```python
import torch

def _softmax(x, axis=-1):
    return torch.softmax(x, dim=axis)

def _gelu(x):
    return torch.nn.functional.gelu(x, approximate='tanh')

def _silu(x):
    return torch.nn.functional.silu(x)

def _sigmoid(x):
    return torch.sigmoid(x)

def _layernorm(x, axis=-1, eps=1e-05):
    m = x.mean(dim=axis, keepdim=True)
    v = x.var(dim=axis, keepdim=True, unbiased=False)
    return (x - m) / torch.sqrt(v + eps)

def _scatter_add(tgt, idx, src, axis=0):
    return tgt.clone().index_add_(axis, idx, src)

def _segment_sum(src, seg, n):
    out = torch.zeros((n,) + src.shape[1:], dtype=src.dtype)
    return out.index_add_(0, seg, src)

def _pad(x, pw):
    flat = tuple((v for pair in reversed(pw) for v in pair))
    return torch.nn.functional.pad(x, flat)
kernel_name = 'recurrent_scan__memory_aug_recurrent_mem_tr__glu_gated_swiglu__prompt'

def setup_inputs():

    _w = lambda a: (lambda t: t.to(torch.bfloat16) if t.is_floating_point() else t)(torch.as_tensor(a))

    def _A_setup():
        B, S, Dm = (1, 2048, 640)
        H, Dh = (32, 128)
        M, seg = (8, 32)
        seg = min(seg, S)
        S = S // seg * seg
        return {'x': _w((lambda *s: torch.randn(*s, dtype=torch.bfloat16) * 0.1)(B, S, Dm)), 'mem0': _w((lambda *s: torch.randn(*s, dtype=torch.bfloat16) * 1.6)(B, M, Dm)), 'Wq': _w((lambda *s: torch.randn(*s, dtype=torch.bfloat16) * 0.8)(Dm, H, Dh) * Dm ** (-0.5)), 'Wk': _w((lambda *s: torch.randn(*s, dtype=torch.bfloat16) * 0.8)(Dm, H, Dh) * Dm ** (-0.5)), 'Wv': _w((lambda *s: torch.randn(*s, dtype=torch.bfloat16) * 1.6)(Dm, H, Dh) * Dm ** (-0.5)), 'Wo': _w((lambda *s: torch.randn(*s, dtype=torch.bfloat16) * 1.6)(H, Dh, Dm) * (H * Dh) ** (-0.5)), 'seg_len': seg}
    _A_in = _A_setup()

    def _B_setup():
        B, S, D, F = (1, 2048, 640, 1728)
        return {'x': _w((lambda *s: torch.randn(*s, dtype=torch.bfloat16) * 0.1)(B, S, D)), 'w1': _w((lambda *s: torch.randn(*s, dtype=torch.bfloat16) * 0.4)(D, F) * (2.0 / D) ** 0.5), 'w3': _w((lambda *s: torch.randn(*s, dtype=torch.bfloat16) * 0.4)(D, F) * (2.0 / D) ** 0.5), 'w2': _w((lambda *s: torch.randn(*s, dtype=torch.bfloat16) * 0.4)(F, D) * (2.0 / F) ** 0.5)}
    _B_in = _B_setup()
    return {'A_x': _A_in['x'], 'A_mem0': _A_in['mem0'], 'A_Wq': _A_in['Wq'], 'A_Wk': _A_in['Wk'], 'A_Wv': _A_in['Wv'], 'A_Wo': _A_in['Wo'], 'A_seg_len': _A_in['seg_len'], 'B_x': _B_in['x'], 'B_w1': _B_in['w1'], 'B_w3': _B_in['w3'], 'B_w2': _B_in['w2']}

def reference(A_x, A_mem0, A_Wq, A_Wk, A_Wv, A_Wo, A_seg_len, B_x, B_w1, B_w3, B_w2):

    def _A_ref(x, mem0, Wq, Wk, Wv, Wo, seg_len):
        B, S, Dm = x.shape
        H, Dh = (Wq.shape[1], Wq.shape[2])
        M = mem0.shape[1]
        scale = Dh ** (-0.5)
        n_seg = S // seg_len
        L = M + seg_len
        idx = torch.arange(L)
        mask = (idx[:, None] < M) | (idx[:, None] >= idx[None, :])
        mem = mem0
        outs = []
        for s in range(n_seg):
            xs = x[:, s * seg_len:(s + 1) * seg_len, :].clone()
            h = torch.concatenate([mem, xs], axis=1)
            q = torch.einsum('btd,dhe->bhte', h, Wq)
            k = torch.einsum('btd,dhe->bhte', h, Wk)
            v = torch.einsum('btd,dhe->bhte', h, Wv)
            scores = torch.einsum('bhqe,bhke->bhqk', q, k) * scale
            scores = torch.where(mask[None, None], scores, -1000000000.0)
            p = _softmax(scores, axis=-1)
            o = torch.einsum('bhqk,bhke->bhqe', p, v)
            o = torch.einsum('bhte,hed->btd', o, Wo)
            mem = o[:, :M, :].clone()
            outs.append(o[:, M:, :])
        return torch.concatenate(outs, axis=1)

    def _B_ref(x, w1, w3, w2):
        gate = torch.einsum('bsd,df->bsf', x, w1)
        up = torch.einsum('bsd,df->bsf', x, w3)
        h = _silu(gate) * up
        out = torch.einsum('bsf,fd->bsd', h, w2)
        return out
    x = A_x
    xn = _layernorm(x, axis=-1)
    s = _A_ref(xn, A_mem0, A_Wq, A_Wk, A_Wv, A_Wo, A_seg_len)
    g = _silu(_B_ref(xn, B_w1, B_w3, B_w2))
    return x + s * g
```

```python
class Asm:
    def __init__(self):
        self.lines = []
        self._lab = 0
    def e(self, s):
        self.lines.append("    " + s)
    def c(self, s):
        self.lines.append("    ; " + s)
    def label(self, name):
        self.lines.append(name + ":")
    def newlabel(self, base="L"):
        self._lab += 1
        return "%s_%d" % (base, self._lab)
    def raw(self, s):
        self.lines.append(s)
    def text(self):
        return "\n".join(self.lines) + "\n"

def vr(a, n=1):
    return "v%d" % a if n == 1 else "v[%d:%d]" % (a, a + n - 1)
def ar(a, n=1):
    return "a%d" % a if n == 1 else "a[%d:%d]" % (a, a + n - 1)
def sr(a, n=1):
    return "s%d" % a if n == 1 else "s[%d:%d]" % (a, a + n - 1)
def R(a, n=1):
    if a < 256:
        assert a + n <= 256
        return vr(a, n)
    return ar(a - 256, n)

def kernel_header(A, name):
    A.raw(".globl %s" % name)
    A.raw(".p2align 8")
    A.raw(".type %s,@function" % name)
    A.label(name)

def kernel_desc(name, vgpr, sgpr, accum, wgy=False):
    s = ".amdhsa_kernel %s\n" % name
    s += "  .amdhsa_next_free_vgpr %d\n" % vgpr
    s += "  .amdhsa_next_free_sgpr %d\n" % sgpr
    s += "  .amdhsa_accum_offset %d\n" % accum
    s += "  .amdhsa_group_segment_fixed_size 0\n"
    s += "  .amdhsa_kernarg_size 112\n"
    s += "  .amdhsa_user_sgpr_count 2\n"
    s += "  .amdhsa_user_sgpr_kernarg_segment_ptr 1\n"
    s += "  .amdhsa_system_sgpr_workgroup_id_x 1\n"
    if wgy:
        s += "  .amdhsa_system_sgpr_workgroup_id_y 1\n"
    s += ".end_amdhsa_kernel\n"
    return s
```

```python
from asmlib import *
from layout import *
from gen_g1 import srd
MF32 = "v_mfma_f32_16x16x32_bf16"
MF16 = "v_mfma_f32_16x16x16_bf16"

def emit_att_setup(A):
    e = A.e
    e("v_lshlrev_b32 v1, 4, v0"); e("v_lshlrev_b32 v2, 2, v0")
    e("v_and_b32 v3, 15, v0"); e("v_lshrrev_b32 v8, 4, v0"); e("v_lshlrev_b32 v8, 2, v8")
    for r in range(4):
        e("v_add_u32 v9, %d, v8" % r); e("v_cmp_gt_u32 s[%d:%d], v9, v3" % (20 + 2 * r, 21 + 2 * r))
    for i in range(4): e("v_mov_b32 v%d, 0x3f803f80" % (4 + i))
    e("s_mov_b32 s51, 0x3e0293ee")
    e("v_mov_b32 v3, 0xf149f2ca")

def emit_att(A, ldsc=""):
    e = A.e
    Q, K, X, V, VM, S0, S1, S2, P1, P0, LS, O = 16, 48, 80, 96, 128, 144, 148, 152, 156, 160, 164, 48
    e("s_lshl_b32 s33, s30, 13")
    e("s_add_u32 s34, s33, 0x%x" % QF_OFF); e("s_add_u32 s35, s34, 4096")
    e("s_add_u32 s36, s33, 0x%x" % KF_OFF); e("s_add_u32 s37, s36, 4096")
    e("s_add_u32 s38, s33, 0x%x" % VF_OFF); e("s_add_u32 s39, s38, 4096")
    e("s_lshr_b32 s40, s33, 1"); e("s_add_u32 s40, s40, 0x%x" % XF_OFF)
    e("s_lshr_b32 s41, s33, 2"); e("s_add_u32 s41, s41, 0x%x" % VM_OFF)
    for i in range(8): e("buffer_load_dwordx4 v[%d:%d], v1, s[4:7], s%d offen offset:%d%s" % (Q + 4 * i, Q + 4 * i + 3, 34 + (i >> 2), 1024 * (i & 3), ldsc))
    for i in range(4): e("buffer_load_dwordx4 v[%d:%d], v1, s[4:7], s40 offen offset:%d%s" % (X + 4 * i, X + 4 * i + 3, 1024 * i, ldsc))
    for i in range(8): e("buffer_load_dwordx4 v[%d:%d], v1, s[4:7], s%d offen offset:%d%s" % (K + 4 * i, K + 4 * i + 3, 36 + (i >> 2), 1024 * (i & 3), ldsc))
    for i in range(8): e("buffer_load_dword v%d, v2, s[4:7], s41 offen offset:%d%s" % (VM + 2 * i, 256 * i, ldsc))
    for i in range(8): e("buffer_load_dwordx4 v[%d:%d], v1, s[4:7], s%d offen offset:%d%s" % (V + 4 * i, V + 4 * i + 3, 38 + (i >> 2), 1024 * (i & 3), ldsc))
    for i in range(8): e("v_mov_b32 v%d, 0" % (VM + 2 * i + 1))
    e("s_lshr_b32 s42, s30, 5"); e("s_lshl_b32 s42, s42, 18"); e("s_and_b32 s43, s30, 31"); e("s_lshl_b32 s43, s43, 12"); e("s_add_u32 s42, s42, s43"); e("s_add_u32 s42, s42, 0x%x" % O_OFF)
    e("s_add_u32 s43, s42, 0x20000")
    e("s_waitcnt vmcnt(16)")
    PP = {}
    for tq in range(2):
        s0, s1, s2 = (S0, S1, S2) if tq == 1 else (168, 172, None)
        for ks in range(4): e("%s %s, %s, %s, %s" % (MF32, vr(s0, 4), vr(X + 4 * ks, 4), vr(Q + 16 * tq + 4 * ks, 4), "0" if ks == 0 else vr(s0, 4)))
        for ks in range(4): e("%s %s, %s, %s, %s" % (MF32, vr(s1, 4), vr(K + 4 * ks, 4), vr(Q + 16 * tq + 4 * ks, 4), "0" if ks == 0 else vr(s1, 4)))
        if tq == 1:
            for ks in range(4): e("%s %s, %s, %s, %s" % (MF32, vr(s2, 4), vr(K + 16 + 4 * ks, 4), vr(Q + 16 + 4 * ks, 4), "0" if ks == 0 else vr(s2, 4)))
    for tq in range(2):
        s0, s1, s2 = (S0, S1, S2) if tq == 1 else (168, 172, None)
        p1, p0 = (P1, P0) if tq == 1 else (8, 12)
        md = s1 if tq == 0 else s2
        if tq == 1: e("s_nop 4")
        for r in range(4): e("v_cndmask_b32 v%d, v%d, v3, s[%d:%d]" % (md + r, md + r, 20 + 2 * r, 21 + 2 * r))
        vals = [s0, s0 + 1] + [s1 + i for i in range(4)] + ([s2 + i for i in range(4)] if tq else [])
        m, t = s0 + 2, s0 + 3
        e("v_max3_f32 v%d, v%d, v%d, v%d" % (m, vals[0], vals[1], vals[2]))
        rest = vals[3:]
        while len(rest) >= 2:
            e("v_max3_f32 v%d, v%d, v%d, v%d" % (m, m, rest[0], rest[1])); rest = rest[2:]
        if rest: e("v_max_f32 v%d, v%d, v%d" % (m, m, rest[0]))
        for sw in ("v_permlane16_swap_b32", "v_permlane32_swap_b32"):
            e("v_mov_b32 v%d, v%d" % (t, m)); e("s_nop 1"); e("%s v%d, v%d" % (sw, m, t)); e("v_max_f32 v%d, v%d, v%d" % (m, m, t))
        e("v_mul_f32 v%d, s51, v%d" % (m, m))
        for v in vals: e("v_fma_f32 v%d, v%d, s51, -v%d" % (v, v, m))
        for v in vals: e("v_exp_f32 v%d, v%d" % (v, v))
        e("v_mov_b32 v%d, 0" % (p0 + 1))
        e("v_cvt_pk_bf16_f32 v%d, v%d, v%d" % (p0, s0, s0 + 1))
        e("v_cvt_pk_bf16_f32 v%d, v%d, v%d" % (p1, s1, s1 + 1)); e("v_cvt_pk_bf16_f32 v%d, v%d, v%d" % (p1 + 1, s1 + 2, s1 + 3))
        if tq:
            e("v_cvt_pk_bf16_f32 v%d, v%d, v%d" % (p1 + 2, s2, s2 + 1)); e("v_cvt_pk_bf16_f32 v%d, v%d, v%d" % (p1 + 3, s2 + 2, s2 + 3))
        else:
            e("v_mov_b32 v%d, 0" % (p1 + 2)); e("v_mov_b32 v%d, 0" % (p1 + 3))
    e("s_waitcnt vmcnt(0)")
    for tq in range(2):
        p1, p0 = (P1, P0) if tq == 1 else (8, 12)
        o = 16 + 32 * tq
        e("%s %s, %s, %s, 0" % (MF16, vr(LS, 4), vr(4, 2), vr(p0, 2)))
        e("%s %s, %s, %s, %s" % (MF32, vr(LS, 4), vr(4, 4), vr(p1, 4), vr(LS, 4)))
        for et in range(8): e("%s %s, %s, %s, 0" % (MF16, vr(o + 4 * et, 4), vr(VM + 2 * et, 2), vr(p0, 2)))
        e("v_rcp_f32 v%d, v%d" % (14, LS))
        for et in range(8): e("%s %s, %s, %s, %s" % (MF32, vr(o + 4 * et, 4), vr(V + 4 * et, 4), vr(p1, 4), vr(o + 4 * et, 4)))
        e("s_nop 1")
        for ks in range(4):
            b = o + 8 * ks
            if ks == 3: e("s_nop 0")
            for i in range(8): e("v_mul_f32 v%d, v%d, v14" % (b + i, b + i))
            for i in range(4): e("v_cvt_pk_bf16_f32 v%d, v%d, v%d" % (b + i, b + 2 * i, b + 2 * i + 1))
            e("buffer_store_dwordx4 v[%d:%d], v1, s[4:7], s%d offen offset:%d" % (b, b + 3, 42 + tq, 1024 * ks))

def emit_att_kernel(A):
    e = A.e
    kernel_header(A, "att_kernel")
    e("s_cmp_ge_u32 s2, 512"); e("s_cbranch_scc1 L_att_end")
    e("s_load_dwordx2 s[60:61], s[0:1], 104")
    e("v_lshrrev_b32 v1, 6, v0"); e("v_and_b32 v0, 63, v0"); e("v_readfirstlane_b32 s28, v1")
    e("s_waitcnt lgkmcnt(0)")
    srd(e, 4, 60, WS_BYTES)
    emit_att_setup(A)
    e("s_lshl_b32 s30, s2, 2"); e("s_add_u32 s30, s30, s28")
    emit_att(A)
    A.label("L_att_end")
    e("s_endpgm")
```

```python
from asmlib import *
from layout import *
MF32 = "v_mfma_f32_16x16x32_bf16"

def srd(e, d, lo, n):
    e("s_mov_b32 s%d, s%d" % (d, lo)); e("s_mov_b32 s%d, s%d" % (d + 1, lo + 1)); e("s_mov_b32 s%d, 0x%x" % (d + 2, n)); e("s_mov_b32 s%d, 0x20000" % (d + 3))

def emit_init(A):
    e = A.e
    e("s_lshl_b32 s33, s2, 13"); e("s_add_u32 s33, s33, 0x%x" % ML_OFF)
    e("v_lshlrev_b32 v1, 4, v0")
    for i in range(4): e("v_mov_b32 v%d, -1" % (4 + i))
    for i in range(4): e("v_mov_b32 v%d, -1" % (8 + i))
    e("s_and_b32 s34, s2, 63"); e("s_cmp_lg_u32 s34, 0"); e("s_cbranch_scc1 L_init_st")
    e("s_bfe_u32 s34, s2, 0x10006"); e("s_mul_i32 s34, s34, 640")
    for half in range(2):
        d = 4 + 4 * half
        e("v_bfe_u32 v2, v0, 1, 3"); e("v_mul_u32_u24 v2, 1280, v2")
        e("v_bfe_u32 v3, v0, 4, 2"); e("v_lshl_add_u32 v2, v3, 3, v2")
        e("v_and_b32 v3, 1, v0"); e("v_lshl_add_u32 v2, v3, 2, v2")
        if half == 0:
            e("v_lshrrev_b32 v3, 6, v0"); e("v_lshl_add_u32 v2, v3, 7, v2")
        else:
            e("v_add_u32 v2, 512, v2")
            e("v_cmp_gt_u32 vcc, 64, v0"); e("s_and_saveexec_b64 s[36:37], vcc"); e("s_cbranch_execz L_init_r")
        for t in range(4): e("buffer_load_dword v%d, v2, s[40:43], s34 offen offset:%d" % (12 + t, 32 * t))
        e("s_mov_b32 s35, 0x05040100"); e("s_mov_b32 s38, 0x07060302")
        e("s_waitcnt vmcnt(0)")
        e("v_perm_b32 v%d, v13, v12, s35" % d); e("v_perm_b32 v%d, v15, v14, s35" % (d + 1))
        e("v_perm_b32 v%d, v13, v12, s38" % (d + 2)); e("v_perm_b32 v%d, v15, v14, s38" % (d + 3))
        for i in range(4): e("v_min_u32 v%d, -2, v%d" % (d + i, d + i))
    A.label("L_init_r")
    e("s_mov_b64 exec, -1")
    A.label("L_init_st")
    e("buffer_store_dwordx4 v[4:7], v1, s[4:7], s33 offen")
    e("s_add_u32 s33, s33, 4096")
    e("buffer_store_dwordx4 v[8:11], v1, s[4:7], s33 offen")
    e("s_lshl_b32 s33, s2, 11"); e("s_add_u32 s33, s33, 0x%x" % PB_OFF)
    e("v_lshlrev_b32 v1, 3, v0"); e("v_mov_b32 v2, 0"); e("v_mov_b32 v3, 0")
    e("buffer_store_dwordx2 v[2:3], v1, s[4:7], s33 offen")

XA0 = 96
def XA(tt, kk): return XA0 + (tt * 20 + kk) * 4
BB, ACC, ET = 16, 48, 80
def acc(T, tt): return ACC + (T * 2 + tt) * 4

def emit_g1(A, NPART=16, NCG=248):
    e = A.e
    e("v_lshlrev_b32 v1, 4, v0")
    e("v_lshrrev_b32 v2, 2, v0")
    e("v_lshrrev_b32 v3, 5, v0"); e("v_lshlrev_b32 v3, 1, v3"); e("v_and_b32 v4, 3, v0"); e("v_xor_b32 v3, v3, v4"); e("v_lshlrev_b32 v3, 4, v3")
    e("v_lshrrev_b32 v5, 4, v0"); e("v_bfe_u32 v6, v0, 2, 2"); e("v_lshl_add_u32 v6, v5, 3, v6"); e("v_lshlrev_b32 v6, 6, v6")
    e("v_lshl_add_u32 v6, v4, 3, v6"); e("v_and_b32 v5, 1, v5"); e("v_lshl_add_u32 v6, v5, 5, v6")
    e("v_xor_b32 v7, 32, v6"); e("v_add_u32 v8, 0x10000, v6"); e("v_add_u32 v9, 0x10000, v7")
    e("s_lshr_b32 s44, s26, 1")
    e("s_and_b32 s45, s26, 1"); e("s_lshl_b32 s45, s45, 6")
    e("s_lshl_b32 s46, s26, 12")
    e("s_mov_b32 s15, 0x20000")
    def setup_dma():
        e("s_lshr_b32 s33, s30, 6"); e("s_and_b32 s34, s30, 63")
        e("s_cmp_eq_u32 s33, 0"); e("s_cselect_b64 s[12:13], s[18:19], s[20:21]")
        e("s_cmp_eq_u32 s33, 2"); e("s_cselect_b64 s[12:13], s[16:17], s[12:13]")
        e("s_cmp_eq_u32 s44, 0"); e("s_cselect_b64 s[36:37], s[22:23], s[24:25]")
        e("s_lshl_b32 s35, s34, 1"); e("s_add_u32 s35, s35, s44")
        e("s_cmp_eq_u32 s33, 3")
        e("s_cselect_b64 s[12:13], s[36:37], s[12:13]")
        e("s_mov_b32 s31, 8192"); e("s_cmov_b32 s31, 3456")
        e("s_mov_b32 s14, 5242880"); e("s_cmov_b32 s14, 2211840")
        e("s_cselect_b32 s35, s34, s35"); e("s_lshl_b32 s35, s35, 6")
        e("s_cmp_ge_u32 s30, %d" % NCG); e("s_cselect_b32 s14, 0, s14")
        e("s_mul_i32 s32, s45, s31"); e("s_add_u32 s32, s32, s35")
        e("v_mad_u32_u24 v10, v2, s31, v3")
    def dma(ks5):
        for i in range(4):
            e("s_add_u32 m0, s46, %d" % (ks5 * 16384 + i * 1024))
            e("s_mul_i32 s33, s31, %d" % (128 * ks5 + 16 * i)); e("s_add_u32 s33, s33, s32")
            e("buffer_load_dwordx4 v10, s[12:15], s33 offen lds")
    e("s_mov_b32 s29, s28"); e("s_mov_b32 s30, s28")
    setup_dma()
    for k in range(4): dma(k)
    e("s_lshl_b32 s33, s27, 2"); e("s_add_u32 s47, s33, s26")
    e("s_mul_i32 s33, s47, 40960")
    e("v_and_b32 v4, 15, v0"); e("v_mul_u32_u24 v4, 1280, v4"); e("v_lshrrev_b32 v5, 4, v0"); e("v_lshl_add_u32 v4, v5, 4, v4")
    e("s_add_u32 s34, s33, 20480")
    for tt in range(2):
        for kk in range(20): e("buffer_load_dwordx4 v[%d:%d], v4, s[8:11], s%d offen offset:%d" % (XA(tt, kk), XA(tt, kk) + 3, 33 + tt, 64 * kk))
    e("v_mov_b32 v11, 0x3f803f80")
    for tt in range(2):
        e("s_waitcnt vmcnt(%d)" % (20 if tt == 0 else 0))
        for r in range(4): e("v_mov_b32 v%d, 0" % (ET + r))
        for i in range(80):
            r = XA(tt, 0) + i
            e("v_dot2c_f32_bf16 v%d, v%d, v11" % (ET + (i & 1), r)); e("v_dot2c_f32_bf16 v%d, v%d, v%d" % (ET + 2 + (i & 1), r, r))
        e("s_nop 2")
        e("v_add_f32 v%d, v%d, v%d" % (ET, ET, ET + 1)); e("v_add_f32 v%d, v%d, v%d" % (ET + 2, ET + 2, ET + 3))
        for sw in ("v_permlane16_swap_b32", "v_permlane32_swap_b32"):
            e("v_mov_b32 v%d, v%d" % (ET + 1, ET)); e("v_mov_b32 v%d, v%d" % (ET + 3, ET + 2)); e("s_nop 1")
            e("%s v%d, v%d" % (sw, ET, ET + 1)); e("%s v%d, v%d" % (sw, ET + 2, ET + 3))
            e("v_add_f32 v%d, v%d, v%d" % (ET, ET, ET + 1)); e("v_add_f32 v%d, v%d, v%d" % (ET + 2, ET + 2, ET + 3))
        e("v_mul_f32 v%d, 0x3acccccd, v%d" % (ET, ET))
        e("v_mul_f32 v%d, 0x3acccccd, v%d" % (ET + 2, ET + 2))
        e("v_fma_f32 v%d, -v%d, v%d, v%d" % (ET + 2, ET, ET, ET + 2))
        e("v_max_f32 v%d, 0, v%d" % (ET + 2, ET + 2)); e("v_add_f32 v%d, 0x3727c5ac, v%d" % (ET + 2, ET + 2))
        e("v_rsq_f32 v%d, v%d" % (ET + 2, ET + 2)); e("s_nop 0")
        e("v_mul_f32 v%d, v%d, v%d" % (ET, ET, ET + 2))
        for i in range(80):
            r = XA(tt, 0) + i; a = ET + 4 + 2 * (i & 3)
            e("v_lshlrev_b32 v%d, 16, v%d" % (a, r)); e("v_and_b32 v%d, 0xffff0000, v%d" % (a + 1, r))
            e("v_fma_f32 v%d, v%d, v%d, -v%d" % (a, a, ET + 2, ET)); e("v_fma_f32 v%d, v%d, v%d, -v%d" % (a + 1, a + 1, ET + 2, ET))
            e("v_cvt_pk_bf16_f32 v%d, v%d, v%d" % (r, a, a + 1))
    e("s_lshl_b32 s48, s47, 18")
    e("s_mul_i32 s49, s47, %d" % (2 * 56 * 1024)); e("s_add_u32 s49, s49, 0x%x" % H_OFF)
    e("s_mov_b32 s50, 0xbfb8aa3b")
    e("s_barrier")
    PD = 6
    def rd(f):
        f %= 80
        ks5, ks, T = f >> 4, (f >> 2) & 3, f & 3
        off = ks5 * 16384 + (T >> 1) * 8192 + ks * 2048
        base = 6 + (T & 1)
        if off >= 65536: off -= 65536; base += 2
        b = BB + 4 * (f & 7)
        for a in range(2): e("ds_read_b64_tr_b16 v[%d:%d], v%d offset:%d" % (b + 2 * a, b + 2 * a + 1, base, off + 256 * a))
    for f in range(PD): rd(f)
    A.label("L_g1_loop")
    e("s_lshr_b32 s33, s29, 6"); e("s_cmp_eq_u32 s33, 1"); e("s_cbranch_scc1 L_g1_bodyV")
    for kind in ("N", "V"):
        A.label("L_g1_body" + kind)
        for f in range(80):
            ks5, ks, T = f >> 4, (f >> 2) & 3, f & 3
            if f & 15 == 0:
                e("s_waitcnt vmcnt(8)"); e("s_barrier")
                if ks5 == 1:
                    e("s_add_u32 s30, s30, %d" % NPART); setup_dma()
                dma((ks5 + 4) % 5)
            rd(f + PD)
            e("s_waitcnt lgkmcnt(%d)" % (2 * PD))
            b = vr(BB + 4 * (f & 7), 4)
            for tt in range(2):
                x = vr(XA(tt, 4 * ks5 + ks), 4); d = vr(acc(T, tt), 4)
                c = "0" if (ks5 == 0 and ks == 0) else d
                if kind == "N": e("%s %s, %s, %s, %s" % (MF32, d, b, x, c))
                else: e("%s %s, %s, %s, %s" % (MF32, d, x, b, c))
        e("s_and_b32 s34, s29, 63")
        e("s_lshr_b32 s35, s34, 1"); e("s_lshl_b32 s35, s35, 13"); e("s_add_u32 s35, s35, s48")
        e("s_and_b32 s36, s34, 1")
        if kind == "V":
            e("s_lshl_b32 s36, s36, 12"); e("s_add_u32 s35, s35, s36"); e("s_add_u32 s35, s35, 0x%x" % VF_OFF)
            e("s_nop 1")
            for T in range(4):
                o = ET + 4 * T
                for tt in range(2):
                    a = acc(T, tt)
                    e("v_cvt_pk_bf16_f32 v%d, v%d, v%d" % (o + 2 * tt, a, a + 1)); e("v_cvt_pk_bf16_f32 v%d, v%d, v%d" % (o + 2 * tt + 1, a + 2, a + 3))
                e("buffer_store_dwordx4 v[%d:%d], v1, s[4:7], s35 offen offset:%d" % (o, o + 3, 1024 * T))
        else:
            e("s_lshr_b32 s33, s29, 6"); e("s_cmp_eq_u32 s33, 3"); e("s_cbranch_scc1 L_g1_epiF")
            e("s_lshl_b32 s36, s36, 11"); e("s_add_u32 s35, s35, s36")
            e("s_cmp_eq_u32 s33, 0"); e("s_mov_b32 s36, 0x%x" % QF_OFF); e("s_cmov_b32 s36, 0x%x" % KF_OFF); e("s_add_u32 s35, s35, s36"); e("s_add_u32 s36, s35, 4096")
            for u in range(2):
                for tt in range(2):
                    o = ET + 4 * (2 * u + tt)
                    for i in range(2):
                        a = acc(2 * u + i, tt)
                        e("v_cvt_pk_bf16_f32 v%d, v%d, v%d" % (o + 2 * i, a, a + 1)); e("v_cvt_pk_bf16_f32 v%d, v%d, v%d" % (o + 2 * i + 1, a + 2, a + 3))
                    e("buffer_store_dwordx4 v[%d:%d], v1, s[4:7], s%d offen offset:%d" % (o, o + 3, 35 + tt, 1024 * u))
            e("s_branch L_g1_next")
            A.label("L_g1_epiF")
            e("s_lshl_b32 s35, s34, 10"); e("s_add_u32 s35, s35, s49"); e("s_add_u32 s36, s35, %d" % (56 * 1024))
            for tt in range(2):
                gs = [acc(T, tt) + r for T in range(2) for r in range(4)]
                us = [acc(T + 2, tt) + r for T in range(2) for r in range(4)]
                for i in range(8): e("v_mul_f32 v%d, s50, v%d" % (ET + i, gs[i]))
                for i in range(8): e("v_exp_f32 v%d, v%d" % (ET + i, ET + i))
                for i in range(8): e("v_add_f32 v%d, 1.0, v%d" % (ET + i, ET + i))
                for i in range(8): e("v_rcp_f32 v%d, v%d" % (ET + i, ET + i))
                for i in range(8): e("v_mul_f32 v%d, v%d, v%d" % (gs[i], gs[i], us[i]))
                for i in range(8): e("v_mul_f32 v%d, v%d, v%d" % (gs[i], gs[i], ET + i))
                o = ET + 8 + 4 * tt
                for i in range(4): e("v_cvt_pk_bf16_f32 v%d, v%d, v%d" % (o + i, gs[2 * i], gs[2 * i + 1]))
                e("buffer_store_dwordx4 v[%d:%d], v1, s[4:7], s%d offen" % (o, o + 3, 35 + tt))
            e("s_branch L_g1_next")
    A.label("L_g1_next")
    e("s_add_u32 s29, s29, %d" % NPART); e("s_cmp_lt_u32 s29, %d" % NCG); e("s_cbranch_scc1 L_g1_loop")
    e("s_waitcnt vmcnt(0) lgkmcnt(0)")

def emit_g1_kernel(A):
    e = A.e
    kernel_header(A, "g1_kernel")
    e("s_cmp_ge_u32 s2, 256"); e("s_cbranch_scc1 L_g1_end")
    e("s_load_dwordx4 s[52:55], s[0:1], 0")
    e("s_load_dwordx4 s[16:19], s[0:1], 16")
    e("s_load_dwordx2 s[20:21], s[0:1], 32")
    e("s_load_dwordx4 s[56:59], s[0:1], 64")
    e("s_load_dwordx2 s[60:61], s[0:1], 104")
    e("v_lshrrev_b32 v1, 6, v0"); e("s_nop 0"); e("v_readfirstlane_b32 s26, v1")
    e("s_waitcnt lgkmcnt(0)")
    e("s_mov_b64 s[22:23], s[56:57]"); e("s_mov_b64 s[24:25], s[58:59]")
    srd(e, 4, 60, WS_BYTES); srd(e, 8, 52, 2621440); srd(e, 40, 54, 10240)
    emit_init(A)
    e("v_and_b32 v0, 63, v0")
    e("s_and_b32 s28, s2, 7"); e("s_lshr_b32 s33, s2, 7"); e("s_lshl_b32 s33, s33, 3"); e("s_add_u32 s28, s28, s33")
    e("s_bfe_u32 s27, s2, 0x40003")
    emit_g1(A)
    A.label("L_g1_end")
    e("s_endpgm")

if __name__ == "__main__":
    A = Asm()
    A.raw("; @launch kernel=g1_kernel grid=(256,1,1) block=(256,1,1) lds=81920")
    A.raw('.amdgcn_target "amdgcn-amd-amdhsa--gfx950"')
    A.raw(".text")
    emit_g1_kernel(A)
    A.raw('.section .rodata,"a"'); A.raw(".p2align 6")
    A.raw(kernel_desc("g1_kernel", 256, 80, 256))
    open("g1_test.s", "w").write(A.text())
```

```python
from asmlib import *
from layout import *
from gen_g1 import srd
MF32 = "v_mfma_f32_16x16x32_bf16"
HKS = 56
BB, ACC, GT, AC = 16, 48, 80, 112
def acc(T, tt): return ACC + (T * 2 + tt) * 4
def act(buf, ks, tt): return AC + ((buf * 4 + ks) * 2 + tt) * 4

def emit_g2(A):
    e = A.e
    e("v_lshlrev_b32 v1, 4, v0")
    e("v_lshrrev_b32 v2, 2, v0"); e("v_mul_u32_u24 v2, 1280, v2")
    e("v_bfe_u32 v3, v0, 4, 1"); e("v_lshlrev_b32 v3, 1, v3"); e("v_and_b32 v4, 3, v0"); e("v_xor_b32 v3, v3, v4"); e("v_lshl_add_u32 v10, v3, 4, v2")
    e("v_lshrrev_b32 v6, 2, v0"); e("v_lshlrev_b32 v6, 6, v6"); e("v_lshl_add_u32 v6, v4, 3, v6"); e("v_bfe_u32 v5, v0, 4, 1"); e("v_lshl_add_u32 v6, v5, 5, v6")
    e("v_xor_b32 v7, 32, v6"); e("v_xor_b32 v8, 0x8000, v6"); e("v_xor_b32 v9, 0x8000, v7")
    e("s_lshl_b32 s46, s26, 12")
    e("s_lshl_b32 s32, s28, 7"); e("s_lshr_b32 s33, s26, 1"); e("s_lshl_b32 s33, s33, 6"); e("s_add_u32 s32, s32, s33")
    e("s_and_b32 s33, s26, 1"); e("s_mul_i32 s33, s33, 81920"); e("s_add_u32 s44, s32, s33")
    e("s_mov_b32 s32, s44")
    e("s_mov_b64 s[12:13], s[20:21]"); e("s_mov_b32 s14, %d" % (1728 * 1280)); e("s_mov_b32 s15, 0x20000")
    e("s_lshl_b32 s33, s27, 2"); e("s_add_u32 s47, s33, s26")
    e("s_mul_i32 s34, s47, %d" % (2 * HKS * 1024)); e("s_add_u32 s34, s34, 0x%x" % H_OFF); e("s_add_u32 s35, s34, %d" % (HKS * 1024))
    e("s_lshl_b32 s36, s47, 18"); e("s_add_u32 s36, s36, 0x%x" % O_OFF); e("s_add_u32 s37, s36, 0x20000")
    e("s_mov_b32 s30, 0")
    e("s_mov_b32 s31, 0")
    e("s_mov_b32 s38, 0")
    e("s_mov_b32 s50, 0xbfb8aa3b")
    def dma():
        e("s_cmp_eq_u32 s30, 14")
        e("s_cselect_b64 s[12:13], s[22:23], s[12:13]"); e("s_cmov_b32 s14, 5242880"); e("s_cselect_b32 s32, s44, s32")
        e("s_add_u32 s39, s38, s46")
        for i in range(4):
            e("s_add_u32 m0, s39, %d" % (i * 1024))
            e("s_add_u32 s33, s32, %d" % (16 * i * 1280))
            e("buffer_load_dwordx4 v10, s[12:15], s33 offen lds")
        e("s_add_u32 s32, s32, %d" % (128 * 1280)); e("s_add_u32 s30, s30, 1")
        e("s_add_u32 s38, s38, 16384"); e("s_and_b32 s38, s38, 0xffff")
    def actld(buf, ks):
        if ks == 0:
            e("s_cmp_eq_u32 s31, 14"); e("s_cselect_b64 s[34:35], s[36:37], s[34:35]")
        for tt in range(2): e("buffer_load_dwordx4 %s, v1, s[4:7], s%d offen offset:%d" % (vr(act(buf, ks, tt), 4), 34 + tt, 1024 * ks))
        if ks == 3:
            e("s_add_u32 s34, s34, 4096"); e("s_add_u32 s35, s35, 4096"); e("s_add_u32 s31, s31, 1")
    for _ in range(3): dma()
    for buf in range(2):
        for ks in range(4): actld(buf, ks)
    for r in range(32): e("v_mov_b32 v%d, 0" % (ACC + r))
    e("s_waitcnt vmcnt(0)"); e("s_barrier")
    PD = 6
    def rd(f):
        alt = f >= 32; f %= 32
        st, ks, T = f >> 4, (f >> 2) & 3, f & 3
        off = st * 16384 + (T >> 1) * 8192 + ks * 2048
        base = 6 + (T & 1) + (2 if alt else 0)
        b = BB + 4 * (f & 7)
        for a in range(2): e("ds_read_b64_tr_b16 v[%d:%d], v%d offset:%d" % (b + 2 * a, b + 2 * a + 1, base, off + 1024 * a))
    for f in range(PD): rd(f)
    e("s_mov_b32 s29, 0")
    A.label("L_g2_loop")
    for f in range(32):
        st, ks, T = f >> 4, (f >> 2) & 3, f & 3
        if f & 15 == 0:
            e("s_waitcnt vmcnt(20)"); e("s_barrier"); dma()
        rd(f + PD)
        if T == 0: e("s_waitcnt vmcnt(22) lgkmcnt(%d)" % (2 * PD))
        else: e("s_waitcnt lgkmcnt(%d)" % (2 * PD))
        b = vr(BB + 4 * (f & 7), 4)
        for tt in range(2):
            d = vr(acc(T, tt), 4)
            e("%s %s, %s, %s, %s" % (MF32, d, b, vr(act(st, ks, tt), 4), d))
        if T == 3: actld(st, ks)
    for r in range(6, 10): e("v_xor_b32 v%d, 0x8000, v%d" % (r, r))
    e("s_add_u32 s29, s29, 1")
    e("s_cmp_lg_u32 s29, 7"); e("s_cbranch_scc1 L_g2_nogate")
    e("s_nop 4")
    for h in range(4):
        rs = [ACC + 8 * h + i for i in range(8)]; gs = [GT + 8 * h + i for i in range(8)]
        for i in range(8): e("v_mul_f32 v%d, s50, v%d" % (gs[i], rs[i]))
        for i in range(8): e("v_exp_f32 v%d, v%d" % (gs[i], gs[i]))
        for i in range(8): e("v_add_f32 v%d, 1.0, v%d" % (gs[i], gs[i]))
        for i in range(8): e("v_rcp_f32 v%d, v%d" % (gs[i], gs[i]))
        e("s_nop 0")
        for i in range(8): e("v_mul_f32 v%d, v%d, v%d" % (gs[i], gs[i], rs[i]))
        for i in range(8): e("v_mov_b32 v%d, 0" % rs[i])
    e("s_nop 1")
    A.label("L_g2_nogate")
    e("s_cmp_lt_u32 s29, 23"); e("s_cbranch_scc1 L_g2_loop")
    e("s_waitcnt vmcnt(0) lgkmcnt(0)")
    e("v_and_b32 v2, 15, v0"); e("v_mul_u32_u24 v2, 1280, v2"); e("v_lshrrev_b32 v3, 4, v0"); e("v_lshl_add_u32 v2, v3, 3, v2")
    e("s_mul_i32 s33, s47, 40960"); e("s_lshl_b32 s34, s28, 7"); e("s_add_u32 s33, s33, s34"); e("s_add_u32 s34, s33, 20480")
    for T in range(4):
        for tt in range(2): e("buffer_load_dwordx2 %s, v2, s[8:11], s%d offen offset:%d" % (vr(BB + 2 * (2 * T + tt), 2), 33 + tt, 32 * T))
    e("s_waitcnt vmcnt(0)")
    for T in range(4):
        for tt in range(2):
            xb = BB + 2 * (2 * T + tt); a = acc(T, tt); gq = GT + (a - ACC); t = AC + 4 * (2 * T + tt)
            e("v_lshlrev_b32 v%d, 16, v%d" % (t, xb)); e("v_and_b32 v%d, 0xffff0000, v%d" % (t + 1, xb))
            e("v_lshlrev_b32 v%d, 16, v%d" % (t + 2, xb + 1)); e("v_and_b32 v%d, 0xffff0000, v%d" % (t + 3, xb + 1))
            for i in range(4): e("v_fma_f32 v%d, v%d, v%d, v%d" % (t + i, a + i, gq + i, t + i))
            e("v_cvt_pk_bf16_f32 v%d, v%d, v%d" % (t, t, t + 1)); e("v_cvt_pk_bf16_f32 v%d, v%d, v%d" % (t + 1, t + 2, t + 3))
            e("buffer_store_dwordx2 %s, v2, s[16:19], s%d offen offset:%d" % (vr(t, 2), 33 + tt, 32 * T))

def emit_g2_kernel(A):
    e = A.e
    kernel_header(A, "g2_kernel")
    e("s_cmp_ge_u32 s2, 160"); e("s_cbranch_scc1 L_g2_end")
    e("s_load_dwordx2 s[52:53], s[0:1], 0")
    e("s_load_dwordx2 s[22:23], s[0:1], 40")
    e("s_load_dwordx4 s[56:59], s[0:1], 80")
    e("s_load_dwordx2 s[60:61], s[0:1], 104")
    e("v_lshrrev_b32 v1, 6, v0"); e("v_and_b32 v0, 63, v0"); e("v_readfirstlane_b32 s26, v1")
    e("s_waitcnt lgkmcnt(0)")
    e("s_mov_b64 s[20:21], s[56:57]")
    srd(e, 4, 60, WS_BYTES); srd(e, 8, 52, 2621440); srd(e, 16, 58, 2621440)
    e("s_and_b32 s27, s2, 7"); e("s_lshl_b32 s27, s27, 1"); e("s_bfe_u32 s33, s2, 0x10003"); e("s_add_u32 s27, s27, s33")
    e("s_lshr_b32 s28, s2, 4")
    emit_g2(A)
    A.label("L_g2_end")
    e("s_endpgm")
```

```python
from asmlib import *
from layout import *

SMF = "v_smfmac_f32_16x16x64_bf16"
MF32 = "v_mfma_f32_16x16x32_bf16"
MF16 = "v_mfma_f32_16x16x16_bf16"

SPIN_LIMIT = 100000
R_AT = 0
KX_L, QKX_L, OX_L, MISC_L, AC_L, SEL_L, WV_L = 0, 8192, 12288, 14848, 16384, 26624, 32768
NSLOT = 8
WB = 80
def FR(f): return R(WB + 8 * f, 8)
def FQ(j, T): return 2 * j + T
def FK(j, T):
    assert j != 4
    return 20 + 2 * (j if j < 4 else j - 1) + T
def FV(j, T):
    assert j >= 5
    return 38 + 2 * (j - 5) + T
def FO(t, ks):
    assert t < 3
    return 48 + 2 * t + ks
def AA(j): return 12 + 4 * j
GG, ACQ, ACK, ACV, TMP = 32, 40, 48, 56, 64
D_REM = 0
TRACE_STEP = 40

def emit_rec(A, instr=False, d_first=4, d_red=4, steps=64, exit_label="L_end"):
    e = A.e
    e("s_load_dwordx4 s[52:55], s[0:1], 16")
    e("s_load_dwordx4 s[56:59], s[0:1], 32")
    e("s_load_dwordx4 s[60:63], s[0:1], 96")
    e("v_lshrrev_b32 v11, 6, v0"); e("v_and_b32 v0, 63, v0"); e("v_readfirstlane_b32 s28, v11")
    e("s_waitcnt lgkmcnt(0)")
    for (d, s, n) in ((4, 62, WS_BYTES), (8, 52, 5242880), (12, 54, 5242880), (16, 56, 5242880), (20, 58, 5242880), (24, 60, 256)):
        e("s_mov_b32 s%d, s%d" % (d, s)); e("s_mov_b32 s%d, s%d" % (d + 1, s + 1)); e("s_mov_b32 s%d, 0x%x" % (d + 2, n)); e("s_mov_b32 s%d, 0x20000" % (d + 3))
    e("s_mov_b32 s74, 0")
    e("s_getreg_b32 s52, hwreg(HW_REG_XCC_ID)"); e("s_and_b32 s52, s52, 15")
    e("s_mov_b32 s53, 1")
    e("s_cmp_eq_u32 s52, 0"); e("s_cselect_b32 s54, 0x400, 0"); e("s_add_u32 s53, s53, s54")
    e("s_cmp_eq_u32 s52, 1"); e("s_cselect_b32 s54, 0x100000, 0"); e("s_add_u32 s53, s53, s54")
    e("v_mov_b32 v1, s53"); e("v_mov_b32 v2, 0"); e("v_mov_b32 v3, %d" % MISC_L)
    e("s_cmp_lg_u32 s28, 0"); e("s_cbranch_scc1 L_el_done")
    e("s_mov_b64 exec, 1")
    e("buffer_atomic_add v1, v2, s[24:27], 0 offen sc0 sc1"); e("s_waitcnt vmcnt(0)")
    A.label("L_el_poll")
    e("buffer_load_dword v4, v2, s[24:27], 0 offen sc1"); e("s_waitcnt vmcnt(0)")
    e("v_readfirstlane_b32 s54, v4"); e("s_nop 3")
    e("s_bfe_u32 s55, s54, 0xa000a"); e("s_bfe_u32 s56, s54, 0xa0014"); e("s_min_u32 s55, s55, s56")
    e("s_mov_b32 s57, 0")
    e("s_cmp_ge_u32 s55, 32"); e("s_cbranch_scc1 L_el_dec")
    e("s_mov_b32 s57, 1")
    e("s_and_b32 s55, s54, 0x3ff"); e("s_cmp_ge_u32 s55, 256"); e("s_cbranch_scc1 L_el_dec")
    e("s_add_u32 s74, s74, 1"); e("s_cmp_gt_u32 s74, %d" % SPIN_LIMIT); e("s_cbranch_scc1 L_abort")
    e("s_sleep 2"); e("s_branch L_el_poll")
    A.label("L_el_dec")
    e("v_mov_b32 v4, s57")
    e("ds_write_b32 v3, v1"); e("ds_write_b32 v3, v4 offset:4"); e("s_waitcnt lgkmcnt(0)")
    e("s_mov_b64 exec, -1")
    A.label("L_el_done")
    e("s_barrier")
    e("ds_read_b64 v[4:5], v3"); e("s_waitcnt lgkmcnt(0)")
    e("v_readfirstlane_b32 s54, v4"); e("v_readfirstlane_b32 s31, v5"); e("s_nop 3")
    e("s_barrier")
    e("s_cmp_lg_u32 s31, 0"); e("s_cbranch_scc1 L_el_slow")
    e("s_cmp_ge_u32 s52, 2"); e("s_cbranch_scc1 %s" % exit_label)
    e("s_mov_b32 s29, s52")
    e("s_bfe_u32 s55, s54, 0xa000a"); e("s_bfe_u32 s56, s54, 0xa0014")
    e("s_cmp_eq_u32 s52, 0"); e("s_cselect_b32 s30, s55, s56")
    e("s_cmp_ge_u32 s30, 32"); e("s_cbranch_scc1 %s" % exit_label)
    e("s_branch L_el_role")
    A.label("L_el_slow")
    e("s_and_b32 s55, s54, 0x3ff"); e("s_cmp_ge_u32 s55, 64"); e("s_cbranch_scc1 %s" % exit_label)
    e("s_lshr_b32 s29, s55, 5"); e("s_and_b32 s30, s55, 31")
    A.label("L_el_role")
    e("v_lshlrev_b32 v1, 4, v0")
    e("v_and_b32 v11, 1, v0"); e("v_cmp_eq_u32 vcc, 1, v11"); e("v_mov_b32 v2, 0x4444"); e("v_mov_b32 v11, 0xeeee"); e("v_cndmask_b32 v2, v2, v11, vcc")
    C, G, RR, CP, T0, T1 = 64, 65, 66, 67, 68, 69
    e("v_and_b32 v%d, 15, v0" % C); e("v_lshrrev_b32 v%d, 4, v0" % G)
    e("v_bfe_u32 v%d, v0, 2, 2" % RR); e("v_and_b32 v%d, 3, v0" % CP)
    e("v_and_b32 v%d, 1, v%d" % (T0, RR)); e("v_lshlrev_b32 v3, 4, v%d" % T0)
    e("v_lshrrev_b32 v%d, 1, v%d" % (T1, G)); e("v_lshl_add_u32 v3, v%d, 2, v3" % T1)
    e("v_lshrrev_b32 v%d, 1, v%d" % (T1, RR)); e("v_lshl_add_u32 v3, v%d, 1, v3" % T1)
    e("v_and_b32 v%d, 1, v%d" % (T1, G)); e("v_add_u32 v3, v3, v%d" % T1)
    e("v_lshlrev_b32 v3, 6, v3"); e("v_lshl_add_u32 v3, v%d, 3, v3" % CP); e("v_lshl_add_u32 v3, v%d, 5, v3" % T0)
    e("s_mul_i32 s52, s28, %d" % (NSLOT * 4096)); e("s_add_u32 s52, s52, %d" % WV_L)
    e("v_add_u32 v3, s52, v3"); e("v_xor_b32 v4, 32, v3")
    e("s_lshl_b32 s53, s28, 10"); e("s_add_u32 s53, s53, %d" % QKX_L)
    e("v_lshlrev_b32 v5, 5, v%d" % C); e("v_lshl_add_u32 v5, v%d, 3, v5" % G); e("v_add_u32 v5, s53, v5")
    e("v_lshlrev_b32 v6, 3, v0")
    e("v_lshrrev_b32 v%d, 2, v%d" % (T0, C)); e("v_and_b32 v%d, 1, v%d" % (T1, C)); e("v_lshl_add_u32 v%d, v%d, 1, v%d" % (T0, T0, T1))
    e("v_mul_u32_u24 v7, 320, v%d" % T0); e("v_lshl_add_u32 v7, v%d, 3, v7" % G)
    e("s_lshl_b32 s53, s28, 6"); e("s_add_u32 s53, s53, %d" % OX_L); e("v_add_u32 v7, s53, v7")
    e("v_lshrrev_b32 v%d, 1, v%d" % (T0, C)); e("v_mul_u32_u24 v8, 320, v%d" % T0); e("v_lshl_add_u32 v8, v%d, 5, v8" % G)
    e("v_lshl_add_u32 v8, v%d, 4, v8" % T1); e("v_add_u32 v8, %d, v8" % OX_L)
    e("v_lshlrev_b32 v9, 13, v%d" % G); e("v_lshrrev_b32 v%d, 3, v%d" % (T0, C)); e("v_lshl_add_u32 v9, v%d, 12, v9" % T0)
    e("v_and_b32 v%d, 7, v%d" % (T0, C)); e("v_lshl_add_u32 v9, v%d, 4, v9" % T0)
    e("s_lshl_b32 s42, s28, 5"); e("s_add_u32 s42, s42, s30")
    e("s_and_b32 s53, s42, 1"); e("s_lshl_b32 s53, s53, 3")
    e("v_add_u32 v%d, s53, v%d" % (T0, T0))
    e("v_lshrrev_b32 v10, 2, v%d" % T0); e("v_lshlrev_b32 v10, 8, v10")
    e("v_bfe_u32 v%d, v%d, 1, 1" % (T1, T0)); e("v_lshl_add_u32 v10, v%d, 4, v10" % T1)
    e("v_and_b32 v%d, 1, v%d" % (T1, T0)); e("v_lshl_add_u32 v10, v%d, 3, v10" % T1)
    e("v_and_b32 v%d, 1, v%d" % (T1, G)); e("v_lshl_add_u32 v10, v%d, 5, v10" % T1)
    e("s_bfe_u32 s53, s42, 0x20001"); e("s_lshl_b32 s53, s53, 6")
    e("s_lshr_b32 s54, s42, 3"); e("s_lshl_b32 s54, s54, 10"); e("s_add_u32 s53, s53, s54")
    e("v_add_u32 v10, s53, v10")
    e("s_lshl_b32 s53, s29, 18"); e("s_add_u32 s53, s53, 0x%x" % PB_OFF)
    e("s_lshl_b32 s54, s30, 7"); e("s_add_u32 s54, s54, s53")
    e("s_lshl_b32 s43, s28, 15"); e("s_add_u32 s43, s43, s54")
    e("s_lshl_b32 s44, s28, 2"); e("s_add_u32 s44, s44, s54"); e("s_add_u32 s44, s44, 0x20000")
    e("s_lshl_b32 s45, s42, 12"); e("s_add_u32 s45, s45, s53")
    e("s_lshl_b32 s53, s29, 19")
    e("s_add_u32 s38, s53, 0x%x" % ML_OFF)
    e("s_add_u32 s40, s53, 0x%x" % MR_OFF)
    e("s_xor_b32 s53, s53, 0x80000"); e("s_add_u32 s39, s53, 0x%x" % MR_OFF)
    e("s_lshl_b32 s53, s30, 13"); e("s_lshl_b32 s54, s28, 11"); e("s_add_u32 s53, s53, s54")
    e("s_add_u32 s46, s53, 0x%x" % KF_OFF); e("s_add_u32 s47, s53, 0x%x" % VF_OFF)
    e("s_lshr_b32 s54, s53, 1"); e("s_add_u32 s48, s54, 0x%x" % XF_OFF)
    e("s_lshr_b32 s54, s53, 2"); e("s_add_u32 s49, s54, 0x%x" % VM_OFF)
    e("s_lshl_b32 s50, s28, 11")
    GE, GO, GW4, GW1 = 70, 71, 72, 73
    e("v_lshrrev_b32 v%d, 2, v0" % T0); e("v_lshlrev_b32 v%d, 13, v%d" % (GE, T0)); e("v_lshl_add_u32 v%d, v%d, 4, v%d" % (GE, CP, GE))
    e("s_lshl_b32 s53, s30, 8"); e("s_lshl_b32 s54, s28, 6"); e("s_add_u32 s53, s53, s54")
    e("v_add_u32 v%d, s53, v%d" % (GE, GE)); e("v_xor_b32 v%d, 32, v%d" % (GO, GE))
    e("v_lshrrev_b32 v%d, 1, v0" % T0); e("v_mul_u32_u24 v%d, 1280, v%d" % (GW1, T0)); e("v_and_b32 v%d, 1, v0" % T0); e("v_lshl_add_u32 v%d, v%d, 4, v%d" % (GW1, T0, GW1))
    e("s_mul_i32 s53, s30, 163840"); e("s_mul_i32 s54, s29, 640"); e("s_add_u32 s53, s53, s54")
    e("s_lshl_b32 s54, s28, 7"); e("s_add_u32 s54, s54, s53"); e("v_add_u32 v%d, s54, v%d" % (GW4, GW1))
    e("s_lshl_b32 s54, s28, 5"); e("s_add_u32 s54, s54, s53"); e("s_add_u32 s54, s54, 512"); e("v_add_u32 v%d, s54, v%d" % (GW1, GW1))
    e("v_lshrrev_b32 v%d, 1, v%d" % (T0, G)); e("v_lshlrev_b32 v%d, 4, v%d" % (T0, T0))
    e("v_lshrrev_b32 v%d, 1, v%d" % (T1, RR)); e("v_lshl_add_u32 v%d, v%d, 3, v%d" % (T0, T1, T0))
    e("v_and_b32 v%d, 1, v%d" % (T1, G)); e("v_lshl_add_u32 v%d, v%d, 2, v%d" % (T0, T1, T0))
    e("v_and_b32 v%d, 1, v%d" % (T1, RR)); e("v_add_u32 v%d, v%d, v%d" % (T0, T0, T1))
    e("v_lshlrev_b32 v0, 5, v%d" % T0); e("v_lshl_add_u32 v0, v%d, 3, v0" % CP); e("v_add_u32 v0, s52, v0")
    e("s_mul_i32 s53, s29, 5"); e("s_sub_u32 s54, 5, s53")
    for j in range(10):
        e("s_add_u32 s%d, s%d, %d" % (64 + j, 53 if j < 5 else 54, j % 5)); e("s_lshl_b32 s%d, s%d, 19" % (64 + j, 64 + j))
    e("v_mov_b32 v21, 0x3f80"); e("v_mov_b32 v22, 0x3f800000")
    e("v_cmp_gt_u32 vcc, 4, v%d" % C); e("s_nop 1"); e("v_cndmask_b32 v21, v22, v21, vcc")
    e("v_cmp_gt_u32 vcc, 8, v%d" % C); e("s_nop 1"); e("v_cndmask_b32 v21, 0, v21, vcc")
    for d in range(4):
        e("v_cmp_eq_u32 vcc, %d, v%d" % (d, CP)); e("s_nop 1"); e("v_cndmask_b32 v%d, 0, v21, vcc" % (16 + d))
    e("ds_write_b128 v1, v[16:19] offset:%d" % SEL_L)
    e("s_lshl_b32 s33, s28, 10"); e("s_lshl_b32 s34, s28, 8"); e("s_add_u32 s34, s34, 4096")
    items = [("Q", j) for j in range(10)] + [("K", j) for j in range(10) if j != 4] + [("V", j) for j in range(5, 10)] + [("O", t) for t in range(3)]
    final = [("V", j) for j in range(5)] + [("K", 4), ("O", 3), ("O", 4)]
    def issue(it, slot):
        k, j = it
        for i in range(4):
            e("s_add_u32 m0, s52, %d" % (slot * 4096 + i * 1024))
            if k == "O":
                e("s_mov_b32 s53, %d" % (i * 32 * 1280 + (32 * j if j < 4 else 0)))
                e("buffer_load_dwordx4 v%d, s[20:23], s53 offen lds" % (GW4 if j < 4 else GW1))
            else:
                e("s_add_u32 s53, s%d, %d" % (64 + j, i * 16 * 8192))
                e("buffer_load_dwordx4 v%d, %s, s53 offen lds" % (GO if i & 1 else GE, {"Q": "s[8:11]", "K": "s[12:15]", "V": "s[16:19]"}[k]))
    def consume(it, slot):
        k, j = it
        for T in range(2):
            f = {"Q": FQ, "K": FK, "V": FV, "O": FO}[k](j, T)
            for a in range(4):
                if k == "O": e("ds_read_b64_tr_b16 %s, v0 offset:%d" % (R(WB + 8 * f + 2 * a, 2), slot * 4096 + (64 * T + 32 * (a >> 1) + 2 * (a & 1)) * 32))
                else: e("ds_read_b64_tr_b16 %s, v%d offset:%d" % (R(WB + 8 * f + 2 * a, 2), 3 + T, slot * 4096 + 2048 * (a & 1) + 512 * (a >> 1)))
    inflight = []
    for n in range(NSLOT):
        issue(items[n], n); inflight.append((items[n], n))
    nxt = NSLOT
    done = set()
    while inflight and inflight[0][0] != "F":
        it, sl = inflight.pop(0)
        e("s_waitcnt vmcnt(%d)" % (4 * len(inflight)))
        consume(it, sl)
        e("s_waitcnt lgkmcnt(0)")
        if nxt < len(items):
            issue(items[nxt], sl); inflight.append((items[nxt], sl)); nxt += 1
        else:
            issue(final[sl], sl); inflight.append(("F", sl)); done.add(sl)
    assert len(done) == NSLOT
    e("s_mov_b32 m0, s50"); e("s_nop 0")
    e("buffer_load_dwordx4 v1, s[4:7], s46 offen lds"); e("buffer_load_dwordx4 v1, s[4:7], s46 offen offset:1024 lds")
    for r in range(ACQ, ACQ + 24): e("v_mov_b32 v%d, 0" % r)
    e("s_mov_b32 s32, 0")
    e("s_mov_b32 s51, 0x3e0293ee")
    e("s_waitcnt vmcnt(0)")
    e("s_barrier")
    if instr:
        for r in range(80, 96): e("s_mov_b32 s%d, 0" % r)
        e("s_memtime s[76:77]"); e("s_waitcnt lgkmcnt(0)"); e("s_mov_b32 s78, s76"); e("s_mov_b32 s95, s76")
    def stamp(i):
        if not instr: return
        if instr == 2:
            l = A.newlabel("Lst")
            e("s_cmp_lg_u32 s32, %d" % TRACE_STEP); e("s_cbranch_scc1 %s" % l)
            e("s_memrealtime s[76:77]"); e("s_waitcnt lgkmcnt(0)"); e("s_mov_b32 s%d, s76" % (80 + i))
            A.label(l)
            return
        e("s_memtime s[76:77]"); e("s_waitcnt lgkmcnt(0)")
        e("s_sub_u32 s79, s76, s78"); e("s_add_u32 s%d, s%d, s79" % (80 + i, 80 + i)); e("s_mov_b32 s78, s76")
        if i == 8:
            l = A.newlabel("Lst")
            e("s_cmp_lg_u32 s32, 3"); e("s_cbranch_scc1 %s" % l)
            for r in range(80, 95): e("s_mov_b32 s%d, 0" % r)
            e("s_mov_b32 s95, s76")
            A.label(l)
    e("s_cmp_lg_u32 s31, 0"); e("s_cbranch_scc1 L_loop_slow")
    for mode in ("fast", "slow"):
        sc = "" if mode == "fast" else " sc1"
        A.label("L_loop_" + mode)
        for par in (1, 0):
            emit_step(A, par, sc, stamp, d_first, d_red, instr)
        e("s_cmp_lt_u32 s32, %d" % steps); e("s_cbranch_scc1 L_loop_" + mode)
        e("s_branch L_rec_done")
    A.label("L_rec_done")
    if instr:
        e("s_memtime s[76:77]"); e("s_waitcnt lgkmcnt(0)"); e("s_sub_u32 s95, s76, s95")
        e("s_lshl_b32 s53, s29, 5"); e("s_add_u32 s53, s53, s30"); e("s_lshl_b32 s53, s53, 2"); e("s_add_u32 s53, s53, s28"); e("s_lshl_b32 s53, s53, 6"); e("s_add_u32 s53, s53, 0x%x" % ST_OFF)
        e("v_mov_b32 v0, 0")
        for i in range(16):
            e("v_mov_b32 v11, s%d" % (80 + i)); e("buffer_store_dword v11, v0, s[4:7], s53 offen offset:%d" % (4 * i))

    e("s_branch %s" % exit_label)
    A.label("L_abort")
    e("s_mov_b64 exec, 1")
    e("v_mov_b32 v0, 64"); e("v_mov_b32 v11, 1")
    e("buffer_store_dword v11, v0, s[24:27], 0 offen")

def vload_tr(A, dst, slot, T):
    for a in range(4):
        A.e("ds_read_b64_tr_b16 v[%d:%d], v%d offset:%d" % (dst + 2 * a, dst + 2 * a + 1, 3 + T, slot * 4096 + 2048 * (a & 1) + 512 * (a >> 1)))
def oload_tr(A, dst, slot, ks):
    for a in range(4):
        A.e("ds_read_b64_tr_b16 v[%d:%d], v0 offset:%d" % (dst + 2 * a, dst + 2 * a + 1, slot * 4096 + (64 * ks + 32 * (a >> 1) + 2 * (a & 1)) * 32))

def emit_step(A, par, sc, stamp, d_first, d_red, instr):
    e = A.e
    def smf(acc, a, b): e("%s v[%d:%d], %s, %s, v2" % (SMF, acc, acc + 3, vr(a, 4), b))
    def spin():
        e("s_add_u32 s74, s74, 1"); e("s_cmp_gt_u32 s74, %d" % SPIN_LIMIT); e("s_cbranch_scc1 L_abort")
    def gl_load(reg, s):
        e("buffer_load_dwordx4 v[%d:%d], v37, s[4:7], s%d offen sc1" % (reg, reg + 3, s))
        e("buffer_load_dword v%d, v38, s[4:7], s%d offen sc1" % (reg + 4, s))
    def gl_finish(reg, s, half, cnt, name):
        lp = A.newlabel(name); ok = A.newlabel(name + "ok")
        A.label(lp)
        e("s_waitcnt vmcnt(0)")
        e("v_max3_u32 v11, v%d, v%d, v%d" % (reg, reg + 1, reg + 2)); e("v_max3_u32 v11, v11, v%d, v%d" % (reg + 3, reg + 4))
        e("v_cmp_eq_u32 vcc, -1, v11")
        e("s_cbranch_vccz %s" % ok)
        gl_load(reg, s)
        if instr: e("s_add_u32 s%d, s%d, 1" % (cnt, cnt))
        spin()
        e("s_branch %s" % lp)
        A.label(ok)
        e("ds_write_b128 v37, v[%d:%d] offset:%d" % (reg, reg + 3, AC_L + 5120 * half))
        e("ds_write_b32 v38, v%d offset:%d" % (reg + 4, AC_L + 5120 * half))
    Lf = [(ACV + 4 * T, j, j, T) for j in range(5) for T in range(2)]
    Lf = Lf[:8] + [(ACK + 4 * T, 4, 5, T) for T in range(2)] + Lf[8:]
    Rf = [(ACQ + 4 * T, j, FQ(j, T)) for j in range(5) for T in range(2)] + [(ACK + 4 * T, j, FK(j, T)) for j in range(4) for T in range(2)]
    Rf.sort(key=lambda x: x[1])
    e("v_add_u32 v37, s33, v1"); e("v_lshrrev_b32 v38, 2, v1"); e("v_add_u32 v38, s34, v38")
    for i in range(2): vload_tr(A, TMP + 8 * i, Lf[i][2], Lf[i][3])
    if d_first: e("s_sleep %d" % d_first)
    gl_load(12, 38)
    gl_finish(12, 38, 0, 90, "Lgl")
    e("s_waitcnt lgkmcnt(0)")
    stamp(0)
    e("s_barrier")
    if R_AT < 0: gl_load(GG, 39)
    for j in range(5): e("ds_read_b128 v[%d:%d], v1 offset:%d" % (AA(j), AA(j) + 3, AC_L + 1024 * j))
    ri = 0
    e("s_waitcnt lgkmcnt(0)")
    for i in range(12):
        acc, j, slot, T = Lf[i]
        if i >= 2: e("s_waitcnt lgkmcnt(%d)" % (4 if i < 11 else 0))
        smf(acc, AA(j), vr(TMP + 8 * (i % 2), 8))
        if i + 2 < 12: vload_tr(A, TMP + 8 * (i % 2), Lf[i + 2][2], Lf[i + 2][3])
        n = 2 if i % 2 == 0 else 1
        for _ in range(n):
            if ri < len(Rf): smf(Rf[ri][0], AA(Rf[ri][1]), FR(Rf[ri][2])); ri += 1
        if i == R_AT: gl_load(GG, 39)
    assert ri == len(Rf)
    for ks in range(4): e("ds_read_b128 v[%d:%d], v1 offset:%d" % (TMP + 4 * ks, TMP + 3 + 4 * ks, KX_L + 4096 + 1024 * ks))
    stamp(1)
    gl_finish(GG, 39, 1, 92, "Lgr")
    e("s_waitcnt lgkmcnt(0)")
    stamp(9)
    e("s_barrier")
    for j in range(5): e("ds_read_b128 v[%d:%d], v1 offset:%d" % (AA(j), AA(j) + 3, AC_L + 5120 + 1024 * j))
    VXR = GG
    e("buffer_load_dwordx4 v[%d:%d], v1, s[4:7], s47 offen" % (VXR, VXR + 3)); e("buffer_load_dwordx4 v[%d:%d], v1, s[4:7], s47 offen offset:1024" % (VXR + 4, VXR + 7))
    for j in range(5):
        e("s_waitcnt lgkmcnt(%d)" % (4 - j))
        for T in range(2): smf(ACQ + 4 * T, AA(j), FR(FQ(5 + j, T)))
    for j in range(5):
        for T in range(2): smf(ACK + 4 * T, AA(j), FR(FK(5 + j, T)))
        if j == 3:
            for T in range(2):
                q = ACQ + 4 * T
                e("v_add_f32 v%d, v%d, v%d" % (q, q, q + 1)); e("v_add_f32 v%d, v%d, v%d" % (q + 2, q + 2, q + 3))
                e("v_cvt_pk_bf16_f32 v%d, v%d, v%d" % (q + 1, q, q + 2))
    stamp(2)
    for j in range(2):
        for T in range(2): smf(ACV + 4 * T, AA(j), FR(FV(5 + j, T)))
    e("s_nop 2")
    for T in range(2):
        q, k = ACQ + 4 * T, ACK + 4 * T
        e("v_add_f32 v%d, v%d, v%d" % (k, k, k + 1)); e("v_add_f32 v%d, v%d, v%d" % (k + 2, k + 2, k + 3))
        e("v_cvt_pk_bf16_f32 v%d, v%d, v%d" % (q, k, k + 2))
        e("ds_write_b64 v5, v[%d:%d] offset:%d" % (q, q + 1, 512 * T))
    for j in (2, 3):
        for T in range(2): smf(ACV + 4 * T, AA(j), FR(FV(5 + j, T)))
    e("s_waitcnt lgkmcnt(0)")
    e("s_barrier")
    X, KT0 = 12, 40
    for ks in range(4):
        for a in range(2): e("ds_read_b64_tr_b16 v[%d:%d], v6 offset:%d" % (X + 4 * ks + 2 * a, X + 4 * ks + 2 * a + 1, QKX_L + 1024 * ks + 512 * a))
    for ks in range(4): e("ds_read_b128 v[%d:%d], v1 offset:%d" % (KT0 + 4 * ks, KT0 + 3 + 4 * ks, KX_L + 1024 * ks))
    for T in range(2): smf(ACV + 4 * T, AA(4), FR(FV(9, T)))
    e("v_and_b32 v11, 0xf0, v1"); e("v_lshlrev_b32 v11, 3, v11"); e("v_and_b32 v6, 0x100, v1"); e("v_lshl_add_u32 v11, v6, 16, v11"); e("v_lshrrev_b32 v6, 1, v1")
    e("s_lshl_b32 s53, s28, 8"); e("s_add_u32 m0, s53, %d" % (MISC_L + 256))
    e("s_add_u32 s46, s46, 0x40000"); e("s_add_u32 s53, s46, 0x40000")
    e("s_and_b32 s54, s42, 63"); e("s_lshl_b32 s54, s54, 7"); e("s_add_u32 s54, s54, s38"); e("s_add_u32 s54, s54, 10240"); e("s_sub_u32 s54, s54, s53")
    e("s_mov_b32 exec_lo, 0"); e("v_mov_b32 v11, s54"); e("s_mov_b32 exec_lo, -1")
    e("buffer_load_dword v11, s[4:7], s53 offen lds")
    stamp(3)
    S2, S0, S1 = 28, 64, 68
    for ks in range(4):
        e("s_waitcnt lgkmcnt(%d)" % (10 - 2 * ks))
        e("%s v[%d:%d], %s, %s, %s" % (MF32, S2, S2 + 3, vr(TMP + 4 * ks, 4), vr(X + 4 * ks, 4), "0" if ks == 0 else vr(S2, 4)))
    for ks in range(4): e("%s v[%d:%d], %s, %s, %s" % (MF32, S0, S0 + 3, vr(X + 4 * ks, 4), vr(X + 4 * ks, 4), "0" if ks == 0 else vr(S0, 4)))
    e("s_waitcnt lgkmcnt(0)")
    for ks in range(4): e("%s v[%d:%d], %s, %s, %s" % (MF32, S1, S1 + 3, vr(KT0 + 4 * ks, 4), vr(X + 4 * ks, 4), "0" if ks == 0 else vr(S1, 4)))
    e("v_add_u32 v11, s33, v6")
    e("ds_read_b64_tr_b16 v[72:73], v11 offset:%d" % QKX_L); e("ds_read_b64_tr_b16 v[74:75], v11 offset:%d" % (QKX_L + 512))
    oload_tr(A, 40, 7, 0); oload_tr(A, 48, 7, 1)
    VM = 76
    e("v_max3_f32 v11, v%d, v%d, v%d" % (S2, S2 + 1, S2 + 2)); e("v_max3_f32 v11, v11, v%d, v%d" % (S2 + 3, S0))
    for T in range(2):
        v = ACV + 4 * T
        e("v_add_f32 v%d, v%d, v%d" % (v, v, v + 1)); e("v_add_f32 v%d, v%d, v%d" % (v + 2, v + 2, v + 3))
        e("v_cvt_pk_bf16_f32 v%d, v%d, v%d" % (VM + 2 * T, v, v + 2)); e("v_mov_b32 v%d, 0" % (VM + 1 + 2 * T))
    e("v_max3_f32 v11, v11, v%d, v%d" % (S0 + 1, S1)); e("v_max3_f32 v11, v11, v%d, v%d" % (S1 + 1, S1 + 2))
    e("v_max_f32 v11, v11, v%d" % (S1 + 3)); e("v_mov_b32 v66, v11"); e("s_nop 1")
    e("v_permlane16_swap_b32 v11, v66"); e("v_max_f32 v11, v11, v66"); e("v_mov_b32 v66, v11"); e("s_nop 1")
    e("v_permlane32_swap_b32 v11, v66"); e("v_max_f32 v11, v11, v66")
    e("v_mul_f32 v11, s51, v11")
    P1, P0, ONES, OA, LS = 12, 16, 20, 56, 24
    vals = [S0, S0 + 1] + [S1 + i for i in range(4)] + [S2 + i for i in range(4)]
    for v in vals: e("v_fma_f32 v%d, v%d, s51, -v11" % (v, v))
    for i, v in enumerate(vals):
        e("v_exp_f32 v%d, v%d" % (v, v))
        if i < 4: e("v_mov_b32 v%d, 0x3f803f80" % (ONES + i))
        if i == 4: e("v_mov_b32 v%d, 0" % (P0 + 1))
        if i == 5: e("v_cvt_pk_bf16_f32 v%d, v%d, v%d" % (P0, S0, S0 + 1))
        if i == 6: e("v_cvt_pk_bf16_f32 v%d, v%d, v%d" % (P1, S1, S1 + 1))
        if i == 7: e("v_cvt_pk_bf16_f32 v%d, v%d, v%d" % (P1 + 1, S1 + 2, S1 + 3))
    e("%s v[%d:%d], %s, %s, 0" % (MF16, LS, LS + 3, vr(ONES, 2), vr(P0, 2)))
    e("v_cvt_pk_bf16_f32 v%d, v%d, v%d" % (P1 + 2, S2, S2 + 1)); e("v_cvt_pk_bf16_f32 v%d, v%d, v%d" % (P1 + 3, S2 + 2, S2 + 3))
    stamp(4)
    for T in range(2): e("%s v[%d:%d], %s, %s, 0" % (MF16, OA + 4 * T, OA + 4 * T + 3, vr(VM + 2 * T, 2), vr(P0, 2)))
    e("%s v[%d:%d], %s, %s, %s" % (MF32, LS, LS + 3, vr(ONES, 4), vr(P1, 4), vr(LS, 4)))
    e("s_waitcnt vmcnt(1)")
    for T in range(2): e("%s v[%d:%d], %s, %s, %s" % (MF32, OA + 4 * T, OA + 4 * T + 3, vr(VXR + 4 * T, 4), vr(P1, 4), vr(OA + 4 * T, 4)))
    t1 = A.newlabel("Lt1"); tj = A.newlabel("Ltj")
    e("s_cmp_lg_u32 s29, 0"); e("s_cbranch_scc1 %s" % t1)
    e("s_waitcnt lgkmcnt(8)")
    e("buffer_store_dwordx4 v[72:75], v1, s[4:7], s48 offen")
    e("s_branch %s" % tj)
    A.label(t1)
    e("v_lshrrev_b32 v66, 2, v1")
    e("buffer_store_dword v%d, v66, s[4:7], s49 offen" % VM); e("buffer_store_dword v%d, v66, s[4:7], s49 offen offset:256" % (VM + 2))
    A.label(tj)
    e("v_rcp_f32 v11, v%d" % LS)
    oload_tr(A, 32, 6, 0)
    for i in range(8): e("v_mul_f32 v%d, v%d, v11" % (OA + i, OA + i))
    for T in range(2):
        o = OA + 4 * T
        e("v_cvt_pk_bf16_f32 v%d, v%d, v%d" % (o, o, o + 1)); e("v_cvt_pk_bf16_f32 v%d, v%d, v%d" % (o + 1, o + 2, o + 3))
    e("s_mov_b32 exec_lo, 0xcccccccc"); e("s_mov_b32 exec_hi, 0xcccccccc")
    for T in range(2): e("ds_write_b64 v7, v[%d:%d] offset:%d" % (OA + 4 * T, OA + 4 * T + 1, 32 * T))
    e("s_mov_b64 exec, -1")
    oload_tr(A, 64, 6, 1)
    WA = 12
    for r in range(WA, WA + 20): e("v_mov_b32 v%d, 0" % r)
    e("s_add_u32 s47, s47, 0x40000"); e("s_add_u32 s48, s48, 0x20000"); e("s_add_u32 s49, s49, 0x10000")
    e("s_waitcnt lgkmcnt(4)")
    e("s_barrier")
    OF = 72
    for ks in range(2): e("ds_read_b128 v[%d:%d], v8 offset:%d" % (OF + 4 * ks, OF + 3 + 4 * ks, 128 * ks))
    e("s_mov_b32 m0, s50"); e("s_nop 0")
    e("buffer_load_dwordx4 v1, s[4:7], s46 offen lds"); e("buffer_load_dwordx4 v1, s[4:7], s46 offen offset:1024 lds")
    stamp(5)
    WF = {(4, 0): vr(40, 8), (4, 1): vr(48, 8), (3, 0): vr(32, 8), (3, 1): vr(64, 8)}
    for t in range(3):
        for ks in range(2): WF[(t, ks)] = FR(FO(t, ks))
    e("s_waitcnt lgkmcnt(1)")
    smf(WA + 16, OF, WF[(4, 0)])
    e("s_waitcnt lgkmcnt(0)")
    smf(WA + 16, OF + 4, WF[(4, 1)])
    for t in (3, 0, 1, 2):
        for ks in range(2): smf(WA + 4 * t, OF + 4 * ks, WF[(t, ks)])
    tagop = (lambda d: "v_or_b32 v%d, 1, v%d" % (d, d)) if par else (lambda d: "v_and_b32 v%d, -2, v%d" % (d, d))
    def pack(t, dst):
        d = WA + 4 * t
        e("v_add_f32 v%d, v%d, v%d" % (d, d, d + 1)); e("v_add_f32 v%d, v%d, v%d" % (d + 2, d + 2, d + 3))
        e("v_cvt_pk_bf16_f32 v%d, v%d, v%d" % (dst, d, d + 2)); e(tagop(dst))
    pack(4, 36)
    e("buffer_store_dword v36, v9, s[4:7], s44 offen%s" % sc)
    pack(3, 35); pack(0, 32); pack(1, 33); pack(2, 34)
    e("buffer_store_dwordx4 v[32:35], v9, s[4:7], s43 offen%s" % sc)
    stamp(6)
    e("s_add_u32 s38, s38, 5120"); e("s_add_u32 s39, s39, 5120"); e("s_add_u32 s40, s40, 5120")
    e("ds_read_b128 v[12:15], v1 offset:%d" % SEL_L)
    for r in range(ACQ, ACQ + 24): e("v_mov_b32 v%d, 0" % r)
    nored = A.newlabel("Lnored"); join = A.newlabel("Ljoin")
    e("s_cmp_ge_u32 s42, 40"); e("s_cbranch_scc1 %s" % nored)
    if d_red: e("s_sleep %d" % d_red)
    lp = A.newlabel("Lrd"); A.label(lp)
    for j in range(4): e("buffer_load_dwordx4 v[%d:%d], v1, s[4:7], s45 offen offset:%d sc1" % (64 + 4 * j, 67 + 4 * j, 1024 * j))
    if instr: e("s_add_u32 s91, s91, 1")
    spin()
    op = "v_bitop3_b32 v11, v11, v%d, v%d bitop3:0x80" if par else "v_or3_b32 v11, v11, v%d, v%d"
    e("v_mov_b32 v11, %d" % par)
    e("s_waitcnt lgkmcnt(0)")
    for j in range(4):
        b = 64 + 4 * j
        e("s_waitcnt vmcnt(%d)" % (3 - j))
        e("%s v[16:19], v[12:15], %s, %s" % (MF32, vr(b, 4), "0" if j == 0 else "v[16:19]"))
        e(op % (b, b + 1)); e(op % (b + 2, b + 3))
    e("v_and_b32 v11, 1, v11")
    e("v_cmp_ne_u32 vcc, %d, v11" % par)
    e("s_cbranch_vccnz %s" % lp)
    e("s_nop 3")
    for i in range(4): e("v_add_f32_dpp v%d, v%d, v%d row_ror:8 row_mask:0xf bank_mask:0xf" % (20 + i, 16 + i, 16 + i))
    e("v_cvt_pk_bf16_f32 v20, v20, v21"); e("v_cvt_pk_bf16_f32 v21, v22, v23")
    e("v_min_u32 v20, -2, v20"); e("v_min_u32 v21, -2, v21")
    e("s_mov_b32 exec_lo, 0x00ff00ff"); e("s_mov_b32 exec_hi, 0")
    e("buffer_store_dwordx2 v[20:21], v10, s[4:7], s40 offen sc1")
    e("buffer_store_dwordx2 v[20:21], v10, s[4:7], s38 offen%s" % sc)
    e("s_mov_b64 exec, -1")
    e("s_branch %s" % join)
    A.label(nored)
    e("s_waitcnt vmcnt(0) lgkmcnt(0)")
    A.label(join)
    stamp(7)
    e("s_barrier")
    stamp(8)
    e("s_add_u32 s32, s32, 1")

def gen(**kw):
    A = Asm()
    A.raw("; @launch kernel=rec_kernel grid=(256,1,1) block=(256,1,1) lds=163840")
    A.raw('.amdgcn_target "amdgcn-amd-amdhsa--gfx950"')
    A.raw(".text")
    kernel_header(A, "rec_kernel")
    A.e("s_cmp_ge_u32 s2, 256"); A.e("s_cbranch_scc1 L_end")
    emit_rec(A, **kw)
    A.label("L_end")
    A.e("s_endpgm")
    A.raw('.section .rodata,"a"'); A.raw(".p2align 6")
    A.raw(kernel_desc("rec_kernel", 512, 100, 256))
    return A.text()

if __name__ == "__main__":
    import sys
    for spec in sys.argv[1:]:
        d1, dr, ra, ins = map(int, spec.split(","))
        R_AT = ra
        open("rec_%d_%d_%d_%d.s" % (d1, dr, ra, ins), "w").write(gen(instr=ins, d_first=d1, d_red=dr))
```

```python
XN_OFF = 0x0000000
QF_OFF = 0x0400000
KF_OFF = 0x1400000
VF_OFF = 0x2400000
H_OFF  = 0x3400000
O_OFF  = 0x3C00000
XF_OFF = 0x4C00000
VM_OFF = 0x5400000
ML_OFF = 0x5800000
MR_OFF = 0x5900000
PB_OFF = 0x5A00000
ST_OFF = 0x5B00000
WS_BYTES = 0x10000000

KV_OFF = 0x1400000
XV_OFF = 0x6000000
```

```python
import sys
from asmlib import *
import gen_g1, gen_rec, gen_att, gen_g2
HEAD = open("recurrent_scan__memory_aug_recurrent_mem_tr__glu_gated_swiglu__prompt.s.ref").read().split("; Override launch")[0]
def build():
    A = Asm()
    A.raw(HEAD.rstrip())
    A.raw("; @launch kernel=g1_kernel grid=(256,1,1) block=(256,1,1) lds=81920")
    A.raw("; @launch kernel=rec_kernel grid=(256,1,1) block=(256,1,1) lds=163840")
    A.raw("; @launch kernel=att_kernel grid=(512,1,1) block=(256,1,1) lds=0")
    A.raw("; @launch kernel=g2_kernel grid=(160,1,1) block=(256,1,1) lds=65536")
    A.raw('.amdgcn_target "amdgcn-amd-amdhsa--gfx950"')
    A.raw(".text")
    gen_g1.emit_g1_kernel(A)
    kernel_header(A, "rec_kernel")
    A.e("s_cmp_ge_u32 s2, 256"); A.e("s_cbranch_scc1 L_end")
    gen_rec.R_AT = -1
    gen_rec.emit_rec(A, instr=0, d_first=2, d_red=3)
    A.label("L_end"); A.e("s_endpgm")
    gen_att.emit_att_kernel(A)
    gen_g2.emit_g2_kernel(A)
    A.raw('.section .rodata,"a"'); A.raw(".p2align 6")
    A.raw(kernel_desc("g1_kernel", 256, 80, 256))
    A.raw(".p2align 6"); A.raw(kernel_desc("rec_kernel", 512, 100, 256))
    A.raw(".p2align 6"); A.raw(kernel_desc("att_kernel", 176, 80, 176))
    A.raw(".p2align 6"); A.raw(kernel_desc("g2_kernel", 176, 80, 176))
    return A.text()
if __name__ == "__main__":
    out = sys.argv[1] if len(sys.argv) > 1 else "recurrent_scan__memory_aug_recurrent_mem_tr__glu_gated_swiglu__prompt.s"
    open(out, "w").write(build())
```

```python
from asmlib import *
from layout import *
from gen_g1 import srd
MF32 = "v_mfma_f32_16x16x32_bf16"
MF16 = "v_mfma_f32_16x16x16_bf16"

def emit_att_setup(A):
    e = A.e
    e("v_lshlrev_b32 v1, 4, v0"); e("v_lshlrev_b32 v2, 2, v0")
    e("v_and_b32 v3, 15, v0"); e("v_lshrrev_b32 v8, 4, v0"); e("v_lshlrev_b32 v8, 2, v8")
    for r in range(4):
        e("v_add_u32 v9, %d, v8" % r); e("v_cmp_gt_u32 s[%d:%d], v9, v3" % (20 + 2 * r, 21 + 2 * r))
    for i in range(4): e("v_mov_b32 v%d, 0x3f803f80" % (4 + i))
    e("s_mov_b32 s51, 0x3e0293ee")
    e("v_mov_b32 v3, 0xf149f2ca")

def emit_att(A, ldsc=""):
    e = A.e
    Q, K, X, V, VM, S0, S1, S2, P1, P0, LS, O = 16, 48, 80, 96, 128, 144, 148, 152, 156, 160, 164, 48
    e("s_lshl_b32 s33, s30, 13")
    e("s_add_u32 s34, s33, 0x%x" % QF_OFF); e("s_add_u32 s35, s34, 4096")
    e("s_add_u32 s40, s33, 0x%x" % XV_OFF); e("s_add_u32 s41, s40, 4096")
    e("s_lshl_b32 s33, s30, 14")
    e("s_add_u32 s36, s33, 0x%x" % KV_OFF); e("s_add_u32 s37, s36, 4096")
    e("s_add_u32 s38, s36, 8192"); e("s_add_u32 s39, s38, 4096")
    for i in range(8): e("buffer_load_dwordx4 v[%d:%d], v1, s[4:7], s%d offen offset:%d%s" % (Q + 4 * i, Q + 4 * i + 3, 34 + (i >> 2), 1024 * (i & 3), ldsc))
    for i in range(4): e("buffer_load_dwordx4 v[%d:%d], v1, s[4:7], s40 offen offset:%d%s" % (X + 4 * i, X + 4 * i + 3, 1024 * i, ldsc))
    for i in range(8): e("buffer_load_dwordx4 v[%d:%d], v1, s[4:7], s%d offen offset:%d%s" % (K + 4 * i, K + 4 * i + 3, 36 + (i >> 2), 1024 * (i & 3), ldsc))
    for i in range(8): e("buffer_load_dword v%d, v2, s[4:7], s41 offen offset:%d%s" % (VM + 2 * i, 256 * i, ldsc))
    for i in range(8): e("buffer_load_dwordx4 v[%d:%d], v1, s[4:7], s%d offen offset:%d%s" % (V + 4 * i, V + 4 * i + 3, 38 + (i >> 2), 1024 * (i & 3), ldsc))
    for i in range(8): e("v_mov_b32 v%d, 0" % (VM + 2 * i + 1))
    e("s_and_b32 s42, s30, 63"); e("s_lshl_b32 s42, s42, 18"); e("s_lshr_b32 s43, s30, 6"); e("s_lshl_b32 s43, s43, 12"); e("s_add_u32 s42, s42, s43"); e("s_add_u32 s42, s42, 0x%x" % O_OFF)
    e("s_add_u32 s43, s42, 0x20000")
    e("s_waitcnt vmcnt(16)")
    PP = {}
    for tq in range(2):
        s0, s1, s2 = (S0, S1, S2) if tq == 1 else (168, 172, None)
        for ks in range(4): e("%s %s, %s, %s, %s" % (MF32, vr(s0, 4), vr(X + 4 * ks, 4), vr(Q + 16 * tq + 4 * ks, 4), "0" if ks == 0 else vr(s0, 4)))
        for ks in range(4): e("%s %s, %s, %s, %s" % (MF32, vr(s1, 4), vr(K + 4 * ks, 4), vr(Q + 16 * tq + 4 * ks, 4), "0" if ks == 0 else vr(s1, 4)))
        if tq == 1:
            for ks in range(4): e("%s %s, %s, %s, %s" % (MF32, vr(s2, 4), vr(K + 16 + 4 * ks, 4), vr(Q + 16 + 4 * ks, 4), "0" if ks == 0 else vr(s2, 4)))
    for tq in range(2):
        s0, s1, s2 = (S0, S1, S2) if tq == 1 else (168, 172, None)
        p1, p0 = (P1, P0) if tq == 1 else (8, 12)
        md = s1 if tq == 0 else s2
        if tq == 1: e("s_nop 4")
        for r in range(4): e("v_cndmask_b32 v%d, v%d, v3, s[%d:%d]" % (md + r, md + r, 20 + 2 * r, 21 + 2 * r))
        vals = [s0, s0 + 1] + [s1 + i for i in range(4)] + ([s2 + i for i in range(4)] if tq else [])
        m, t = s0 + 2, s0 + 3
        e("v_max3_f32 v%d, v%d, v%d, v%d" % (m, vals[0], vals[1], vals[2]))
        rest = vals[3:]
        while len(rest) >= 2:
            e("v_max3_f32 v%d, v%d, v%d, v%d" % (m, m, rest[0], rest[1])); rest = rest[2:]
        if rest: e("v_max_f32 v%d, v%d, v%d" % (m, m, rest[0]))
        for sw in ("v_permlane16_swap_b32", "v_permlane32_swap_b32"):
            e("v_mov_b32 v%d, v%d" % (t, m)); e("s_nop 1"); e("%s v%d, v%d" % (sw, m, t)); e("v_max_f32 v%d, v%d, v%d" % (m, m, t))
        e("v_mul_f32 v%d, s51, v%d" % (m, m))
        for v in vals: e("v_fma_f32 v%d, v%d, s51, -v%d" % (v, v, m))
        for v in vals: e("v_exp_f32 v%d, v%d" % (v, v))
        e("v_mov_b32 v%d, 0" % (p0 + 1))
        e("v_cvt_pk_bf16_f32 v%d, v%d, v%d" % (p0, s0, s0 + 1))
        e("v_cvt_pk_bf16_f32 v%d, v%d, v%d" % (p1, s1, s1 + 1)); e("v_cvt_pk_bf16_f32 v%d, v%d, v%d" % (p1 + 1, s1 + 2, s1 + 3))
        if tq:
            e("v_cvt_pk_bf16_f32 v%d, v%d, v%d" % (p1 + 2, s2, s2 + 1)); e("v_cvt_pk_bf16_f32 v%d, v%d, v%d" % (p1 + 3, s2 + 2, s2 + 3))
        else:
            e("v_mov_b32 v%d, 0" % (p1 + 2)); e("v_mov_b32 v%d, 0" % (p1 + 3))
    e("s_waitcnt vmcnt(0)")
    for tq in range(2):
        p1, p0 = (P1, P0) if tq == 1 else (8, 12)
        o = 16 + 32 * tq
        e("%s %s, %s, %s, 0" % (MF16, vr(LS, 4), vr(4, 2), vr(p0, 2)))
        e("%s %s, %s, %s, %s" % (MF32, vr(LS, 4), vr(4, 4), vr(p1, 4), vr(LS, 4)))
        for et in range(8): e("%s %s, %s, %s, 0" % (MF16, vr(o + 4 * et, 4), vr(VM + 2 * et, 2), vr(p0, 2)))
        e("v_rcp_f32 v%d, v%d" % (14, LS))
        for et in range(8): e("%s %s, %s, %s, %s" % (MF32, vr(o + 4 * et, 4), vr(V + 4 * et, 4), vr(p1, 4), vr(o + 4 * et, 4)))
        e("s_nop 1")
        for ks in range(4):
            b = o + 8 * ks
            if ks == 3: e("s_nop 0")
            for i in range(8): e("v_mul_f32 v%d, v%d, v14" % (b + i, b + i))
            for i in range(4): e("v_cvt_pk_bf16_f32 v%d, v%d, v%d" % (b + i, b + 2 * i, b + 2 * i + 1))
            e("buffer_store_dwordx4 v[%d:%d], v1, s[4:7], s%d offen offset:%d" % (b, b + 3, 42 + tq, 1024 * ks))

def emit_att_kernel(A):
    e = A.e
    kernel_header(A, "att_kernel")
    e("s_cmp_ge_u32 s2, 512"); e("s_cbranch_scc1 L_att_end")
    e("s_load_dwordx2 s[60:61], s[0:1], 104")
    e("v_lshrrev_b32 v1, 6, v0"); e("v_and_b32 v0, 63, v0"); e("v_readfirstlane_b32 s28, v1")
    e("s_waitcnt lgkmcnt(0)")
    srd(e, 4, 60, WS_BYTES)
    emit_att_setup(A)
    e("s_lshl_b32 s30, s2, 2"); e("s_add_u32 s30, s30, s28")
    emit_att(A)
    A.label("L_att_end")
    e("s_endpgm")
```

```python
from asmlib import *
from layout import *
MF32 = "v_mfma_f32_16x16x32_bf16"

def srd(e, d, lo, n):
    e("s_mov_b32 s%d, s%d" % (d, lo)); e("s_mov_b32 s%d, s%d" % (d + 1, lo + 1)); e("s_mov_b32 s%d, 0x%x" % (d + 2, n)); e("s_mov_b32 s%d, 0x20000" % (d + 3))

def emit_init(A):
    e = A.e
    e("s_lshl_b32 s33, s2, 13"); e("s_add_u32 s33, s33, 0x%x" % ML_OFF)
    e("v_lshlrev_b32 v1, 4, v0")
    for i in range(4): e("v_mov_b32 v%d, -1" % (4 + i))
    for i in range(4): e("v_mov_b32 v%d, -1" % (8 + i))
    e("s_and_b32 s34, s2, 63"); e("s_cmp_lg_u32 s34, 0"); e("s_cbranch_scc1 L_init_st")
    e("s_bfe_u32 s34, s2, 0x10006"); e("s_mul_i32 s34, s34, 640")
    for half in range(2):
        d = 4 + 4 * half
        e("v_bfe_u32 v2, v0, 1, 3"); e("v_mul_u32_u24 v2, 1280, v2")
        e("v_bfe_u32 v3, v0, 4, 2"); e("v_lshl_add_u32 v2, v3, 3, v2")
        e("v_and_b32 v3, 1, v0"); e("v_lshl_add_u32 v2, v3, 2, v2")
        if half == 0:
            e("v_lshrrev_b32 v3, 6, v0"); e("v_lshl_add_u32 v2, v3, 7, v2")
        else:
            e("v_add_u32 v2, 512, v2")
            e("v_cmp_gt_u32 vcc, 64, v0"); e("s_and_saveexec_b64 s[36:37], vcc"); e("s_cbranch_execz L_init_r")
        for t in range(4): e("buffer_load_dword v%d, v2, s[40:43], s34 offen offset:%d" % (12 + t, 32 * t))
        e("s_mov_b32 s35, 0x05040100"); e("s_mov_b32 s38, 0x07060302")
        e("s_waitcnt vmcnt(0)")
        e("v_perm_b32 v%d, v13, v12, s35" % d); e("v_perm_b32 v%d, v15, v14, s35" % (d + 1))
        e("v_perm_b32 v%d, v13, v12, s38" % (d + 2)); e("v_perm_b32 v%d, v15, v14, s38" % (d + 3))
        for i in range(4): e("v_min_u32 v%d, -2, v%d" % (d + i, d + i))
    A.label("L_init_r")
    e("s_mov_b64 exec, -1")
    A.label("L_init_st")
    e("buffer_store_dwordx4 v[4:7], v1, s[4:7], s33 offen")
    e("s_add_u32 s33, s33, 4096")
    e("buffer_store_dwordx4 v[8:11], v1, s[4:7], s33 offen")
    e("s_lshl_b32 s33, s2, 11"); e("s_add_u32 s33, s33, 0x%x" % PB_OFF)
    e("v_lshlrev_b32 v1, 3, v0"); e("v_mov_b32 v2, 0"); e("v_mov_b32 v3, 0")
    e("buffer_store_dwordx2 v[2:3], v1, s[4:7], s33 offen")

XA0 = 96
def XA(tt, kk): return XA0 + (tt * 20 + kk) * 4
BB, ACC, ET = 16, 48, 80
def acc(T, tt): return ACC + (T * 2 + tt) * 4

def emit_g1(A, NPART=16, NCG=248):
    e = A.e
    e("v_lshlrev_b32 v1, 4, v0")
    e("v_lshrrev_b32 v2, 2, v0")
    e("v_lshrrev_b32 v3, 5, v0"); e("v_lshlrev_b32 v3, 1, v3"); e("v_and_b32 v4, 3, v0"); e("v_xor_b32 v3, v3, v4"); e("v_lshlrev_b32 v3, 4, v3")
    e("v_lshrrev_b32 v5, 4, v0"); e("v_bfe_u32 v6, v0, 2, 2"); e("v_lshl_add_u32 v6, v5, 3, v6"); e("v_lshlrev_b32 v6, 6, v6")
    e("v_lshl_add_u32 v6, v4, 3, v6"); e("v_and_b32 v5, 1, v5"); e("v_lshl_add_u32 v6, v5, 5, v6")
    e("v_xor_b32 v7, 32, v6"); e("v_add_u32 v8, 0x10000, v6"); e("v_add_u32 v9, 0x10000, v7")
    e("s_lshr_b32 s44, s26, 1")
    e("s_and_b32 s45, s26, 1"); e("s_lshl_b32 s45, s45, 6")
    e("s_lshl_b32 s46, s26, 12")
    e("s_mov_b32 s15, 0x20000")
    def setup_dma():
        e("s_lshr_b32 s33, s30, 6"); e("s_and_b32 s34, s30, 63")
        e("s_cmp_eq_u32 s33, 0"); e("s_cselect_b64 s[12:13], s[18:19], s[20:21]")
        e("s_cmp_eq_u32 s33, 2"); e("s_cselect_b64 s[12:13], s[16:17], s[12:13]")
        e("s_cmp_eq_u32 s44, 0"); e("s_cselect_b64 s[36:37], s[22:23], s[24:25]")
        e("s_lshl_b32 s35, s34, 1"); e("s_add_u32 s35, s35, s44")
        e("s_cmp_eq_u32 s33, 3")
        e("s_cselect_b64 s[12:13], s[36:37], s[12:13]")
        e("s_mov_b32 s31, 8192"); e("s_cmov_b32 s31, 3456")
        e("s_mov_b32 s14, 5242880"); e("s_cmov_b32 s14, 2211840")
        e("s_cselect_b32 s35, s34, s35"); e("s_lshl_b32 s35, s35, 6")
        e("s_cmp_ge_u32 s30, %d" % NCG); e("s_cselect_b32 s14, 0, s14")
        e("s_mul_i32 s32, s45, s31"); e("s_add_u32 s32, s32, s35")
        e("v_mad_u32_u24 v10, v2, s31, v3")
    def dma(ks5):
        for i in range(4):
            e("s_add_u32 m0, s46, %d" % (ks5 * 16384 + i * 1024))
            e("s_mul_i32 s33, s31, %d" % (128 * ks5 + 16 * i)); e("s_add_u32 s33, s33, s32")
            e("buffer_load_dwordx4 v10, s[12:15], s33 offen lds")
    e("s_mov_b32 s29, s28"); e("s_mov_b32 s30, s28")
    setup_dma()
    for k in range(4): dma(k)
    e("s_lshl_b32 s33, s27, 2"); e("s_add_u32 s47, s33, s26")
    e("s_mul_i32 s33, s47, 40960")
    e("v_and_b32 v4, 15, v0"); e("v_mul_u32_u24 v4, 1280, v4"); e("v_lshrrev_b32 v5, 4, v0"); e("v_lshl_add_u32 v4, v5, 4, v4")
    e("s_add_u32 s34, s33, 20480")
    for tt in range(2):
        for kk in range(20): e("buffer_load_dwordx4 v[%d:%d], v4, s[8:11], s%d offen offset:%d" % (XA(tt, kk), XA(tt, kk) + 3, 33 + tt, 64 * kk))
    e("v_mov_b32 v11, 0x3f803f80")
    for tt in range(2):
        e("s_waitcnt vmcnt(%d)" % (20 if tt == 0 else 0))
        for r in range(4): e("v_mov_b32 v%d, 0" % (ET + r))
        for i in range(80):
            r = XA(tt, 0) + i
            e("v_dot2c_f32_bf16 v%d, v%d, v11" % (ET + (i & 1), r)); e("v_dot2c_f32_bf16 v%d, v%d, v%d" % (ET + 2 + (i & 1), r, r))
        e("s_nop 2")
        e("v_add_f32 v%d, v%d, v%d" % (ET, ET, ET + 1)); e("v_add_f32 v%d, v%d, v%d" % (ET + 2, ET + 2, ET + 3))
        for sw in ("v_permlane16_swap_b32", "v_permlane32_swap_b32"):
            e("v_mov_b32 v%d, v%d" % (ET + 1, ET)); e("v_mov_b32 v%d, v%d" % (ET + 3, ET + 2)); e("s_nop 1")
            e("%s v%d, v%d" % (sw, ET, ET + 1)); e("%s v%d, v%d" % (sw, ET + 2, ET + 3))
            e("v_add_f32 v%d, v%d, v%d" % (ET, ET, ET + 1)); e("v_add_f32 v%d, v%d, v%d" % (ET + 2, ET + 2, ET + 3))
        e("v_mul_f32 v%d, 0x3acccccd, v%d" % (ET, ET))
        e("v_mul_f32 v%d, 0x3acccccd, v%d" % (ET + 2, ET + 2))
        e("v_fma_f32 v%d, -v%d, v%d, v%d" % (ET + 2, ET, ET, ET + 2))
        e("v_max_f32 v%d, 0, v%d" % (ET + 2, ET + 2)); e("v_add_f32 v%d, 0x3727c5ac, v%d" % (ET + 2, ET + 2))
        e("v_rsq_f32 v%d, v%d" % (ET + 2, ET + 2)); e("s_nop 0")
        e("v_mul_f32 v%d, v%d, v%d" % (ET, ET, ET + 2))
        for i in range(80):
            r = XA(tt, 0) + i; a = ET + 4 + 2 * (i & 3)
            e("v_lshlrev_b32 v%d, 16, v%d" % (a, r)); e("v_and_b32 v%d, 0xffff0000, v%d" % (a + 1, r))
            e("v_fma_f32 v%d, v%d, v%d, -v%d" % (a, a, ET + 2, ET)); e("v_fma_f32 v%d, v%d, v%d, -v%d" % (a + 1, a + 1, ET + 2, ET))
            e("v_cvt_pk_bf16_f32 v%d, v%d, v%d" % (r, a, a + 1))
    e("s_lshl_b32 s48, s47, 14")
    e("s_mul_i32 s49, s47, %d" % (2 * 56 * 1024)); e("s_add_u32 s49, s49, 0x%x" % H_OFF)
    e("s_mov_b32 s50, 0xbfb8aa3b")
    e("s_barrier")
    PD = 6
    def rd(f):
        f %= 80
        ks5, ks, T = f >> 4, (f >> 2) & 3, f & 3
        off = ks5 * 16384 + (T >> 1) * 8192 + ks * 2048
        base = 6 + (T & 1)
        if off >= 65536: off -= 65536; base += 2
        b = BB + 4 * (f & 7)
        for a in range(2): e("ds_read_b64_tr_b16 v[%d:%d], v%d offset:%d" % (b + 2 * a, b + 2 * a + 1, base, off + 256 * a))
    for f in range(PD): rd(f)
    A.label("L_g1_loop")
    e("s_lshr_b32 s33, s29, 6"); e("s_cmp_eq_u32 s33, 1"); e("s_cbranch_scc1 L_g1_bodyV")
    for kind in ("N", "V"):
        A.label("L_g1_body" + kind)
        for f in range(80):
            ks5, ks, T = f >> 4, (f >> 2) & 3, f & 3
            if f & 15 == 0:
                e("s_waitcnt vmcnt(8)"); e("s_barrier")
                if ks5 == 1:
                    e("s_add_u32 s30, s30, %d" % NPART); setup_dma()
                dma((ks5 + 4) % 5)
            rd(f + PD)
            e("s_waitcnt lgkmcnt(%d)" % (2 * PD))
            b = vr(BB + 4 * (f & 7), 4)
            for tt in range(2):
                x = vr(XA(tt, 4 * ks5 + ks), 4); d = vr(acc(T, tt), 4)
                c = "0" if (ks5 == 0 and ks == 0) else d
                if kind == "N": e("%s %s, %s, %s, %s" % (MF32, d, b, x, c))
                else: e("%s %s, %s, %s, %s" % (MF32, d, x, b, c))
        e("s_and_b32 s34, s29, 63")
        e("s_lshr_b32 s35, s34, 1"); e("s_lshl_b32 s35, s35, 20"); e("s_add_u32 s35, s35, s48")
        e("s_and_b32 s36, s34, 1")
        if kind == "V":
            e("s_lshl_b32 s36, s36, 12"); e("s_add_u32 s35, s35, s36"); e("s_add_u32 s35, s35, 0x%x" % (KV_OFF + 8192))
            e("s_nop 1")
            for T in range(4):
                o = ET + 4 * T
                for tt in range(2):
                    a = acc(T, tt)
                    e("v_cvt_pk_bf16_f32 v%d, v%d, v%d" % (o + 2 * tt, a, a + 1)); e("v_cvt_pk_bf16_f32 v%d, v%d, v%d" % (o + 2 * tt + 1, a + 2, a + 3))
                e("buffer_store_dwordx4 v[%d:%d], v1, s[4:7], s35 offen offset:%d" % (o, o + 3, 1024 * T))
        else:
            e("s_lshr_b32 s33, s29, 6"); e("s_cmp_eq_u32 s33, 3"); e("s_cbranch_scc1 L_g1_epiF")
            e("s_lshr_b32 s37, s35, 1"); e("s_add_u32 s37, s37, 0x%x" % QF_OFF); e("s_add_u32 s35, s35, 0x%x" % KV_OFF)
            e("s_cmp_eq_u32 s33, 0"); e("s_cselect_b32 s35, s35, s37")
            e("s_lshl_b32 s36, s36, 11"); e("s_add_u32 s35, s35, s36"); e("s_add_u32 s36, s35, 4096")
            for u in range(2):
                for tt in range(2):
                    o = ET + 4 * (2 * u + tt)
                    for i in range(2):
                        a = acc(2 * u + i, tt)
                        e("v_cvt_pk_bf16_f32 v%d, v%d, v%d" % (o + 2 * i, a, a + 1)); e("v_cvt_pk_bf16_f32 v%d, v%d, v%d" % (o + 2 * i + 1, a + 2, a + 3))
                    e("buffer_store_dwordx4 v[%d:%d], v1, s[4:7], s%d offen offset:%d" % (o, o + 3, 35 + tt, 1024 * u))
            e("s_branch L_g1_next")
            A.label("L_g1_epiF")
            e("s_lshl_b32 s35, s34, 10"); e("s_add_u32 s35, s35, s49"); e("s_add_u32 s36, s35, %d" % (56 * 1024))
            for tt in range(2):
                gs = [acc(T, tt) + r for T in range(2) for r in range(4)]
                us = [acc(T + 2, tt) + r for T in range(2) for r in range(4)]
                for i in range(8): e("v_mul_f32 v%d, s50, v%d" % (ET + i, gs[i]))
                for i in range(8): e("v_exp_f32 v%d, v%d" % (ET + i, ET + i))
                for i in range(8): e("v_add_f32 v%d, 1.0, v%d" % (ET + i, ET + i))
                for i in range(8): e("v_rcp_f32 v%d, v%d" % (ET + i, ET + i))
                for i in range(8): e("v_mul_f32 v%d, v%d, v%d" % (gs[i], gs[i], us[i]))
                for i in range(8): e("v_mul_f32 v%d, v%d, v%d" % (gs[i], gs[i], ET + i))
                o = ET + 8 + 4 * tt
                for i in range(4): e("v_cvt_pk_bf16_f32 v%d, v%d, v%d" % (o + i, gs[2 * i], gs[2 * i + 1]))
                e("buffer_store_dwordx4 v[%d:%d], v1, s[4:7], s%d offen" % (o, o + 3, 35 + tt))
            e("s_branch L_g1_next")
    A.label("L_g1_next")
    e("s_add_u32 s29, s29, %d" % NPART); e("s_cmp_lt_u32 s29, %d" % NCG); e("s_cbranch_scc1 L_g1_loop")
    e("s_waitcnt vmcnt(0) lgkmcnt(0)")

def emit_g1_kernel(A):
    e = A.e
    kernel_header(A, "g1_kernel")
    e("s_cmp_ge_u32 s2, 256"); e("s_cbranch_scc1 L_g1_end")
    e("s_load_dwordx4 s[52:55], s[0:1], 0")
    e("s_load_dwordx4 s[16:19], s[0:1], 16")
    e("s_load_dwordx2 s[20:21], s[0:1], 32")
    e("s_load_dwordx4 s[56:59], s[0:1], 64")
    e("s_load_dwordx2 s[60:61], s[0:1], 104")
    e("v_lshrrev_b32 v1, 6, v0"); e("s_nop 0"); e("v_readfirstlane_b32 s26, v1")
    e("s_waitcnt lgkmcnt(0)")
    e("s_mov_b64 s[22:23], s[56:57]"); e("s_mov_b64 s[24:25], s[58:59]")
    srd(e, 4, 60, WS_BYTES); srd(e, 8, 52, 2621440); srd(e, 40, 54, 10240)
    emit_init(A)
    e("v_and_b32 v0, 63, v0")
    e("s_and_b32 s28, s2, 7"); e("s_lshr_b32 s33, s2, 7"); e("s_lshl_b32 s33, s33, 3"); e("s_add_u32 s28, s28, s33")
    e("s_bfe_u32 s27, s2, 0x40003")
    emit_g1(A)
    A.label("L_g1_end")
    e("s_endpgm")

if __name__ == "__main__":
    A = Asm()
    A.raw("; @launch kernel=g1_kernel grid=(256,1,1) block=(256,1,1) lds=81920")
    A.raw('.amdgcn_target "amdgcn-amd-amdhsa--gfx950"')
    A.raw(".text")
    emit_g1_kernel(A)
    A.raw('.section .rodata,"a"'); A.raw(".p2align 6")
    A.raw(kernel_desc("g1_kernel", 256, 80, 256))
    open("g1_test.s", "w").write(A.text())
```

```python
from asmlib import *
from layout import *
from gen_g1 import srd
MF32 = "v_mfma_f32_16x16x32_bf16"
HKS = 56
ACF, ACS, RING, NR, W2B = 16, 32, 48, 24, 144
def WO(ks, T): return ar((ks * 2 + T) * 4, 4)
def W2(ks, T): return vr(W2B + (ks * 2 + T) * 4, 4)

def emit_g2s_prologue(A):
    e = A.e
    e("v_lshlrev_b32 v1, 4, v0")
    e("v_lshrrev_b32 v2, 2, v0"); e("v_mul_u32_u24 v2, 1280, v2")
    e("v_bfe_u32 v3, v0, 4, 1"); e("v_lshlrev_b32 v3, 1, v3"); e("v_and_b32 v4, 3, v0"); e("v_xor_b32 v3, v3, v4"); e("v_lshl_add_u32 v10, v3, 4, v2")
    e("s_lshl_b32 s46, s26, 15")
    e("v_lshrrev_b32 v6, 2, v0"); e("v_lshlrev_b32 v6, 6, v6"); e("v_lshl_add_u32 v6, v4, 3, v6"); e("v_bfe_u32 v5, v0, 4, 1"); e("v_lshl_add_u32 v6, v5, 5, v6")
    e("v_add_u32 v6, s46, v6"); e("v_xor_b32 v7, 32, v6")
    e("s_lshl_b32 s32, s28, 6")
    e("s_mul_i32 s33, s26, %d" % (1024 * 1280)); e("s_add_u32 s33, s33, s32")
    e("s_mul_i32 s34, s26, %d" % (448 * 1280)); e("s_add_u32 s34, s34, s32")
    items = [("2", t) for t in range(7)] + [("O", t) for t in range(16)]
    def issue(it, sl):
        k, t = it
        for i in range(4):
            e("s_add_u32 m0, s46, %d" % (sl * 4096 + i * 1024))
            e("s_add_u32 s35, s%d, %d" % (33 if k == "O" else 34, (64 * t + 16 * i) * 1280))
            e("buffer_load_dwordx4 v10, %s, s35 offen lds" % ("s[20:23]" if k == "O" else "s[12:15]"))
    def consume(it, sl):
        k, t = it
        for kk in range(2):
            for T in range(2):
                for a in range(2):
                    idx = ((2 * t + kk) * 2 + T) * 4 + 2 * a
                    d = ar(idx, 2) if k == "O" else vr(W2B + idx, 2)
                    e("ds_read_b64_tr_b16 %s, v%d offset:%d" % (d, 6 + T, sl * 4096 + kk * 2048 + a * 1024))
    infl = []
    for n in range(8): issue(items[n], n); infl.append((items[n], n))
    nxt = 8
    while infl:
        it, sl = infl.pop(0)
        e("s_waitcnt vmcnt(%d)" % (4 * len(infl)))
        consume(it, sl)
        e("s_waitcnt lgkmcnt(0)")
        if nxt < len(items): issue(items[nxt], sl); infl.append((items[nxt], sl)); nxt += 1
    e("v_and_b32 v2, 15, v0"); e("v_mul_u32_u24 v2, 1280, v2"); e("v_lshrrev_b32 v3, 4, v0"); e("v_lshl_add_u32 v2, v3, 3, v2")
    e("s_and_b32 s33, s26, 1"); e("s_mul_i32 s33, s33, 20480"); e("s_lshr_b32 s34, s26, 1"); e("s_lshl_b32 s34, s34, 5"); e("s_add_u32 s33, s33, s34"); e("s_add_u32 s33, s33, s32")
    e("v_add_u32 v2, s33, v2")
    e("s_lshl_b32 s33, s26, 13"); e("v_add_u32 v3, s33, v1")
    e("s_lshl_b32 s33, s26, 10"); e("v_add_u32 v4, s33, v1")
    e("s_mov_b32 s50, 0xbfb8aa3b")
    e("s_barrier")

def emit_g2s_task(A, waitH=None, waitO=None, sc=""):
    e = A.e
    e("s_mul_i32 s36, s47, %d" % (2 * HKS * 1024)); e("s_mul_i32 s33, s26, %d" % (14 * 1024)); e("s_add_u32 s36, s36, s33"); e("s_add_u32 s36, s36, 0x%x" % H_OFF)
    e("s_lshl_b32 s38, s47, 18"); e("s_lshl_b32 s33, s26, 15"); e("s_add_u32 s38, s38, s33"); e("s_add_u32 s38, s38, 0x%x" % O_OFF)
    e("s_mul_i32 s40, s47, 40960")
    def phase(nks, sbase, tstride, acc, W):
        n = 2 * nks
        def ld(i):
            ks, tt = i >> 1, i & 1
            off = tt * tstride + (ks >> 2) * 4096
            e("s_add_u32 s33, s%d, %d" % (sbase, off))
            e("buffer_load_dwordx4 %s, v1, s[4:7], s33 offen offset:%d%s" % (vr(RING + 4 * (i % NR), 4), 1024 * (ks & 3), sc))
        for i in range(min(NR, n)): ld(i)
        for i in range(n):
            ks, tt = i >> 1, i & 1
            e("s_waitcnt vmcnt(%d)" % min(NR - 1, n - 1 - i))
            for T in range(2):
                d = vr(acc + (T * 2 + tt) * 4, 4)
                e("%s %s, %s, %s, %s" % (MF32, d, W(ks, T), vr(RING + 4 * (i % NR), 4), "0" if ks == 0 else d))
            if i + NR < n: ld(i + NR)
    if waitH: waitH()
    phase(14, 36, HKS * 1024, ACF, W2)
    e("buffer_load_dwordx2 v[8:9], v2, s[8:11], s40 offen")
    if waitO: waitO()
    e("s_waitcnt vmcnt(0)")
    phase(32, 38, 0x20000, ACS, WO)
    e("s_nop 7")
    for q in range(8): e("ds_write_b128 v3, %s offset:%d" % (vr(ACF + 4 * q, 4), 1024 * q))
    e("s_waitcnt lgkmcnt(0)"); e("s_barrier")
    for w in range(4):
        e("ds_read_b128 %s, v4 offset:%d" % (vr(RING + 4 * w, 4), 8192 * w))
        e("ds_read_b128 %s, v4 offset:%d" % (vr(RING + 16 + 4 * w, 4), 8192 * w + 4096))
    e("v_lshlrev_b32 v12, 16, v8"); e("v_and_b32 v13, 0xffff0000, v8"); e("v_lshlrev_b32 v14, 16, v9"); e("v_and_b32 v15, 0xffff0000, v9")
    e("s_waitcnt lgkmcnt(0)"); e("s_barrier")
    F, S = RING, RING + 16
    for b in (F, S):
        for i in range(4):
            e("v_add_f32 v%d, v%d, v%d" % (b + i, b + i, b + 4 + i)); e("v_add_f32 v%d, v%d, v%d" % (b + 8 + i, b + 8 + i, b + 12 + i))
        for i in range(4): e("v_add_f32 v%d, v%d, v%d" % (b + i, b + i, b + 8 + i))
    t = F + 4
    for i in range(4): e("v_mul_f32 v%d, s50, v%d" % (t + i, F + i))
    for i in range(4): e("v_exp_f32 v%d, v%d" % (t + i, t + i))
    for i in range(4): e("v_add_f32 v%d, 1.0, v%d" % (t + i, t + i))
    for i in range(4): e("v_rcp_f32 v%d, v%d" % (t + i, t + i))
    for i in range(4): e("v_mul_f32 v%d, v%d, v%d" % (F + i, F + i, S + i))
    for i in range(4): e("v_fma_f32 v%d, v%d, v%d, v%d" % (12 + i, F + i, t + i, 12 + i))
    e("v_cvt_pk_bf16_f32 v12, v12, v13"); e("v_cvt_pk_bf16_f32 v13, v14, v15")
    e("buffer_store_dwordx2 v[12:13], v2, s[16:19], s40 offen")

def emit_g2s_kernel(A):
    e = A.e
    kernel_header(A, "g2_kernel")
    e("s_cmp_ge_u32 s2, 160"); e("s_cbranch_scc1 L_g2_end")
    e("s_load_dwordx2 s[52:53], s[0:1], 0")
    e("s_load_dwordx2 s[54:55], s[0:1], 40")
    e("s_load_dwordx4 s[56:59], s[0:1], 80")
    e("s_load_dwordx2 s[60:61], s[0:1], 104")
    e("v_lshrrev_b32 v1, 6, v0"); e("v_and_b32 v0, 63, v0"); e("v_readfirstlane_b32 s26, v1")
    e("s_waitcnt lgkmcnt(0)")
    srd(e, 4, 60, WS_BYTES); srd(e, 8, 52, 2621440); srd(e, 16, 58, 2621440); srd(e, 12, 56, 1728 * 1280); srd(e, 20, 54, 5242880)
    e("s_and_b32 s47, s2, 7"); e("s_lshr_b32 s28, s2, 3")
    emit_g2s_prologue(A)
    A.label("L_g2_loop")
    emit_g2s_task(A)
    e("s_add_u32 s47, s47, 8"); e("s_cmp_lt_u32 s47, 64"); e("s_cbranch_scc1 L_g2_loop")
    A.label("L_g2_end")
    e("s_endpgm")
```

```python
from asmlib import *
from layout import *

SMF = "v_smfmac_f32_16x16x64_bf16"
MF32 = "v_mfma_f32_16x16x32_bf16"
MF16 = "v_mfma_f32_16x16x16_bf16"

SPIN_LIMIT = 100000
R_AT = 0
KX_L, AC_L, QKX_L, SEL_L, MISC_L, WV_L = 0, 16384, 26624, 30720, 31744, 32768
OX_L = AC_L + 5120
VX_L = 8192
NSLOT = 8
WB = 80
def FR(f): return R(WB + 8 * f, 8)
LSLOT = {("K", 0): 0, ("K", 2): 1, ("K", 4): 2, ("V", 1): 3, ("V", 3): 4, ("Q", 5): 5, ("O", 3): 6, ("O", 4): 7}
_res = [(m, j) for m in "QKV" for j in range(10) if (m, j) not in LSLOT] + [("O", t) for t in range(3)]
RIDX = {k: i for i, k in enumerate(_res)}
assert len(_res) == 27
def FX(m, j, T): return 2 * RIDX[(m, j)] + T
def AA(j): return 12 + 4 * j
GG, ACQ, ACK, ACV, TMP = 32, 40, 48, 56, 64
D_GAP = 2
DIS = 0
PUBSC = ""
KVSC = ""
TRACE_STEP = 40

def emit_rec(A, instr=False, d_first=4, d_red=4, steps=64, exit_label="L_end"):
    e = A.e
    e("s_load_dwordx4 s[52:55], s[0:1], 16")
    e("s_load_dwordx4 s[56:59], s[0:1], 32")
    e("s_load_dwordx4 s[60:63], s[0:1], 96")
    e("v_lshrrev_b32 v11, 6, v0"); e("v_and_b32 v0, 63, v0"); e("v_readfirstlane_b32 s28, v11")
    e("s_waitcnt lgkmcnt(0)")
    for (d, s, n) in ((4, 62, WS_BYTES), (8, 52, 5242880), (12, 54, 5242880), (16, 56, 5242880), (20, 58, 5242880), (24, 60, 256)):
        e("s_mov_b32 s%d, s%d" % (d, s)); e("s_mov_b32 s%d, s%d" % (d + 1, s + 1)); e("s_mov_b32 s%d, 0x%x" % (d + 2, n)); e("s_mov_b32 s%d, 0x20000" % (d + 3))
    e("s_mov_b32 s74, 0")
    e("s_getreg_b32 s52, hwreg(HW_REG_XCC_ID)"); e("s_and_b32 s52, s52, 15")
    e("s_mov_b32 s53, 1")
    e("s_cmp_eq_u32 s52, 0"); e("s_cselect_b32 s54, 0x400, 0"); e("s_add_u32 s53, s53, s54")
    e("s_cmp_eq_u32 s52, 1"); e("s_cselect_b32 s54, 0x100000, 0"); e("s_add_u32 s53, s53, s54")
    e("v_mov_b32 v1, s53"); e("v_mov_b32 v2, 0"); e("v_mov_b32 v3, %d" % MISC_L)
    e("s_cmp_lg_u32 s28, 0"); e("s_cbranch_scc1 L_el_done")
    e("s_mov_b64 exec, 1")
    e("buffer_atomic_add v1, v2, s[24:27], 0 offen sc0 sc1"); e("s_waitcnt vmcnt(0)")
    A.label("L_el_poll")
    e("buffer_load_dword v4, v2, s[24:27], 0 offen sc1"); e("s_waitcnt vmcnt(0)")
    e("v_readfirstlane_b32 s54, v4"); e("s_nop 3")
    e("s_bfe_u32 s55, s54, 0xa000a"); e("s_bfe_u32 s56, s54, 0xa0014"); e("s_min_u32 s55, s55, s56")
    e("s_mov_b32 s57, 0")
    e("s_cmp_ge_u32 s55, 32"); e("s_cbranch_scc1 L_el_dec")
    e("s_mov_b32 s57, 1")
    e("s_and_b32 s55, s54, 0x3ff"); e("s_cmp_ge_u32 s55, 256"); e("s_cbranch_scc1 L_el_dec")
    e("s_add_u32 s74, s74, 1"); e("s_cmp_gt_u32 s74, %d" % SPIN_LIMIT); e("s_cbranch_scc1 L_abort")
    e("s_sleep 2"); e("s_branch L_el_poll")
    A.label("L_el_dec")
    e("v_mov_b32 v4, s57")
    e("ds_write_b32 v3, v1"); e("ds_write_b32 v3, v4 offset:4"); e("s_waitcnt lgkmcnt(0)")
    e("s_mov_b64 exec, -1")
    A.label("L_el_done")
    e("s_barrier")
    e("ds_read_b64 v[4:5], v3"); e("s_waitcnt lgkmcnt(0)")
    e("v_readfirstlane_b32 s54, v4"); e("v_readfirstlane_b32 s31, v5"); e("s_nop 3")
    e("s_barrier")
    e("s_cmp_lg_u32 s31, 0"); e("s_cbranch_scc1 L_el_slow")
    e("s_cmp_ge_u32 s52, 2"); e("s_cbranch_scc1 %s" % exit_label)
    e("s_mov_b32 s29, s52")
    e("s_bfe_u32 s55, s54, 0xa000a"); e("s_bfe_u32 s56, s54, 0xa0014")
    e("s_cmp_eq_u32 s52, 0"); e("s_cselect_b32 s30, s55, s56")
    e("s_cmp_ge_u32 s30, 32"); e("s_cbranch_scc1 %s" % exit_label)
    e("s_branch L_el_role")
    A.label("L_el_slow")
    e("s_and_b32 s55, s54, 0x3ff"); e("s_cmp_ge_u32 s55, 64"); e("s_cbranch_scc1 %s" % exit_label)
    e("s_lshr_b32 s29, s55, 5"); e("s_and_b32 s30, s55, 31")
    A.label("L_el_role")
    e("v_lshlrev_b32 v1, 4, v0")
    e("v_and_b32 v11, 1, v0"); e("v_cmp_eq_u32 vcc, 1, v11"); e("v_mov_b32 v2, 0x4444"); e("v_mov_b32 v11, 0xeeee"); e("v_cndmask_b32 v2, v2, v11, vcc")
    C, G, RR, CP, T0, T1 = 64, 65, 66, 67, 68, 69
    e("v_and_b32 v%d, 15, v0" % C); e("v_lshrrev_b32 v%d, 4, v0" % G)
    e("v_bfe_u32 v%d, v0, 2, 2" % RR); e("v_and_b32 v%d, 3, v0" % CP)
    e("v_and_b32 v%d, 1, v%d" % (T0, RR)); e("v_lshlrev_b32 v3, 4, v%d" % T0)
    e("v_lshrrev_b32 v%d, 1, v%d" % (T1, G)); e("v_lshl_add_u32 v3, v%d, 2, v3" % T1)
    e("v_lshrrev_b32 v%d, 1, v%d" % (T1, RR)); e("v_lshl_add_u32 v3, v%d, 1, v3" % T1)
    e("v_and_b32 v%d, 1, v%d" % (T1, G)); e("v_add_u32 v3, v3, v%d" % T1)
    e("v_lshlrev_b32 v3, 6, v3"); e("v_lshl_add_u32 v3, v%d, 3, v3" % CP); e("v_lshl_add_u32 v3, v%d, 5, v3" % T0)
    e("s_mul_i32 s52, s28, %d" % (NSLOT * 4096)); e("s_add_u32 s52, s52, %d" % WV_L)
    e("v_add_u32 v3, s52, v3"); e("v_xor_b32 v4, 32, v3")
    e("s_lshl_b32 s53, s28, 10"); e("s_add_u32 s53, s53, %d" % QKX_L)
    e("v_lshlrev_b32 v5, 5, v%d" % C); e("v_lshl_add_u32 v5, v%d, 3, v5" % G); e("v_add_u32 v5, s53, v5")
    e("v_lshlrev_b32 v6, 3, v0")
    e("v_lshrrev_b32 v%d, 2, v%d" % (T0, C)); e("v_and_b32 v%d, 1, v%d" % (T1, C)); e("v_lshl_add_u32 v%d, v%d, 1, v%d" % (T0, T0, T1))
    e("v_mul_u32_u24 v7, 320, v%d" % T0); e("v_lshl_add_u32 v7, v%d, 3, v7" % G)
    e("s_lshl_b32 s53, s28, 6"); e("s_add_u32 s53, s53, %d" % OX_L); e("v_add_u32 v7, s53, v7")
    e("v_lshrrev_b32 v%d, 1, v%d" % (T0, C)); e("v_mul_u32_u24 v8, 320, v%d" % T0); e("v_lshl_add_u32 v8, v%d, 5, v8" % G)
    e("v_lshl_add_u32 v8, v%d, 4, v8" % T1); e("v_add_u32 v8, %d, v8" % OX_L)
    e("v_lshlrev_b32 v9, 13, v%d" % G); e("v_lshrrev_b32 v%d, 3, v%d" % (T0, C)); e("v_lshl_add_u32 v9, v%d, 12, v9" % T0)
    e("v_and_b32 v%d, 7, v%d" % (T0, C)); e("v_lshl_add_u32 v9, v%d, 4, v9" % T0)
    e("s_lshl_b32 s42, s28, 5"); e("s_add_u32 s42, s42, s30")
    e("s_and_b32 s53, s42, 1"); e("s_lshl_b32 s53, s53, 3")
    e("v_add_u32 v%d, s53, v%d" % (T0, T0))
    e("v_lshrrev_b32 v10, 2, v%d" % T0); e("v_lshlrev_b32 v10, 8, v10")
    e("v_bfe_u32 v%d, v%d, 1, 1" % (T1, T0)); e("v_lshl_add_u32 v10, v%d, 4, v10" % T1)
    e("v_and_b32 v%d, 1, v%d" % (T1, T0)); e("v_lshl_add_u32 v10, v%d, 3, v10" % T1)
    e("v_and_b32 v%d, 1, v%d" % (T1, G)); e("v_lshl_add_u32 v10, v%d, 5, v10" % T1)
    e("s_bfe_u32 s53, s42, 0x20001"); e("s_lshl_b32 s53, s53, 6")
    e("s_lshr_b32 s54, s42, 3"); e("s_lshl_b32 s54, s54, 10"); e("s_add_u32 s53, s53, s54")
    e("v_add_u32 v10, s53, v10")
    e("s_lshl_b32 s53, s29, 18"); e("s_add_u32 s53, s53, 0x%x" % PB_OFF)
    e("s_lshl_b32 s54, s30, 7"); e("s_add_u32 s54, s54, s53")
    e("s_lshl_b32 s43, s28, 15"); e("s_add_u32 s43, s43, s54")
    e("s_lshl_b32 s44, s28, 2"); e("s_add_u32 s44, s44, s54"); e("s_add_u32 s44, s44, 0x20000")
    e("s_lshl_b32 s45, s42, 12"); e("s_add_u32 s45, s45, s53")
    e("s_lshl_b32 s53, s29, 19")
    e("s_add_u32 s38, s53, 0x%x" % ML_OFF)
    e("s_add_u32 s40, s53, 0x%x" % MR_OFF)
    e("s_xor_b32 s53, s53, 0x80000"); e("s_add_u32 s39, s53, 0x%x" % MR_OFF)
    e("s_lshl_b32 s53, s30, 20"); e("s_lshl_b32 s54, s28, 11"); e("s_add_u32 s53, s53, s54")
    e("s_add_u32 s46, s53, 0x%x" % KV_OFF); e("s_add_u32 s47, s46, 8192")
    e("s_lshr_b32 s54, s53, 1"); e("s_add_u32 s48, s54, 0x%x" % XV_OFF)
    e("s_lshl_b32 s53, s30, 19"); e("s_lshl_b32 s54, s28, 9"); e("s_add_u32 s49, s53, s54"); e("s_add_u32 s49, s49, 0x%x" % (XV_OFF + 4096))
    e("s_lshl_b32 s50, s28, 11")
    GE, GO, GW4, GW1 = 70, 71, 72, 73
    e("v_lshrrev_b32 v%d, 2, v0" % T0); e("v_lshlrev_b32 v%d, 13, v%d" % (GE, T0)); e("v_lshl_add_u32 v%d, v%d, 4, v%d" % (GE, CP, GE))
    e("s_lshl_b32 s53, s30, 8"); e("s_lshl_b32 s54, s28, 6"); e("s_add_u32 s53, s53, s54")
    e("v_add_u32 v%d, s53, v%d" % (GE, GE)); e("v_xor_b32 v%d, 32, v%d" % (GO, GE))
    e("v_lshrrev_b32 v%d, 1, v0" % T0); e("v_mul_u32_u24 v%d, 1280, v%d" % (GW1, T0)); e("v_and_b32 v%d, 1, v0" % T0); e("v_lshl_add_u32 v%d, v%d, 4, v%d" % (GW1, T0, GW1))
    e("s_mul_i32 s53, s30, 163840"); e("s_mul_i32 s54, s29, 640"); e("s_add_u32 s53, s53, s54")
    e("s_lshl_b32 s54, s28, 7"); e("s_add_u32 s54, s54, s53"); e("v_add_u32 v%d, s54, v%d" % (GW4, GW1))
    e("s_lshl_b32 s54, s28, 5"); e("s_add_u32 s54, s54, s53"); e("s_add_u32 s54, s54, 512"); e("v_add_u32 v%d, s54, v%d" % (GW1, GW1))
    e("v_lshrrev_b32 v%d, 1, v%d" % (T0, G)); e("v_lshlrev_b32 v%d, 4, v%d" % (T0, T0))
    e("v_lshrrev_b32 v%d, 1, v%d" % (T1, RR)); e("v_lshl_add_u32 v%d, v%d, 3, v%d" % (T0, T1, T0))
    e("v_and_b32 v%d, 1, v%d" % (T1, G)); e("v_lshl_add_u32 v%d, v%d, 2, v%d" % (T0, T1, T0))
    e("v_and_b32 v%d, 1, v%d" % (T1, RR)); e("v_add_u32 v%d, v%d, v%d" % (T0, T0, T1))
    e("v_lshlrev_b32 v0, 5, v%d" % T0); e("v_lshl_add_u32 v0, v%d, 3, v0" % CP); e("v_add_u32 v0, s52, v0")
    e("s_mul_i32 s53, s29, 5"); e("s_sub_u32 s54, 5, s53")
    for j in range(10):
        e("s_add_u32 s%d, s%d, %d" % (64 + j, 53 if j < 5 else 54, j % 5)); e("s_lshl_b32 s%d, s%d, 19" % (64 + j, 64 + j))
    e("v_mov_b32 v21, 0x3f80"); e("v_mov_b32 v22, 0x3f800000")
    e("v_cmp_gt_u32 vcc, 4, v%d" % C); e("s_nop 1"); e("v_cndmask_b32 v21, v22, v21, vcc")
    e("v_cmp_gt_u32 vcc, 8, v%d" % C); e("s_nop 1"); e("v_cndmask_b32 v21, 0, v21, vcc")
    for d in range(4):
        e("v_cmp_eq_u32 vcc, %d, v%d" % (d, CP)); e("s_nop 1"); e("v_cndmask_b32 v%d, 0, v21, vcc" % (16 + d))
    e("ds_write_b128 v1, v[16:19] offset:%d" % SEL_L)
    e("s_lshl_b32 s33, s28, 10"); e("s_lshl_b32 s34, s28, 8"); e("s_add_u32 s34, s34, 4096")
    items = list(_res)
    final = sorted(LSLOT, key=lambda k: LSLOT[k])
    def issue(it, slot):
        k, j = it
        for i in range(4):
            e("s_add_u32 m0, s52, %d" % (slot * 4096 + i * 1024))
            if k == "O":
                e("s_mov_b32 s53, %d" % (i * 32 * 1280 + (32 * j if j < 4 else 0)))
                e("buffer_load_dwordx4 v%d, s[20:23], s53 offen lds" % (GW4 if j < 4 else GW1))
            else:
                e("s_add_u32 s53, s%d, %d" % (64 + j, i * 16 * 8192))
                e("buffer_load_dwordx4 v%d, %s, s53 offen lds" % (GO if i & 1 else GE, {"Q": "s[8:11]", "K": "s[12:15]", "V": "s[16:19]"}[k]))
    def consume(it, slot):
        k, j = it
        for T in range(2):
            f = FX(k, j, T)
            for a in range(4):
                if k == "O": e("ds_read_b64_tr_b16 %s, v0 offset:%d" % (R(WB + 8 * f + 2 * a, 2), slot * 4096 + (64 * T + 32 * (a >> 1) + 2 * (a & 1)) * 32))
                else: e("ds_read_b64_tr_b16 %s, v%d offset:%d" % (R(WB + 8 * f + 2 * a, 2), 3 + T, slot * 4096 + 2048 * (a & 1) + 512 * (a >> 1)))
    inflight = []
    for n in range(NSLOT):
        issue(items[n], n); inflight.append((items[n], n))
    nxt = NSLOT
    done = set()
    while inflight and inflight[0][0] != "F":
        it, sl = inflight.pop(0)
        e("s_waitcnt vmcnt(%d)" % (4 * len(inflight)))
        consume(it, sl)
        e("s_waitcnt lgkmcnt(0)")
        if nxt < len(items):
            issue(items[nxt], sl); inflight.append((items[nxt], sl)); nxt += 1
        else:
            issue(final[sl], sl); inflight.append(("F", sl)); done.add(sl)
    assert len(done) == NSLOT
    e("s_waitcnt vmcnt(0)")
    e("v_add_u32 v11, s52, v1")
    for sl in range(NSLOT):
        k, j = final[sl]
        for T in range(2):
            for a in range(4):
                d = 16 + 8 * T + 2 * a
                if k == "O": e("ds_read_b64_tr_b16 v[%d:%d], v0 offset:%d" % (d, d + 1, sl * 4096 + (64 * T + 32 * (a >> 1) + 2 * (a & 1)) * 32))
                else: e("ds_read_b64_tr_b16 v[%d:%d], v%d offset:%d" % (d, d + 1, 3 + T, sl * 4096 + 2048 * (a & 1) + 512 * (a >> 1)))
        e("s_waitcnt lgkmcnt(0)")
        for q in range(4): e("ds_write_b128 v11, v[%d:%d] offset:%d" % (16 + 4 * q, 19 + 4 * q, sl * 4096 + 1024 * q))
    e("v_mov_b32 v3, v11")
    e("v_lshrrev_b32 v0, 2, v1")
    e("v_lshlrev_b32 v4, 2, v1")
    e("s_lshl_b32 s35, s28, 8"); e("s_add_u32 s35, s35, %d" % MISC_L)
    e("s_and_b32 s36, s42, 63"); e("s_lshl_b32 s36, s36, 7"); e("s_add_u32 s36, s36, 10240")
    e("s_lshl_b32 s50, s28, 12"); e("s_lshl_b32 s46, s30, 20"); e("s_add_u32 s46, s46, s50"); e("s_add_u32 s46, s46, 0x%x" % KV_OFF)
    e("s_lshl_b32 s56, s28, 10"); e("s_lshl_b32 s57, s28, 9")
    e("s_add_u32 s54, s57, 4096"); e("s_cmp_eq_u32 s29, 0"); e("s_cselect_b32 s54, s56, s54")
    e("s_lshl_b32 s48, s30, 19"); e("s_add_u32 s48, s48, s54"); e("s_add_u32 s48, s48, 0x%x" % (XV_OFF - 0x2000))
    e("s_lshl_b32 s47, s28, 11"); e("s_add_u32 s47, s47, %d" % VX_L)
    for r in range(ACQ, ACQ + 24): e("v_mov_b32 v%d, 0" % r)
    e("s_mov_b32 s32, 0")
    e("s_mov_b32 s51, 0x3e0293ee")
    e("s_waitcnt vmcnt(0)")
    e("s_barrier")
    if instr in (1, 2):
        for r in range(80, 96): e("s_mov_b32 s%d, 0" % r)
        e("s_memtime s[76:77]"); e("s_waitcnt lgkmcnt(0)"); e("s_mov_b32 s78, s76"); e("s_mov_b32 s95, s76")
    TP = [64, 66, 68, 70, 72] + list(range(76, 102, 2))
    tstate = {"n": 0}
    def stamp(i, fine=False):
        if not instr: return
        if instr == 3:
            n = tstate["n"]
            e("s_memtime s[%d:%d]" % (TP[n], TP[n] + 1)); A.c("stamp %d (%s)" % (n, i))
            tstate["n"] = n + 1
            if i == 8:
                l = A.newlabel("Lst")
                e("s_cmp_lg_u32 s32, %d" % TRACE_STEP); e("s_cbranch_scc1 %s" % l)
                e("s_waitcnt lgkmcnt(0)")
                e("s_lshl_b32 s53, s29, 5"); e("s_add_u32 s53, s53, s30"); e("s_lshl_b32 s53, s53, 2"); e("s_add_u32 s53, s53, s28"); e("s_lshl_b32 s53, s53, 7"); e("s_add_u32 s53, s53, 0x%x" % ST_OFF)
                e("v_mov_b32 v37, 0")
                for k in range(tstate["n"]):
                    e("v_mov_b32 v11, s%d" % TP[k]); e("buffer_store_dword v11, v37, s[4:7], s53 offen offset:%d" % (4 * k))
                A.label(l)
                tstate["n"] = 0
            return
        if fine: return
        if instr == 2:
            l = A.newlabel("Lst")
            e("s_cmp_lg_u32 s32, %d" % TRACE_STEP); e("s_cbranch_scc1 %s" % l)
            e("s_memrealtime s[76:77]"); e("s_waitcnt lgkmcnt(0)"); e("s_mov_b32 s%d, s76" % (80 + i))
            A.label(l)
            return
        e("s_memtime s[76:77]"); e("s_waitcnt lgkmcnt(0)")
        e("s_sub_u32 s79, s76, s78"); e("s_add_u32 s%d, s%d, s79" % (80 + i, 80 + i)); e("s_mov_b32 s78, s76")
        if i == 8:
            l = A.newlabel("Lst")
            e("s_cmp_lg_u32 s32, 3"); e("s_cbranch_scc1 %s" % l)
            for r in range(80, 95): e("s_mov_b32 s%d, 0" % r)
            e("s_mov_b32 s95, s76")
            A.label(l)
    e("s_cmp_lg_u32 s31, 0"); e("s_cbranch_scc1 L_loop_slow")
    for mode in ("fast", "slow"):
        sc = "" if mode == "fast" else " sc1"
        A.label("L_loop_" + mode)
        for par in (1, 0):
            emit_step(A, par, sc, stamp, d_first, d_red, instr in (1, 2))
        e("s_cmp_lt_u32 s32, %d" % steps); e("s_cbranch_scc1 L_loop_" + mode)
        e("s_branch L_rec_done")
    A.label("L_rec_done")
    publish(A)
    if instr in (1, 2):
        e("s_memtime s[76:77]"); e("s_waitcnt lgkmcnt(0)"); e("s_sub_u32 s95, s76, s95")
        e("s_lshl_b32 s53, s29, 5"); e("s_add_u32 s53, s53, s30"); e("s_lshl_b32 s53, s53, 2"); e("s_add_u32 s53, s53, s28"); e("s_lshl_b32 s53, s53, 6"); e("s_add_u32 s53, s53, 0x%x" % ST_OFF)
        e("v_mov_b32 v0, 0")
        for i in range(16):
            e("v_mov_b32 v11, s%d" % (80 + i)); e("buffer_store_dword v11, v0, s[4:7], s53 offen offset:%d" % (4 * i))

    e("s_branch %s" % exit_label)
    A.label("L_abort")
    e("s_mov_b64 exec, 1")
    e("v_mov_b32 v0, 64"); e("v_mov_b32 v11, 1")
    e("buffer_store_dword v11, v0, s[24:27], 0 offen")

def fload(A, dst, slot, T):
    for q in range(2):
        A.e("ds_read_b128 v[%d:%d], v3 offset:%d" % (dst + 4 * q, dst + 4 * q + 3, slot * 4096 + 2048 * T + 1024 * q))

def publish(A, lds=None, wait_for=None, mm=None):
    e = A.e
    e("v_add_u32 v36, s56, v6"); e("v_add_u32 v37, s57, v6")
    e("ds_read_b64_tr_b16 v[32:33], v36 offset:%d" % QKX_L); e("ds_read_b64_tr_b16 v[34:35], v36 offset:%d" % (QKX_L + 512))
    e("ds_read_b64 v[38:39], v37 offset:%d" % QKX_L)
    if lds: lds("PB", 3)
    seq = (6, 7, 9, 5, 8) if mm else (9,)
    for j in seq:
        if mm:
            wait_for(("A", j))
            for T in range(2): mm("Q", j, T)
        if j == 9:
            if mm: wait_for("PB")
            else: e("s_waitcnt lgkmcnt(0)")
            t1 = A.newlabel("Lt1"); tj = A.newlabel("Ltj")
            e("s_cmp_eq_u32 s32, 0"); e("s_cbranch_scc1 %s" % tj)
            e("s_cmp_lg_u32 s29, 0"); e("s_cbranch_scc1 %s" % t1)
            if not DIS & 1: e("buffer_store_dwordx4 v[32:35], v1, s[4:7], s48 offen%s" % PUBSC)
            e("s_branch %s" % tj)
            A.label(t1)
            if not DIS & 1: e("buffer_store_dwordx2 v[38:39], v6, s[4:7], s48 offen%s" % PUBSC)
            A.label(tj)
            e("s_add_u32 s48, s48, 0x2000")

def emit_step(A, par, sc, stamp, d_first, d_red, instr):
    e = A.e
    KXC = KX_L
    ACC = {"Q": ACQ, "K": ACK, "V": ACV}
    def smf(acc, a, b): e("%s v[%d:%d], %s, %s, v2" % (SMF, acc, acc + 3, vr(a, 4), b))
    def spin():
        e("s_add_u32 s74, s74, 1"); e("s_cmp_gt_u32 s74, %d" % SPIN_LIMIT); e("s_cbranch_scc1 L_abort")
    def gl_load(reg, s):
        e("buffer_load_dwordx4 v[%d:%d], v37, s[4:7], s%d offen sc1" % (reg, reg + 3, s))
        e("buffer_load_dword v%d, v38, s[4:7], s%d offen sc1" % (reg + 4, s))
    def gl_check(reg):
        e("v_max3_u32 v11, v%d, v%d, v%d" % (reg, reg + 1, reg + 2)); e("v_max3_u32 v11, v11, v%d, v%d" % (reg + 3, reg + 4))
        e("v_cmp_eq_u32 vcc, -1, v11")
    def gl_write(reg, half):
        e("ds_write_b128 v37, v[%d:%d] offset:%d" % (reg, reg + 3, AC_L + 5120 * half))
        e("ds_write_b32 v38, v%d offset:%d" % (reg + 4, AC_L + 5120 * half))
    Lseq = [(m, j, T) for (m, j) in [("K", 0), ("K", 2), ("K", 4), ("V", 1), ("V", 3), ("Q", 5)] for T in range(2)]
    lstate = {"issued": 0, "other": 0}
    pend = []
    def lds(tag, n=1):
        pend.extend([tag] * n)
    def wait_for(tag):
        if tag not in pend: return
        last = len(pend) - 1 - pend[::-1].index(tag)
        n = len(pend) - 1 - last
        e("s_waitcnt lgkmcnt(%d)" % n)
        del pend[:last + 1]
    def wait_all():
        e("s_waitcnt lgkmcnt(0)"); del pend[:]
    def Lissue():
        i = lstate["issued"]
        if i >= len(Lseq): return
        m, j, T = Lseq[i]
        fload(A, TMP + 8 * (i % 2), LSLOT[(m, j)], T); lds(("L", i), 2)
        lstate["issued"] = i + 1
    def mm(m, j, T):
        a = AA(j % 5)
        if (m, j) in LSLOT:
            i = Lseq.index((m, j, T))
            wait_for(("L", i))
            smf(ACC[m] + 4 * T, a, vr(TMP + 8 * (i % 2), 8))
            Lissue()
        else:
            smf(ACC[m] + 4 * T, a, FR(FX(m, j, T)))
    def rdA(j):
        e("ds_read_b128 v[%d:%d], v1 offset:%d" % (AA(j % 5), AA(j % 5) + 3, AC_L + 1024 * j)); lds(("A", j))
    def zero(lo, hi):
        for r in range(lo, hi, 2): e("v_mov_b64 v[%d:%d], 0" % (r, r + 1))
    e("v_add_u32 v37, s33, v1"); e("v_add_u32 v38, s34, v0")
    if d_first: e("s_sleep %d" % d_first)
    GA, GB = 12, 20
    gl_load(GA, 38)
    stamp("issueA", True)
    if D_GAP: e("s_sleep %d" % D_GAP)
    e("s_mov_b32 m0, s50")
    gl_load(GB, 38)
    for i in range(4): e("buffer_load_dwordx4 v1, s[4:7], s46 offen offset:%d lds%s" % (1024 * i, KVSC))
    lp = A.newlabel("Lgl"); okA = A.newlabel("LglA"); okB = A.newlabel("LglB"); ok = A.newlabel("Lglok"); re = A.newlabel("Lglre")
    e("s_waitcnt vmcnt(6)")
    A.label(lp)
    gl_check(GA); e("s_cbranch_vccnz %s" % re)
    gl_write(GA, 0)
    A.label(ok)
    lds("W", 2)
    stamp("gotL", True)
    Lissue(); Lissue()
    wait_for("W")
    stamp(0)
    e("s_barrier")
    e("s_waitcnt vmcnt(0)")
    stamp("B4", True)
    for j in range(5): rdA(j)
    gl_load(GG, 39)
    for j in range(5):
        wait_for(("A", j))
        if j % 2 == 0: order = [("K", 0), ("Q", 0), ("Q", 1), ("K", 1)]
        else: order = [("Q", 0), ("K", 0), ("Q", 1), ("K", 1)]
        for m, T in order: mm(m, j, T)

    stamp(1)
    lpr = A.newlabel("Lgr"); rer = A.newlabel("Lgrre")
    A.label(lpr)
    e("s_waitcnt vmcnt(0)"); gl_check(GG); e("s_cbranch_vccnz %s" % rer)
    gl_write(GG, 1); lds("W", 2)
    stamp(9)
    mm("V", 0, 0)
    e("s_mov_b32 m0, s35"); e("s_add_u32 s46, s46, 0x4000")
    e("buffer_load_dword v4, s[4:7], s46 offen lds%s" % KVSC)
    mm("V", 1, 0)
    nml = A.newlabel("Lnml")
    e("s_cmp_lg_u32 s30, 31"); e("s_cbranch_scc1 %s" % nml)
    e("s_add_u32 s54, s38, s50"); e("s_add_u32 s54, s54, 10240")
    e("buffer_load_dword v4, s[4:7], s54 offen lds")
    A.label(nml)
    mm("V", 0, 1); mm("V", 1, 1)
    wait_for("W")
    e("s_barrier")
    stamp("B5", True)
    rdA(5); rdA(6)
    VXR = GG
    mm("V", 2, 0); mm("V", 2, 1); rdA(7)
    mm("V", 4, 0); mm("V", 4, 1); rdA(9)
    mm("V", 3, 0); mm("V", 3, 1); rdA(8)
    publish(A, lds, wait_for, mm)
    for j in range(5, 10):
        for T in range(2):
            mm("K", j, T)
            if j < 7:
                ks = 2 * (j - 5) + T
                e("ds_read_b128 v[%d:%d], v1 offset:%d" % (TMP + 4 * ks, TMP + 3 + 4 * ks, KXC + 4096 + 1024 * ks)); lds("K1")
            if j == 8:
                q = ACQ + 4 * T
                e("v_add_f32 v%d, v%d, v%d" % (q, q, q + 1)); e("v_add_f32 v%d, v%d, v%d" % (q + 2, q + 2, q + 3))
            if j == 9:
                q = ACQ + 4 * T
                e("v_cvt_pk_bf16_f32 v%d, v%d, v%d" % (q + 1, q, q + 2))
    stamp(2)
    for j in (5, 6):
        for T in range(2): mm("V", j, T)
    e("s_nop 1")
    for T in range(2):
        q, k = ACQ + 4 * T, ACK + 4 * T
        e("v_add_f32 v%d, v%d, v%d" % (k, k, k + 1)); e("v_add_f32 v%d, v%d, v%d" % (k + 2, k + 2, k + 3))
        e("v_cvt_pk_bf16_f32 v%d, v%d, v%d" % (q, k, k + 2))
        e("ds_write_b64 v5, v[%d:%d] offset:%d" % (q, q + 1, 512 * T)); lds("W")
    for j in (7, 8):
        for T in range(2): mm("V", j, T)
    wait_all()
    e("s_barrier")
    stamp("B1", True)
    X, KT0 = 12, 40
    for ks in range(4):
        for a in range(2): e("ds_read_b64_tr_b16 v[%d:%d], v6 offset:%d" % (X + 4 * ks + 2 * a, X + 4 * ks + 2 * a + 1, QKX_L + 1024 * ks + 512 * a))
        lds(("X", ks), 2)
        if ks == 1: mm("V", 9, 0)
        if ks == 3: mm("V", 9, 1)
    for ks in range(4): e("ds_read_b128 v[%d:%d], v1 offset:%d" % (KT0 + 4 * ks, KT0 + 3 + 4 * ks, KXC + 1024 * ks)); lds("K0")
    e("v_add_u32 v11, s47, v1")
    e("ds_read_b128 v[32:35], v11"); e("ds_read_b128 v[36:39], v11 offset:1024"); lds("VX", 2)
    stamp(3)
    S2, S0, S1 = 28, 64, 68
    for ks in range(4):
        wait_for(("X", ks))
        e("%s v[%d:%d], %s, %s, %s" % (MF32, S2, S2 + 3, vr(TMP + 4 * ks, 4), vr(X + 4 * ks, 4), "0" if ks == 0 else vr(S2, 4)))
    for ks in range(4):
        e("%s v[%d:%d], %s, %s, %s" % (MF32, S0, S0 + 3, vr(X + 4 * ks, 4), vr(X + 4 * ks, 4), "0" if ks == 0 else vr(S0, 4)))
    wait_all()
    VM = 76
    for ks in range(4):
        e("%s v[%d:%d], %s, %s, %s" % (MF32, S1, S1 + 3, vr(KT0 + 4 * ks, 4), vr(X + 4 * ks, 4), "0" if ks == 0 else vr(S1, 4)))
        if ks < 2:
            v = ACV + 4 * ks
            e("v_add_f32 v%d, v%d, v%d" % (v, v, v + 1)); e("v_add_f32 v%d, v%d, v%d" % (v + 2, v + 2, v + 3))
        else:
            v = ACV + 4 * (ks - 2)
            e("v_cvt_pk_bf16_f32 v%d, v%d, v%d" % (VM + 2 * (ks - 2), v, v + 2)); e("v_mov_b32 v%d, 0" % (VM + 1 + 2 * (ks - 2)))
    fload(A, 40, 7, 0); fload(A, 48, 7, 1); lds("O4", 4)
    e("v_max3_f32 v11, v%d, v%d, v%d" % (S2, S2 + 1, S2 + 2)); e("v_max3_f32 v11, v11, v%d, v%d" % (S2 + 3, S0))
    P1, P0, ONES, OA, LS = 12, 16, 20, 56, 24
    e("v_max3_f32 v11, v11, v%d, v%d" % (S0 + 1, S1)); e("v_max3_f32 v11, v11, v%d, v%d" % (S1 + 1, S1 + 2))
    e("v_max_f32 v11, v11, v%d" % (S1 + 3)); e("v_mov_b32 v66, v11")
    e("v_mov_b32 v%d, 0x3f803f80" % ONES); e("v_mov_b32 v%d, 0x3f803f80" % (ONES + 1))
    e("v_permlane16_swap_b32 v11, v66"); e("v_max_f32 v11, v11, v66"); e("v_mov_b32 v66, v11")
    e("v_mov_b64 v[%d:%d], v[%d:%d]" % (ONES + 2, ONES + 3, ONES, ONES + 1)); e("v_mov_b32 v%d, 0" % (P0 + 1))
    e("v_permlane32_swap_b32 v11, v66"); e("v_max_f32 v11, v11, v66")
    e("v_mul_f32 v11, s51, v11")
    vals = [S0, S0 + 1] + [S1 + i for i in range(4)] + [S2 + i for i in range(4)]
    for i, v in enumerate(vals):
        e("v_fma_f32 v%d, v%d, s51, -v11" % (v, v))
        if i >= 1: e("v_exp_f32 v%d, v%d" % (vals[i - 1], vals[i - 1]))
        if i == 3: e("v_cvt_pk_bf16_f32 v%d, v%d, v%d" % (P0, S0, S0 + 1))
        if i == 5:
            e("v_cvt_pk_bf16_f32 v%d, v%d, v%d" % (P1, S1, S1 + 1))
            e("%s v[%d:%d], %s, %s, 0" % (MF16, LS, LS + 3, vr(ONES, 2), vr(P0, 2)))
        if i == 6: e("%s v[%d:%d], %s, %s, 0" % (MF16, OA, OA + 3, vr(VM, 2), vr(P0, 2)))
        if i == 7:
            e("v_cvt_pk_bf16_f32 v%d, v%d, v%d" % (P1 + 1, S1 + 2, S1 + 3))
            e("%s v[%d:%d], %s, %s, 0" % (MF16, OA + 4, OA + 7, vr(VM + 2, 2), vr(P0, 2)))
    e("v_exp_f32 v%d, v%d" % (vals[9], vals[9]))
    e("v_cvt_pk_bf16_f32 v%d, v%d, v%d" % (P1 + 2, S2, S2 + 1)); e("v_cvt_pk_bf16_f32 v%d, v%d, v%d" % (P1 + 3, S2 + 2, S2 + 3))
    stamp(4)
    e("s_nop 1")
    stamp("vx", True)
    e("%s v[%d:%d], %s, %s, %s" % (MF32, LS, LS + 3, vr(ONES, 4), vr(P1, 4), vr(LS, 4)))
    for T in range(2): e("%s v[%d:%d], %s, %s, %s" % (MF32, OA + 4 * T, OA + 4 * T + 3, vr(VXR + 4 * T, 4), vr(P1, 4), vr(OA + 4 * T, 4)))
    WA = 12
    zero(12, 24)
    e("v_rcp_f32 v11, v%d" % LS)

    e("s_mov_b32 exec_lo, 0xcccccccc"); e("s_mov_b32 exec_hi, 0xcccccccc")
    for T in range(2):
        o = OA + 4 * T
        for i in range(4): e("v_mul_f32 v%d, v%d, v11" % (o + i, o + i))
        e("v_cvt_pk_bf16_f32 v%d, v%d, v%d" % (o, o, o + 1)); e("v_cvt_pk_bf16_f32 v%d, v%d, v%d" % (o + 1, o + 2, o + 3))
        e("ds_write_b64 v7, v[%d:%d] offset:%d" % (o, o + 1, 32 * T)); lds("W")
    e("s_mov_b64 exec, -1")
    fload(A, 32, 6, 0); fload(A, 64, 6, 1); lds("O3", 4)
    zero(24, 32)
    wait_for("W")
    stamp("preB2", True)
    e("s_barrier")
    stamp("B2", True)
    OF = 56
    for ks in range(2): e("ds_read_b128 v[%d:%d], v8 offset:%d" % (OF + 4 * ks, OF + 3 + 4 * ks, 128 * ks)); lds(("OF", ks))
    stamp(5)
    WF = {(4, 0): vr(40, 8), (4, 1): vr(48, 8), (3, 0): vr(32, 8), (3, 1): vr(64, 8)}
    for t in range(3):
        for ks in range(2): WF[(t, ks)] = FR(FX("O", t, ks))
    wait_for(("OF", 0))
    smf(WA + 16, OF, WF[(4, 0)])
    wait_for(("OF", 1))
    smf(WA + 16, OF + 4, WF[(4, 1)])
    tagop = (lambda d: "v_or_b32 v%d, 1, v%d" % (d, d)) if par else (lambda d: "v_and_b32 v%d, -2, v%d" % (d, d))
    def packl(t, dst):
        d = WA + 4 * t
        return ["v_add_f32 v%d, v%d, v%d" % (d, d, d + 1), "v_add_f32 v%d, v%d, v%d" % (d + 2, d + 2, d + 3),
                "v_cvt_pk_bf16_f32 v%d, v%d, v%d" % (dst, d, d + 2), tagop(dst)]
    for t in (0, 1, 2):
        for ks in range(2): smf(WA + 4 * t, OF + 4 * ks, WF[(t, ks)])
    e("s_nop 1")
    p4 = packl(4, 44)
    e(p4[0]); e(p4[1]); smf(WA + 12, OF, WF[(3, 0)]); e(p4[2]); e(p4[3]); smf(WA + 12, OF + 4, WF[(3, 1)])
    e("buffer_store_dword v44, v9, s[4:7], s44 offen%s" % sc)
    for t in range(4):
        for x in packl(t, 40 + t): e(x)
    e("buffer_store_dwordx4 v[40:43], v9, s[4:7], s43 offen%s" % sc)
    stamp(6)
    tv = A.newlabel("Ltv")
    e("s_cmp_eq_u32 s29, 0"); e("s_cbranch_scc1 %s" % tv)
    e("v_add_u32 v11, s57, v0")
    e("ds_write_b32 v11, v%d offset:%d" % (VM, QKX_L)); e("ds_write_b32 v11, v%d offset:%d" % (VM + 2, QKX_L + 256))
    A.label(tv)
    e("s_add_u32 s38, s38, 5120"); e("s_add_u32 s39, s39, 5120"); e("s_add_u32 s40, s40, 5120")
    e("ds_read_b128 v[28:31], v1 offset:%d" % SEL_L)
    zero(ACQ, ACQ + 24)
    nored = A.newlabel("Lnored"); join = A.newlabel("Ljoin")
    e("s_cmp_ge_u32 s42, 40"); e("s_cbranch_scc1 %s" % nored)
    if d_red: e("s_sleep %d" % d_red)
    op = "v_bitop3_b32 v11, v11, v%d, v%d bitop3:0x80" if par else "v_or3_b32 v11, v11, v%d, v%d"
    RA, RB = 64, 12
    def rload(b):
        for j in range(4): e("buffer_load_dwordx4 v[%d:%d], v1, s[4:7], s45 offen offset:%d sc1" % (b + 4 * j, b + 3 + 4 * j, 1024 * j))
        if instr: e("s_add_u32 s91, s91, 1")
    def rcheck(b):
        e("v_mov_b32 v11, %d" % par)
        for j in range(4):
            e("s_waitcnt vmcnt(%d)" % (7 - j))
            e("%s v[32:35], v[28:31], %s, %s" % (MF32, vr(b + 4 * j, 4), "0" if j == 0 else "v[32:35]"))
            e(op % (b + 4 * j, b + 4 * j + 1)); e(op % (b + 4 * j + 2, b + 4 * j + 3))
        e("v_and_b32 v11, 1, v11")
        e("v_cmp_ne_u32 vcc, %d, v11" % par)
    rload(RA)
    if D_GAP: e("s_sleep %d" % D_GAP)
    rload(RB)
    e("s_waitcnt lgkmcnt(0)")
    lpd = A.newlabel("Lrd"); okd = A.newlabel("Lrdok"); A.label(lpd)
    rcheck(RA); e("s_cbranch_vccz %s" % okd); rload(RA)
    rcheck(RB); e("s_cbranch_vccz %s" % okd); rload(RB)
    spin()
    e("s_branch %s" % lpd)
    A.label(re)
    gl_load(GA, 38)
    if instr: e("s_add_u32 s90, s90, 1")
    e("s_waitcnt vmcnt(2)"); gl_check(GB); e("s_cbranch_vccz %s" % okB)
    gl_load(GB, 38)
    if instr: e("s_add_u32 s90, s90, 1")
    spin()
    e("s_waitcnt vmcnt(2)")
    e("s_branch %s" % lp)
    A.label(okB); gl_write(GB, 0); e("s_branch %s" % ok)
    A.label(rer)
    gl_load(GG, 39)
    if instr: e("s_add_u32 s92, s92, 1")
    spin()
    e("s_branch %s" % lpr)
    A.label(nored)
    e("s_waitcnt lgkmcnt(0)")
    e("s_branch %s" % join)
    A.label(okd)
    e("s_nop 2")
    for i in range(4): e("v_add_f32_dpp v%d, v%d, v%d row_ror:8 row_mask:0xf bank_mask:0xf" % (36 + i, 32 + i, 32 + i))
    e("s_mov_b32 exec_lo, 0x00ff00ff"); e("s_mov_b32 exec_hi, 0")
    e("v_cvt_pk_bf16_f32 v32, v36, v37"); e("v_cvt_pk_bf16_f32 v33, v38, v39")
    e("v_min_u32 v32, -2, v32"); e("v_min_u32 v33, -2, v33")
    e("buffer_store_dwordx2 v[32:33], v10, s[4:7], s38 offen%s" % sc)
    e("buffer_store_dwordx2 v[32:33], v10, s[4:7], s40 offen sc1")
    e("s_mov_b64 exec, -1")
    A.label(join)
    stamp(7)
    e("s_barrier")
    stamp(8)
    e("s_add_u32 s32, s32, 1")

def gen(**kw):
    A = Asm()
    A.raw("; @launch kernel=rec_kernel grid=(256,1,1) block=(256,1,1) lds=163840")
    A.raw('.amdgcn_target "amdgcn-amd-amdhsa--gfx950"')
    A.raw(".text")
    kernel_header(A, "rec_kernel")
    A.e("s_cmp_ge_u32 s2, 256"); A.e("s_cbranch_scc1 L_end")
    emit_rec(A, **kw)
    A.label("L_end")
    A.e("s_endpgm")
    A.raw('.section .rodata,"a"'); A.raw(".p2align 6")
    A.raw(kernel_desc("rec_kernel", 512, 102, 256))
    return A.text()

if __name__ == "__main__":
    import sys
    for spec in sys.argv[1:]:
        d1, dr, ra, ins = map(int, spec.split(","))
        DIS = d1 >> 4; d1 &= 15
        D_GAP = ra
        open("rec_%d_%d_%d_%d.s" % (d1 + 16 * DIS, dr, ra, ins), "w").write(gen(instr=ins, d_first=d1, d_red=dr))
```

```python
import sys
from asmlib import *
import gen_g1, gen_rec, gen_att, gen_g2s
HEAD = open("recurrent_scan__memory_aug_recurrent_mem_tr__glu_gated_swiglu__prompt.s.ref").read().split("; Override launch")[0]
def build():
    A = Asm()
    A.raw(HEAD.rstrip())
    A.raw("; @launch kernel=g1_kernel grid=(256,1,1) block=(256,1,1) lds=81920")
    A.raw("; @launch kernel=rec_kernel grid=(256,1,1) block=(256,1,1) lds=163840")
    A.raw("; @launch kernel=att_kernel grid=(512,1,1) block=(256,1,1) lds=0")
    A.raw("; @launch kernel=g2_kernel grid=(160,1,1) block=(256,1,1) lds=131072")
    A.raw('.amdgcn_target "amdgcn-amd-amdhsa--gfx950"')
    A.raw(".text")
    gen_g1.emit_g1_kernel(A)
    kernel_header(A, "rec_kernel")
    A.e("s_cmp_ge_u32 s2, 256"); A.e("s_cbranch_scc1 L_end")
    gen_rec.emit_rec(A, instr=0, d_first=2, d_red=3)
    A.label("L_end"); A.e("s_endpgm")
    gen_att.emit_att_kernel(A)
    gen_g2s.emit_g2s_kernel(A)
    A.raw('.section .rodata,"a"'); A.raw(".p2align 6")
    A.raw(kernel_desc("g1_kernel", 256, 80, 256))
    A.raw(".p2align 6"); A.raw(kernel_desc("rec_kernel", 512, 102, 256))
    A.raw(".p2align 6"); A.raw(kernel_desc("att_kernel", 176, 80, 176))
    A.raw(".p2align 6"); A.raw(kernel_desc("g2_kernel", 512, 80, 256))
    return A.text()
if __name__ == "__main__":
    out = sys.argv[1] if len(sys.argv) > 1 else "recurrent_scan__memory_aug_recurrent_mem_tr__glu_gated_swiglu__prompt.s"
    open(out, "w").write(build())
```

```python
from asmlib import *
from layout import *
from gen_g1 import srd
MF32 = "v_mfma_f32_16x16x32_bf16"
MF16 = "v_mfma_f32_16x16x16_bf16"

def emit_att_setup(A):
    e = A.e
    e("v_lshlrev_b32 v1, 4, v0"); e("v_lshlrev_b32 v2, 2, v0")
    e("v_and_b32 v3, 15, v0"); e("v_lshrrev_b32 v8, 4, v0"); e("v_lshlrev_b32 v8, 2, v8")
    for r in range(4):
        e("v_add_u32 v9, %d, v8" % r); e("v_cmp_gt_u32 s[%d:%d], v9, v3" % (20 + 2 * r, 21 + 2 * r))
    for i in range(4): e("v_mov_b32 v%d, 0x3f803f80" % (4 + i))
    e("s_mov_b32 s51, 0x3e0293ee")
    e("v_mov_b32 v3, 0xf149f2ca")

def emit_att(A, ldsc="", waitQ=None, waitM=None):
    e = A.e
    Q, K, X, V, VM, S0, S1, S2, P1, P0, LS, O = 16, 48, 80, 96, 128, 144, 148, 152, 156, 160, 164, 48
    e("s_lshl_b32 s33, s30, 13")
    e("s_add_u32 s34, s33, 0x%x" % QF_OFF); e("s_add_u32 s35, s34, 4096")
    e("s_add_u32 s40, s33, 0x%x" % XV_OFF); e("s_add_u32 s41, s40, 4096")
    e("s_lshl_b32 s33, s30, 14")
    e("s_add_u32 s36, s33, 0x%x" % KV_OFF); e("s_add_u32 s37, s36, 4096")
    e("s_add_u32 s38, s36, 8192"); e("s_add_u32 s39, s38, 4096")
    if waitQ: waitQ()
    for i in range(8): e("buffer_load_dwordx4 v[%d:%d], v1, s[4:7], s%d offen offset:%d%s" % (Q + 4 * i, Q + 4 * i + 3, 34 + (i >> 2), 1024 * (i & 3), ldsc))
    for i in range(8): e("buffer_load_dwordx4 v[%d:%d], v1, s[4:7], s%d offen offset:%d%s" % (K + 4 * i, K + 4 * i + 3, 36 + (i >> 2), 1024 * (i & 3), ldsc))
    for i in range(8): e("buffer_load_dwordx4 v[%d:%d], v1, s[4:7], s%d offen offset:%d%s" % (V + 4 * i, V + 4 * i + 3, 38 + (i >> 2), 1024 * (i & 3), ldsc))
    if waitM: waitM()
    for i in range(4): e("buffer_load_dwordx4 v[%d:%d], v1, s[4:7], s40 offen offset:%d%s" % (X + 4 * i, X + 4 * i + 3, 1024 * i, ldsc))
    for i in range(8): e("buffer_load_dword v%d, v2, s[4:7], s41 offen offset:%d%s" % (VM + 2 * i, 256 * i, ldsc))
    for i in range(8): e("v_mov_b32 v%d, 0" % (VM + 2 * i + 1))
    e("s_and_b32 s42, s30, 63"); e("s_lshl_b32 s42, s42, 18"); e("s_lshr_b32 s43, s30, 6"); e("s_lshl_b32 s43, s43, 12"); e("s_add_u32 s42, s42, s43"); e("s_add_u32 s42, s42, 0x%x" % O_OFF)
    e("s_add_u32 s43, s42, 0x20000")
    e("s_waitcnt vmcnt(8)")
    PP = {}
    for tq in range(2):
        s0, s1, s2 = (S0, S1, S2) if tq == 1 else (168, 172, None)
        for ks in range(4): e("%s %s, %s, %s, %s" % (MF32, vr(s0, 4), vr(X + 4 * ks, 4), vr(Q + 16 * tq + 4 * ks, 4), "0" if ks == 0 else vr(s0, 4)))
        for ks in range(4): e("%s %s, %s, %s, %s" % (MF32, vr(s1, 4), vr(K + 4 * ks, 4), vr(Q + 16 * tq + 4 * ks, 4), "0" if ks == 0 else vr(s1, 4)))
        if tq == 1:
            for ks in range(4): e("%s %s, %s, %s, %s" % (MF32, vr(s2, 4), vr(K + 16 + 4 * ks, 4), vr(Q + 16 + 4 * ks, 4), "0" if ks == 0 else vr(s2, 4)))
    for tq in range(2):
        s0, s1, s2 = (S0, S1, S2) if tq == 1 else (168, 172, None)
        p1, p0 = (P1, P0) if tq == 1 else (8, 12)
        md = s1 if tq == 0 else s2
        if tq == 1: e("s_nop 4")
        for r in range(4): e("v_cndmask_b32 v%d, v%d, v3, s[%d:%d]" % (md + r, md + r, 20 + 2 * r, 21 + 2 * r))
        vals = [s0, s0 + 1] + [s1 + i for i in range(4)] + ([s2 + i for i in range(4)] if tq else [])
        m, t = s0 + 2, s0 + 3
        e("v_max3_f32 v%d, v%d, v%d, v%d" % (m, vals[0], vals[1], vals[2]))
        rest = vals[3:]
        while len(rest) >= 2:
            e("v_max3_f32 v%d, v%d, v%d, v%d" % (m, m, rest[0], rest[1])); rest = rest[2:]
        if rest: e("v_max_f32 v%d, v%d, v%d" % (m, m, rest[0]))
        for sw in ("v_permlane16_swap_b32", "v_permlane32_swap_b32"):
            e("v_mov_b32 v%d, v%d" % (t, m)); e("s_nop 1"); e("%s v%d, v%d" % (sw, m, t)); e("v_max_f32 v%d, v%d, v%d" % (m, m, t))
        e("v_mul_f32 v%d, s51, v%d" % (m, m))
        for v in vals: e("v_fma_f32 v%d, v%d, s51, -v%d" % (v, v, m))
        for v in vals: e("v_exp_f32 v%d, v%d" % (v, v))
        e("v_mov_b32 v%d, 0" % (p0 + 1))
        e("v_cvt_pk_bf16_f32 v%d, v%d, v%d" % (p0, s0, s0 + 1))
        e("v_cvt_pk_bf16_f32 v%d, v%d, v%d" % (p1, s1, s1 + 1)); e("v_cvt_pk_bf16_f32 v%d, v%d, v%d" % (p1 + 1, s1 + 2, s1 + 3))
        if tq:
            e("v_cvt_pk_bf16_f32 v%d, v%d, v%d" % (p1 + 2, s2, s2 + 1)); e("v_cvt_pk_bf16_f32 v%d, v%d, v%d" % (p1 + 3, s2 + 2, s2 + 3))
        else:
            e("v_mov_b32 v%d, 0" % (p1 + 2)); e("v_mov_b32 v%d, 0" % (p1 + 3))
    e("s_waitcnt vmcnt(0)")
    for tq in range(2):
        p1, p0 = (P1, P0) if tq == 1 else (8, 12)
        o = 16 + 32 * tq
        e("%s %s, %s, %s, 0" % (MF16, vr(LS, 4), vr(4, 2), vr(p0, 2)))
        e("%s %s, %s, %s, %s" % (MF32, vr(LS, 4), vr(4, 4), vr(p1, 4), vr(LS, 4)))
        for et in range(8): e("%s %s, %s, %s, 0" % (MF16, vr(o + 4 * et, 4), vr(VM + 2 * et, 2), vr(p0, 2)))
        e("v_rcp_f32 v%d, v%d" % (14, LS))
        for et in range(8): e("%s %s, %s, %s, %s" % (MF32, vr(o + 4 * et, 4), vr(V + 4 * et, 4), vr(p1, 4), vr(o + 4 * et, 4)))
        e("s_nop 1")
        for ks in range(4):
            b = o + 8 * ks
            if ks == 3: e("s_nop 0")
            for i in range(8): e("v_mul_f32 v%d, v%d, v14" % (b + i, b + i))
            for i in range(4): e("v_cvt_pk_bf16_f32 v%d, v%d, v%d" % (b + i, b + 2 * i, b + 2 * i + 1))
            e("buffer_store_dwordx4 v[%d:%d], v1, s[4:7], s%d offen offset:%d%s" % (b, b + 3, 42 + tq, 1024 * ks, ldsc))

def emit_att_kernel(A):
    e = A.e
    kernel_header(A, "att_kernel")
    e("s_cmp_ge_u32 s2, 512"); e("s_cbranch_scc1 L_att_end")
    e("s_load_dwordx2 s[60:61], s[0:1], 104")
    e("v_lshrrev_b32 v1, 6, v0"); e("v_and_b32 v0, 63, v0"); e("v_readfirstlane_b32 s28, v1")
    e("s_waitcnt lgkmcnt(0)")
    srd(e, 4, 60, WS_BYTES)
    emit_att_setup(A)
    e("s_lshl_b32 s30, s2, 2"); e("s_add_u32 s30, s30, s28")
    emit_att(A)
    A.label("L_att_end")
    e("s_endpgm")
```

```python
from asmlib import *
from layout import *
MF32 = "v_mfma_f32_16x16x32_bf16"

def srd(e, d, lo, n):
    e("s_mov_b32 s%d, s%d" % (d, lo)); e("s_mov_b32 s%d, s%d" % (d + 1, lo + 1)); e("s_mov_b32 s%d, 0x%x" % (d + 2, n)); e("s_mov_b32 s%d, 0x20000" % (d + 3))

def emit_init(A):
    e = A.e
    e("s_lshl_b32 s33, s2, 13"); e("s_add_u32 s33, s33, 0x%x" % ML_OFF)
    e("v_lshlrev_b32 v1, 4, v0")
    for i in range(4): e("v_mov_b32 v%d, -1" % (4 + i))
    for i in range(4): e("v_mov_b32 v%d, -1" % (8 + i))
    e("s_and_b32 s34, s2, 63"); e("s_cmp_lg_u32 s34, 0"); e("s_cbranch_scc1 L_init_st")
    e("s_bfe_u32 s34, s2, 0x10006"); e("s_mul_i32 s34, s34, 640")
    for half in range(2):
        d = 4 + 4 * half
        e("v_bfe_u32 v2, v0, 1, 3"); e("v_mul_u32_u24 v2, 1280, v2")
        e("v_bfe_u32 v3, v0, 4, 2"); e("v_lshl_add_u32 v2, v3, 3, v2")
        e("v_and_b32 v3, 1, v0"); e("v_lshl_add_u32 v2, v3, 2, v2")
        if half == 0:
            e("v_lshrrev_b32 v3, 6, v0"); e("v_lshl_add_u32 v2, v3, 7, v2")
        else:
            e("v_add_u32 v2, 512, v2")
            e("v_cmp_gt_u32 vcc, 64, v0"); e("s_and_saveexec_b64 s[36:37], vcc"); e("s_cbranch_execz L_init_r")
        for t in range(4): e("buffer_load_dword v%d, v2, s[40:43], s34 offen offset:%d" % (12 + t, 32 * t))
        e("s_mov_b32 s35, 0x05040100"); e("s_mov_b32 s38, 0x07060302")
        e("s_waitcnt vmcnt(0)")
        e("v_perm_b32 v%d, v13, v12, s35" % d); e("v_perm_b32 v%d, v15, v14, s35" % (d + 1))
        e("v_perm_b32 v%d, v13, v12, s38" % (d + 2)); e("v_perm_b32 v%d, v15, v14, s38" % (d + 3))
        for i in range(4): e("v_min_u32 v%d, -2, v%d" % (d + i, d + i))
    A.label("L_init_r")
    e("s_mov_b64 exec, -1")
    A.label("L_init_st")
    e("buffer_store_dwordx4 v[4:7], v1, s[4:7], s33 offen")
    e("s_add_u32 s33, s33, 4096")
    e("buffer_store_dwordx4 v[8:11], v1, s[4:7], s33 offen")
    e("s_lshl_b32 s33, s2, 11"); e("s_add_u32 s33, s33, 0x%x" % PB_OFF)
    e("v_lshlrev_b32 v1, 3, v0"); e("v_mov_b32 v2, 0"); e("v_mov_b32 v3, 0")
    e("buffer_store_dwordx2 v[2:3], v1, s[4:7], s33 offen")

XA0 = 96
def XA(tt, kk): return XA0 + (tt * 20 + kk) * 4
BB, ACC, ET = 16, 48, 80
def acc(T, tt): return ACC + (T * 2 + tt) * 4

def emit_g1(A, NPART=16, NCG=248, mega=False):
    e = A.e
    sc = " sc1" if mega else ""
    def signal(cgreg):
        l = A.newlabel("Lg1s")
        e("s_cmp_lg_u32 s26, 0"); e("s_cbranch_scc1 %s" % l)
        e("s_lshr_b32 s33, s%d, 6" % cgreg); e("s_mov_b32 s34, 1")
        e("s_cmp_eq_u32 s33, 2"); e("s_cmov_b32 s34, 0x400"); e("s_cmp_eq_u32 s33, 3"); e("s_cmov_b32 s34, 0x100000")
        e("s_lshl_b32 s33, s27, 2")
        e("s_mov_b64 exec, 1"); e("v_mov_b32 v11, s34"); e("v_mov_b32 v12, s33")
        e("buffer_atomic_add v11, v12, s[64:67], 0 offen offset:%d sc1" % DBG_G1)
        e("s_mov_b64 exec, -1")
        A.label(l)
    e("v_lshlrev_b32 v1, 4, v0")
    e("v_lshrrev_b32 v2, 2, v0")
    e("v_lshrrev_b32 v3, 5, v0"); e("v_lshlrev_b32 v3, 1, v3"); e("v_and_b32 v4, 3, v0"); e("v_xor_b32 v3, v3, v4"); e("v_lshlrev_b32 v3, 4, v3")
    e("v_lshrrev_b32 v5, 4, v0"); e("v_bfe_u32 v6, v0, 2, 2"); e("v_lshl_add_u32 v6, v5, 3, v6"); e("v_lshlrev_b32 v6, 6, v6")
    e("v_lshl_add_u32 v6, v4, 3, v6"); e("v_and_b32 v5, 1, v5"); e("v_lshl_add_u32 v6, v5, 5, v6")
    e("v_xor_b32 v7, 32, v6"); e("v_add_u32 v8, 0x10000, v6"); e("v_add_u32 v9, 0x10000, v7")
    e("s_lshr_b32 s44, s26, 1")
    e("s_and_b32 s45, s26, 1"); e("s_lshl_b32 s45, s45, 6")
    e("s_lshl_b32 s46, s26, 12")
    e("s_mov_b32 s15, 0x20000")
    def setup_dma():
        e("s_lshr_b32 s33, s30, 6"); e("s_and_b32 s34, s30, 63")
        e("s_cmp_eq_u32 s33, 0"); e("s_cselect_b64 s[12:13], s[18:19], s[20:21]")
        e("s_cmp_eq_u32 s33, 2"); e("s_cselect_b64 s[12:13], s[16:17], s[12:13]")
        e("s_cmp_eq_u32 s44, 0"); e("s_cselect_b64 s[36:37], s[22:23], s[24:25]")
        e("s_lshl_b32 s35, s34, 1"); e("s_add_u32 s35, s35, s44")
        e("s_cmp_eq_u32 s33, 3")
        e("s_cselect_b64 s[12:13], s[36:37], s[12:13]")
        e("s_mov_b32 s31, 8192"); e("s_cmov_b32 s31, 3456")
        e("s_mov_b32 s14, 5242880"); e("s_cmov_b32 s14, 2211840")
        e("s_cselect_b32 s35, s34, s35"); e("s_lshl_b32 s35, s35, 6")
        e("s_cmp_ge_u32 s30, %d" % NCG); e("s_cselect_b32 s14, 0, s14")
        e("s_mul_i32 s32, s45, s31"); e("s_add_u32 s32, s32, s35")
        e("v_mad_u32_u24 v10, v2, s31, v3")
    def dma(ks5):
        for i in range(4):
            e("s_add_u32 m0, s46, %d" % (ks5 * 16384 + i * 1024))
            e("s_mul_i32 s33, s31, %d" % (128 * ks5 + 16 * i)); e("s_add_u32 s33, s33, s32")
            e("buffer_load_dwordx4 v10, s[12:15], s33 offen lds")
    A.label("L_g1_pass")
    e("s_mov_b32 s29, s28"); e("s_mov_b32 s30, s28")
    setup_dma()
    for k in range(4): dma(k)
    e("s_lshl_b32 s33, s27, 2"); e("s_add_u32 s47, s33, s26")
    e("s_mul_i32 s33, s47, 40960")
    e("v_and_b32 v4, 15, v0"); e("v_mul_u32_u24 v4, 1280, v4"); e("v_lshrrev_b32 v5, 4, v0"); e("v_lshl_add_u32 v4, v5, 4, v4")
    e("s_add_u32 s34, s33, 20480")
    for tt in range(2):
        for kk in range(20): e("buffer_load_dwordx4 v[%d:%d], v4, s[8:11], s%d offen offset:%d" % (XA(tt, kk), XA(tt, kk) + 3, 33 + tt, 64 * kk))
    e("v_mov_b32 v11, 0x3f803f80")
    for tt in range(2):
        e("s_waitcnt vmcnt(%d)" % (20 if tt == 0 else 0))
        for r in range(4): e("v_mov_b32 v%d, 0" % (ET + r))
        for i in range(80):
            r = XA(tt, 0) + i
            e("v_dot2c_f32_bf16 v%d, v%d, v11" % (ET + (i & 1), r)); e("v_dot2c_f32_bf16 v%d, v%d, v%d" % (ET + 2 + (i & 1), r, r))
        e("s_nop 2")
        e("v_add_f32 v%d, v%d, v%d" % (ET, ET, ET + 1)); e("v_add_f32 v%d, v%d, v%d" % (ET + 2, ET + 2, ET + 3))
        for sw in ("v_permlane16_swap_b32", "v_permlane32_swap_b32"):
            e("v_mov_b32 v%d, v%d" % (ET + 1, ET)); e("v_mov_b32 v%d, v%d" % (ET + 3, ET + 2)); e("s_nop 1")
            e("%s v%d, v%d" % (sw, ET, ET + 1)); e("%s v%d, v%d" % (sw, ET + 2, ET + 3))
            e("v_add_f32 v%d, v%d, v%d" % (ET, ET, ET + 1)); e("v_add_f32 v%d, v%d, v%d" % (ET + 2, ET + 2, ET + 3))
        e("v_mul_f32 v%d, 0x3acccccd, v%d" % (ET, ET))
        e("v_mul_f32 v%d, 0x3acccccd, v%d" % (ET + 2, ET + 2))
        e("v_fma_f32 v%d, -v%d, v%d, v%d" % (ET + 2, ET, ET, ET + 2))
        e("v_max_f32 v%d, 0, v%d" % (ET + 2, ET + 2)); e("v_add_f32 v%d, 0x3727c5ac, v%d" % (ET + 2, ET + 2))
        e("v_rsq_f32 v%d, v%d" % (ET + 2, ET + 2)); e("s_nop 0")
        e("v_mul_f32 v%d, v%d, v%d" % (ET, ET, ET + 2))
        for i in range(80):
            r = XA(tt, 0) + i; a = ET + 4 + 2 * (i & 3)
            e("v_lshlrev_b32 v%d, 16, v%d" % (a, r)); e("v_and_b32 v%d, 0xffff0000, v%d" % (a + 1, r))
            e("v_fma_f32 v%d, v%d, v%d, -v%d" % (a, a, ET + 2, ET)); e("v_fma_f32 v%d, v%d, v%d, -v%d" % (a + 1, a + 1, ET + 2, ET))
            e("v_cvt_pk_bf16_f32 v%d, v%d, v%d" % (r, a, a + 1))
    e("s_lshl_b32 s48, s47, 14")
    e("s_mul_i32 s49, s47, %d" % (2 * 56 * 1024)); e("s_add_u32 s49, s49, 0x%x" % H_OFF)
    e("s_mov_b32 s50, 0xbfb8aa3b")
    e("s_barrier")
    PD = 6
    def rd(f):
        f %= 80
        ks5, ks, T = f >> 4, (f >> 2) & 3, f & 3
        off = ks5 * 16384 + (T >> 1) * 8192 + ks * 2048
        base = 6 + (T & 1)
        if off >= 65536: off -= 65536; base += 2
        b = BB + 4 * (f & 7)
        for a in range(2): e("ds_read_b64_tr_b16 v[%d:%d], v%d offset:%d" % (b + 2 * a, b + 2 * a + 1, base, off + 256 * a))
    for f in range(PD): rd(f)
    A.label("L_g1_loop")
    e("s_lshr_b32 s33, s29, 6"); e("s_cmp_eq_u32 s33, 1"); e("s_cbranch_scc1 L_g1_bodyV")
    for kind in ("N", "V"):
        A.label("L_g1_body" + kind)
        for f in range(80):
            ks5, ks, T = f >> 4, (f >> 2) & 3, f & 3
            if f & 15 == 0:
                e("s_waitcnt vmcnt(8)"); e("s_barrier")
                if ks5 == 1:
                    e("s_add_u32 s30, s30, %d" % NPART); setup_dma()
                dma((ks5 + 4) % 5)
                if mega and ks5 == 2:
                    l = A.newlabel("Lg1f")
                    e("s_cmp_eq_u32 s29, s28"); e("s_cbranch_scc1 %s" % l)
                    e("s_sub_u32 s37, s29, %d" % NPART); signal(37)
                    A.label(l)
            rd(f + PD)
            e("s_waitcnt lgkmcnt(%d)" % (2 * PD))
            b = vr(BB + 4 * (f & 7), 4)
            for tt in range(2):
                x = vr(XA(tt, 4 * ks5 + ks), 4); d = vr(acc(T, tt), 4)
                c = "0" if (ks5 == 0 and ks == 0) else d
                if kind == "N": e("%s %s, %s, %s, %s" % (MF32, d, b, x, c))
                else: e("%s %s, %s, %s, %s" % (MF32, d, x, b, c))
        e("s_and_b32 s34, s29, 63")
        e("s_lshr_b32 s35, s34, 1"); e("s_lshl_b32 s35, s35, 20"); e("s_add_u32 s35, s35, s48")
        e("s_and_b32 s36, s34, 1")
        if kind == "V":
            e("s_lshl_b32 s36, s36, 12"); e("s_add_u32 s35, s35, s36"); e("s_add_u32 s35, s35, 0x%x" % (KV_OFF + 8192))
            e("s_nop 1")
            for T in range(4):
                o = ET + 4 * T
                for tt in range(2):
                    a = acc(T, tt)
                    e("v_cvt_pk_bf16_f32 v%d, v%d, v%d" % (o + 2 * tt, a, a + 1)); e("v_cvt_pk_bf16_f32 v%d, v%d, v%d" % (o + 2 * tt + 1, a + 2, a + 3))
                e("buffer_store_dwordx4 v[%d:%d], v1, s[4:7], s35 offen offset:%d%s" % (o, o + 3, 1024 * T, sc))
        else:
            e("s_lshr_b32 s33, s29, 6"); e("s_cmp_eq_u32 s33, 3"); e("s_cbranch_scc1 L_g1_epiF")
            e("s_lshr_b32 s37, s35, 1"); e("s_add_u32 s37, s37, 0x%x" % QF_OFF); e("s_add_u32 s35, s35, 0x%x" % KV_OFF)
            e("s_cmp_eq_u32 s33, 0"); e("s_cselect_b32 s35, s35, s37")
            e("s_lshl_b32 s36, s36, 11"); e("s_add_u32 s35, s35, s36"); e("s_add_u32 s36, s35, 4096")
            for u in range(2):
                for tt in range(2):
                    o = ET + 4 * (2 * u + tt)
                    for i in range(2):
                        a = acc(2 * u + i, tt)
                        e("v_cvt_pk_bf16_f32 v%d, v%d, v%d" % (o + 2 * i, a, a + 1)); e("v_cvt_pk_bf16_f32 v%d, v%d, v%d" % (o + 2 * i + 1, a + 2, a + 3))
                    e("buffer_store_dwordx4 v[%d:%d], v1, s[4:7], s%d offen offset:%d%s" % (o, o + 3, 35 + tt, 1024 * u, sc))
            e("s_branch L_g1_next")
            A.label("L_g1_epiF")
            e("s_lshl_b32 s35, s34, 10"); e("s_add_u32 s35, s35, s49"); e("s_add_u32 s36, s35, %d" % (56 * 1024))
            for tt in range(2):
                gs = [acc(T, tt) + r for T in range(2) for r in range(4)]
                us = [acc(T + 2, tt) + r for T in range(2) for r in range(4)]
                for i in range(8): e("v_mul_f32 v%d, s50, v%d" % (ET + i, gs[i]))
                for i in range(8): e("v_exp_f32 v%d, v%d" % (ET + i, ET + i))
                for i in range(8): e("v_add_f32 v%d, 1.0, v%d" % (ET + i, ET + i))
                for i in range(8): e("v_rcp_f32 v%d, v%d" % (ET + i, ET + i))
                for i in range(8): e("v_mul_f32 v%d, v%d, v%d" % (gs[i], gs[i], us[i]))
                for i in range(8): e("v_mul_f32 v%d, v%d, v%d" % (gs[i], gs[i], ET + i))
                o = ET + 8 + 4 * tt
                for i in range(4): e("v_cvt_pk_bf16_f32 v%d, v%d, v%d" % (o + i, gs[2 * i], gs[2 * i + 1]))
                e("buffer_store_dwordx4 v[%d:%d], v1, s[4:7], s%d offen%s" % (o, o + 3, 35 + tt, sc))
            e("s_branch L_g1_next")
    A.label("L_g1_next")
    e("s_add_u32 s29, s29, %d" % NPART); e("s_cmp_lt_u32 s29, %d" % NCG); e("s_cbranch_scc1 L_g1_loop")
    e("s_waitcnt vmcnt(0) lgkmcnt(0)")
    if mega:
        e("s_barrier")
        e("s_sub_u32 s37, s29, %d" % NPART); signal(37)
        e("s_add_u32 s27, s27, 8"); e("s_cmp_lt_u32 s27, 16"); e("s_cbranch_scc1 L_g1_pass")

def emit_g1_kernel(A):
    e = A.e
    kernel_header(A, "g1_kernel")
    e("s_cmp_ge_u32 s2, 256"); e("s_cbranch_scc1 L_g1_end")
    e("s_load_dwordx4 s[52:55], s[0:1], 0")
    e("s_load_dwordx4 s[16:19], s[0:1], 16")
    e("s_load_dwordx2 s[20:21], s[0:1], 32")
    e("s_load_dwordx4 s[56:59], s[0:1], 64")
    e("s_load_dwordx2 s[60:61], s[0:1], 104")
    e("v_lshrrev_b32 v1, 6, v0"); e("s_nop 0"); e("v_readfirstlane_b32 s26, v1")
    e("s_waitcnt lgkmcnt(0)")
    e("s_mov_b64 s[22:23], s[56:57]"); e("s_mov_b64 s[24:25], s[58:59]")
    srd(e, 4, 60, WS_BYTES); srd(e, 8, 52, 2621440); srd(e, 40, 54, 10240)
    emit_init(A)
    e("v_and_b32 v0, 63, v0")
    e("s_and_b32 s28, s2, 7"); e("s_lshr_b32 s33, s2, 7"); e("s_lshl_b32 s33, s33, 3"); e("s_add_u32 s28, s28, s33")
    e("s_bfe_u32 s27, s2, 0x40003")
    emit_g1(A)
    A.label("L_g1_end")
    e("s_endpgm")

if __name__ == "__main__":
    A = Asm()
    A.raw("; @launch kernel=g1_kernel grid=(256,1,1) block=(256,1,1) lds=81920")
    A.raw('.amdgcn_target "amdgcn-amd-amdhsa--gfx950"')
    A.raw(".text")
    emit_g1_kernel(A)
    A.raw('.section .rodata,"a"'); A.raw(".p2align 6")
    A.raw(kernel_desc("g1_kernel", 256, 80, 256))
    open("g1_test.s", "w").write(A.text())
```

```python
from asmlib import *
from layout import *

SMF = "v_smfmac_f32_16x16x64_bf16"
MF32 = "v_mfma_f32_16x16x32_bf16"
MF16 = "v_mfma_f32_16x16x16_bf16"

SPIN_LIMIT = 100000
R_AT = 0
KX_L, AC_L, QKX_L, SEL_L, MISC_L, WV_L = 0, 16384, 26624, 30720, 31744, 32768
OX_L = AC_L + 5120
VX_L = 8192
NSLOT = 8
WB = 80
def FR(f): return R(WB + 8 * f, 8)
LSLOT = {("K", 0): 0, ("K", 2): 1, ("K", 4): 2, ("V", 1): 3, ("V", 3): 4, ("Q", 5): 5, ("O", 3): 6, ("O", 4): 7}
_res = [(m, j) for m in "QKV" for j in range(10) if (m, j) not in LSLOT] + [("O", t) for t in range(3)]
RIDX = {k: i for i, k in enumerate(_res)}
assert len(_res) == 27
def FX(m, j, T): return 2 * RIDX[(m, j)] + T
def AA(j): return 12 + 4 * j
GG, ACQ, ACK, ACV, TMP = 32, 40, 48, 56, 64
D_GAP = 2
DIS = 0
PUBSC = ""
KVSC = ""
TRACE_STEP = 40
MEGA = False

def emit_rec(A, instr=False, d_first=4, d_red=4, steps=64, exit_label="L_end", worker_label=None):
    e = A.e
    e("s_load_dwordx4 s[52:55], s[0:1], 16")
    e("s_load_dwordx4 s[56:59], s[0:1], 32")
    e("s_load_dwordx4 s[60:63], s[0:1], 96")
    e("v_lshrrev_b32 v11, 6, v0"); e("v_and_b32 v0, 63, v0"); e("v_readfirstlane_b32 s28, v11")
    e("s_waitcnt lgkmcnt(0)")
    for (d, s, n) in ((4, 62, WS_BYTES), (8, 52, 5242880), (12, 54, 5242880), (16, 56, 5242880), (20, 58, 5242880), (24, 60, 256)):
        e("s_mov_b32 s%d, s%d" % (d, s)); e("s_mov_b32 s%d, s%d" % (d + 1, s + 1)); e("s_mov_b32 s%d, 0x%x" % (d + 2, n)); e("s_mov_b32 s%d, 0x20000" % (d + 3))
    e("s_mov_b32 s74, 0")
    e("s_getreg_b32 s52, hwreg(HW_REG_XCC_ID)"); e("s_and_b32 s52, s52, 15")
    e("s_mov_b32 s53, 1")
    e("s_cmp_eq_u32 s52, 0"); e("s_cselect_b32 s54, 0x400, 0"); e("s_add_u32 s53, s53, s54")
    e("s_cmp_eq_u32 s52, 1"); e("s_cselect_b32 s54, 0x100000, 0"); e("s_add_u32 s53, s53, s54")
    e("v_mov_b32 v1, s53"); e("v_mov_b32 v2, 0"); e("v_mov_b32 v3, %d" % MISC_L)
    e("s_cmp_lg_u32 s28, 0"); e("s_cbranch_scc1 L_el_done")
    e("s_mov_b64 exec, 1")
    e("buffer_atomic_add v1, v2, s[24:27], 0 offen sc0 sc1"); e("s_waitcnt vmcnt(0)")
    A.label("L_el_poll")
    e("buffer_load_dword v4, v2, s[24:27], 0 offen sc1"); e("s_waitcnt vmcnt(0)")
    e("v_readfirstlane_b32 s54, v4"); e("s_nop 3")
    e("s_bfe_u32 s55, s54, 0xa000a"); e("s_bfe_u32 s56, s54, 0xa0014"); e("s_min_u32 s55, s55, s56")
    e("s_mov_b32 s57, 0")
    e("s_cmp_ge_u32 s55, 32"); e("s_cbranch_scc1 L_el_dec")
    e("s_mov_b32 s57, 1")
    e("s_and_b32 s55, s54, 0x3ff"); e("s_cmp_ge_u32 s55, 256"); e("s_cbranch_scc1 L_el_dec")
    e("s_add_u32 s74, s74, 1"); e("s_cmp_gt_u32 s74, %d" % SPIN_LIMIT); e("s_cbranch_scc1 L_abort")
    e("s_sleep 2"); e("s_branch L_el_poll")
    A.label("L_el_dec")
    e("v_mov_b32 v4, s57")
    e("ds_write_b32 v3, v1"); e("ds_write_b32 v3, v4 offset:4"); e("s_waitcnt lgkmcnt(0)")
    e("s_mov_b64 exec, -1")
    A.label("L_el_done")
    e("s_barrier")
    e("ds_read_b64 v[4:5], v3"); e("s_waitcnt lgkmcnt(0)")
    e("v_readfirstlane_b32 s54, v4"); e("v_readfirstlane_b32 s31, v5"); e("s_nop 3")
    e("s_barrier")
    e("s_cmp_lg_u32 s31, 0"); e("s_cbranch_scc1 L_el_slow")
    e("s_cmp_ge_u32 s52, 2"); e("s_cbranch_scc1 %s" % (worker_label or exit_label))
    e("s_mov_b32 s29, s52")
    e("s_bfe_u32 s55, s54, 0xa000a"); e("s_bfe_u32 s56, s54, 0xa0014")
    e("s_cmp_eq_u32 s52, 0"); e("s_cselect_b32 s30, s55, s56")
    e("s_cmp_ge_u32 s30, 32"); e("s_cbranch_scc1 %s" % (worker_label or exit_label))
    e("s_branch L_el_role")
    A.label("L_el_slow")
    e("s_and_b32 s55, s54, 0x3ff"); e("s_cmp_ge_u32 s55, 64"); e("s_cbranch_scc1 %s" % (worker_label or exit_label))
    e("s_lshr_b32 s29, s55, 5"); e("s_and_b32 s30, s55, 31")
    A.label("L_el_role")
    if MEGA: team_init(A)
    e("v_lshlrev_b32 v1, 4, v0")
    e("v_and_b32 v11, 1, v0"); e("v_cmp_eq_u32 vcc, 1, v11"); e("v_mov_b32 v2, 0x4444"); e("v_mov_b32 v11, 0xeeee"); e("v_cndmask_b32 v2, v2, v11, vcc")
    C, G, RR, CP, T0, T1 = 64, 65, 66, 67, 68, 69
    e("v_and_b32 v%d, 15, v0" % C); e("v_lshrrev_b32 v%d, 4, v0" % G)
    e("v_bfe_u32 v%d, v0, 2, 2" % RR); e("v_and_b32 v%d, 3, v0" % CP)
    e("v_and_b32 v%d, 1, v%d" % (T0, RR)); e("v_lshlrev_b32 v3, 4, v%d" % T0)
    e("v_lshrrev_b32 v%d, 1, v%d" % (T1, G)); e("v_lshl_add_u32 v3, v%d, 2, v3" % T1)
    e("v_lshrrev_b32 v%d, 1, v%d" % (T1, RR)); e("v_lshl_add_u32 v3, v%d, 1, v3" % T1)
    e("v_and_b32 v%d, 1, v%d" % (T1, G)); e("v_add_u32 v3, v3, v%d" % T1)
    e("v_lshlrev_b32 v3, 6, v3"); e("v_lshl_add_u32 v3, v%d, 3, v3" % CP); e("v_lshl_add_u32 v3, v%d, 5, v3" % T0)
    e("s_mul_i32 s52, s28, %d" % (NSLOT * 4096)); e("s_add_u32 s52, s52, %d" % WV_L)
    e("v_add_u32 v3, s52, v3"); e("v_xor_b32 v4, 32, v3")
    e("s_lshl_b32 s53, s28, 10"); e("s_add_u32 s53, s53, %d" % QKX_L)
    e("v_lshlrev_b32 v5, 5, v%d" % C); e("v_lshl_add_u32 v5, v%d, 3, v5" % G); e("v_add_u32 v5, s53, v5")
    e("v_lshlrev_b32 v6, 3, v0")
    e("v_lshrrev_b32 v%d, 2, v%d" % (T0, C)); e("v_and_b32 v%d, 1, v%d" % (T1, C)); e("v_lshl_add_u32 v%d, v%d, 1, v%d" % (T0, T0, T1))
    e("v_mul_u32_u24 v7, 320, v%d" % T0); e("v_lshl_add_u32 v7, v%d, 3, v7" % G)
    e("s_lshl_b32 s53, s28, 6"); e("s_add_u32 s53, s53, %d" % OX_L); e("v_add_u32 v7, s53, v7")
    e("v_lshrrev_b32 v%d, 1, v%d" % (T0, C)); e("v_mul_u32_u24 v8, 320, v%d" % T0); e("v_lshl_add_u32 v8, v%d, 5, v8" % G)
    e("v_lshl_add_u32 v8, v%d, 4, v8" % T1); e("v_add_u32 v8, %d, v8" % OX_L)
    e("v_lshlrev_b32 v9, 13, v%d" % G); e("v_lshrrev_b32 v%d, 3, v%d" % (T0, C)); e("v_lshl_add_u32 v9, v%d, 12, v9" % T0)
    e("v_and_b32 v%d, 7, v%d" % (T0, C)); e("v_lshl_add_u32 v9, v%d, 4, v9" % T0)
    e("s_lshl_b32 s42, s28, 5"); e("s_add_u32 s42, s42, s30")
    e("s_and_b32 s53, s42, 1"); e("s_lshl_b32 s53, s53, 3")
    e("v_add_u32 v%d, s53, v%d" % (T0, T0))
    e("v_lshrrev_b32 v10, 2, v%d" % T0); e("v_lshlrev_b32 v10, 8, v10")
    e("v_bfe_u32 v%d, v%d, 1, 1" % (T1, T0)); e("v_lshl_add_u32 v10, v%d, 4, v10" % T1)
    e("v_and_b32 v%d, 1, v%d" % (T1, T0)); e("v_lshl_add_u32 v10, v%d, 3, v10" % T1)
    e("v_and_b32 v%d, 1, v%d" % (T1, G)); e("v_lshl_add_u32 v10, v%d, 5, v10" % T1)
    e("s_bfe_u32 s53, s42, 0x20001"); e("s_lshl_b32 s53, s53, 6")
    e("s_lshr_b32 s54, s42, 3"); e("s_lshl_b32 s54, s54, 10"); e("s_add_u32 s53, s53, s54")
    e("v_add_u32 v10, s53, v10")
    e("s_lshl_b32 s53, s29, 18"); e("s_add_u32 s53, s53, 0x%x" % PB_OFF)
    e("s_lshl_b32 s54, s30, 7"); e("s_add_u32 s54, s54, s53")
    e("s_lshl_b32 s43, s28, 15"); e("s_add_u32 s43, s43, s54")
    e("s_lshl_b32 s44, s28, 2"); e("s_add_u32 s44, s44, s54"); e("s_add_u32 s44, s44, 0x20000")
    e("s_lshl_b32 s45, s42, 12"); e("s_add_u32 s45, s45, s53")
    e("s_lshl_b32 s53, s29, 19")
    e("s_add_u32 s38, s53, 0x%x" % ML_OFF)
    e("s_add_u32 s40, s53, 0x%x" % MR_OFF)
    e("s_xor_b32 s53, s53, 0x80000"); e("s_add_u32 s39, s53, 0x%x" % MR_OFF)
    e("s_lshl_b32 s53, s30, 20"); e("s_lshl_b32 s54, s28, 11"); e("s_add_u32 s53, s53, s54")
    e("s_add_u32 s46, s53, 0x%x" % KV_OFF); e("s_add_u32 s47, s46, 8192")
    e("s_lshr_b32 s54, s53, 1"); e("s_add_u32 s48, s54, 0x%x" % XV_OFF)
    e("s_lshl_b32 s53, s30, 19"); e("s_lshl_b32 s54, s28, 9"); e("s_add_u32 s49, s53, s54"); e("s_add_u32 s49, s49, 0x%x" % (XV_OFF + 4096))
    e("s_lshl_b32 s50, s28, 11")
    GE, GO, GW4, GW1 = 70, 71, 72, 73
    e("v_lshrrev_b32 v%d, 2, v0" % T0); e("v_lshlrev_b32 v%d, 13, v%d" % (GE, T0)); e("v_lshl_add_u32 v%d, v%d, 4, v%d" % (GE, CP, GE))
    e("s_lshl_b32 s53, s30, 8"); e("s_lshl_b32 s54, s28, 6"); e("s_add_u32 s53, s53, s54")
    e("v_add_u32 v%d, s53, v%d" % (GE, GE)); e("v_xor_b32 v%d, 32, v%d" % (GO, GE))
    e("v_lshrrev_b32 v%d, 1, v0" % T0); e("v_mul_u32_u24 v%d, 1280, v%d" % (GW1, T0)); e("v_and_b32 v%d, 1, v0" % T0); e("v_lshl_add_u32 v%d, v%d, 4, v%d" % (GW1, T0, GW1))
    e("s_mul_i32 s53, s30, 163840"); e("s_mul_i32 s54, s29, 640"); e("s_add_u32 s53, s53, s54")
    e("s_lshl_b32 s54, s28, 7"); e("s_add_u32 s54, s54, s53"); e("v_add_u32 v%d, s54, v%d" % (GW4, GW1))
    e("s_lshl_b32 s54, s28, 5"); e("s_add_u32 s54, s54, s53"); e("s_add_u32 s54, s54, 512"); e("v_add_u32 v%d, s54, v%d" % (GW1, GW1))
    e("v_lshrrev_b32 v%d, 1, v%d" % (T0, G)); e("v_lshlrev_b32 v%d, 4, v%d" % (T0, T0))
    e("v_lshrrev_b32 v%d, 1, v%d" % (T1, RR)); e("v_lshl_add_u32 v%d, v%d, 3, v%d" % (T0, T1, T0))
    e("v_and_b32 v%d, 1, v%d" % (T1, G)); e("v_lshl_add_u32 v%d, v%d, 2, v%d" % (T0, T1, T0))
    e("v_and_b32 v%d, 1, v%d" % (T1, RR)); e("v_add_u32 v%d, v%d, v%d" % (T0, T0, T1))
    e("v_lshlrev_b32 v0, 5, v%d" % T0); e("v_lshl_add_u32 v0, v%d, 3, v0" % CP); e("v_add_u32 v0, s52, v0")
    e("s_mul_i32 s53, s29, 5"); e("s_sub_u32 s54, 5, s53")
    for j in range(10):
        e("s_add_u32 s%d, s%d, %d" % (64 + j, 53 if j < 5 else 54, j % 5)); e("s_lshl_b32 s%d, s%d, 19" % (64 + j, 64 + j))
    e("v_mov_b32 v21, 0x3f80"); e("v_mov_b32 v22, 0x3f800000")
    e("v_cmp_gt_u32 vcc, 4, v%d" % C); e("s_nop 1"); e("v_cndmask_b32 v21, v22, v21, vcc")
    e("v_cmp_gt_u32 vcc, 8, v%d" % C); e("s_nop 1"); e("v_cndmask_b32 v21, 0, v21, vcc")
    for d in range(4):
        e("v_cmp_eq_u32 vcc, %d, v%d" % (d, CP)); e("s_nop 1"); e("v_cndmask_b32 v%d, 0, v21, vcc" % (16 + d))
    e("ds_write_b128 v1, v[16:19] offset:%d" % SEL_L)
    e("s_lshl_b32 s33, s28, 10"); e("s_lshl_b32 s34, s28, 8"); e("s_add_u32 s34, s34, 4096")
    items = list(_res)
    final = sorted(LSLOT, key=lambda k: LSLOT[k])
    def issue(it, slot):
        k, j = it
        for i in range(4):
            e("s_add_u32 m0, s52, %d" % (slot * 4096 + i * 1024))
            if k == "O":
                e("s_mov_b32 s53, %d" % (i * 32 * 1280 + (32 * j if j < 4 else 0)))
                e("buffer_load_dwordx4 v%d, s[20:23], s53 offen lds" % (GW4 if j < 4 else GW1))
            else:
                e("s_add_u32 s53, s%d, %d" % (64 + j, i * 16 * 8192))
                e("buffer_load_dwordx4 v%d, %s, s53 offen lds" % (GO if i & 1 else GE, {"Q": "s[8:11]", "K": "s[12:15]", "V": "s[16:19]"}[k]))
    def consume(it, slot):
        k, j = it
        for T in range(2):
            f = FX(k, j, T)
            for a in range(4):
                if k == "O": e("ds_read_b64_tr_b16 %s, v0 offset:%d" % (R(WB + 8 * f + 2 * a, 2), slot * 4096 + (64 * T + 32 * (a >> 1) + 2 * (a & 1)) * 32))
                else: e("ds_read_b64_tr_b16 %s, v%d offset:%d" % (R(WB + 8 * f + 2 * a, 2), 3 + T, slot * 4096 + 2048 * (a & 1) + 512 * (a >> 1)))
    inflight = []
    for n in range(NSLOT):
        issue(items[n], n); inflight.append((items[n], n))
    nxt = NSLOT
    done = set()
    while inflight and inflight[0][0] != "F":
        it, sl = inflight.pop(0)
        e("s_waitcnt vmcnt(%d)" % (4 * len(inflight)))
        consume(it, sl)
        e("s_waitcnt lgkmcnt(0)")
        if nxt < len(items):
            issue(items[nxt], sl); inflight.append((items[nxt], sl)); nxt += 1
        else:
            issue(final[sl], sl); inflight.append(("F", sl)); done.add(sl)
    assert len(done) == NSLOT
    e("s_waitcnt vmcnt(0)")
    e("v_add_u32 v11, s52, v1")
    for sl in range(NSLOT):
        k, j = final[sl]
        for T in range(2):
            for a in range(4):
                d = 16 + 8 * T + 2 * a
                if k == "O": e("ds_read_b64_tr_b16 v[%d:%d], v0 offset:%d" % (d, d + 1, sl * 4096 + (64 * T + 32 * (a >> 1) + 2 * (a & 1)) * 32))
                else: e("ds_read_b64_tr_b16 v[%d:%d], v%d offset:%d" % (d, d + 1, 3 + T, sl * 4096 + 2048 * (a & 1) + 512 * (a >> 1)))
        e("s_waitcnt lgkmcnt(0)")
        for q in range(4): e("ds_write_b128 v11, v[%d:%d] offset:%d" % (16 + 4 * q, 19 + 4 * q, sl * 4096 + 1024 * q))
    e("v_mov_b32 v3, v11")
    e("v_lshrrev_b32 v0, 2, v1")
    e("v_lshlrev_b32 v4, 2, v1")
    e("s_lshl_b32 s35, s28, 8"); e("s_add_u32 s35, s35, %d" % MISC_L)
    e("s_and_b32 s36, s42, 63"); e("s_lshl_b32 s36, s36, 7"); e("s_add_u32 s36, s36, 10240")
    e("s_lshl_b32 s50, s28, 12"); e("s_lshl_b32 s46, s30, 20"); e("s_add_u32 s46, s46, s50"); e("s_add_u32 s46, s46, 0x%x" % KV_OFF)
    e("s_lshl_b32 s56, s28, 10"); e("s_lshl_b32 s57, s28, 9")
    e("s_add_u32 s54, s57, 4096"); e("s_cmp_eq_u32 s29, 0"); e("s_cselect_b32 s54, s56, s54")
    e("s_lshl_b32 s48, s30, 19"); e("s_add_u32 s48, s48, s54"); e("s_add_u32 s48, s48, 0x%x" % (XV_OFF - 0x2000))
    e("s_lshl_b32 s47, s28, 11"); e("s_add_u32 s47, s47, %d" % VX_L)
    for r in range(ACQ, ACQ + 24): e("v_mov_b32 v%d, 0" % r)
    e("s_mov_b32 s32, 0")
    e("s_mov_b32 s51, 0x3e0293ee")
    if MEGA:
        A.label("L_ti_poll")
        e("v_mov_b32 v11, 0"); e("buffer_load_dword v11, v11, s[24:27], 0 offen offset:%d sc1" % DBG_INIT); e("s_waitcnt vmcnt(0)")
        e("v_readfirstlane_b32 s53, v11"); e("s_nop 3"); e("s_cmp_ge_u32 s53, 64"); e("s_cbranch_scc1 L_ti_ok")
        e("s_add_u32 s74, s74, 1"); e("s_cmp_gt_u32 s74, %d" % SPIN_LIMIT); e("s_cbranch_scc1 L_abort")
        e("s_sleep 4"); e("s_branch L_ti_poll")
        A.label("L_ti_ok")
        e("s_mov_b32 s49, 0")
        kv_poll(A, 32)
    e("s_waitcnt vmcnt(0)")
    e("s_barrier")
    if instr in (1, 2):
        for r in range(80, 96): e("s_mov_b32 s%d, 0" % r)
        e("s_memtime s[76:77]"); e("s_waitcnt lgkmcnt(0)"); e("s_mov_b32 s78, s76"); e("s_mov_b32 s95, s76")
    TP = [64, 66, 68, 70, 72] + list(range(76, 102, 2))
    tstate = {"n": 0}
    def stamp(i, fine=False):
        if not instr: return
        if instr == 3:
            n = tstate["n"]
            e("s_memtime s[%d:%d]" % (TP[n], TP[n] + 1)); A.c("stamp %d (%s)" % (n, i))
            tstate["n"] = n + 1
            if i == 8:
                l = A.newlabel("Lst")
                e("s_cmp_lg_u32 s32, %d" % TRACE_STEP); e("s_cbranch_scc1 %s" % l)
                e("s_waitcnt lgkmcnt(0)")
                e("s_lshl_b32 s53, s29, 5"); e("s_add_u32 s53, s53, s30"); e("s_lshl_b32 s53, s53, 2"); e("s_add_u32 s53, s53, s28"); e("s_lshl_b32 s53, s53, 7"); e("s_add_u32 s53, s53, 0x%x" % ST_OFF)
                e("v_mov_b32 v37, 0")
                for k in range(tstate["n"]):
                    e("v_mov_b32 v11, s%d" % TP[k]); e("buffer_store_dword v11, v37, s[4:7], s53 offen offset:%d" % (4 * k))
                A.label(l)
                tstate["n"] = 0
            return
        if fine: return
        if instr == 2:
            l = A.newlabel("Lst")
            e("s_cmp_lg_u32 s32, %d" % TRACE_STEP); e("s_cbranch_scc1 %s" % l)
            e("s_memrealtime s[76:77]"); e("s_waitcnt lgkmcnt(0)"); e("s_mov_b32 s%d, s76" % (80 + i))
            A.label(l)
            return
        e("s_memtime s[76:77]"); e("s_waitcnt lgkmcnt(0)")
        e("s_sub_u32 s79, s76, s78"); e("s_add_u32 s%d, s%d, s79" % (80 + i, 80 + i)); e("s_mov_b32 s78, s76")
        if i == 8:
            l = A.newlabel("Lst")
            e("s_cmp_lg_u32 s32, 3"); e("s_cbranch_scc1 %s" % l)
            for r in range(80, 95): e("s_mov_b32 s%d, 0" % r)
            e("s_mov_b32 s95, s76")
            A.label(l)
    e("s_cmp_lg_u32 s31, 0"); e("s_cbranch_scc1 L_loop_slow")
    for mode in ("fast", "slow"):
        sc = "" if mode == "fast" else " sc1"
        A.label("L_loop_" + mode)
        for par in (1, 0):
            emit_step(A, par, sc, stamp, d_first, d_red, instr in (1, 2))
        e("s_cmp_lt_u32 s32, %d" % steps); e("s_cbranch_scc1 L_loop_" + mode)
        e("s_branch L_rec_done")
    A.label("L_rec_done")
    publish(A)
    if MEGA:
        e("s_waitcnt vmcnt(0)"); e("s_barrier")
        signal_m(A, 2); signal_m(A, 1)
    if instr in (1, 2):
        e("s_memtime s[76:77]"); e("s_waitcnt lgkmcnt(0)"); e("s_sub_u32 s95, s76, s95")
        e("s_lshl_b32 s53, s29, 5"); e("s_add_u32 s53, s53, s30"); e("s_lshl_b32 s53, s53, 2"); e("s_add_u32 s53, s53, s28"); e("s_lshl_b32 s53, s53, 6"); e("s_add_u32 s53, s53, 0x%x" % ST_OFF)
        e("v_mov_b32 v0, 0")
        for i in range(16):
            e("v_mov_b32 v11, s%d" % (80 + i)); e("buffer_store_dword v11, v0, s[4:7], s53 offen offset:%d" % (4 * i))

    e("s_branch %s" % exit_label)
    A.label("L_abort")
    e("s_mov_b64 exec, 1")
    e("v_mov_b32 v0, %d" % DBG_ABORT); e("v_mov_b32 v11, 1")
    e("buffer_store_dword v11, v0, s[24:27], 0 offen")

def fload(A, dst, slot, T):
    for q in range(2):
        A.e("ds_read_b128 v[%d:%d], v3 offset:%d" % (dst + 4 * q, dst + 4 * q + 3, slot * 4096 + 2048 * T + 1024 * q))

def team_init(A):
    e = A.e
    e("s_load_dwordx2 s[52:53], s[0:1], 8")
    e("s_lshl_b32 s54, s28, 6"); e("v_add_u32 v12, s54, v0")
    e("v_lshlrev_b32 v13, 4, v12")
    for i in range(12): e("v_mov_b32 v%d, -1" % (16 + i))
    e("s_waitcnt lgkmcnt(0)")
    e("s_mov_b32 s56, s52"); e("s_mov_b32 s57, s53"); e("s_mov_b32 s58, 10240"); e("s_mov_b32 s59, 0x20000")
    e("s_cmp_lg_u32 s30, 0"); e("s_cbranch_scc1 L_ti_st")
    e("s_mul_i32 s54, s29, 640")
    for half in range(2):
        d = 16 + 4 * half
        e("v_bfe_u32 v14, v12, 1, 3"); e("v_mul_u32_u24 v14, 1280, v14")
        e("v_bfe_u32 v15, v12, 4, 2"); e("v_lshl_add_u32 v14, v15, 3, v14")
        e("v_and_b32 v15, 1, v12"); e("v_lshl_add_u32 v14, v15, 2, v14")
        if half == 0:
            e("v_lshrrev_b32 v15, 6, v12"); e("v_lshl_add_u32 v14, v15, 7, v14")
        else:
            e("v_add_u32 v14, 512, v14")
            e("s_cmp_lg_u32 s28, 0"); e("s_cbranch_scc1 L_ti_st")
        for t in range(4): e("buffer_load_dword v%d, v14, s[56:59], s54 offen offset:%d" % (28 + t, 32 * t))
        e("s_mov_b32 s52, 0x05040100"); e("s_mov_b32 s53, 0x07060302")
        e("s_waitcnt vmcnt(0)")
        e("v_perm_b32 v%d, v29, v28, s52" % d); e("v_perm_b32 v%d, v31, v30, s52" % (d + 1))
        e("v_perm_b32 v%d, v29, v28, s53" % (d + 2)); e("v_perm_b32 v%d, v31, v30, s53" % (d + 3))
        for i in range(4): e("v_min_u32 v%d, -2, v%d" % (d + i, d + i))
    A.label("L_ti_st")
    e("s_lshl_b32 s52, s29, 19"); e("s_mul_i32 s53, s30, 12288"); e("s_add_u32 s52, s52, s53")
    for base in (ML_OFF, MR_OFF):
        for i in range(3):
            e("s_add_u32 s53, s52, 0x%x" % (base + 4096 * i))
            e("buffer_store_dwordx4 v[%d:%d], v13, s[4:7], s53 offen sc1" % (16 + 4 * i, 19 + 4 * i))
    for i in range(4): e("v_mov_b32 v%d, 0" % (32 + i))
    e("s_lshl_b32 s52, s29, 18"); e("s_lshl_b32 s53, s30, 13"); e("s_add_u32 s52, s52, s53")
    for i in range(2):
        e("s_add_u32 s53, s52, 0x%x" % (PB_OFF + 4096 * i))
        e("buffer_store_dwordx4 v[32:35], v13, s[4:7], s53 offen sc1")
    e("s_lshl_b32 s52, s29, 5"); e("s_add_u32 s52, s52, s30"); e("s_lshl_b32 s52, s52, 8"); e("s_add_u32 s52, s52, 0x%x" % CT_OFF)
    e("v_lshlrev_b32 v14, 2, v0")
    e("buffer_store_dword v32, v14, s[4:7], s52 offen sc1")
    e("s_waitcnt vmcnt(0)"); e("s_barrier")
    e("s_cmp_lg_u32 s28, 0"); e("s_cbranch_scc1 L_ti_done")
    e("s_mov_b64 exec, 1"); e("v_mov_b32 v14, %d" % DBG_INIT); e("v_mov_b32 v15, 1")
    e("buffer_atomic_add v15, v14, s[24:27], 0 offen sc1")
    e("s_mov_b64 exec, -1")
    A.label("L_ti_done")

def kv_poll(A, need_sreg):
    e = A.e
    lp = A.newlabel("Lkv"); ok = A.newlabel("Lkvok")
    e("s_cmp_lt_u32 s%d, s49" % need_sreg); e("s_cbranch_scc1 %s" % ok)
    A.label(lp)
    e("buffer_load_dword v11, v0, s[24:27], 0 offen offset:%d sc1" % DBG_G1); e("s_waitcnt vmcnt(0)")
    e("v_and_b32 v11, 0x3ff, v11"); e("v_cmp_le_u32 vcc, 128, v11"); e("s_nop 3")
    e("s_and_b32 s49, vcc_lo, 0xffff"); e("s_ff0_i32_b32 s49, s49")
    e("s_cmp_eq_u32 s49, 16"); e("s_cmov_b32 s49, 17")
    e("s_cmp_lt_u32 s%d, s49" % need_sreg); e("s_cbranch_scc1 %s" % ok)
    e("s_add_u32 s74, s74, 1"); e("s_cmp_gt_u32 s74, %d" % SPIN_LIMIT); e("s_cbranch_scc1 L_abort")
    e("s_sleep 8"); e("s_branch %s" % lp)
    A.label(ok)

def signal_m(A, back):
    e = A.e
    l = A.newlabel("Lsg")
    e("s_cmp_lg_u32 s28, 3"); e("s_cbranch_scc1 %s" % l)
    e("s_cmp_lt_u32 s32, %d" % back); e("s_cbranch_scc1 %s" % l)
    e("s_lshl_b32 s53, s32, 7"); e("s_add_u32 s53, s53, 0x%x" % (CT_OFF - 128 * back))
    e("s_mov_b64 exec, 1"); e("v_mov_b32 v11, 1")
    e("buffer_atomic_add v11, v0, s[4:7], s53 offen sc1")
    e("s_mov_b64 exec, -1")
    A.label(l)

def publish(A, lds=None, wait_for=None, mm=None):
    e = A.e
    e("v_add_u32 v36, s56, v6"); e("v_add_u32 v37, s57, v6")
    e("ds_read_b64_tr_b16 v[32:33], v36 offset:%d" % QKX_L); e("ds_read_b64_tr_b16 v[34:35], v36 offset:%d" % (QKX_L + 512))
    e("ds_read_b64 v[38:39], v37 offset:%d" % QKX_L)
    if lds: lds("PB", 3)
    seq = (6, 7, 9, 5, 8) if mm else (9,)
    for j in seq:
        if mm:
            wait_for(("A", j))
            for T in range(2): mm("Q", j, T)
        if j == 9:
            if mm: wait_for("PB")
            else: e("s_waitcnt lgkmcnt(0)")
            t1 = A.newlabel("Lt1"); tj = A.newlabel("Ltj")
            e("s_cmp_eq_u32 s32, 0"); e("s_cbranch_scc1 %s" % tj)
            e("s_cmp_lg_u32 s29, 0"); e("s_cbranch_scc1 %s" % t1)
            if not DIS & 1: e("buffer_store_dwordx4 v[32:35], v1, s[4:7], s48 offen%s" % PUBSC)
            e("s_branch %s" % tj)
            A.label(t1)
            if not DIS & 1: e("buffer_store_dwordx2 v[38:39], v6, s[4:7], s48 offen%s" % PUBSC)
            A.label(tj)
            e("s_add_u32 s48, s48, 0x2000")

def emit_step(A, par, sc, stamp, d_first, d_red, instr):
    e = A.e
    KXC = KX_L
    ACC = {"Q": ACQ, "K": ACK, "V": ACV}
    def smf(acc, a, b): e("%s v[%d:%d], %s, %s, v2" % (SMF, acc, acc + 3, vr(a, 4), b))
    def spin():
        e("s_add_u32 s74, s74, 1"); e("s_cmp_gt_u32 s74, %d" % SPIN_LIMIT); e("s_cbranch_scc1 L_abort")
    def gl_load(reg, s):
        e("buffer_load_dwordx4 v[%d:%d], v37, s[4:7], s%d offen sc1" % (reg, reg + 3, s))
        e("buffer_load_dword v%d, v38, s[4:7], s%d offen sc1" % (reg + 4, s))
    def gl_check(reg):
        e("v_max3_u32 v11, v%d, v%d, v%d" % (reg, reg + 1, reg + 2)); e("v_max3_u32 v11, v11, v%d, v%d" % (reg + 3, reg + 4))
        e("v_cmp_eq_u32 vcc, -1, v11")
    def gl_write(reg, half):
        e("ds_write_b128 v37, v[%d:%d] offset:%d" % (reg, reg + 3, AC_L + 5120 * half))
        e("ds_write_b32 v38, v%d offset:%d" % (reg + 4, AC_L + 5120 * half))
    Lseq = [(m, j, T) for (m, j) in [("K", 0), ("K", 2), ("K", 4), ("V", 1), ("V", 3), ("Q", 5)] for T in range(2)]
    lstate = {"issued": 0, "other": 0}
    pend = []
    def lds(tag, n=1):
        pend.extend([tag] * n)
    def wait_for(tag):
        if tag not in pend: return
        last = len(pend) - 1 - pend[::-1].index(tag)
        n = len(pend) - 1 - last
        e("s_waitcnt lgkmcnt(%d)" % n)
        del pend[:last + 1]
    def wait_all():
        e("s_waitcnt lgkmcnt(0)"); del pend[:]
    def Lissue():
        i = lstate["issued"]
        if i >= len(Lseq): return
        m, j, T = Lseq[i]
        fload(A, TMP + 8 * (i % 2), LSLOT[(m, j)], T); lds(("L", i), 2)
        lstate["issued"] = i + 1
    def mm(m, j, T):
        a = AA(j % 5)
        if (m, j) in LSLOT:
            i = Lseq.index((m, j, T))
            wait_for(("L", i))
            smf(ACC[m] + 4 * T, a, vr(TMP + 8 * (i % 2), 8))
            Lissue()
        else:
            smf(ACC[m] + 4 * T, a, FR(FX(m, j, T)))
    def rdA(j):
        e("ds_read_b128 v[%d:%d], v1 offset:%d" % (AA(j % 5), AA(j % 5) + 3, AC_L + 1024 * j)); lds(("A", j))
    def zero(lo, hi):
        for r in range(lo, hi, 2): e("v_mov_b64 v[%d:%d], 0" % (r, r + 1))
    e("v_add_u32 v37, s33, v1"); e("v_add_u32 v38, s34, v0")
    if d_first: e("s_sleep %d" % d_first)
    GA, GB = 12, 20
    gl_load(GA, 38)
    stamp("issueA", True)
    if D_GAP: e("s_sleep %d" % D_GAP)
    e("s_mov_b32 m0, s50")
    gl_load(GB, 38)
    for i in range(4): e("buffer_load_dwordx4 v1, s[4:7], s46 offen offset:%d%s lds" % (1024 * i, KVSC))
    lp = A.newlabel("Lgl"); okA = A.newlabel("LglA"); okB = A.newlabel("LglB"); ok = A.newlabel("Lglok"); re = A.newlabel("Lglre")
    e("s_waitcnt vmcnt(6)")
    A.label(lp)
    gl_check(GA); e("s_cbranch_vccnz %s" % re)
    gl_write(GA, 0)
    A.label(ok)
    lds("W", 2)
    stamp("gotL", True)
    Lissue(); Lissue()
    wait_for("W")
    stamp(0)
    e("s_barrier")
    e("s_waitcnt vmcnt(0)")
    stamp("B4", True)
    for j in range(5): rdA(j)
    gl_load(GG, 39)
    for j in range(5):
        wait_for(("A", j))
        if j % 2 == 0: order = [("K", 0), ("Q", 0), ("Q", 1), ("K", 1)]
        else: order = [("Q", 0), ("K", 0), ("Q", 1), ("K", 1)]
        for m, T in order: mm(m, j, T)

    stamp(1)
    lpr = A.newlabel("Lgr"); rer = A.newlabel("Lgrre")
    A.label(lpr)
    e("s_waitcnt vmcnt(0)"); gl_check(GG); e("s_cbranch_vccnz %s" % rer)
    gl_write(GG, 1); lds("W", 2)
    stamp(9)
    mm("V", 0, 0)
    if MEGA and not par:
        e("s_add_u32 s54, s32, 1"); e("s_lshr_b32 s54, s54, 2")
        kv_poll(A, 54)
    e("s_mov_b32 m0, s35"); e("s_add_u32 s46, s46, 0x4000")
    e("buffer_load_dword v4, s[4:7], s46 offen%s lds" % KVSC)
    if MEGA: signal_m(A, 2)
    mm("V", 1, 0)
    nml = A.newlabel("Lnml")
    e("s_cmp_lg_u32 s30, 31"); e("s_cbranch_scc1 %s" % nml)
    e("s_add_u32 s54, s38, s50"); e("s_add_u32 s54, s54, 10240")
    e("buffer_load_dword v4, s[4:7], s54 offen lds")
    A.label(nml)
    mm("V", 0, 1); mm("V", 1, 1)
    wait_for("W")
    e("s_barrier")
    stamp("B5", True)
    rdA(5); rdA(6)
    VXR = GG
    mm("V", 2, 0); mm("V", 2, 1); rdA(7)
    mm("V", 4, 0); mm("V", 4, 1); rdA(9)
    mm("V", 3, 0); mm("V", 3, 1); rdA(8)
    publish(A, lds, wait_for, mm)
    for j in range(5, 10):
        for T in range(2):
            mm("K", j, T)
            if j < 7:
                ks = 2 * (j - 5) + T
                e("ds_read_b128 v[%d:%d], v1 offset:%d" % (TMP + 4 * ks, TMP + 3 + 4 * ks, KXC + 4096 + 1024 * ks)); lds("K1")
            if j == 8:
                q = ACQ + 4 * T
                e("v_add_f32 v%d, v%d, v%d" % (q, q, q + 1)); e("v_add_f32 v%d, v%d, v%d" % (q + 2, q + 2, q + 3))
            if j == 9:
                q = ACQ + 4 * T
                e("v_cvt_pk_bf16_f32 v%d, v%d, v%d" % (q + 1, q, q + 2))
    stamp(2)
    for j in (5, 6):
        for T in range(2): mm("V", j, T)
    e("s_nop 1")
    for T in range(2):
        q, k = ACQ + 4 * T, ACK + 4 * T
        e("v_add_f32 v%d, v%d, v%d" % (k, k, k + 1)); e("v_add_f32 v%d, v%d, v%d" % (k + 2, k + 2, k + 3))
        e("v_cvt_pk_bf16_f32 v%d, v%d, v%d" % (q, k, k + 2))
        e("ds_write_b64 v5, v[%d:%d] offset:%d" % (q, q + 1, 512 * T)); lds("W")
    for j in (7, 8):
        for T in range(2): mm("V", j, T)
    wait_all()
    e("s_barrier")
    stamp("B1", True)
    X, KT0 = 12, 40
    for ks in range(4):
        for a in range(2): e("ds_read_b64_tr_b16 v[%d:%d], v6 offset:%d" % (X + 4 * ks + 2 * a, X + 4 * ks + 2 * a + 1, QKX_L + 1024 * ks + 512 * a))
        lds(("X", ks), 2)
        if ks == 1: mm("V", 9, 0)
        if ks == 3: mm("V", 9, 1)
    for ks in range(4): e("ds_read_b128 v[%d:%d], v1 offset:%d" % (KT0 + 4 * ks, KT0 + 3 + 4 * ks, KXC + 1024 * ks)); lds("K0")
    e("v_add_u32 v11, s47, v1")
    e("ds_read_b128 v[32:35], v11"); e("ds_read_b128 v[36:39], v11 offset:1024"); lds("VX", 2)
    stamp(3)
    S2, S0, S1 = 28, 64, 68
    for ks in range(4):
        wait_for(("X", ks))
        e("%s v[%d:%d], %s, %s, %s" % (MF32, S2, S2 + 3, vr(TMP + 4 * ks, 4), vr(X + 4 * ks, 4), "0" if ks == 0 else vr(S2, 4)))
    for ks in range(4):
        e("%s v[%d:%d], %s, %s, %s" % (MF32, S0, S0 + 3, vr(X + 4 * ks, 4), vr(X + 4 * ks, 4), "0" if ks == 0 else vr(S0, 4)))
    wait_all()
    VM = 76
    for ks in range(4):
        e("%s v[%d:%d], %s, %s, %s" % (MF32, S1, S1 + 3, vr(KT0 + 4 * ks, 4), vr(X + 4 * ks, 4), "0" if ks == 0 else vr(S1, 4)))
        if ks < 2:
            v = ACV + 4 * ks
            e("v_add_f32 v%d, v%d, v%d" % (v, v, v + 1)); e("v_add_f32 v%d, v%d, v%d" % (v + 2, v + 2, v + 3))
        else:
            v = ACV + 4 * (ks - 2)
            e("v_cvt_pk_bf16_f32 v%d, v%d, v%d" % (VM + 2 * (ks - 2), v, v + 2)); e("v_mov_b32 v%d, 0" % (VM + 1 + 2 * (ks - 2)))
    fload(A, 40, 7, 0); fload(A, 48, 7, 1); lds("O4", 4)
    e("v_max3_f32 v11, v%d, v%d, v%d" % (S2, S2 + 1, S2 + 2)); e("v_max3_f32 v11, v11, v%d, v%d" % (S2 + 3, S0))
    P1, P0, ONES, OA, LS = 12, 16, 20, 56, 24
    e("v_max3_f32 v11, v11, v%d, v%d" % (S0 + 1, S1)); e("v_max3_f32 v11, v11, v%d, v%d" % (S1 + 1, S1 + 2))
    e("v_max_f32 v11, v11, v%d" % (S1 + 3)); e("v_mov_b32 v66, v11")
    e("v_mov_b32 v%d, 0x3f803f80" % ONES); e("v_mov_b32 v%d, 0x3f803f80" % (ONES + 1))
    e("v_permlane16_swap_b32 v11, v66"); e("v_max_f32 v11, v11, v66"); e("v_mov_b32 v66, v11")
    e("v_mov_b64 v[%d:%d], v[%d:%d]" % (ONES + 2, ONES + 3, ONES, ONES + 1)); e("v_mov_b32 v%d, 0" % (P0 + 1))
    e("v_permlane32_swap_b32 v11, v66"); e("v_max_f32 v11, v11, v66")
    e("v_mul_f32 v11, s51, v11")
    vals = [S0, S0 + 1] + [S1 + i for i in range(4)] + [S2 + i for i in range(4)]
    for i, v in enumerate(vals):
        e("v_fma_f32 v%d, v%d, s51, -v11" % (v, v))
        if i >= 1: e("v_exp_f32 v%d, v%d" % (vals[i - 1], vals[i - 1]))
        if i == 3: e("v_cvt_pk_bf16_f32 v%d, v%d, v%d" % (P0, S0, S0 + 1))
        if i == 5:
            e("v_cvt_pk_bf16_f32 v%d, v%d, v%d" % (P1, S1, S1 + 1))
            e("%s v[%d:%d], %s, %s, 0" % (MF16, LS, LS + 3, vr(ONES, 2), vr(P0, 2)))
        if i == 6: e("%s v[%d:%d], %s, %s, 0" % (MF16, OA, OA + 3, vr(VM, 2), vr(P0, 2)))
        if i == 7:
            e("v_cvt_pk_bf16_f32 v%d, v%d, v%d" % (P1 + 1, S1 + 2, S1 + 3))
            e("%s v[%d:%d], %s, %s, 0" % (MF16, OA + 4, OA + 7, vr(VM + 2, 2), vr(P0, 2)))
    e("v_exp_f32 v%d, v%d" % (vals[9], vals[9]))
    e("v_cvt_pk_bf16_f32 v%d, v%d, v%d" % (P1 + 2, S2, S2 + 1)); e("v_cvt_pk_bf16_f32 v%d, v%d, v%d" % (P1 + 3, S2 + 2, S2 + 3))
    stamp(4)
    e("s_nop 1")
    stamp("vx", True)
    e("%s v[%d:%d], %s, %s, %s" % (MF32, LS, LS + 3, vr(ONES, 4), vr(P1, 4), vr(LS, 4)))
    for T in range(2): e("%s v[%d:%d], %s, %s, %s" % (MF32, OA + 4 * T, OA + 4 * T + 3, vr(VXR + 4 * T, 4), vr(P1, 4), vr(OA + 4 * T, 4)))
    WA = 12
    zero(12, 24)
    e("v_rcp_f32 v11, v%d" % LS)

    e("s_mov_b32 exec_lo, 0xcccccccc"); e("s_mov_b32 exec_hi, 0xcccccccc")
    for T in range(2):
        o = OA + 4 * T
        for i in range(4): e("v_mul_f32 v%d, v%d, v11" % (o + i, o + i))
        e("v_cvt_pk_bf16_f32 v%d, v%d, v%d" % (o, o, o + 1)); e("v_cvt_pk_bf16_f32 v%d, v%d, v%d" % (o + 1, o + 2, o + 3))
        e("ds_write_b64 v7, v[%d:%d] offset:%d" % (o, o + 1, 32 * T)); lds("W")
    e("s_mov_b64 exec, -1")
    fload(A, 32, 6, 0); fload(A, 64, 6, 1); lds("O3", 4)
    zero(24, 32)
    wait_for("W")
    stamp("preB2", True)
    e("s_barrier")
    stamp("B2", True)
    OF = 56
    for ks in range(2): e("ds_read_b128 v[%d:%d], v8 offset:%d" % (OF + 4 * ks, OF + 3 + 4 * ks, 128 * ks)); lds(("OF", ks))
    stamp(5)
    WF = {(4, 0): vr(40, 8), (4, 1): vr(48, 8), (3, 0): vr(32, 8), (3, 1): vr(64, 8)}
    for t in range(3):
        for ks in range(2): WF[(t, ks)] = FR(FX("O", t, ks))
    wait_for(("OF", 0))
    smf(WA + 16, OF, WF[(4, 0)])
    wait_for(("OF", 1))
    smf(WA + 16, OF + 4, WF[(4, 1)])
    tagop = (lambda d: "v_or_b32 v%d, 1, v%d" % (d, d)) if par else (lambda d: "v_and_b32 v%d, -2, v%d" % (d, d))
    def packl(t, dst):
        d = WA + 4 * t
        return ["v_add_f32 v%d, v%d, v%d" % (d, d, d + 1), "v_add_f32 v%d, v%d, v%d" % (d + 2, d + 2, d + 3),
                "v_cvt_pk_bf16_f32 v%d, v%d, v%d" % (dst, d, d + 2), tagop(dst)]
    for t in (0, 1, 2):
        for ks in range(2): smf(WA + 4 * t, OF + 4 * ks, WF[(t, ks)])
    e("s_nop 1")
    p4 = packl(4, 44)
    e(p4[0]); e(p4[1]); smf(WA + 12, OF, WF[(3, 0)]); e(p4[2]); e(p4[3]); smf(WA + 12, OF + 4, WF[(3, 1)])
    e("buffer_store_dword v44, v9, s[4:7], s44 offen%s" % sc)
    for t in range(4):
        for x in packl(t, 40 + t): e(x)
    e("buffer_store_dwordx4 v[40:43], v9, s[4:7], s43 offen%s" % sc)
    stamp(6)
    tv = A.newlabel("Ltv")
    e("s_cmp_eq_u32 s29, 0"); e("s_cbranch_scc1 %s" % tv)
    e("v_add_u32 v11, s57, v0")
    e("ds_write_b32 v11, v%d offset:%d" % (VM, QKX_L)); e("ds_write_b32 v11, v%d offset:%d" % (VM + 2, QKX_L + 256))
    A.label(tv)
    e("s_add_u32 s38, s38, 5120"); e("s_add_u32 s39, s39, 5120"); e("s_add_u32 s40, s40, 5120")
    e("ds_read_b128 v[28:31], v1 offset:%d" % SEL_L)
    zero(ACQ, ACQ + 24)
    nored = A.newlabel("Lnored"); join = A.newlabel("Ljoin")
    e("s_cmp_ge_u32 s42, 40"); e("s_cbranch_scc1 %s" % nored)
    if d_red: e("s_sleep %d" % d_red)
    op = "v_bitop3_b32 v11, v11, v%d, v%d bitop3:0x80" if par else "v_or3_b32 v11, v11, v%d, v%d"
    RA, RB = 64, 12
    def rload(b):
        for j in range(4): e("buffer_load_dwordx4 v[%d:%d], v1, s[4:7], s45 offen offset:%d sc1" % (b + 4 * j, b + 3 + 4 * j, 1024 * j))
        if instr: e("s_add_u32 s91, s91, 1")
    def rcheck(b):
        e("v_mov_b32 v11, %d" % par)
        for j in range(4):
            e("s_waitcnt vmcnt(%d)" % (7 - j))
            e("%s v[32:35], v[28:31], %s, %s" % (MF32, vr(b + 4 * j, 4), "0" if j == 0 else "v[32:35]"))
            e(op % (b + 4 * j, b + 4 * j + 1)); e(op % (b + 4 * j + 2, b + 4 * j + 3))
        e("v_and_b32 v11, 1, v11")
        e("v_cmp_ne_u32 vcc, %d, v11" % par)
    rload(RA)
    if D_GAP: e("s_sleep %d" % D_GAP)
    rload(RB)
    e("s_waitcnt lgkmcnt(0)")
    lpd = A.newlabel("Lrd"); okd = A.newlabel("Lrdok"); A.label(lpd)
    rcheck(RA); e("s_cbranch_vccz %s" % okd); rload(RA)
    rcheck(RB); e("s_cbranch_vccz %s" % okd); rload(RB)
    spin()
    e("s_branch %s" % lpd)
    A.label(re)
    gl_load(GA, 38)
    if instr: e("s_add_u32 s90, s90, 1")
    e("s_waitcnt vmcnt(2)"); gl_check(GB); e("s_cbranch_vccz %s" % okB)
    gl_load(GB, 38)
    if instr: e("s_add_u32 s90, s90, 1")
    spin()
    e("s_waitcnt vmcnt(2)")
    e("s_branch %s" % lp)
    A.label(okB); gl_write(GB, 0); e("s_branch %s" % ok)
    A.label(rer)
    gl_load(GG, 39)
    if instr: e("s_add_u32 s92, s92, 1")
    spin()
    e("s_branch %s" % lpr)
    A.label(nored)
    e("s_waitcnt lgkmcnt(0)")
    e("s_branch %s" % join)
    A.label(okd)
    e("s_nop 2")
    for i in range(4): e("v_add_f32_dpp v%d, v%d, v%d row_ror:8 row_mask:0xf bank_mask:0xf" % (36 + i, 32 + i, 32 + i))
    e("s_mov_b32 exec_lo, 0x00ff00ff"); e("s_mov_b32 exec_hi, 0")
    e("v_cvt_pk_bf16_f32 v32, v36, v37"); e("v_cvt_pk_bf16_f32 v33, v38, v39")
    e("v_min_u32 v32, -2, v32"); e("v_min_u32 v33, -2, v33")
    e("buffer_store_dwordx2 v[32:33], v10, s[4:7], s38 offen%s" % sc)
    e("buffer_store_dwordx2 v[32:33], v10, s[4:7], s40 offen sc1")
    e("s_mov_b64 exec, -1")
    A.label(join)
    stamp(7)
    e("s_barrier")
    stamp(8)
    e("s_add_u32 s32, s32, 1")

def gen(**kw):
    A = Asm()
    A.raw("; @launch kernel=rec_kernel grid=(256,1,1) block=(256,1,1) lds=163840")
    A.raw('.amdgcn_target "amdgcn-amd-amdhsa--gfx950"')
    A.raw(".text")
    kernel_header(A, "rec_kernel")
    A.e("s_cmp_ge_u32 s2, 256"); A.e("s_cbranch_scc1 L_end")
    emit_rec(A, **kw)
    A.label("L_end")
    A.e("s_endpgm")
    A.raw('.section .rodata,"a"'); A.raw(".p2align 6")
    A.raw(kernel_desc("rec_kernel", 512, 102, 256))
    return A.text()

if __name__ == "__main__":
    import sys
    for spec in sys.argv[1:]:
        d1, dr, ra, ins = map(int, spec.split(","))
        DIS = d1 >> 4; d1 &= 15
        D_GAP = ra
        open("rec_%d_%d_%d_%d.s" % (d1 + 16 * DIS, dr, ra, ins), "w").write(gen(instr=ins, d_first=d1, d_red=dr))
```

```python
XN_OFF = 0x0000000
QF_OFF = 0x0400000
KF_OFF = 0x1400000
VF_OFF = 0x2400000
H_OFF  = 0x3400000
O_OFF  = 0x3C00000
XF_OFF = 0x4C00000
VM_OFF = 0x5400000
ML_OFF = 0x5800000
MR_OFF = 0x5900000
PB_OFF = 0x5A00000
ST_OFF = 0x5B00000
WS_BYTES = 0x10000000

KV_OFF = 0x1400000
XV_OFF = 0x6000000
CT_OFF = 0x5C00000
DBG_INIT = 28
DBG_G1 = 64
DBG_ABORT = 128
```

```python
import sys
from asmlib import *
from layout import *
import gen_g1, gen_rec, gen_att, gen_g2s
from gen_g1 import srd
NAME = "recurrent_scan__memory_aug_recurrent_mem_tr__glu_gated_swiglu__prompt"
HEAD = open("cdna_kernels/%s.s.ref" % NAME).read().split("; Override launch")[0]
LIM = 400000

def poll(A, srdname, soff, voff_imm, shift, target, vtmp, sleep=8):
    e = A.e
    lp = A.newlabel("Lp"); ok = A.newlabel("Lpok")
    A.label(lp)
    e("v_mov_b32 v%d, 0" % vtmp)
    e("buffer_load_dword v%d, v%d, %s, %s offen offset:%d sc1" % (vtmp, vtmp, srdname, soff, voff_imm)); e("s_waitcnt vmcnt(0)")
    e("v_readfirstlane_b32 s68, v%d" % vtmp); e("s_nop 3")
    for (sh, tg) in zip(shift, target):
        e("s_bfe_u32 s69, s68, 0x%x" % ((10 << 16) | sh)); e("s_cmp_lt_u32 s69, %d" % tg); e("s_cbranch_scc1 %s_n" % lp)
    e("s_branch %s" % ok)
    A.label(lp + "_n")
    e("s_add_u32 s74, s74, 1"); e("s_cmp_gt_u32 s74, %d" % LIM); e("s_cbranch_scc1 L_wabort")
    e("s_sleep %d" % sleep); e("s_branch %s" % lp)
    A.label(ok)

def build(instr=0, d_first=2, d_red=3, listform=False):
    A = Asm(); e = A.e
    A.raw(HEAD.rstrip())
    if listform: A.raw("; @launch kernel=%s_kernel grid=(256,1,1) block=(256,1,1) lds=163840" % NAME)
    else: A.raw("; @launch grid=(256,1,1) block=(256,1,1) lds=163840")
    A.raw('.amdgcn_target "amdgcn-amd-amdhsa--gfx950"')
    A.raw(".text")
    kernel_header(A, NAME + "_kernel")
    e("s_cmp_ge_u32 s2, 256"); e("s_cbranch_scc1 L_end")
    gen_rec.MEGA = True; gen_rec.PUBSC = " sc1"; gen_rec.KVSC = " sc1"
    gen_rec.emit_rec(A, instr=instr, d_first=d_first, d_red=d_red, worker_label="L_worker")
    e("s_branch L_end")
    A.label("L_worker")
    e("s_mov_b32 s26, s28")
    e("s_mov_b32 s64, s24"); e("s_mov_b32 s65, s25"); e("s_mov_b32 s66, 256"); e("s_mov_b32 s67, 0x20000")
    e("s_load_dwordx2 s[54:55], s[0:1], 0")
    e("s_load_dwordx4 s[16:19], s[0:1], 16")
    e("s_load_dwordx2 s[20:21], s[0:1], 32")
    e("s_load_dwordx4 s[56:59], s[0:1], 64")
    e("v_mov_b32 v3, %d" % gen_rec.MISC_L)
    e("s_cmp_lg_u32 s26, 0"); e("s_cbranch_scc1 L_w_slot_done")
    e("s_sub_u32 s33, s52, 2"); e("s_cmp_lt_u32 s52, 2"); e("s_cmov_b32 s33, 0"); e("s_cmp_gt_u32 s33, 5"); e("s_cmov_b32 s33, 0")
    e("s_mov_b64 exec, 1")
    A.label("L_w_slot")
    e("s_lshl_b32 s34, s33, 2"); e("v_mov_b32 v1, 1"); e("v_mov_b32 v2, s34")
    e("buffer_atomic_add v1, v2, s[64:67], 0 offen offset:4 sc0 sc1"); e("s_waitcnt vmcnt(0)")
    e("v_readfirstlane_b32 s34, v1"); e("s_nop 3")
    e("s_cmp_lt_u32 s34, 32"); e("s_cbranch_scc1 L_w_got")
    e("s_add_u32 s33, s33, 1"); e("s_cmp_eq_u32 s33, 6"); e("s_cmov_b32 s33, 0")
    e("s_add_u32 s74, s74, 1"); e("s_cmp_gt_u32 s74, %d" % LIM); e("s_cbranch_scc1 L_wabort")
    e("s_branch L_w_slot")
    A.label("L_w_got")
    e("s_lshl_b32 s33, s33, 5"); e("s_add_u32 s33, s33, s34"); e("v_mov_b32 v1, s33")
    e("ds_write_b32 v3, v1"); e("s_waitcnt lgkmcnt(0)")
    e("s_mov_b64 exec, -1")
    A.label("L_w_slot_done")
    e("s_waitcnt lgkmcnt(0)")
    e("s_barrier")
    e("ds_read_b32 v1, v3"); e("s_waitcnt lgkmcnt(0)"); e("v_readfirstlane_b32 s70, v1"); e("s_nop 3")
    e("s_barrier")
    e("s_mov_b64 s[22:23], s[56:57]"); e("s_mov_b64 s[24:25], s[58:59]")
    srd(e, 8, 54, 2621440)
    e("s_and_b32 s27, s70, 7"); e("s_lshr_b32 s28, s70, 3")
    gen_g1.emit_g1(A, NPART=24, mega=True)
    poll(A, "s[64:67]", "0", DBG_INIT, [0], [64], 11)
    e("s_mul_i32 s33, s70, 171"); e("s_lshr_b32 s71, s33, 10")
    e("s_mul_i32 s33, s71, 6"); e("s_sub_u32 s72, s70, s33")
    e("s_cmp_eq_u32 s72, 5"); e("s_cbranch_scc1 L_att_role")
    e("s_load_dwordx2 s[54:55], s[0:1], 40")
    e("s_load_dwordx4 s[56:59], s[0:1], 80")
    e("s_mul_i32 s33, s71, 5"); e("s_add_u32 s33, s33, s72")
    e("s_mul_i32 s47, s33, 205"); e("s_lshr_b32 s47, s47, 12")
    e("s_mul_i32 s34, s47, 20"); e("s_sub_u32 s28, s33, s34")
    e("s_waitcnt lgkmcnt(0)")
    srd(e, 16, 58, 2621440); srd(e, 12, 56, 1728 * 1280); srd(e, 20, 54, 5242880)
    e("s_barrier")
    gen_g2s.emit_g2s_prologue(A)
    A.label("L_g2_loop")
    def waitH():
        e("s_lshr_b32 s41, s47, 2"); e("s_lshl_b32 s41, s41, 2")
        poll(A, "s[64:67]", "s41", DBG_G1, [20], [56], 11)
    def waitO():
        e("s_lshl_b32 s41, s47, 7"); e("s_add_u32 s41, s41, 0x%x" % (CT_OFF + 0x2000))
        poll(A, "s[4:7]", "s41", 0, [0], [32], 11, sleep=4)
    gen_g2s.emit_g2s_task(A, waitH, waitO, " sc1")
    e("s_add_u32 s47, s47, 8"); e("s_cmp_lt_u32 s47, 64"); e("s_cbranch_scc1 L_g2_loop")
    e("s_branch L_end")
    A.label("L_att_role")
    gen_att.emit_att_setup(A)
    e("v_lshrrev_b32 v0, 6, v0")
    e("s_mov_b32 s47, s73")
    A.label("L_att_loop")
    e("s_lshl_b32 s30, s71, 6"); e("s_add_u32 s30, s30, s47")
    def waitQ():
        e("s_lshr_b32 s44, s47, 2"); e("s_lshl_b32 s44, s44, 2")
        poll(A, "s[64:67]", "s44", DBG_G1, [0, 10], [128, 64], 15)
    def waitM():
        e("s_lshl_b32 s44, s47, 7"); e("s_add_u32 s44, s44, 0x%x" % CT_OFF)
        poll(A, "s[4:7]", "s44", 0, [0], [64], 15, sleep=4)
    gen_att.emit_att(A, " sc1", waitQ, waitM)
    e("s_waitcnt vmcnt(0)")
    e("s_lshl_b32 s44, s47, 7"); e("s_add_u32 s44, s44, 0x%x" % (CT_OFF + 0x2000))
    e("s_mov_b64 exec, 1"); e("v_mov_b32 v15, 1")
    e("buffer_atomic_add v15, v0, s[4:7], s44 offen sc1")
    e("s_mov_b64 exec, -1")
    e("s_add_u32 s47, s47, 4"); e("s_cmp_lt_u32 s47, 64"); e("s_cbranch_scc1 L_att_loop")
    e("s_branch L_end")
    A.label("L_wabort")
    e("s_mov_b64 exec, 1"); e("v_mov_b32 v0, %d" % (DBG_ABORT + 4)); e("v_mov_b32 v11, 1")
    e("buffer_store_dword v11, v0, s[64:67], 0 offen")
    A.label("L_end"); e("s_endpgm")
    A.raw('.section .rodata,"a"'); A.raw(".p2align 6")
    A.raw(kernel_desc(NAME + "_kernel", 512, 102, 256))
    txt = A.text()
    return txt.replace("    s_mov_b32 s26, s28\n", "    s_mov_b32 s26, s28\n    s_mov_b32 s73, s28\n", 1)
if __name__ == "__main__":
    open("cdna_kernels/%s.s" % NAME, "w").write(build())
    open("mega_list.s", "w").write(build(listform=True))
```

```python
class Asm:
    def __init__(self):
        self.lines = []
        self._lab = 0
    def e(self, s):
        self.lines.append("    " + s)
    def c(self, s):
        self.lines.append("    ; " + s)
    def label(self, name):
        self.lines.append(name + ":")
    def newlabel(self, base="L"):
        self._lab += 1
        return "%s_%d" % (base, self._lab)
    def raw(self, s):
        self.lines.append(s)
    def text(self):
        return "\n".join(self.lines) + "\n"

def vr(a, n=1):
    return "v%d" % a if n == 1 else "v[%d:%d]" % (a, a + n - 1)
def ar(a, n=1):
    return "a%d" % a if n == 1 else "a[%d:%d]" % (a, a + n - 1)
def sr(a, n=1):
    return "s%d" % a if n == 1 else "s[%d:%d]" % (a, a + n - 1)
def R(a, n=1):
    if a < 256:
        assert a + n <= 256
        return vr(a, n)
    return ar(a - 256, n)

def kernel_header(A, name):
    A.raw(".globl %s" % name)
    A.raw(".p2align 8")
    A.raw(".type %s,@function" % name)
    A.label(name)

def kernel_desc(name, vgpr, sgpr, accum, wgy=False):
    s = ".amdhsa_kernel %s\n" % name
    s += "  .amdhsa_next_free_vgpr %d\n" % vgpr
    s += "  .amdhsa_next_free_sgpr %d\n" % sgpr
    s += "  .amdhsa_accum_offset %d\n" % accum
    s += "  .amdhsa_group_segment_fixed_size 0\n"
    s += "  .amdhsa_kernarg_size 112\n"
    s += "  .amdhsa_user_sgpr_count 2\n"
    s += "  .amdhsa_user_sgpr_kernarg_segment_ptr 1\n"
    s += "  .amdhsa_system_sgpr_workgroup_id_x 1\n"
    if wgy:
        s += "  .amdhsa_system_sgpr_workgroup_id_y 1\n"
    s += ".end_amdhsa_kernel\n"
    return s

TICK = {"on": False}
def tick(A, idx, vt, wavereg, sidx=None, st=(96, 97, 98)):
    if not TICK["on"]: return
    e = A.e
    a, b, c = st
    e("s_memrealtime s[%d:%d]" % (a, b))
    e("s_lshl_b32 s%d, s2, 2" % c); e("s_add_u32 s%d, s%d, s%d" % (c, c, wavereg)); e("s_lshl_b32 s%d, s%d, 6" % (c, c))
    if sidx is not None: e("s_add_u32 s%d, s%d, s%d" % (c, c, sidx))
    e("s_lshl_b32 s%d, s%d, 2" % (c, c)); e("s_add_u32 s%d, s%d, 0x%x" % (c, c, 0x5D00000 + 4 * idx))
    e("s_waitcnt lgkmcnt(0)")
    e("v_mov_b32 v%d, s%d" % (vt, a)); e("v_mov_b32 v%d, 0" % (vt + 1))
    e("buffer_store_dword v%d, v%d, s[4:7], s%d offen" % (vt, vt + 1, c))
```

```python
from asmlib import *
from layout import *
MF32 = "v_mfma_f32_16x16x32_bf16"

def srd(e, d, lo, n):
    e("s_mov_b32 s%d, s%d" % (d, lo)); e("s_mov_b32 s%d, s%d" % (d + 1, lo + 1)); e("s_mov_b32 s%d, 0x%x" % (d + 2, n)); e("s_mov_b32 s%d, 0x20000" % (d + 3))

def emit_init(A):
    e = A.e
    e("s_lshl_b32 s33, s2, 13"); e("s_add_u32 s33, s33, 0x%x" % ML_OFF)
    e("v_lshlrev_b32 v1, 4, v0")
    for i in range(4): e("v_mov_b32 v%d, -1" % (4 + i))
    for i in range(4): e("v_mov_b32 v%d, -1" % (8 + i))
    e("s_and_b32 s34, s2, 63"); e("s_cmp_lg_u32 s34, 0"); e("s_cbranch_scc1 L_init_st")
    e("s_bfe_u32 s34, s2, 0x10006"); e("s_mul_i32 s34, s34, 640")
    for half in range(2):
        d = 4 + 4 * half
        e("v_bfe_u32 v2, v0, 1, 3"); e("v_mul_u32_u24 v2, 1280, v2")
        e("v_bfe_u32 v3, v0, 4, 2"); e("v_lshl_add_u32 v2, v3, 3, v2")
        e("v_and_b32 v3, 1, v0"); e("v_lshl_add_u32 v2, v3, 2, v2")
        if half == 0:
            e("v_lshrrev_b32 v3, 6, v0"); e("v_lshl_add_u32 v2, v3, 7, v2")
        else:
            e("v_add_u32 v2, 512, v2")
            e("v_cmp_gt_u32 vcc, 64, v0"); e("s_and_saveexec_b64 s[36:37], vcc"); e("s_cbranch_execz L_init_r")
        for t in range(4): e("buffer_load_dword v%d, v2, s[40:43], s34 offen offset:%d" % (12 + t, 32 * t))
        e("s_mov_b32 s35, 0x05040100"); e("s_mov_b32 s38, 0x07060302")
        e("s_waitcnt vmcnt(0)")
        e("v_perm_b32 v%d, v13, v12, s35" % d); e("v_perm_b32 v%d, v15, v14, s35" % (d + 1))
        e("v_perm_b32 v%d, v13, v12, s38" % (d + 2)); e("v_perm_b32 v%d, v15, v14, s38" % (d + 3))
        for i in range(4): e("v_min_u32 v%d, -2, v%d" % (d + i, d + i))
    A.label("L_init_r")
    e("s_mov_b64 exec, -1")
    A.label("L_init_st")
    e("buffer_store_dwordx4 v[4:7], v1, s[4:7], s33 offen")
    e("s_add_u32 s33, s33, 4096")
    e("buffer_store_dwordx4 v[8:11], v1, s[4:7], s33 offen")
    e("s_lshl_b32 s33, s2, 11"); e("s_add_u32 s33, s33, 0x%x" % PB_OFF)
    e("v_lshlrev_b32 v1, 3, v0"); e("v_mov_b32 v2, 0"); e("v_mov_b32 v3, 0")
    e("buffer_store_dwordx2 v[2:3], v1, s[4:7], s33 offen")

XA0 = 96
def XA(tt, kk): return XA0 + (tt * 20 + kk) * 4
BB, ACC, ET = 16, 48, 80
def acc(T, tt): return ACC + (T * 2 + tt) * 4

def emit_g1(A, NPART=16, NCG=248, mega=False, NT=8):
    e = A.e
    sc = " sc1" if mega else ""
    def signal(cgreg):
        l = A.newlabel("Lg1s")
        e("s_cmp_lg_u32 s26, 0"); e("s_cbranch_scc1 %s" % l)
        e("s_lshr_b32 s33, s%d, 6" % cgreg); e("s_mov_b32 s34, 1")
        e("s_cmp_eq_u32 s33, 2"); e("s_cmov_b32 s34, 0x400"); e("s_cmp_eq_u32 s33, 3"); e("s_cmov_b32 s34, 0x100000")
        e("s_lshl_b32 s33, s27, 2")
        e("s_mov_b64 exec, 1"); e("v_mov_b32 v11, s34"); e("v_mov_b32 v12, s33")
        e("buffer_atomic_add v11, v12, s[64:67], 0 offen offset:%d sc1" % DBG_G1)
        e("s_mov_b64 exec, -1")
        A.label(l)
    e("v_lshlrev_b32 v1, 4, v0")
    e("v_lshrrev_b32 v2, 2, v0")
    e("v_lshrrev_b32 v3, 5, v0"); e("v_lshlrev_b32 v3, 1, v3"); e("v_and_b32 v4, 3, v0"); e("v_xor_b32 v3, v3, v4"); e("v_lshlrev_b32 v3, 4, v3")
    e("v_lshrrev_b32 v5, 4, v0"); e("v_bfe_u32 v6, v0, 2, 2"); e("v_lshl_add_u32 v6, v5, 3, v6"); e("v_lshlrev_b32 v6, 6, v6")
    e("v_lshl_add_u32 v6, v4, 3, v6"); e("v_and_b32 v5, 1, v5"); e("v_lshl_add_u32 v6, v5, 5, v6")
    e("v_xor_b32 v7, 32, v6"); e("v_add_u32 v8, 0x10000, v6"); e("v_add_u32 v9, 0x10000, v7")
    e("s_lshr_b32 s44, s26, 1")
    e("s_and_b32 s45, s26, 1"); e("s_lshl_b32 s45, s45, 6")
    e("s_lshl_b32 s46, s26, 12")
    e("s_mov_b32 s15, 0x20000")
    def setup_dma():
        e("s_lshr_b32 s33, s30, 6"); e("s_and_b32 s34, s30, 63")
        e("s_cmp_eq_u32 s33, 0"); e("s_cselect_b64 s[12:13], s[18:19], s[20:21]")
        e("s_cmp_eq_u32 s33, 2"); e("s_cselect_b64 s[12:13], s[16:17], s[12:13]")
        e("s_cmp_eq_u32 s44, 0"); e("s_cselect_b64 s[36:37], s[22:23], s[24:25]")
        e("s_lshl_b32 s35, s34, 1"); e("s_add_u32 s35, s35, s44")
        e("s_cmp_eq_u32 s33, 3")
        e("s_cselect_b64 s[12:13], s[36:37], s[12:13]")
        e("s_mov_b32 s31, 8192"); e("s_cmov_b32 s31, 3456")
        e("s_mov_b32 s14, 5242880"); e("s_cmov_b32 s14, 2211840")
        e("s_cselect_b32 s35, s34, s35"); e("s_lshl_b32 s35, s35, 6")
        e("s_cmp_ge_u32 s30, %d" % NCG); e("s_cselect_b32 s14, 0, s14")
        e("s_mul_i32 s32, s45, s31"); e("s_add_u32 s32, s32, s35")
        e("v_mad_u32_u24 v10, v2, s31, v3")
    def dma(ks5):
        for i in range(4):
            e("s_add_u32 m0, s46, %d" % (ks5 * 16384 + i * 1024))
            e("s_mul_i32 s33, s31, %d" % (128 * ks5 + 16 * i)); e("s_add_u32 s33, s33, s32")
            e("buffer_load_dwordx4 v10, s[12:15], s33 offen lds")
    A.label("L_g1_pass")
    e("s_mov_b32 s29, s28"); e("s_mov_b32 s30, s28")
    setup_dma()
    for k in range(4): dma(k)
    e("s_lshl_b32 s33, s27, 2"); e("s_add_u32 s47, s33, s26")
    e("s_mul_i32 s33, s47, 40960")
    e("v_and_b32 v4, 15, v0"); e("v_mul_u32_u24 v4, 1280, v4"); e("v_lshrrev_b32 v5, 4, v0"); e("v_lshl_add_u32 v4, v5, 4, v4")
    e("s_add_u32 s34, s33, 20480")
    for tt in range(2):
        for kk in range(20): e("buffer_load_dwordx4 v[%d:%d], v4, s[8:11], s%d offen offset:%d" % (XA(tt, kk), XA(tt, kk) + 3, 33 + tt, 64 * kk))
    e("v_mov_b32 v11, 0x3f803f80")
    for tt in range(2):
        e("s_waitcnt vmcnt(%d)" % (20 if tt == 0 else 0))
        for r in range(4): e("v_mov_b32 v%d, 0" % (ET + r))
        for i in range(80):
            r = XA(tt, 0) + i
            e("v_dot2c_f32_bf16 v%d, v%d, v11" % (ET + (i & 1), r)); e("v_dot2c_f32_bf16 v%d, v%d, v%d" % (ET + 2 + (i & 1), r, r))
        e("s_nop 2")
        e("v_add_f32 v%d, v%d, v%d" % (ET, ET, ET + 1)); e("v_add_f32 v%d, v%d, v%d" % (ET + 2, ET + 2, ET + 3))
        for sw in ("v_permlane16_swap_b32", "v_permlane32_swap_b32"):
            e("v_mov_b32 v%d, v%d" % (ET + 1, ET)); e("v_mov_b32 v%d, v%d" % (ET + 3, ET + 2)); e("s_nop 1")
            e("%s v%d, v%d" % (sw, ET, ET + 1)); e("%s v%d, v%d" % (sw, ET + 2, ET + 3))
            e("v_add_f32 v%d, v%d, v%d" % (ET, ET, ET + 1)); e("v_add_f32 v%d, v%d, v%d" % (ET + 2, ET + 2, ET + 3))
        e("v_mul_f32 v%d, 0x3acccccd, v%d" % (ET, ET))
        e("v_mul_f32 v%d, 0x3acccccd, v%d" % (ET + 2, ET + 2))
        e("v_fma_f32 v%d, -v%d, v%d, v%d" % (ET + 2, ET, ET, ET + 2))
        e("v_max_f32 v%d, 0, v%d" % (ET + 2, ET + 2)); e("v_add_f32 v%d, 0x3727c5ac, v%d" % (ET + 2, ET + 2))
        e("v_rsq_f32 v%d, v%d" % (ET + 2, ET + 2)); e("s_nop 0")
        e("v_mul_f32 v%d, v%d, v%d" % (ET, ET, ET + 2))
        for i in range(80):
            r = XA(tt, 0) + i; a = ET + 4 + 2 * (i & 3)
            e("v_lshlrev_b32 v%d, 16, v%d" % (a, r)); e("v_and_b32 v%d, 0xffff0000, v%d" % (a + 1, r))
            e("v_fma_f32 v%d, v%d, v%d, -v%d" % (a, a, ET + 2, ET)); e("v_fma_f32 v%d, v%d, v%d, -v%d" % (a + 1, a + 1, ET + 2, ET))
            e("v_cvt_pk_bf16_f32 v%d, v%d, v%d" % (r, a, a + 1))
    e("s_lshl_b32 s48, s47, 14")
    e("s_mul_i32 s49, s47, %d" % (2 * 56 * 1024)); e("s_add_u32 s49, s49, 0x%x" % H_OFF)
    e("s_mov_b32 s50, 0xbfb8aa3b")
    e("s_barrier")
    PD = 6
    def rd(f):
        f %= 80
        ks5, ks, T = f >> 4, (f >> 2) & 3, f & 3
        off = ks5 * 16384 + (T >> 1) * 8192 + ks * 2048
        base = 6 + (T & 1)
        if off >= 65536: off -= 65536; base += 2
        b = BB + 4 * (f & 7)
        for a in range(2): e("ds_read_b64_tr_b16 v[%d:%d], v%d offset:%d" % (b + 2 * a, b + 2 * a + 1, base, off + 256 * a))
    for f in range(PD): rd(f)
    A.label("L_g1_loop")
    e("s_lshr_b32 s33, s29, 6"); e("s_cmp_eq_u32 s33, 1"); e("s_cbranch_scc1 L_g1_bodyV")
    for kind in ("N", "V"):
        A.label("L_g1_body" + kind)
        for f in range(80):
            ks5, ks, T = f >> 4, (f >> 2) & 3, f & 3
            if f & 15 == 0:
                e("s_waitcnt vmcnt(8)"); e("s_barrier")
                if ks5 == 1:
                    e("s_add_u32 s30, s30, %d" % NPART); setup_dma()
                dma((ks5 + 4) % 5)
                if mega and ks5 == 2:
                    l = A.newlabel("Lg1f")
                    e("s_cmp_eq_u32 s29, s28"); e("s_cbranch_scc1 %s" % l)
                    e("s_sub_u32 s37, s29, %d" % NPART); signal(37)
                    A.label(l)
            rd(f + PD)
            e("s_waitcnt lgkmcnt(%d)" % (2 * PD))
            b = vr(BB + 4 * (f & 7), 4)
            for tt in range(2):
                x = vr(XA(tt, 4 * ks5 + ks), 4); d = vr(acc(T, tt), 4)
                c = "0" if (ks5 == 0 and ks == 0) else d
                if kind == "N": e("%s %s, %s, %s, %s" % (MF32, d, b, x, c))
                else: e("%s %s, %s, %s, %s" % (MF32, d, x, b, c))
        e("s_and_b32 s34, s29, 63")
        e("s_lshr_b32 s35, s34, 1"); e("s_lshl_b32 s35, s35, 20"); e("s_add_u32 s35, s35, s48")
        e("s_and_b32 s36, s34, 1")
        if kind == "V":
            e("s_lshl_b32 s36, s36, 12"); e("s_add_u32 s35, s35, s36"); e("s_add_u32 s35, s35, 0x%x" % (KV_OFF + 8192))
            e("s_nop 1")
            for T in range(4):
                o = ET + 4 * T
                for tt in range(2):
                    a = acc(T, tt)
                    e("v_cvt_pk_bf16_f32 v%d, v%d, v%d" % (o + 2 * tt, a, a + 1)); e("v_cvt_pk_bf16_f32 v%d, v%d, v%d" % (o + 2 * tt + 1, a + 2, a + 3))
                e("buffer_store_dwordx4 v[%d:%d], v1, s[4:7], s35 offen offset:%d%s" % (o, o + 3, 1024 * T, sc))
        else:
            e("s_lshr_b32 s33, s29, 6"); e("s_cmp_eq_u32 s33, 3"); e("s_cbranch_scc1 L_g1_epiF")
            e("s_lshr_b32 s37, s35, 1"); e("s_add_u32 s37, s37, 0x%x" % QF_OFF); e("s_add_u32 s35, s35, 0x%x" % KV_OFF)
            e("s_cmp_eq_u32 s33, 0"); e("s_cselect_b32 s35, s35, s37")
            e("s_lshl_b32 s36, s36, 11"); e("s_add_u32 s35, s35, s36"); e("s_add_u32 s36, s35, 4096")
            for u in range(2):
                for tt in range(2):
                    o = ET + 4 * (2 * u + tt)
                    for i in range(2):
                        a = acc(2 * u + i, tt)
                        e("v_cvt_pk_bf16_f32 v%d, v%d, v%d" % (o + 2 * i, a, a + 1)); e("v_cvt_pk_bf16_f32 v%d, v%d, v%d" % (o + 2 * i + 1, a + 2, a + 3))
                    e("buffer_store_dwordx4 v[%d:%d], v1, s[4:7], s%d offen offset:%d%s" % (o, o + 3, 35 + tt, 1024 * u, sc))
            e("s_branch L_g1_next")
            A.label("L_g1_epiF")
            e("s_lshl_b32 s35, s34, 10"); e("s_add_u32 s35, s35, s49"); e("s_add_u32 s36, s35, %d" % (56 * 1024))
            for tt in range(2):
                gs = [acc(T, tt) + r for T in range(2) for r in range(4)]
                us = [acc(T + 2, tt) + r for T in range(2) for r in range(4)]
                for i in range(8): e("v_mul_f32 v%d, s50, v%d" % (ET + i, gs[i]))
                for i in range(8): e("v_exp_f32 v%d, v%d" % (ET + i, ET + i))
                for i in range(8): e("v_add_f32 v%d, 1.0, v%d" % (ET + i, ET + i))
                for i in range(8): e("v_rcp_f32 v%d, v%d" % (ET + i, ET + i))
                for i in range(8): e("v_mul_f32 v%d, v%d, v%d" % (gs[i], gs[i], us[i]))
                for i in range(8): e("v_mul_f32 v%d, v%d, v%d" % (gs[i], gs[i], ET + i))
                o = ET + 8 + 4 * tt
                for i in range(4): e("v_cvt_pk_bf16_f32 v%d, v%d, v%d" % (o + i, gs[2 * i], gs[2 * i + 1]))
                e("buffer_store_dwordx4 v[%d:%d], v1, s[4:7], s%d offen%s" % (o, o + 3, 35 + tt, sc))
            e("s_branch L_g1_next")
    A.label("L_g1_next")
    if TICK["on"]:
        e("s_add_u32 s99, s99, 1"); tick(A, 2, 12, 26, 99)
    e("s_add_u32 s29, s29, %d" % NPART); e("s_cmp_lt_u32 s29, %d" % NCG); e("s_cbranch_scc1 L_g1_loop")
    e("s_waitcnt vmcnt(0) lgkmcnt(0)")
    if mega:
        e("s_barrier")
        e("s_sub_u32 s37, s29, %d" % NPART); signal(37)
        e("s_add_u32 s27, s27, %d" % NT); e("s_cmp_lt_u32 s27, 16"); e("s_cbranch_scc1 L_g1_pass")

def emit_g1_kernel(A):
    e = A.e
    kernel_header(A, "g1_kernel")
    e("s_cmp_ge_u32 s2, 256"); e("s_cbranch_scc1 L_g1_end")
    e("s_load_dwordx4 s[52:55], s[0:1], 0")
    e("s_load_dwordx4 s[16:19], s[0:1], 16")
    e("s_load_dwordx2 s[20:21], s[0:1], 32")
    e("s_load_dwordx4 s[56:59], s[0:1], 64")
    e("s_load_dwordx2 s[60:61], s[0:1], 104")
    e("v_lshrrev_b32 v1, 6, v0"); e("s_nop 0"); e("v_readfirstlane_b32 s26, v1")
    e("s_waitcnt lgkmcnt(0)")
    e("s_mov_b64 s[22:23], s[56:57]"); e("s_mov_b64 s[24:25], s[58:59]")
    srd(e, 4, 60, WS_BYTES); srd(e, 8, 52, 2621440); srd(e, 40, 54, 10240)
    emit_init(A)
    e("v_and_b32 v0, 63, v0")
    e("s_and_b32 s28, s2, 7"); e("s_lshr_b32 s33, s2, 7"); e("s_lshl_b32 s33, s33, 3"); e("s_add_u32 s28, s28, s33")
    e("s_bfe_u32 s27, s2, 0x40003")
    emit_g1(A)
    A.label("L_g1_end")
    e("s_endpgm")

if __name__ == "__main__":
    A = Asm()
    A.raw("; @launch kernel=g1_kernel grid=(256,1,1) block=(256,1,1) lds=81920")
    A.raw('.amdgcn_target "amdgcn-amd-amdhsa--gfx950"')
    A.raw(".text")
    emit_g1_kernel(A)
    A.raw('.section .rodata,"a"'); A.raw(".p2align 6")
    A.raw(kernel_desc("g1_kernel", 256, 80, 256))
    open("g1_test.s", "w").write(A.text())
```

```python
from asmlib import *
from layout import *

SMF = "v_smfmac_f32_16x16x64_bf16"
MF32 = "v_mfma_f32_16x16x32_bf16"
MF16 = "v_mfma_f32_16x16x16_bf16"

SPIN_LIMIT = 20000
R_AT = 0
KX_L, AC_L, QKX_L, SEL_L, MISC_L, WV_L = 0, 16384, 26624, 30720, 31744, 32768
OX_L = AC_L + 5120
VX_L = 8192
NSLOT = 8
WB = 80
def FR(f): return R(WB + 8 * f, 8)
LSLOT = {("K", 0): 0, ("K", 2): 1, ("K", 4): 2, ("V", 1): 3, ("V", 3): 4, ("Q", 5): 5, ("O", 3): 6, ("O", 4): 7}
_res = [(m, j) for m in "QKV" for j in range(10) if (m, j) not in LSLOT] + [("O", t) for t in range(3)]
RIDX = {k: i for i, k in enumerate(_res)}
assert len(_res) == 27
def FX(m, j, T): return 2 * RIDX[(m, j)] + T
def AA(j): return 12 + 4 * j
GG, ACQ, ACK, ACV, TMP = 32, 40, 48, 56, 64
D_GAP = 2
DIS = 0
PUBSC = ""
KVSC = ""
TRACE_STEP = 40
MEGA = False

def emit_rec(A, instr=False, d_first=4, d_red=4, steps=64, exit_label="L_end", worker_label=None):
    e = A.e
    e("s_load_dwordx4 s[52:55], s[0:1], 16")
    e("s_load_dwordx4 s[56:59], s[0:1], 32")
    e("s_load_dwordx4 s[60:63], s[0:1], 96")
    e("v_lshrrev_b32 v11, 6, v0"); e("v_and_b32 v0, 63, v0"); e("v_readfirstlane_b32 s28, v11")
    e("s_waitcnt lgkmcnt(0)")
    for (d, s, n) in ((4, 62, WS_BYTES), (8, 52, 5242880), (12, 54, 5242880), (16, 56, 5242880), (20, 58, 5242880), (24, 60, 256)):
        e("s_mov_b32 s%d, s%d" % (d, s)); e("s_mov_b32 s%d, s%d" % (d + 1, s + 1)); e("s_mov_b32 s%d, 0x%x" % (d + 2, n)); e("s_mov_b32 s%d, 0x20000" % (d + 3))
    tick(A, 0, 20, 28)
    e("s_mov_b32 s74, 0")
    e("s_getreg_b32 s52, hwreg(HW_REG_XCC_ID)"); e("s_and_b32 s52, s52, 7")
    e("s_lshl_b32 s53, s52, 4")
    e("v_mov_b32 v1, 1"); e("v_mov_b32 v2, s53"); e("v_mov_b32 v3, %d" % MISC_L); e("v_lshlrev_b32 v5, 4, v0")
    e("s_cmp_lg_u32 s28, 0"); e("s_cbranch_scc1 L_el_done")
    e("s_mov_b64 exec, 1")
    e("buffer_atomic_add v1, v2, s[24:27], 0 offen offset:%d sc0 sc1" % DBG_XC); e("s_waitcnt vmcnt(0)")
    e("v_readfirstlane_b32 s54, v1"); e("s_nop 3")
    e("s_lshl_b32 s55, s52, 5"); e("s_add_u32 s55, s55, s54")
    e("s_cmp_lt_u32 s54, 32"); e("s_cbranch_scc1 L_el_dec")
    e("v_mov_b32 v1, 1"); e("v_mov_b32 v2, 0")
    e("buffer_atomic_add v1, v2, s[24:27], 0 offen offset:%d sc0 sc1" % DBG_OVF); e("s_waitcnt vmcnt(0)")
    e("v_readfirstlane_b32 s54, v1")
    e("s_mov_b64 exec, 0xff")
    A.label("L_el_poll")
    e("buffer_load_dword v4, v5, s[24:27], 0 offen offset:%d sc1" % DBG_XC); e("s_waitcnt vmcnt(0)")
    e("s_mov_b32 s56, 0")
    for i in range(8):
        e("v_readlane_b32 s%d, v4, %d" % (64 + i, i))
    e("s_nop 3")
    for i in range(8): e("s_add_u32 s56, s56, s%d" % (64 + i))
    e("s_cmp_ge_u32 s56, 256"); e("s_cbranch_scc1 L_el_hole")
    e("s_add_u32 s74, s74, 1"); e("s_cmp_gt_u32 s74, %d" % SPIN_LIMIT); e("s_cbranch_scc1 L_abort")
    e("s_sleep 4"); e("s_branch L_el_poll")
    A.label("L_el_hole")
    for i in range(8):
        e("s_min_u32 s56, s%d, 32" % (64 + i)); e("s_sub_u32 s57, 32, s56")
        e("s_add_u32 s55, s56, s54"); e("s_add_u32 s55, s55, %d" % (32 * i))
        e("s_cmp_lt_u32 s54, s57"); e("s_cbranch_scc1 L_el_dec")
        e("s_sub_u32 s54, s54, s57")
    e("s_branch L_abort")
    A.label("L_el_dec")
    e("s_mov_b64 exec, 1")
    e("v_mov_b32 v1, s55")
    e("ds_write_b32 v3, v1"); e("s_waitcnt lgkmcnt(0)")
    e("s_mov_b64 exec, -1")
    A.label("L_el_done")
    e("s_barrier")
    e("ds_read_b32 v4, v3"); e("s_waitcnt lgkmcnt(0)")
    e("v_readfirstlane_b32 s55, v4"); e("s_nop 3")
    e("s_barrier")
    e("s_cmp_ge_u32 s55, 64"); e("s_cbranch_scc1 %s" % (worker_label or exit_label))
    e("s_lshr_b32 s29, s55, 5"); e("s_and_b32 s30, s55, 31")
    tick(A, 1, 20, 28)
    if MEGA: team_init(A)
    tick(A, 2, 20, 28)
    e("v_lshlrev_b32 v1, 4, v0")
    e("v_and_b32 v11, 1, v0"); e("v_cmp_eq_u32 vcc, 1, v11"); e("v_mov_b32 v2, 0x4444"); e("v_mov_b32 v11, 0xeeee"); e("v_cndmask_b32 v2, v2, v11, vcc")
    C, G, RR, CP, T0, T1 = 64, 65, 66, 67, 68, 69
    e("v_and_b32 v%d, 15, v0" % C); e("v_lshrrev_b32 v%d, 4, v0" % G)
    e("v_bfe_u32 v%d, v0, 2, 2" % RR); e("v_and_b32 v%d, 3, v0" % CP)
    e("v_and_b32 v%d, 1, v%d" % (T0, RR)); e("v_lshlrev_b32 v3, 4, v%d" % T0)
    e("v_lshrrev_b32 v%d, 1, v%d" % (T1, G)); e("v_lshl_add_u32 v3, v%d, 2, v3" % T1)
    e("v_lshrrev_b32 v%d, 1, v%d" % (T1, RR)); e("v_lshl_add_u32 v3, v%d, 1, v3" % T1)
    e("v_and_b32 v%d, 1, v%d" % (T1, G)); e("v_add_u32 v3, v3, v%d" % T1)
    e("v_lshlrev_b32 v3, 6, v3"); e("v_lshl_add_u32 v3, v%d, 3, v3" % CP); e("v_lshl_add_u32 v3, v%d, 5, v3" % T0)
    e("s_mul_i32 s52, s28, %d" % (NSLOT * 4096)); e("s_add_u32 s52, s52, %d" % WV_L)
    e("v_add_u32 v3, s52, v3"); e("v_xor_b32 v4, 32, v3")
    e("s_lshl_b32 s53, s28, 10"); e("s_add_u32 s53, s53, %d" % QKX_L)
    e("v_lshlrev_b32 v5, 5, v%d" % C); e("v_lshl_add_u32 v5, v%d, 3, v5" % G); e("v_add_u32 v5, s53, v5")
    e("v_lshlrev_b32 v6, 3, v0")
    e("v_lshrrev_b32 v%d, 2, v%d" % (T0, C)); e("v_and_b32 v%d, 1, v%d" % (T1, C)); e("v_lshl_add_u32 v%d, v%d, 1, v%d" % (T0, T0, T1))
    e("v_mul_u32_u24 v7, 320, v%d" % T0); e("v_lshl_add_u32 v7, v%d, 3, v7" % G)
    e("s_lshl_b32 s53, s28, 6"); e("s_add_u32 s53, s53, %d" % OX_L); e("v_add_u32 v7, s53, v7")
    e("v_lshrrev_b32 v%d, 1, v%d" % (T0, C)); e("v_mul_u32_u24 v8, 320, v%d" % T0); e("v_lshl_add_u32 v8, v%d, 5, v8" % G)
    e("v_lshl_add_u32 v8, v%d, 4, v8" % T1); e("v_add_u32 v8, %d, v8" % OX_L)
    e("v_lshlrev_b32 v9, 13, v%d" % G); e("v_lshrrev_b32 v%d, 3, v%d" % (T0, C)); e("v_lshl_add_u32 v9, v%d, 12, v9" % T0)
    e("v_and_b32 v%d, 7, v%d" % (T0, C)); e("v_lshl_add_u32 v9, v%d, 4, v9" % T0)
    e("s_lshl_b32 s42, s28, 5"); e("s_add_u32 s42, s42, s30")
    e("s_and_b32 s53, s42, 1"); e("s_lshl_b32 s53, s53, 3")
    e("v_add_u32 v%d, s53, v%d" % (T0, T0))
    e("v_lshrrev_b32 v10, 2, v%d" % T0); e("v_lshlrev_b32 v10, 8, v10")
    e("v_bfe_u32 v%d, v%d, 1, 1" % (T1, T0)); e("v_lshl_add_u32 v10, v%d, 4, v10" % T1)
    e("v_and_b32 v%d, 1, v%d" % (T1, T0)); e("v_lshl_add_u32 v10, v%d, 3, v10" % T1)
    e("v_and_b32 v%d, 1, v%d" % (T1, G)); e("v_lshl_add_u32 v10, v%d, 5, v10" % T1)
    e("s_bfe_u32 s53, s42, 0x20001"); e("s_lshl_b32 s53, s53, 6")
    e("s_lshr_b32 s54, s42, 3"); e("s_lshl_b32 s54, s54, 10"); e("s_add_u32 s53, s53, s54")
    e("v_add_u32 v10, s53, v10")
    e("s_lshl_b32 s53, s29, 18"); e("s_add_u32 s53, s53, 0x%x" % PB_OFF)
    e("s_lshl_b32 s54, s30, 7"); e("s_add_u32 s54, s54, s53")
    e("s_lshl_b32 s43, s28, 15"); e("s_add_u32 s43, s43, s54")
    e("s_lshl_b32 s44, s28, 2"); e("s_add_u32 s44, s44, s54"); e("s_add_u32 s44, s44, 0x20000")
    e("s_lshl_b32 s45, s42, 12"); e("s_add_u32 s45, s45, s53")
    e("s_lshl_b32 s53, s29, 19")
    e("s_add_u32 s38, s53, 0x%x" % ML_OFF)
    e("s_add_u32 s40, s53, 0x%x" % MR_OFF)
    e("s_xor_b32 s53, s53, 0x80000"); e("s_add_u32 s39, s53, 0x%x" % MR_OFF)
    e("s_lshl_b32 s53, s30, 20"); e("s_lshl_b32 s54, s28, 11"); e("s_add_u32 s53, s53, s54")
    e("s_add_u32 s46, s53, 0x%x" % KV_OFF); e("s_add_u32 s47, s46, 8192")
    e("s_lshr_b32 s54, s53, 1"); e("s_add_u32 s48, s54, 0x%x" % XV_OFF)
    e("s_lshl_b32 s53, s30, 19"); e("s_lshl_b32 s54, s28, 9"); e("s_add_u32 s49, s53, s54"); e("s_add_u32 s49, s49, 0x%x" % (XV_OFF + 4096))
    e("s_lshl_b32 s50, s28, 11")
    GE, GO, GW4, GW1 = 70, 71, 72, 73
    e("v_lshrrev_b32 v%d, 2, v0" % T0); e("v_lshlrev_b32 v%d, 13, v%d" % (GE, T0)); e("v_lshl_add_u32 v%d, v%d, 4, v%d" % (GE, CP, GE))
    e("s_lshl_b32 s53, s30, 8"); e("s_lshl_b32 s54, s28, 6"); e("s_add_u32 s53, s53, s54")
    e("v_add_u32 v%d, s53, v%d" % (GE, GE)); e("v_xor_b32 v%d, 32, v%d" % (GO, GE))
    e("v_lshrrev_b32 v%d, 1, v0" % T0); e("v_mul_u32_u24 v%d, 1280, v%d" % (GW1, T0)); e("v_and_b32 v%d, 1, v0" % T0); e("v_lshl_add_u32 v%d, v%d, 4, v%d" % (GW1, T0, GW1))
    e("s_mul_i32 s53, s30, 163840"); e("s_mul_i32 s54, s29, 640"); e("s_add_u32 s53, s53, s54")
    e("s_lshl_b32 s54, s28, 7"); e("s_add_u32 s54, s54, s53"); e("v_add_u32 v%d, s54, v%d" % (GW4, GW1))
    e("s_lshl_b32 s54, s28, 5"); e("s_add_u32 s54, s54, s53"); e("s_add_u32 s54, s54, 512"); e("v_add_u32 v%d, s54, v%d" % (GW1, GW1))
    e("v_lshrrev_b32 v%d, 1, v%d" % (T0, G)); e("v_lshlrev_b32 v%d, 4, v%d" % (T0, T0))
    e("v_lshrrev_b32 v%d, 1, v%d" % (T1, RR)); e("v_lshl_add_u32 v%d, v%d, 3, v%d" % (T0, T1, T0))
    e("v_and_b32 v%d, 1, v%d" % (T1, G)); e("v_lshl_add_u32 v%d, v%d, 2, v%d" % (T0, T1, T0))
    e("v_and_b32 v%d, 1, v%d" % (T1, RR)); e("v_add_u32 v%d, v%d, v%d" % (T0, T0, T1))
    e("v_lshlrev_b32 v0, 5, v%d" % T0); e("v_lshl_add_u32 v0, v%d, 3, v0" % CP); e("v_add_u32 v0, s52, v0")
    e("s_mul_i32 s53, s29, 5"); e("s_sub_u32 s54, 5, s53")
    for j in range(10):
        e("s_add_u32 s%d, s%d, %d" % (64 + j, 53 if j < 5 else 54, j % 5)); e("s_lshl_b32 s%d, s%d, 19" % (64 + j, 64 + j))
    e("v_mov_b32 v21, 0x3f80"); e("v_mov_b32 v22, 0x3f800000")
    e("v_cmp_gt_u32 vcc, 4, v%d" % C); e("s_nop 1"); e("v_cndmask_b32 v21, v22, v21, vcc")
    e("v_cmp_gt_u32 vcc, 8, v%d" % C); e("s_nop 1"); e("v_cndmask_b32 v21, 0, v21, vcc")
    for d in range(4):
        e("v_cmp_eq_u32 vcc, %d, v%d" % (d, CP)); e("s_nop 1"); e("v_cndmask_b32 v%d, 0, v21, vcc" % (16 + d))
    e("ds_write_b128 v1, v[16:19] offset:%d" % SEL_L)
    e("s_lshl_b32 s33, s28, 10"); e("s_lshl_b32 s34, s28, 8"); e("s_add_u32 s34, s34, 4096")
    items = list(_res)
    final = sorted(LSLOT, key=lambda k: LSLOT[k])
    def issue(it, slot):
        k, j = it
        for i in range(4):
            e("s_add_u32 m0, s52, %d" % (slot * 4096 + i * 1024))
            if k == "O":
                e("s_mov_b32 s53, %d" % (i * 32 * 1280 + (32 * j if j < 4 else 0)))
                e("buffer_load_dwordx4 v%d, s[20:23], s53 offen lds" % (GW4 if j < 4 else GW1))
            else:
                e("s_add_u32 s53, s%d, %d" % (64 + j, i * 16 * 8192))
                e("buffer_load_dwordx4 v%d, %s, s53 offen lds" % (GO if i & 1 else GE, {"Q": "s[8:11]", "K": "s[12:15]", "V": "s[16:19]"}[k]))
    def consume(it, slot):
        k, j = it
        for T in range(2):
            f = FX(k, j, T)
            for a in range(4):
                if k == "O": e("ds_read_b64_tr_b16 %s, v0 offset:%d" % (R(WB + 8 * f + 2 * a, 2), slot * 4096 + (64 * T + 32 * (a >> 1) + 2 * (a & 1)) * 32))
                else: e("ds_read_b64_tr_b16 %s, v%d offset:%d" % (R(WB + 8 * f + 2 * a, 2), 3 + T, slot * 4096 + 2048 * (a & 1) + 512 * (a >> 1)))
    inflight = []
    for n in range(NSLOT):
        issue(items[n], n); inflight.append((items[n], n))
    nxt = NSLOT
    done = set()
    while inflight and inflight[0][0] != "F":
        it, sl = inflight.pop(0)
        e("s_waitcnt vmcnt(%d)" % (4 * len(inflight)))
        consume(it, sl)
        e("s_waitcnt lgkmcnt(0)")
        if nxt < len(items):
            issue(items[nxt], sl); inflight.append((items[nxt], sl)); nxt += 1
        else:
            issue(final[sl], sl); inflight.append(("F", sl)); done.add(sl)
    assert len(done) == NSLOT
    e("s_waitcnt vmcnt(0)")
    e("v_add_u32 v11, s52, v1")
    for sl in range(NSLOT):
        k, j = final[sl]
        for T in range(2):
            for a in range(4):
                d = 16 + 8 * T + 2 * a
                if k == "O": e("ds_read_b64_tr_b16 v[%d:%d], v0 offset:%d" % (d, d + 1, sl * 4096 + (64 * T + 32 * (a >> 1) + 2 * (a & 1)) * 32))
                else: e("ds_read_b64_tr_b16 v[%d:%d], v%d offset:%d" % (d, d + 1, 3 + T, sl * 4096 + 2048 * (a & 1) + 512 * (a >> 1)))
        e("s_waitcnt lgkmcnt(0)")
        for q in range(4): e("ds_write_b128 v11, v[%d:%d] offset:%d" % (16 + 4 * q, 19 + 4 * q, sl * 4096 + 1024 * q))
    e("v_mov_b32 v3, v11")
    e("v_lshrrev_b32 v0, 2, v1")
    e("v_lshlrev_b32 v4, 2, v1")
    e("s_lshl_b32 s35, s28, 8"); e("s_add_u32 s35, s35, %d" % MISC_L)
    e("s_and_b32 s36, s42, 63"); e("s_lshl_b32 s36, s36, 7"); e("s_add_u32 s36, s36, 10240")
    e("s_lshl_b32 s50, s28, 12"); e("s_lshl_b32 s46, s30, 20"); e("s_add_u32 s46, s46, s50"); e("s_add_u32 s46, s46, 0x%x" % KV_OFF)
    e("s_lshl_b32 s56, s28, 10"); e("s_lshl_b32 s57, s28, 9")
    e("s_add_u32 s54, s57, 4096"); e("s_cmp_eq_u32 s29, 0"); e("s_cselect_b32 s54, s56, s54")
    e("s_lshl_b32 s48, s30, 19"); e("s_add_u32 s48, s48, s54"); e("s_add_u32 s48, s48, 0x%x" % (XV_OFF - 0x2000))
    e("s_lshl_b32 s47, s28, 11"); e("s_add_u32 s47, s47, %d" % VX_L)
    for r in range(ACQ, ACQ + 24): e("v_mov_b32 v%d, 0" % r)
    e("s_mov_b32 s32, 0")
    e("s_mov_b32 s51, 0x3e0293ee")
    tick(A, 3, 20, 28)
    A.label("L_md_poll")
    e("buffer_load_dword v11, v1, s[24:27], 0 offen offset:%d sc1" % DBG_XC); e("s_waitcnt vmcnt(0)")
    for i in range(8): e("v_readlane_b32 s%d, v11, %d" % (64 + i, i))
    e("s_nop 3")
    e("s_mov_b32 s31, 0")
    e("s_min_u32 s53, s64, s65"); e("s_cmp_ge_u32 s53, 32"); e("s_cbranch_scc1 L_md_ok")
    e("s_mov_b32 s31, 1"); e("s_mov_b32 s53, 0")
    for i in range(8): e("s_add_u32 s53, s53, s%d" % (64 + i))
    e("s_cmp_ge_u32 s53, 256"); e("s_cbranch_scc1 L_md_ok")
    e("s_add_u32 s74, s74, 1"); e("s_cmp_gt_u32 s74, %d" % SPIN_LIMIT); e("s_cbranch_scc1 L_abort")
    e("s_sleep 4"); e("s_branch L_md_poll")
    A.label("L_md_ok")
    if MEGA:
        A.label("L_ti_poll")
        e("v_mov_b32 v11, 0"); e("buffer_load_dword v11, v11, s[24:27], 0 offen offset:%d sc1" % DBG_INIT); e("s_waitcnt vmcnt(0)")
        e("v_readfirstlane_b32 s53, v11"); e("s_nop 3"); e("s_cmp_ge_u32 s53, 64"); e("s_cbranch_scc1 L_ti_ok")
        e("s_add_u32 s74, s74, 1"); e("s_cmp_gt_u32 s74, %d" % SPIN_LIMIT); e("s_cbranch_scc1 L_abort")
        e("s_sleep 4"); e("s_branch L_ti_poll")
        A.label("L_ti_ok")
        e("s_mov_b32 s49, 0")
        kv_poll(A, 32)
    e("s_waitcnt vmcnt(0)")
    e("s_barrier")
    if instr in (1, 2):
        for r in range(80, 96): e("s_mov_b32 s%d, 0" % r)
        e("s_memtime s[76:77]"); e("s_waitcnt lgkmcnt(0)"); e("s_mov_b32 s78, s76"); e("s_mov_b32 s95, s76")
    TP = [64, 66, 68, 70, 72] + list(range(76, 102, 2))
    tstate = {"n": 0}
    def stamp(i, fine=False):
        if not instr: return
        if instr == 3:
            n = tstate["n"]
            e("s_memtime s[%d:%d]" % (TP[n], TP[n] + 1)); A.c("stamp %d (%s)" % (n, i))
            tstate["n"] = n + 1
            if i == 8:
                l = A.newlabel("Lst")
                e("s_cmp_lg_u32 s32, %d" % TRACE_STEP); e("s_cbranch_scc1 %s" % l)
                e("s_waitcnt lgkmcnt(0)")
                e("s_lshl_b32 s53, s29, 5"); e("s_add_u32 s53, s53, s30"); e("s_lshl_b32 s53, s53, 2"); e("s_add_u32 s53, s53, s28"); e("s_lshl_b32 s53, s53, 7"); e("s_add_u32 s53, s53, 0x%x" % ST_OFF)
                e("v_mov_b32 v37, 0")
                for k in range(tstate["n"]):
                    e("v_mov_b32 v11, s%d" % TP[k]); e("buffer_store_dword v11, v37, s[4:7], s53 offen offset:%d" % (4 * k))
                A.label(l)
                tstate["n"] = 0
            return
        if fine: return
        if instr == 2:
            l = A.newlabel("Lst")
            e("s_cmp_lg_u32 s32, %d" % TRACE_STEP); e("s_cbranch_scc1 %s" % l)
            e("s_memrealtime s[76:77]"); e("s_waitcnt lgkmcnt(0)"); e("s_mov_b32 s%d, s76" % (80 + i))
            A.label(l)
            return
        e("s_memtime s[76:77]"); e("s_waitcnt lgkmcnt(0)")
        e("s_sub_u32 s79, s76, s78"); e("s_add_u32 s%d, s%d, s79" % (80 + i, 80 + i)); e("s_mov_b32 s78, s76")
        if i == 8:
            l = A.newlabel("Lst")
            e("s_cmp_lg_u32 s32, 3"); e("s_cbranch_scc1 %s" % l)
            for r in range(80, 95): e("s_mov_b32 s%d, 0" % r)
            e("s_mov_b32 s95, s76")
            A.label(l)
    tick(A, 4, 20, 28)
    e("s_cmp_lg_u32 s31, 0"); e("s_cbranch_scc1 L_loop_slow")
    for mode in ("fast", "slow"):
        sc = "" if mode == "fast" else " sc1"
        A.label("L_loop_" + mode)
        for par in (1, 0):
            emit_step(A, par, sc, stamp, d_first, d_red, instr in (1, 2))
        if TICK["on"]:
            e("s_lshr_b32 s99, s32, 1"); tick(A, 5, 12, 28, 99)
        e("s_cmp_lt_u32 s32, %d" % steps); e("s_cbranch_scc1 L_loop_" + mode)
        e("s_branch L_rec_done")
    A.label("L_rec_done")
    publish(A)
    if MEGA:
        e("s_waitcnt vmcnt(0)"); e("s_barrier")
        signal_m(A, 2); signal_m(A, 1)
    if instr in (1, 2):
        e("s_memtime s[76:77]"); e("s_waitcnt lgkmcnt(0)"); e("s_sub_u32 s95, s76, s95")
        e("s_lshl_b32 s53, s29, 5"); e("s_add_u32 s53, s53, s30"); e("s_lshl_b32 s53, s53, 2"); e("s_add_u32 s53, s53, s28"); e("s_lshl_b32 s53, s53, 6"); e("s_add_u32 s53, s53, 0x%x" % ST_OFF)
        e("v_mov_b32 v0, 0")
        for i in range(16):
            e("v_mov_b32 v11, s%d" % (80 + i)); e("buffer_store_dword v11, v0, s[4:7], s53 offen offset:%d" % (4 * i))

    e("s_branch %s" % exit_label)
    A.label("L_abort")
    e("s_mov_b64 exec, 1")
    e("v_mov_b32 v0, %d" % DBG_ABORT); e("v_mov_b32 v11, 1")
    e("buffer_store_dword v11, v0, s[24:27], 0 offen")

def fload(A, dst, slot, T):
    for q in range(2):
        A.e("ds_read_b128 v[%d:%d], v3 offset:%d" % (dst + 4 * q, dst + 4 * q + 3, slot * 4096 + 2048 * T + 1024 * q))

def team_init(A):
    e = A.e
    e("s_load_dwordx2 s[52:53], s[0:1], 8")
    e("s_lshl_b32 s54, s28, 6"); e("v_add_u32 v12, s54, v0")
    e("v_lshlrev_b32 v13, 4, v12")
    for i in range(12): e("v_mov_b32 v%d, -1" % (16 + i))
    e("s_waitcnt lgkmcnt(0)")
    e("s_mov_b32 s56, s52"); e("s_mov_b32 s57, s53"); e("s_mov_b32 s58, 10240"); e("s_mov_b32 s59, 0x20000")
    e("s_cmp_lg_u32 s30, 0"); e("s_cbranch_scc1 L_ti_st")
    e("s_mul_i32 s54, s29, 640")
    for half in range(2):
        d = 16 + 4 * half
        e("v_bfe_u32 v14, v12, 1, 3"); e("v_mul_u32_u24 v14, 1280, v14")
        e("v_bfe_u32 v15, v12, 4, 2"); e("v_lshl_add_u32 v14, v15, 3, v14")
        e("v_and_b32 v15, 1, v12"); e("v_lshl_add_u32 v14, v15, 2, v14")
        if half == 0:
            e("v_lshrrev_b32 v15, 6, v12"); e("v_lshl_add_u32 v14, v15, 7, v14")
        else:
            e("v_add_u32 v14, 512, v14")
            e("s_cmp_lg_u32 s28, 0"); e("s_cbranch_scc1 L_ti_st")
        for t in range(4): e("buffer_load_dword v%d, v14, s[56:59], s54 offen offset:%d" % (28 + t, 32 * t))
        e("s_mov_b32 s52, 0x05040100"); e("s_mov_b32 s53, 0x07060302")
        e("s_waitcnt vmcnt(0)")
        e("v_perm_b32 v%d, v29, v28, s52" % d); e("v_perm_b32 v%d, v31, v30, s52" % (d + 1))
        e("v_perm_b32 v%d, v29, v28, s53" % (d + 2)); e("v_perm_b32 v%d, v31, v30, s53" % (d + 3))
        for i in range(4): e("v_min_u32 v%d, -2, v%d" % (d + i, d + i))
    A.label("L_ti_st")
    e("s_lshl_b32 s52, s29, 19"); e("s_mul_i32 s53, s30, 12288"); e("s_add_u32 s52, s52, s53")
    for base in (ML_OFF, MR_OFF):
        for i in range(3):
            e("s_add_u32 s53, s52, 0x%x" % (base + 4096 * i))
            e("buffer_store_dwordx4 v[%d:%d], v13, s[4:7], s53 offen sc1" % (16 + 4 * i, 19 + 4 * i))
    for i in range(4): e("v_mov_b32 v%d, 0" % (32 + i))
    e("s_lshl_b32 s52, s29, 18"); e("s_lshl_b32 s53, s30, 13"); e("s_add_u32 s52, s52, s53")
    for i in range(2):
        e("s_add_u32 s53, s52, 0x%x" % (PB_OFF + 4096 * i))
        e("buffer_store_dwordx4 v[32:35], v13, s[4:7], s53 offen sc1")
    e("s_lshl_b32 s52, s29, 5"); e("s_add_u32 s52, s52, s30"); e("s_lshl_b32 s52, s52, 8"); e("s_add_u32 s52, s52, 0x%x" % CT_OFF)
    e("v_lshlrev_b32 v14, 2, v0")
    e("buffer_store_dword v32, v14, s[4:7], s52 offen sc1")
    e("s_waitcnt vmcnt(0)"); e("s_barrier")
    e("s_cmp_lg_u32 s28, 0"); e("s_cbranch_scc1 L_ti_done")
    e("s_mov_b64 exec, 1"); e("v_mov_b32 v14, %d" % DBG_INIT); e("v_mov_b32 v15, 1")
    e("buffer_atomic_add v15, v14, s[24:27], 0 offen sc1")
    e("s_mov_b64 exec, -1")
    A.label("L_ti_done")

def kv_poll(A, need_sreg):
    e = A.e
    lp = A.newlabel("Lkv"); ok = A.newlabel("Lkvok")
    e("s_cmp_lt_u32 s%d, s49" % need_sreg); e("s_cbranch_scc1 %s" % ok)
    A.label(lp)
    e("buffer_load_dword v11, v0, s[24:27], 0 offen offset:%d sc1" % DBG_G1); e("s_waitcnt vmcnt(0)")
    e("v_and_b32 v11, 0x3ff, v11"); e("v_cmp_le_u32 vcc, 128, v11"); e("s_nop 3")
    e("s_and_b32 s49, vcc_lo, 0xffff"); e("s_ff0_i32_b32 s49, s49")
    e("s_cmp_eq_u32 s49, 16"); e("s_cmov_b32 s49, 17")
    e("s_cmp_lt_u32 s%d, s49" % need_sreg); e("s_cbranch_scc1 %s" % ok)
    e("s_add_u32 s74, s74, 1"); e("s_cmp_gt_u32 s74, %d" % SPIN_LIMIT); e("s_cbranch_scc1 L_abort")
    e("s_sleep 8"); e("s_branch %s" % lp)
    A.label(ok)

def signal_m(A, back):
    e = A.e
    l = A.newlabel("Lsg")
    e("s_cmp_lg_u32 s28, 3"); e("s_cbranch_scc1 %s" % l)
    e("s_cmp_lt_u32 s32, %d" % back); e("s_cbranch_scc1 %s" % l)
    e("s_lshl_b32 s53, s32, 7"); e("s_add_u32 s53, s53, 0x%x" % (CT_OFF - 128 * back))
    e("s_mov_b64 exec, 1"); e("v_mov_b32 v11, 1")
    e("buffer_atomic_add v11, v0, s[4:7], s53 offen sc1")
    e("s_mov_b64 exec, -1")
    A.label(l)

def publish(A, lds=None, wait_for=None, mm=None):
    e = A.e
    e("v_add_u32 v36, s56, v6"); e("v_add_u32 v37, s57, v6")
    e("ds_read_b64_tr_b16 v[32:33], v36 offset:%d" % QKX_L); e("ds_read_b64_tr_b16 v[34:35], v36 offset:%d" % (QKX_L + 512))
    e("ds_read_b64 v[38:39], v37 offset:%d" % QKX_L)
    if lds: lds("PB", 3)
    seq = (6, 7, 9, 5, 8) if mm else (9,)
    for j in seq:
        if mm:
            wait_for(("A", j))
            for T in range(2): mm("Q", j, T)
        if j == 9:
            if mm: wait_for("PB")
            else: e("s_waitcnt lgkmcnt(0)")
            t1 = A.newlabel("Lt1"); tj = A.newlabel("Ltj")
            e("s_cmp_eq_u32 s32, 0"); e("s_cbranch_scc1 %s" % tj)
            e("s_cmp_lg_u32 s29, 0"); e("s_cbranch_scc1 %s" % t1)
            if not DIS & 1: e("buffer_store_dwordx4 v[32:35], v1, s[4:7], s48 offen%s" % PUBSC)
            e("s_branch %s" % tj)
            A.label(t1)
            if not DIS & 1: e("buffer_store_dwordx2 v[38:39], v6, s[4:7], s48 offen%s" % PUBSC)
            A.label(tj)
            e("s_add_u32 s48, s48, 0x2000")

def emit_step(A, par, sc, stamp, d_first, d_red, instr):
    e = A.e
    KXC = KX_L
    ACC = {"Q": ACQ, "K": ACK, "V": ACV}
    def smf(acc, a, b): e("%s v[%d:%d], %s, %s, v2" % (SMF, acc, acc + 3, vr(a, 4), b))
    def spin():
        e("s_add_u32 s74, s74, 1"); e("s_cmp_gt_u32 s74, %d" % SPIN_LIMIT); e("s_cbranch_scc1 L_abort")
    def gl_load(reg, s):
        e("buffer_load_dwordx4 v[%d:%d], v37, s[4:7], s%d offen sc1" % (reg, reg + 3, s))
        e("buffer_load_dword v%d, v38, s[4:7], s%d offen sc1" % (reg + 4, s))
    def gl_check(reg):
        e("v_max3_u32 v11, v%d, v%d, v%d" % (reg, reg + 1, reg + 2)); e("v_max3_u32 v11, v11, v%d, v%d" % (reg + 3, reg + 4))
        e("v_cmp_eq_u32 vcc, -1, v11")
    def gl_write(reg, half):
        e("ds_write_b128 v37, v[%d:%d] offset:%d" % (reg, reg + 3, AC_L + 5120 * half))
        e("ds_write_b32 v38, v%d offset:%d" % (reg + 4, AC_L + 5120 * half))
    Lseq = [(m, j, T) for (m, j) in [("K", 0), ("K", 2), ("K", 4), ("V", 1), ("V", 3), ("Q", 5)] for T in range(2)]
    lstate = {"issued": 0, "other": 0}
    pend = []
    def lds(tag, n=1):
        pend.extend([tag] * n)
    def wait_for(tag):
        if tag not in pend: return
        last = len(pend) - 1 - pend[::-1].index(tag)
        n = len(pend) - 1 - last
        e("s_waitcnt lgkmcnt(%d)" % n)
        del pend[:last + 1]
    def wait_all():
        e("s_waitcnt lgkmcnt(0)"); del pend[:]
    def Lissue():
        i = lstate["issued"]
        if i >= len(Lseq): return
        m, j, T = Lseq[i]
        fload(A, TMP + 8 * (i % 2), LSLOT[(m, j)], T); lds(("L", i), 2)
        lstate["issued"] = i + 1
    def mm(m, j, T):
        a = AA(j % 5)
        if (m, j) in LSLOT:
            i = Lseq.index((m, j, T))
            wait_for(("L", i))
            smf(ACC[m] + 4 * T, a, vr(TMP + 8 * (i % 2), 8))
            Lissue()
        else:
            smf(ACC[m] + 4 * T, a, FR(FX(m, j, T)))
    def rdA(j):
        e("ds_read_b128 v[%d:%d], v1 offset:%d" % (AA(j % 5), AA(j % 5) + 3, AC_L + 1024 * j)); lds(("A", j))
    def zero(lo, hi):
        for r in range(lo, hi, 2): e("v_mov_b64 v[%d:%d], 0" % (r, r + 1))
    e("v_add_u32 v37, s33, v1"); e("v_add_u32 v38, s34, v0")
    if d_first: e("s_sleep %d" % d_first)
    GA, GB = 12, 20
    gl_load(GA, 38)
    stamp("issueA", True)
    if D_GAP: e("s_sleep %d" % D_GAP)
    e("s_mov_b32 m0, s50")
    gl_load(GB, 38)
    for i in range(4): e("buffer_load_dwordx4 v1, s[4:7], s46 offen offset:%d%s lds" % (1024 * i, KVSC))
    lp = A.newlabel("Lgl"); okA = A.newlabel("LglA"); okB = A.newlabel("LglB"); ok = A.newlabel("Lglok"); re = A.newlabel("Lglre")
    e("s_waitcnt vmcnt(6)")
    A.label(lp)
    gl_check(GA); e("s_cbranch_vccnz %s" % re)
    gl_write(GA, 0)
    A.label(ok)
    lds("W", 2)
    stamp("gotL", True)
    Lissue(); Lissue()
    wait_for("W")
    stamp(0)
    e("s_barrier")
    e("s_waitcnt vmcnt(0)")
    stamp("B4", True)
    for j in range(5): rdA(j)
    gl_load(GG, 39)
    for j in range(5):
        wait_for(("A", j))
        if j % 2 == 0: order = [("K", 0), ("Q", 0), ("Q", 1), ("K", 1)]
        else: order = [("Q", 0), ("K", 0), ("Q", 1), ("K", 1)]
        for m, T in order: mm(m, j, T)

    stamp(1)
    lpr = A.newlabel("Lgr"); rer = A.newlabel("Lgrre")
    A.label(lpr)
    e("s_waitcnt vmcnt(0)"); gl_check(GG); e("s_cbranch_vccnz %s" % rer)
    gl_write(GG, 1); lds("W", 2)
    stamp(9)
    mm("V", 0, 0)
    if MEGA and not par:
        e("s_add_u32 s54, s32, 1"); e("s_lshr_b32 s54, s54, 2")
        kv_poll(A, 54)
    e("s_mov_b32 m0, s35"); e("s_add_u32 s46, s46, 0x4000")
    e("buffer_load_dword v4, s[4:7], s46 offen%s lds" % KVSC)
    if MEGA: signal_m(A, 2)
    mm("V", 1, 0)
    nml = A.newlabel("Lnml")
    e("s_cmp_lg_u32 s30, 31"); e("s_cbranch_scc1 %s" % nml)
    e("s_add_u32 s54, s38, s50"); e("s_add_u32 s54, s54, 10240")
    e("buffer_load_dword v4, s[4:7], s54 offen lds")
    A.label(nml)
    mm("V", 0, 1); mm("V", 1, 1)
    wait_for("W")
    e("s_barrier")
    stamp("B5", True)
    rdA(5); rdA(6)
    VXR = GG
    mm("V", 2, 0); mm("V", 2, 1); rdA(7)
    mm("V", 4, 0); mm("V", 4, 1); rdA(9)
    mm("V", 3, 0); mm("V", 3, 1); rdA(8)
    publish(A, lds, wait_for, mm)
    for j in range(5, 10):
        for T in range(2):
            mm("K", j, T)
            if j < 7:
                ks = 2 * (j - 5) + T
                e("ds_read_b128 v[%d:%d], v1 offset:%d" % (TMP + 4 * ks, TMP + 3 + 4 * ks, KXC + 4096 + 1024 * ks)); lds("K1")
            if j == 8:
                q = ACQ + 4 * T
                e("v_add_f32 v%d, v%d, v%d" % (q, q, q + 1)); e("v_add_f32 v%d, v%d, v%d" % (q + 2, q + 2, q + 3))
            if j == 9:
                q = ACQ + 4 * T
                e("v_cvt_pk_bf16_f32 v%d, v%d, v%d" % (q + 1, q, q + 2))
    stamp(2)
    for j in (5, 6):
        for T in range(2): mm("V", j, T)
    e("s_nop 1")
    for T in range(2):
        q, k = ACQ + 4 * T, ACK + 4 * T
        e("v_add_f32 v%d, v%d, v%d" % (k, k, k + 1)); e("v_add_f32 v%d, v%d, v%d" % (k + 2, k + 2, k + 3))
        e("v_cvt_pk_bf16_f32 v%d, v%d, v%d" % (q, k, k + 2))
        e("ds_write_b64 v5, v[%d:%d] offset:%d" % (q, q + 1, 512 * T)); lds("W")
    for j in (7, 8):
        for T in range(2): mm("V", j, T)
    wait_all()
    e("s_barrier")
    stamp("B1", True)
    X, KT0 = 12, 40
    for ks in range(4):
        for a in range(2): e("ds_read_b64_tr_b16 v[%d:%d], v6 offset:%d" % (X + 4 * ks + 2 * a, X + 4 * ks + 2 * a + 1, QKX_L + 1024 * ks + 512 * a))
        lds(("X", ks), 2)
        if ks == 1: mm("V", 9, 0)
        if ks == 3: mm("V", 9, 1)
    for ks in range(4): e("ds_read_b128 v[%d:%d], v1 offset:%d" % (KT0 + 4 * ks, KT0 + 3 + 4 * ks, KXC + 1024 * ks)); lds("K0")
    e("v_add_u32 v11, s47, v1")
    e("ds_read_b128 v[32:35], v11"); e("ds_read_b128 v[36:39], v11 offset:1024"); lds("VX", 2)
    stamp(3)
    S2, S0, S1 = 28, 64, 68
    for ks in range(4):
        wait_for(("X", ks))
        e("%s v[%d:%d], %s, %s, %s" % (MF32, S2, S2 + 3, vr(TMP + 4 * ks, 4), vr(X + 4 * ks, 4), "0" if ks == 0 else vr(S2, 4)))
    for ks in range(4):
        e("%s v[%d:%d], %s, %s, %s" % (MF32, S0, S0 + 3, vr(X + 4 * ks, 4), vr(X + 4 * ks, 4), "0" if ks == 0 else vr(S0, 4)))
    wait_all()
    VM = 76
    for ks in range(4):
        e("%s v[%d:%d], %s, %s, %s" % (MF32, S1, S1 + 3, vr(KT0 + 4 * ks, 4), vr(X + 4 * ks, 4), "0" if ks == 0 else vr(S1, 4)))
        if ks < 2:
            v = ACV + 4 * ks
            e("v_add_f32 v%d, v%d, v%d" % (v, v, v + 1)); e("v_add_f32 v%d, v%d, v%d" % (v + 2, v + 2, v + 3))
        else:
            v = ACV + 4 * (ks - 2)
            e("v_cvt_pk_bf16_f32 v%d, v%d, v%d" % (VM + 2 * (ks - 2), v, v + 2)); e("v_mov_b32 v%d, 0" % (VM + 1 + 2 * (ks - 2)))
    fload(A, 40, 7, 0); fload(A, 48, 7, 1); lds("O4", 4)
    e("v_max3_f32 v11, v%d, v%d, v%d" % (S2, S2 + 1, S2 + 2)); e("v_max3_f32 v11, v11, v%d, v%d" % (S2 + 3, S0))
    P1, P0, ONES, OA, LS = 12, 16, 20, 56, 24
    e("v_max3_f32 v11, v11, v%d, v%d" % (S0 + 1, S1)); e("v_max3_f32 v11, v11, v%d, v%d" % (S1 + 1, S1 + 2))
    e("v_max_f32 v11, v11, v%d" % (S1 + 3)); e("v_mov_b32 v66, v11")
    e("v_mov_b32 v%d, 0x3f803f80" % ONES); e("v_mov_b32 v%d, 0x3f803f80" % (ONES + 1))
    e("v_permlane16_swap_b32 v11, v66"); e("v_max_f32 v11, v11, v66"); e("v_mov_b32 v66, v11")
    e("v_mov_b64 v[%d:%d], v[%d:%d]" % (ONES + 2, ONES + 3, ONES, ONES + 1)); e("v_mov_b32 v%d, 0" % (P0 + 1))
    e("v_permlane32_swap_b32 v11, v66"); e("v_max_f32 v11, v11, v66")
    e("v_mul_f32 v11, s51, v11")
    vals = [S0, S0 + 1] + [S1 + i for i in range(4)] + [S2 + i for i in range(4)]
    for i, v in enumerate(vals):
        e("v_fma_f32 v%d, v%d, s51, -v11" % (v, v))
        if i >= 1: e("v_exp_f32 v%d, v%d" % (vals[i - 1], vals[i - 1]))
        if i == 3: e("v_cvt_pk_bf16_f32 v%d, v%d, v%d" % (P0, S0, S0 + 1))
        if i == 5:
            e("v_cvt_pk_bf16_f32 v%d, v%d, v%d" % (P1, S1, S1 + 1))
            e("%s v[%d:%d], %s, %s, 0" % (MF16, LS, LS + 3, vr(ONES, 2), vr(P0, 2)))
        if i == 6: e("%s v[%d:%d], %s, %s, 0" % (MF16, OA, OA + 3, vr(VM, 2), vr(P0, 2)))
        if i == 7:
            e("v_cvt_pk_bf16_f32 v%d, v%d, v%d" % (P1 + 1, S1 + 2, S1 + 3))
            e("%s v[%d:%d], %s, %s, 0" % (MF16, OA + 4, OA + 7, vr(VM + 2, 2), vr(P0, 2)))
    e("v_exp_f32 v%d, v%d" % (vals[9], vals[9]))
    e("v_cvt_pk_bf16_f32 v%d, v%d, v%d" % (P1 + 2, S2, S2 + 1)); e("v_cvt_pk_bf16_f32 v%d, v%d, v%d" % (P1 + 3, S2 + 2, S2 + 3))
    stamp(4)
    e("s_nop 1")
    stamp("vx", True)
    e("%s v[%d:%d], %s, %s, %s" % (MF32, LS, LS + 3, vr(ONES, 4), vr(P1, 4), vr(LS, 4)))
    for T in range(2): e("%s v[%d:%d], %s, %s, %s" % (MF32, OA + 4 * T, OA + 4 * T + 3, vr(VXR + 4 * T, 4), vr(P1, 4), vr(OA + 4 * T, 4)))
    WA = 12
    zero(12, 24)
    e("v_rcp_f32 v11, v%d" % LS)

    e("s_mov_b32 exec_lo, 0xcccccccc"); e("s_mov_b32 exec_hi, 0xcccccccc")
    for T in range(2):
        o = OA + 4 * T
        for i in range(4): e("v_mul_f32 v%d, v%d, v11" % (o + i, o + i))
        e("v_cvt_pk_bf16_f32 v%d, v%d, v%d" % (o, o, o + 1)); e("v_cvt_pk_bf16_f32 v%d, v%d, v%d" % (o + 1, o + 2, o + 3))
        e("ds_write_b64 v7, v[%d:%d] offset:%d" % (o, o + 1, 32 * T)); lds("W")
    e("s_mov_b64 exec, -1")
    fload(A, 32, 6, 0); fload(A, 64, 6, 1); lds("O3", 4)
    zero(24, 32)
    wait_for("W")
    stamp("preB2", True)
    e("s_barrier")
    stamp("B2", True)
    OF = 56
    for ks in range(2): e("ds_read_b128 v[%d:%d], v8 offset:%d" % (OF + 4 * ks, OF + 3 + 4 * ks, 128 * ks)); lds(("OF", ks))
    stamp(5)
    WF = {(4, 0): vr(40, 8), (4, 1): vr(48, 8), (3, 0): vr(32, 8), (3, 1): vr(64, 8)}
    for t in range(3):
        for ks in range(2): WF[(t, ks)] = FR(FX("O", t, ks))
    wait_for(("OF", 0))
    smf(WA + 16, OF, WF[(4, 0)])
    wait_for(("OF", 1))
    smf(WA + 16, OF + 4, WF[(4, 1)])
    tagop = (lambda d: "v_or_b32 v%d, 1, v%d" % (d, d)) if par else (lambda d: "v_and_b32 v%d, -2, v%d" % (d, d))
    def packl(t, dst):
        d = WA + 4 * t
        return ["v_add_f32 v%d, v%d, v%d" % (d, d, d + 1), "v_add_f32 v%d, v%d, v%d" % (d + 2, d + 2, d + 3),
                "v_cvt_pk_bf16_f32 v%d, v%d, v%d" % (dst, d, d + 2), tagop(dst)]
    for t in (0, 1, 2):
        for ks in range(2): smf(WA + 4 * t, OF + 4 * ks, WF[(t, ks)])
    e("s_nop 1")
    p4 = packl(4, 44)
    e(p4[0]); e(p4[1]); smf(WA + 12, OF, WF[(3, 0)]); e(p4[2]); e(p4[3]); smf(WA + 12, OF + 4, WF[(3, 1)])
    e("buffer_store_dword v44, v9, s[4:7], s44 offen%s" % sc)
    for t in range(4):
        for x in packl(t, 40 + t): e(x)
    e("buffer_store_dwordx4 v[40:43], v9, s[4:7], s43 offen%s" % sc)
    stamp(6)
    tv = A.newlabel("Ltv")
    e("s_cmp_eq_u32 s29, 0"); e("s_cbranch_scc1 %s" % tv)
    e("v_add_u32 v11, s57, v0")
    e("ds_write_b32 v11, v%d offset:%d" % (VM, QKX_L)); e("ds_write_b32 v11, v%d offset:%d" % (VM + 2, QKX_L + 256))
    A.label(tv)
    e("s_add_u32 s38, s38, 5120"); e("s_add_u32 s39, s39, 5120"); e("s_add_u32 s40, s40, 5120")
    e("ds_read_b128 v[28:31], v1 offset:%d" % SEL_L)
    zero(ACQ, ACQ + 24)
    nored = A.newlabel("Lnored"); join = A.newlabel("Ljoin")
    e("s_cmp_ge_u32 s42, 40"); e("s_cbranch_scc1 %s" % nored)
    if d_red: e("s_sleep %d" % d_red)
    op = "v_bitop3_b32 v11, v11, v%d, v%d bitop3:0x80" if par else "v_or3_b32 v11, v11, v%d, v%d"
    RA, RB = 64, 12
    def rload(b):
        for j in range(4): e("buffer_load_dwordx4 v[%d:%d], v1, s[4:7], s45 offen offset:%d sc1" % (b + 4 * j, b + 3 + 4 * j, 1024 * j))
        if instr: e("s_add_u32 s91, s91, 1")
    def rcheck(b):
        e("v_mov_b32 v11, %d" % par)
        for j in range(4):
            e("s_waitcnt vmcnt(%d)" % (7 - j))
            e("%s v[32:35], v[28:31], %s, %s" % (MF32, vr(b + 4 * j, 4), "0" if j == 0 else "v[32:35]"))
            e(op % (b + 4 * j, b + 4 * j + 1)); e(op % (b + 4 * j + 2, b + 4 * j + 3))
        e("v_and_b32 v11, 1, v11")
        e("v_cmp_ne_u32 vcc, %d, v11" % par)
    rload(RA)
    if D_GAP: e("s_sleep %d" % D_GAP)
    rload(RB)
    e("s_waitcnt lgkmcnt(0)")
    lpd = A.newlabel("Lrd"); okd = A.newlabel("Lrdok"); A.label(lpd)
    rcheck(RA); e("s_cbranch_vccz %s" % okd); rload(RA)
    rcheck(RB); e("s_cbranch_vccz %s" % okd); rload(RB)
    spin()
    e("s_branch %s" % lpd)
    A.label(re)
    gl_load(GA, 38)
    if instr: e("s_add_u32 s90, s90, 1")
    e("s_waitcnt vmcnt(2)"); gl_check(GB); e("s_cbranch_vccz %s" % okB)
    gl_load(GB, 38)
    if instr: e("s_add_u32 s90, s90, 1")
    spin()
    e("s_waitcnt vmcnt(2)")
    e("s_branch %s" % lp)
    A.label(okB); gl_write(GB, 0); e("s_branch %s" % ok)
    A.label(rer)
    gl_load(GG, 39)
    if instr: e("s_add_u32 s92, s92, 1")
    spin()
    e("s_branch %s" % lpr)
    A.label(nored)
    e("s_waitcnt lgkmcnt(0)")
    e("s_branch %s" % join)
    A.label(okd)
    e("s_nop 2")
    for i in range(4): e("v_add_f32_dpp v%d, v%d, v%d row_ror:8 row_mask:0xf bank_mask:0xf" % (36 + i, 32 + i, 32 + i))
    e("s_mov_b32 exec_lo, 0x00ff00ff"); e("s_mov_b32 exec_hi, 0")
    e("v_cvt_pk_bf16_f32 v32, v36, v37"); e("v_cvt_pk_bf16_f32 v33, v38, v39")
    e("v_min_u32 v32, -2, v32"); e("v_min_u32 v33, -2, v33")
    e("buffer_store_dwordx2 v[32:33], v10, s[4:7], s38 offen%s" % sc)
    e("buffer_store_dwordx2 v[32:33], v10, s[4:7], s40 offen sc1")
    e("s_mov_b64 exec, -1")
    A.label(join)
    stamp(7)
    e("s_barrier")
    stamp(8)
    e("s_add_u32 s32, s32, 1")

def gen(**kw):
    A = Asm()
    A.raw("; @launch kernel=rec_kernel grid=(256,1,1) block=(256,1,1) lds=163840")
    A.raw('.amdgcn_target "amdgcn-amd-amdhsa--gfx950"')
    A.raw(".text")
    kernel_header(A, "rec_kernel")
    A.e("s_cmp_ge_u32 s2, 256"); A.e("s_cbranch_scc1 L_end")
    emit_rec(A, **kw)
    A.label("L_end")
    A.e("s_endpgm")
    A.raw('.section .rodata,"a"'); A.raw(".p2align 6")
    A.raw(kernel_desc("rec_kernel", 512, 102, 256))
    return A.text()

if __name__ == "__main__":
    import sys
    for spec in sys.argv[1:]:
        d1, dr, ra, ins = map(int, spec.split(","))
        DIS = d1 >> 4; d1 &= 15
        KVSC = " sc1" if DIS & 8 else ""
        PUBSC = " sc1" if DIS & 16 else ""
        D_GAP = ra
        open("rec_%d_%d_%d_%d.s" % (d1 + 16 * DIS, dr, ra, ins), "w").write(gen(instr=ins, d_first=d1, d_red=dr))
```

```python
XN_OFF = 0x0000000
QF_OFF = 0x0400000
KF_OFF = 0x1400000
VF_OFF = 0x2400000
H_OFF  = 0x3400000
O_OFF  = 0x3C00000
XF_OFF = 0x4C00000
VM_OFF = 0x5400000
ML_OFF = 0x5800000
MR_OFF = 0x5900000
PB_OFF = 0x5A00000
ST_OFF = 0x5B00000
WS_BYTES = 0x10000000

KV_OFF = 0x1400000
XV_OFF = 0x6000000
CT_OFF = 0x5C00000
DBG_INIT = 4
DBG_G1 = 64
DBG_ABORT = 16
DBG_XC = 128
DBG_OVF = 8
MR2_OFF = 0x7000000
DBG_NEAR = 12
```

```python
import sys
from asmlib import *
from layout import *
import gen_g1, gen_rec, gen_att, gen_g2s
from gen_g1 import srd
NAME = "recurrent_scan__memory_aug_recurrent_mem_tr__glu_gated_swiglu__prompt"
HEAD = open("cdna_kernels/%s.s.ref" % NAME).read().split("; Override launch")[0]
LIM = 20000

SLEEPMUL = 1
def poll(A, srdname, soff, voff_imm, shift, target, vtmp, sleep=8, tail=None):
    e = A.e
    lp = A.newlabel("Lp"); ok = A.newlabel("Lpok")
    A.label(lp)
    e("v_mov_b32 v%d, 0" % vtmp)
    e("buffer_load_dword v%d, v%d, %s, %s offen offset:%d sc1" % (vtmp, vtmp, srdname, soff, voff_imm)); e("s_waitcnt vmcnt(0)")
    e("v_readfirstlane_b32 s68, v%d" % vtmp); e("s_nop 3")
    for (sh, tg) in zip(shift, target):
        e("s_bfe_u32 s69, s68, 0x%x" % ((10 << 16) | sh)); e("s_cmp_lt_u32 s69, %d" % tg); e("s_cbranch_scc1 %s_n" % lp)
    e("s_branch %s" % ok)
    A.label(lp + "_n")
    e("s_add_u32 s74, s74, 1"); e("s_cmp_gt_u32 s74, %d" % LIM); e("s_cbranch_scc1 L_wabort")
    e("s_sleep %d" % sleep)
    if tail:
        e("s_cmp_ge_u32 s47, %d" % tail); e("s_cbranch_scc1 %s" % lp); e("s_sleep 64")
    e("s_branch %s" % lp)
    A.label(ok)

def build(instr=0, d_first=2, d_red=3, listform=False):
    A = Asm(); e = A.e
    A.raw(HEAD.rstrip())
    if listform: A.raw("; @launch kernel=%s_kernel grid=(256,1,1) block=(256,1,1) lds=163840" % NAME)
    else: A.raw("; @launch grid=(256,1,1) block=(256,1,1) lds=163840")
    A.raw('.amdgcn_target "amdgcn-amd-amdhsa--gfx950"')
    A.raw(".text")
    kernel_header(A, NAME + "_kernel")
    e("s_cmp_ge_u32 s2, 256"); e("s_cbranch_scc1 L_end")
    gen_rec.MEGA = True; gen_rec.PUBSC = " sc1"; gen_rec.KVSC = " sc1"
    gen_rec.emit_rec(A, instr=instr, d_first=d_first, d_red=d_red, worker_label="L_worker")
    e("s_branch L_end")
    A.label("L_worker")
    e("s_mov_b32 s26, s28")
    e("s_sub_u32 s70, s55, 64")
    e("s_mov_b32 s64, s24"); e("s_mov_b32 s65, s25"); e("s_mov_b32 s66, 256"); e("s_mov_b32 s67, 0x20000")
    e("s_load_dwordx2 s[54:55], s[0:1], 0")
    e("s_load_dwordx4 s[16:19], s[0:1], 16")
    e("s_load_dwordx2 s[20:21], s[0:1], 32")
    e("s_load_dwordx4 s[56:59], s[0:1], 64")
    e("s_waitcnt lgkmcnt(0)")
    e("s_mov_b64 s[22:23], s[56:57]"); e("s_mov_b64 s[24:25], s[58:59]")
    srd(e, 8, 54, 2621440)
    e("s_and_b32 s27, s70, 3"); e("s_lshr_b32 s28, s70, 2")
    tick(A, 1, 12, 26); e("s_mov_b32 s99, 0")
    gen_g1.emit_g1(A, NPART=48, mega=True, NT=4)
    tick(A, 30, 12, 26)
    poll(A, "s[64:67]", "0", DBG_INIT, [0], [64], 11)
    e("s_mul_i32 s33, s70, 171"); e("s_lshr_b32 s71, s33, 10")
    e("s_mul_i32 s33, s71, 6"); e("s_sub_u32 s72, s70, s33")
    e("s_cmp_eq_u32 s72, 5"); e("s_cbranch_scc1 L_att_role")
    e("s_load_dwordx2 s[54:55], s[0:1], 40")
    e("s_load_dwordx4 s[56:59], s[0:1], 80")
    e("s_mul_i32 s33, s71, 5"); e("s_add_u32 s33, s33, s72")
    e("s_mul_i32 s47, s33, 205"); e("s_lshr_b32 s47, s47, 12")
    e("s_mul_i32 s34, s47, 20"); e("s_sub_u32 s28, s33, s34")
    e("s_waitcnt lgkmcnt(0)")
    srd(e, 16, 58, 2621440); srd(e, 12, 56, 1728 * 1280); srd(e, 20, 54, 5242880)
    e("s_barrier")
    gen_g2s.emit_g2s_prologue(A)
    tick(A, 31, 12, 26)
    A.label("L_g2_loop")
    def waitH():
        e("s_lshr_b32 s41, s47, 2"); e("s_lshl_b32 s41, s41, 2")
        poll(A, "s[64:67]", "s41", DBG_G1, [20], [56], 11, sleep=32)
    def waitO():
        e("s_lshl_b32 s41, s47, 7"); e("s_add_u32 s41, s41, 0x%x" % (CT_OFF + 0x2000))
        e("s_cmp_lg_u32 s26, 0"); e("s_cbranch_scc1 L_g2_nopoll")
        poll(A, "s[4:7]", "s41", 0, [0], [32], 11, sleep=4, tail=60)
        A.label("L_g2_nopoll")
        e("s_barrier")
    gen_g2s.emit_g2s_task(A, waitH, waitO, " sc1")
    if TICK["on"]:
        e("s_lshr_b32 s99, s47, 3"); tick(A, 32, 14, 26, 99)
    e("s_add_u32 s47, s47, 8"); e("s_cmp_lt_u32 s47, 64"); e("s_cbranch_scc1 L_g2_loop")
    e("s_branch L_end")
    A.label("L_att_role")
    gen_att.emit_att_setup(A)
    e("v_lshrrev_b32 v0, 6, v0")
    e("s_mov_b32 s47, s73")
    A.label("L_att_loop")
    e("s_lshl_b32 s30, s71, 6"); e("s_add_u32 s30, s30, s47")
    def waitQ():
        e("s_lshr_b32 s44, s47, 2"); e("s_lshl_b32 s44, s44, 2")
        poll(A, "s[64:67]", "s44", DBG_G1, [0, 10], [128, 64], 15, sleep=32)
    def waitM():
        e("s_lshl_b32 s44, s47, 7"); e("s_add_u32 s44, s44, 0x%x" % CT_OFF)
        poll(A, "s[4:7]", "s44", 0, [0], [64], 15, sleep=4, tail=60)
    gen_att.emit_att(A, " sc1", waitQ, waitM)
    e("s_waitcnt vmcnt(0)")
    e("s_lshl_b32 s44, s47, 7"); e("s_add_u32 s44, s44, 0x%x" % (CT_OFF + 0x2000))
    e("s_mov_b64 exec, 1"); e("v_mov_b32 v15, 1")
    e("buffer_atomic_add v15, v0, s[4:7], s44 offen sc1")
    e("s_mov_b64 exec, -1")
    if TICK["on"]:
        e("s_lshr_b32 s99, s47, 2"); tick(A, 44, 8, 73, 99)
    e("s_add_u32 s47, s47, 4"); e("s_cmp_lt_u32 s47, 64"); e("s_cbranch_scc1 L_att_loop")
    e("s_branch L_end")
    A.label("L_wabort")
    e("s_mov_b64 exec, 1"); e("v_mov_b32 v0, %d" % (DBG_ABORT + 4)); e("v_mov_b32 v11, 1")
    e("buffer_store_dword v11, v0, s[64:67], 0 offen")
    A.label("L_end"); e("s_endpgm")
    A.raw('.section .rodata,"a"'); A.raw(".p2align 6")
    A.raw(kernel_desc(NAME + "_kernel", 512, 102, 256))
    txt = A.text()
    return txt.replace("    s_mov_b32 s26, s28\n", "    s_mov_b32 s26, s28\n    s_mov_b32 s73, s28\n", 1)
if __name__ == "__main__":
    open("cdna_kernels/%s.s" % NAME, "w").write(build())
    open("mega_list.s", "w").write(build(listform=True))
    open("mega_3.s", "w").write(build(listform=True, instr=3))
    TICK["on"] = True
    open("mega_tick.s", "w").write(build(listform=True))
```

```python
from asmlib import *
from layout import *
from gen_g1 import srd
MF32 = "v_mfma_f32_16x16x32_bf16"
MF16 = "v_mfma_f32_16x16x16_bf16"

def emit_att_setup(A):
    e = A.e
    e("v_lshlrev_b32 v1, 4, v0"); e("v_lshlrev_b32 v2, 2, v0")
    e("v_and_b32 v3, 15, v0"); e("v_lshrrev_b32 v8, 4, v0"); e("v_lshlrev_b32 v8, 2, v8")
    for r in range(4):
        e("v_add_u32 v9, %d, v8" % r); e("v_cmp_gt_u32 s[%d:%d], v9, v3" % (20 + 2 * r, 21 + 2 * r))
    for i in range(4): e("v_mov_b32 v%d, 0x3f803f80" % (4 + i))
    e("s_mov_b32 s51, 0x3e0293ee")
    e("v_mov_b32 v3, 0xf149f2ca")

def emit_att(A, ldsc="", waitQ=None, waitM=None):
    e = A.e
    Q, K, X, V, VM, S0, S1, S2, P1, P0, LS, O = 16, 48, 80, 96, 128, 144, 148, 152, 156, 160, 164, 48
    e("s_lshl_b32 s33, s30, 13")
    e("s_add_u32 s34, s33, 0x%x" % QF_OFF); e("s_add_u32 s35, s34, 4096")
    e("s_add_u32 s40, s33, 0x%x" % XV_OFF); e("s_add_u32 s41, s40, 4096")
    e("s_lshl_b32 s33, s30, 14")
    e("s_add_u32 s36, s33, 0x%x" % KV_OFF); e("s_add_u32 s37, s36, 4096")
    e("s_add_u32 s38, s36, 8192"); e("s_add_u32 s39, s38, 4096")
    if waitQ: waitQ()
    for i in range(8): e("buffer_load_dwordx4 v[%d:%d], v1, s[4:7], s%d offen offset:%d%s" % (Q + 4 * i, Q + 4 * i + 3, 34 + (i >> 2), 1024 * (i & 3), ldsc))
    for i in range(8): e("buffer_load_dwordx4 v[%d:%d], v1, s[4:7], s%d offen offset:%d%s" % (K + 4 * i, K + 4 * i + 3, 36 + (i >> 2), 1024 * (i & 3), ldsc))
    for i in range(8): e("buffer_load_dwordx4 v[%d:%d], v1, s[4:7], s%d offen offset:%d%s" % (V + 4 * i, V + 4 * i + 3, 38 + (i >> 2), 1024 * (i & 3), ldsc))
    if waitM: waitM()
    tick(A, 40, 8, 73)
    for i in range(4): e("buffer_load_dwordx4 v[%d:%d], v1, s[4:7], s40 offen offset:%d%s" % (X + 4 * i, X + 4 * i + 3, 1024 * i, ldsc))
    for i in range(8): e("buffer_load_dword v%d, v2, s[4:7], s41 offen offset:%d%s" % (VM + 2 * i, 256 * i, ldsc))
    for i in range(8): e("v_mov_b32 v%d, 0" % (VM + 2 * i + 1))
    e("s_and_b32 s42, s30, 63"); e("s_lshl_b32 s42, s42, 18"); e("s_lshr_b32 s43, s30, 6"); e("s_lshl_b32 s43, s43, 12"); e("s_add_u32 s42, s42, s43"); e("s_add_u32 s42, s42, 0x%x" % O_OFF)
    e("s_add_u32 s43, s42, 0x20000")
    e("s_waitcnt vmcnt(8)")
    tick(A, 41, 8, 73)
    PP = {}
    for tq in range(2):
        s0, s1, s2 = (S0, S1, S2) if tq == 1 else (168, 172, None)
        for ks in range(4): e("%s %s, %s, %s, %s" % (MF32, vr(s0, 4), vr(X + 4 * ks, 4), vr(Q + 16 * tq + 4 * ks, 4), "0" if ks == 0 else vr(s0, 4)))
        for ks in range(4): e("%s %s, %s, %s, %s" % (MF32, vr(s1, 4), vr(K + 4 * ks, 4), vr(Q + 16 * tq + 4 * ks, 4), "0" if ks == 0 else vr(s1, 4)))
        if tq == 1:
            for ks in range(4): e("%s %s, %s, %s, %s" % (MF32, vr(s2, 4), vr(K + 16 + 4 * ks, 4), vr(Q + 16 + 4 * ks, 4), "0" if ks == 0 else vr(s2, 4)))
    for tq in range(2):
        s0, s1, s2 = (S0, S1, S2) if tq == 1 else (168, 172, None)
        p1, p0 = (P1, P0) if tq == 1 else (8, 12)
        md = s1 if tq == 0 else s2
        if tq == 1: e("s_nop 4")
        for r in range(4): e("v_cndmask_b32 v%d, v%d, v3, s[%d:%d]" % (md + r, md + r, 20 + 2 * r, 21 + 2 * r))
        vals = [s0, s0 + 1] + [s1 + i for i in range(4)] + ([s2 + i for i in range(4)] if tq else [])
        m, t = s0 + 2, s0 + 3
        e("v_max3_f32 v%d, v%d, v%d, v%d" % (m, vals[0], vals[1], vals[2]))
        rest = vals[3:]
        while len(rest) >= 2:
            e("v_max3_f32 v%d, v%d, v%d, v%d" % (m, m, rest[0], rest[1])); rest = rest[2:]
        if rest: e("v_max_f32 v%d, v%d, v%d" % (m, m, rest[0]))
        for sw in ("v_permlane16_swap_b32", "v_permlane32_swap_b32"):
            e("v_mov_b32 v%d, v%d" % (t, m)); e("s_nop 1"); e("%s v%d, v%d" % (sw, m, t)); e("v_max_f32 v%d, v%d, v%d" % (m, m, t))
        e("v_mul_f32 v%d, s51, v%d" % (m, m))
        for v in vals: e("v_fma_f32 v%d, v%d, s51, -v%d" % (v, v, m))
        for v in vals: e("v_exp_f32 v%d, v%d" % (v, v))
        e("v_mov_b32 v%d, 0" % (p0 + 1))
        e("v_cvt_pk_bf16_f32 v%d, v%d, v%d" % (p0, s0, s0 + 1))
        e("v_cvt_pk_bf16_f32 v%d, v%d, v%d" % (p1, s1, s1 + 1)); e("v_cvt_pk_bf16_f32 v%d, v%d, v%d" % (p1 + 1, s1 + 2, s1 + 3))
        if tq:
            e("v_cvt_pk_bf16_f32 v%d, v%d, v%d" % (p1 + 2, s2, s2 + 1)); e("v_cvt_pk_bf16_f32 v%d, v%d, v%d" % (p1 + 3, s2 + 2, s2 + 3))
        else:
            e("v_mov_b32 v%d, 0" % (p1 + 2)); e("v_mov_b32 v%d, 0" % (p1 + 3))
    e("s_waitcnt vmcnt(0)")
    for tq in range(2):
        p1, p0 = (P1, P0) if tq == 1 else (8, 12)
        o = 16 + 32 * tq
        e("%s %s, %s, %s, 0" % (MF16, vr(LS, 4), vr(4, 2), vr(p0, 2)))
        for et in range(8): e("%s %s, %s, %s, 0" % (MF16, vr(o + 4 * et, 4), vr(VM + 2 * et, 2), vr(p0, 2)))
        e("%s %s, %s, %s, %s" % (MF32, vr(LS, 4), vr(4, 4), vr(p1, 4), vr(LS, 4)))
        for et in range(8): e("%s %s, %s, %s, %s" % (MF32, vr(o + 4 * et, 4), vr(V + 4 * et, 4), vr(p1, 4), vr(o + 4 * et, 4)))
        e("v_rcp_f32 v%d, v%d" % (14, LS))
        e("s_nop 1")
        for ks in range(4):
            b = o + 8 * ks
            if ks == 3: e("s_nop 0")
            for i in range(8): e("v_mul_f32 v%d, v%d, v14" % (b + i, b + i))
            for i in range(4): e("v_cvt_pk_bf16_f32 v%d, v%d, v%d" % (b + i, b + 2 * i, b + 2 * i + 1))
            e("buffer_store_dwordx4 v[%d:%d], v1, s[4:7], s%d offen offset:%d%s" % (b, b + 3, 42 + tq, 1024 * ks, ldsc))

def emit_att_kernel(A):
    e = A.e
    kernel_header(A, "att_kernel")
    e("s_cmp_ge_u32 s2, 512"); e("s_cbranch_scc1 L_att_end")
    e("s_load_dwordx2 s[60:61], s[0:1], 104")
    e("v_lshrrev_b32 v1, 6, v0"); e("v_and_b32 v0, 63, v0"); e("v_readfirstlane_b32 s28, v1")
    e("s_waitcnt lgkmcnt(0)")
    srd(e, 4, 60, WS_BYTES)
    emit_att_setup(A)
    e("s_lshl_b32 s30, s2, 2"); e("s_add_u32 s30, s30, s28")
    emit_att(A)
    A.label("L_att_end")
    e("s_endpgm")
```

```python
from asmlib import *
from layout import *
MF32 = "v_mfma_f32_16x16x32_bf16"

def srd(e, d, lo, n):
    e("s_mov_b32 s%d, s%d" % (d, lo)); e("s_mov_b32 s%d, s%d" % (d + 1, lo + 1)); e("s_mov_b32 s%d, 0x%x" % (d + 2, n)); e("s_mov_b32 s%d, 0x20000" % (d + 3))

def emit_init(A):
    e = A.e
    e("s_lshl_b32 s33, s2, 13"); e("s_add_u32 s33, s33, 0x%x" % ML_OFF)
    e("v_lshlrev_b32 v1, 4, v0")
    for i in range(4): e("v_mov_b32 v%d, -1" % (4 + i))
    for i in range(4): e("v_mov_b32 v%d, -1" % (8 + i))
    e("s_and_b32 s34, s2, 63"); e("s_cmp_lg_u32 s34, 0"); e("s_cbranch_scc1 L_init_st")
    e("s_bfe_u32 s34, s2, 0x10006"); e("s_mul_i32 s34, s34, 640")
    for half in range(2):
        d = 4 + 4 * half
        e("v_bfe_u32 v2, v0, 1, 3"); e("v_mul_u32_u24 v2, 1280, v2")
        e("v_bfe_u32 v3, v0, 4, 2"); e("v_lshl_add_u32 v2, v3, 3, v2")
        e("v_and_b32 v3, 1, v0"); e("v_lshl_add_u32 v2, v3, 2, v2")
        if half == 0:
            e("v_lshrrev_b32 v3, 6, v0"); e("v_lshl_add_u32 v2, v3, 7, v2")
        else:
            e("v_add_u32 v2, 512, v2")
            e("v_cmp_gt_u32 vcc, 64, v0"); e("s_and_saveexec_b64 s[36:37], vcc"); e("s_cbranch_execz L_init_r")
        for t in range(4): e("buffer_load_dword v%d, v2, s[40:43], s34 offen offset:%d" % (12 + t, 32 * t))
        e("s_mov_b32 s35, 0x05040100"); e("s_mov_b32 s38, 0x07060302")
        e("s_waitcnt vmcnt(0)")
        e("v_perm_b32 v%d, v13, v12, s35" % d); e("v_perm_b32 v%d, v15, v14, s35" % (d + 1))
        e("v_perm_b32 v%d, v13, v12, s38" % (d + 2)); e("v_perm_b32 v%d, v15, v14, s38" % (d + 3))
        for i in range(4): e("v_min_u32 v%d, -2, v%d" % (d + i, d + i))
    A.label("L_init_r")
    e("s_mov_b64 exec, -1")
    A.label("L_init_st")
    e("buffer_store_dwordx4 v[4:7], v1, s[4:7], s33 offen")
    e("s_add_u32 s33, s33, 4096")
    e("buffer_store_dwordx4 v[8:11], v1, s[4:7], s33 offen")
    e("s_lshl_b32 s33, s2, 11"); e("s_add_u32 s33, s33, 0x%x" % PB_OFF)
    e("v_lshlrev_b32 v1, 3, v0"); e("v_mov_b32 v2, 0"); e("v_mov_b32 v3, 0")
    e("buffer_store_dwordx2 v[2:3], v1, s[4:7], s33 offen")

XA0 = 96
def XA(tt, kk): return XA0 + (tt * 20 + kk) * 4
BB, ACC, ET = 16, 48, 80
def acc(T, tt): return ACC + (T * 2 + tt) * 4

def emit_g1(A, NPART=16, NCG=248, mega=False, NT=8):
    e = A.e
    sc = " sc1" if mega else ""
    def signal(cgreg):
        l = A.newlabel("Lg1s")
        e("s_cmp_lg_u32 s26, 0"); e("s_cbranch_scc1 %s" % l)
        e("s_lshr_b32 s33, s%d, 6" % cgreg); e("s_mov_b32 s34, 1")
        e("s_cmp_eq_u32 s33, 2"); e("s_cmov_b32 s34, 0x400"); e("s_cmp_eq_u32 s33, 3"); e("s_cmov_b32 s34, 0x100000")
        e("s_lshl_b32 s33, s27, 2")
        e("s_mov_b64 exec, 1"); e("v_mov_b32 v11, s34"); e("v_mov_b32 v12, s33")
        e("buffer_atomic_add v11, v12, s[64:67], 0 offen offset:%d sc1" % DBG_G1)
        e("s_mov_b64 exec, -1")
        A.label(l)
    e("v_lshlrev_b32 v1, 4, v0")
    e("v_lshrrev_b32 v2, 2, v0")
    e("v_lshrrev_b32 v3, 5, v0"); e("v_lshlrev_b32 v3, 1, v3"); e("v_and_b32 v4, 3, v0"); e("v_xor_b32 v3, v3, v4"); e("v_lshlrev_b32 v3, 4, v3")
    e("v_lshrrev_b32 v5, 4, v0"); e("v_bfe_u32 v6, v0, 2, 2"); e("v_lshl_add_u32 v6, v5, 3, v6"); e("v_lshlrev_b32 v6, 6, v6")
    e("v_lshl_add_u32 v6, v4, 3, v6"); e("v_and_b32 v5, 1, v5"); e("v_lshl_add_u32 v6, v5, 5, v6")
    e("v_xor_b32 v7, 32, v6"); e("v_add_u32 v8, 0x10000, v6"); e("v_add_u32 v9, 0x10000, v7")
    e("s_lshr_b32 s44, s26, 1")
    e("s_and_b32 s45, s26, 1"); e("s_lshl_b32 s45, s45, 6")
    e("s_lshl_b32 s46, s26, 12")
    e("s_mov_b32 s15, 0x20000")
    def setup_dma():
        e("s_lshr_b32 s33, s30, 6"); e("s_and_b32 s34, s30, 63")
        e("s_cmp_eq_u32 s33, 0"); e("s_cselect_b64 s[12:13], s[18:19], s[20:21]")
        e("s_cmp_eq_u32 s33, 2"); e("s_cselect_b64 s[12:13], s[16:17], s[12:13]")
        e("s_cmp_eq_u32 s44, 0"); e("s_cselect_b64 s[36:37], s[22:23], s[24:25]")
        e("s_lshl_b32 s35, s34, 1"); e("s_add_u32 s35, s35, s44")
        e("s_cmp_eq_u32 s33, 3")
        e("s_cselect_b64 s[12:13], s[36:37], s[12:13]")
        e("s_mov_b32 s31, 8192"); e("s_cmov_b32 s31, 3456")
        e("s_mov_b32 s14, 5242880"); e("s_cmov_b32 s14, 2211840")
        e("s_cselect_b32 s35, s34, s35"); e("s_lshl_b32 s35, s35, 6")
        e("s_cmp_ge_u32 s30, %d" % NCG); e("s_cselect_b32 s14, 0, s14")
        e("s_mul_i32 s32, s45, s31"); e("s_add_u32 s32, s32, s35")
        e("v_mad_u32_u24 v10, v2, s31, v3")
    def dma(ks5):
        for i in range(4):
            e("s_add_u32 m0, s46, %d" % (ks5 * 16384 + i * 1024))
            e("s_mul_i32 s33, s31, %d" % (128 * ks5 + 16 * i)); e("s_add_u32 s33, s33, s32")
            e("buffer_load_dwordx4 v10, s[12:15], s33 offen lds")
    A.label("L_g1_pass")
    e("s_mov_b32 s29, s28"); e("s_mov_b32 s30, s28")
    setup_dma()
    for k in range(4): dma(k)
    e("s_lshl_b32 s33, s27, 2"); e("s_add_u32 s47, s33, s26")
    e("s_mul_i32 s33, s47, 40960")
    e("v_and_b32 v4, 15, v0"); e("v_mul_u32_u24 v4, 1280, v4"); e("v_lshrrev_b32 v5, 4, v0"); e("v_lshl_add_u32 v4, v5, 4, v4")
    e("s_add_u32 s34, s33, 20480")
    for tt in range(2):
        for kk in range(20): e("buffer_load_dwordx4 v[%d:%d], v4, s[8:11], s%d offen offset:%d" % (XA(tt, kk), XA(tt, kk) + 3, 33 + tt, 64 * kk))
    npf = 0
    if mega:
        npf = 7
        e("s_cmp_eq_u32 s26, 1"); e("s_cselect_b64 s[40:41], s[18:19], s[16:17]")
        e("s_cmp_eq_u32 s26, 2"); e("s_cselect_b64 s[40:41], s[20:21], s[40:41]")
        e("s_cmp_eq_u32 s26, 3"); e("s_cselect_b64 s[40:41], s[62:63], s[40:41]")
        e("s_mov_b32 s42, 5242880"); e("s_cmp_ge_u32 s27, %d" % NT); e("s_cmov_b32 s42, 0"); e("s_mov_b32 s43, 0x20000")
        e("v_lshlrev_b32 v11, 6, v0"); e("s_lshl_b32 s35, s26, 8"); e("s_add_u32 m0, s35, 0x20000"); e("s_lshl_b32 s35, s70, 12")
        for k in range(7):
            e("buffer_load_dword v11, s[40:43], s35 offen lds"); e("s_add_u32 s35, s35, %d" % (192 * 4096))
    e("v_mov_b32 v11, 0x3f803f80")
    for tt in range(2):
        e("s_waitcnt vmcnt(%d)" % ((20 if tt == 0 else 0) + npf))
        for r in range(4): e("v_mov_b32 v%d, 0" % (ET + r))
        for i in range(80):
            r = XA(tt, 0) + i
            e("v_dot2c_f32_bf16 v%d, v%d, v11" % (ET + (i & 1), r)); e("v_dot2c_f32_bf16 v%d, v%d, v%d" % (ET + 2 + (i & 1), r, r))
        e("s_nop 2")
        e("v_add_f32 v%d, v%d, v%d" % (ET, ET, ET + 1)); e("v_add_f32 v%d, v%d, v%d" % (ET + 2, ET + 2, ET + 3))
        for sw in ("v_permlane16_swap_b32", "v_permlane32_swap_b32"):
            e("v_mov_b32 v%d, v%d" % (ET + 1, ET)); e("v_mov_b32 v%d, v%d" % (ET + 3, ET + 2)); e("s_nop 1")
            e("%s v%d, v%d" % (sw, ET, ET + 1)); e("%s v%d, v%d" % (sw, ET + 2, ET + 3))
            e("v_add_f32 v%d, v%d, v%d" % (ET, ET, ET + 1)); e("v_add_f32 v%d, v%d, v%d" % (ET + 2, ET + 2, ET + 3))
        e("v_mul_f32 v%d, 0x3acccccd, v%d" % (ET, ET))
        e("v_mul_f32 v%d, 0x3acccccd, v%d" % (ET + 2, ET + 2))
        e("v_fma_f32 v%d, -v%d, v%d, v%d" % (ET + 2, ET, ET, ET + 2))
        e("v_max_f32 v%d, 0, v%d" % (ET + 2, ET + 2)); e("v_add_f32 v%d, 0x3727c5ac, v%d" % (ET + 2, ET + 2))
        e("v_rsq_f32 v%d, v%d" % (ET + 2, ET + 2)); e("s_nop 0")
        e("v_mul_f32 v%d, v%d, v%d" % (ET, ET, ET + 2))
        for i in range(80):
            r = XA(tt, 0) + i; a = ET + 4 + 2 * (i & 3)
            e("v_lshlrev_b32 v%d, 16, v%d" % (a, r)); e("v_and_b32 v%d, 0xffff0000, v%d" % (a + 1, r))
            e("v_fma_f32 v%d, v%d, v%d, -v%d" % (a, a, ET + 2, ET)); e("v_fma_f32 v%d, v%d, v%d, -v%d" % (a + 1, a + 1, ET + 2, ET))
            e("v_cvt_pk_bf16_f32 v%d, v%d, v%d" % (r, a, a + 1))
    e("s_lshl_b32 s48, s47, 14")
    e("s_mul_i32 s49, s47, %d" % (2 * 56 * 1024)); e("s_add_u32 s49, s49, 0x%x" % H_OFF)
    e("s_mov_b32 s50, 0xbfb8aa3b")
    e("s_barrier")
    PD = 6
    def rd(f):
        f %= 80
        ks5, ks, T = f >> 4, (f >> 2) & 3, f & 3
        off = ks5 * 16384 + (T >> 1) * 8192 + ks * 2048
        base = 6 + (T & 1)
        if off >= 65536: off -= 65536; base += 2
        b = BB + 4 * (f & 7)
        for a in range(2): e("ds_read_b64_tr_b16 v[%d:%d], v%d offset:%d" % (b + 2 * a, b + 2 * a + 1, base, off + 256 * a))
    for f in range(PD): rd(f)
    A.label("L_g1_loop")
    e("s_lshr_b32 s33, s29, 6"); e("s_cmp_eq_u32 s33, 1"); e("s_cbranch_scc1 L_g1_bodyV")
    for kind in ("N", "V"):
        A.label("L_g1_body" + kind)
        for f in range(80):
            ks5, ks, T = f >> 4, (f >> 2) & 3, f & 3
            if f & 15 == 0:
                e("s_waitcnt vmcnt(8)"); e("s_barrier")
                if ks5 == 1:
                    e("s_add_u32 s30, s30, %d" % NPART); setup_dma()
                dma((ks5 + 4) % 5)
                if mega and ks5 == 2:
                    l = A.newlabel("Lg1f")
                    e("s_cmp_eq_u32 s29, s28"); e("s_cbranch_scc1 %s" % l)
                    e("s_sub_u32 s37, s29, %d" % NPART); signal(37)
                    A.label(l)
            rd(f + PD)
            e("s_waitcnt lgkmcnt(%d)" % (2 * PD))
            b = vr(BB + 4 * (f & 7), 4)
            for tt in range(2):
                x = vr(XA(tt, 4 * ks5 + ks), 4); d = vr(acc(T, tt), 4)
                c = "0" if (ks5 == 0 and ks == 0) else d
                if kind == "N": e("%s %s, %s, %s, %s" % (MF32, d, b, x, c))
                else: e("%s %s, %s, %s, %s" % (MF32, d, x, b, c))
        e("s_and_b32 s34, s29, 63")
        e("s_lshr_b32 s35, s34, 1"); e("s_lshl_b32 s35, s35, 20"); e("s_add_u32 s35, s35, s48")
        e("s_and_b32 s36, s34, 1")
        if kind == "V":
            e("s_lshl_b32 s36, s36, 12"); e("s_add_u32 s35, s35, s36"); e("s_add_u32 s35, s35, 0x%x" % (KV_OFF + 8192))
            e("s_nop 1")
            for T in range(4):
                o = ET + 4 * T
                for tt in range(2):
                    a = acc(T, tt)
                    e("v_cvt_pk_bf16_f32 v%d, v%d, v%d" % (o + 2 * tt, a, a + 1)); e("v_cvt_pk_bf16_f32 v%d, v%d, v%d" % (o + 2 * tt + 1, a + 2, a + 3))
                e("buffer_store_dwordx4 v[%d:%d], v1, s[4:7], s35 offen offset:%d%s" % (o, o + 3, 1024 * T, sc))
        else:
            e("s_lshr_b32 s33, s29, 6"); e("s_cmp_eq_u32 s33, 3"); e("s_cbranch_scc1 L_g1_epiF")
            e("s_lshr_b32 s37, s35, 1"); e("s_add_u32 s37, s37, 0x%x" % QF_OFF); e("s_add_u32 s35, s35, 0x%x" % KV_OFF)
            e("s_cmp_eq_u32 s33, 0"); e("s_cselect_b32 s35, s35, s37")
            e("s_lshl_b32 s36, s36, 11"); e("s_add_u32 s35, s35, s36"); e("s_add_u32 s36, s35, 4096")
            for u in range(2):
                for tt in range(2):
                    o = ET + 4 * (2 * u + tt)
                    for i in range(2):
                        a = acc(2 * u + i, tt)
                        e("v_cvt_pk_bf16_f32 v%d, v%d, v%d" % (o + 2 * i, a, a + 1)); e("v_cvt_pk_bf16_f32 v%d, v%d, v%d" % (o + 2 * i + 1, a + 2, a + 3))
                    e("buffer_store_dwordx4 v[%d:%d], v1, s[4:7], s%d offen offset:%d%s" % (o, o + 3, 35 + tt, 1024 * u, sc))
            e("s_branch L_g1_next")
            A.label("L_g1_epiF")
            e("s_lshl_b32 s35, s34, 10"); e("s_add_u32 s35, s35, s49"); e("s_add_u32 s36, s35, %d" % (56 * 1024))
            for tt in range(2):
                gs = [acc(T, tt) + r for T in range(2) for r in range(4)]
                us = [acc(T + 2, tt) + r for T in range(2) for r in range(4)]
                for i in range(8): e("v_mul_f32 v%d, s50, v%d" % (ET + i, gs[i]))
                for i in range(8): e("v_exp_f32 v%d, v%d" % (ET + i, ET + i))
                for i in range(8): e("v_add_f32 v%d, 1.0, v%d" % (ET + i, ET + i))
                for i in range(8): e("v_rcp_f32 v%d, v%d" % (ET + i, ET + i))
                for i in range(8): e("v_mul_f32 v%d, v%d, v%d" % (gs[i], gs[i], us[i]))
                for i in range(8): e("v_mul_f32 v%d, v%d, v%d" % (gs[i], gs[i], ET + i))
                o = ET + 8 + 4 * tt
                for i in range(4): e("v_cvt_pk_bf16_f32 v%d, v%d, v%d" % (o + i, gs[2 * i], gs[2 * i + 1]))
                e("buffer_store_dwordx4 v[%d:%d], v1, s[4:7], s%d offen%s" % (o, o + 3, 35 + tt, sc))
            e("s_branch L_g1_next")
    A.label("L_g1_next")
    if TICK["on"]:
        e("s_add_u32 s99, s99, 1"); tick(A, 2, 12, 26, 99)
    e("s_add_u32 s29, s29, %d" % NPART); e("s_cmp_lt_u32 s29, %d" % NCG); e("s_cbranch_scc1 L_g1_loop")
    e("s_waitcnt vmcnt(0) lgkmcnt(0)")
    if mega:
        e("s_barrier")
        e("s_sub_u32 s37, s29, %d" % NPART); signal(37)
        e("s_add_u32 s27, s27, %d" % NT); e("s_cmp_lt_u32 s27, 16"); e("s_cbranch_scc1 L_g1_pass")

def emit_g1_kernel(A):
    e = A.e
    kernel_header(A, "g1_kernel")
    e("s_cmp_ge_u32 s2, 256"); e("s_cbranch_scc1 L_g1_end")
    e("s_load_dwordx4 s[52:55], s[0:1], 0")
    e("s_load_dwordx4 s[16:19], s[0:1], 16")
    e("s_load_dwordx2 s[20:21], s[0:1], 32")
    e("s_load_dwordx4 s[56:59], s[0:1], 64")
    e("s_load_dwordx2 s[60:61], s[0:1], 104")
    e("v_lshrrev_b32 v1, 6, v0"); e("s_nop 0"); e("v_readfirstlane_b32 s26, v1")
    e("s_waitcnt lgkmcnt(0)")
    e("s_mov_b64 s[22:23], s[56:57]"); e("s_mov_b64 s[24:25], s[58:59]")
    srd(e, 4, 60, WS_BYTES); srd(e, 8, 52, 2621440); srd(e, 40, 54, 10240)
    emit_init(A)
    e("v_and_b32 v0, 63, v0")
    e("s_and_b32 s28, s2, 7"); e("s_lshr_b32 s33, s2, 7"); e("s_lshl_b32 s33, s33, 3"); e("s_add_u32 s28, s28, s33")
    e("s_bfe_u32 s27, s2, 0x40003")
    emit_g1(A)
    A.label("L_g1_end")
    e("s_endpgm")

if __name__ == "__main__":
    A = Asm()
    A.raw("; @launch kernel=g1_kernel grid=(256,1,1) block=(256,1,1) lds=81920")
    A.raw('.amdgcn_target "amdgcn-amd-amdhsa--gfx950"')
    A.raw(".text")
    emit_g1_kernel(A)
    A.raw('.section .rodata,"a"'); A.raw(".p2align 6")
    A.raw(kernel_desc("g1_kernel", 256, 80, 256))
    open("g1_test.s", "w").write(A.text())
```

```python
from asmlib import *
from layout import *
from gen_g1 import srd
MF32 = "v_mfma_f32_16x16x32_bf16"
HKS = 56
ACF, ACS, RING, NR, W2B = 16, 32, 48, 24, 144
def WO(ks, T): return ar((ks * 2 + T) * 4, 4)
def W2(ks, T): return vr(W2B + (ks * 2 + T) * 4, 4)

def emit_g2s_prologue(A):
    e = A.e
    e("v_lshlrev_b32 v1, 4, v0")
    e("v_lshrrev_b32 v2, 2, v0"); e("v_mul_u32_u24 v2, 1280, v2")
    e("v_bfe_u32 v3, v0, 4, 1"); e("v_lshlrev_b32 v3, 1, v3"); e("v_and_b32 v4, 3, v0"); e("v_xor_b32 v3, v3, v4"); e("v_lshl_add_u32 v10, v3, 4, v2")
    e("s_lshl_b32 s46, s26, 15")
    e("v_lshrrev_b32 v6, 2, v0"); e("v_lshlrev_b32 v6, 6, v6"); e("v_lshl_add_u32 v6, v4, 3, v6"); e("v_bfe_u32 v5, v0, 4, 1"); e("v_lshl_add_u32 v6, v5, 5, v6")
    e("v_add_u32 v6, s46, v6"); e("v_xor_b32 v7, 32, v6")
    e("s_lshl_b32 s32, s28, 6")
    e("s_mul_i32 s33, s26, %d" % (1024 * 1280)); e("s_add_u32 s33, s33, s32")
    e("s_mul_i32 s34, s26, %d" % (448 * 1280)); e("s_add_u32 s34, s34, s32")
    items = [("2", t) for t in range(7)] + [("O", t) for t in range(16)]
    def issue(it, sl):
        k, t = it
        for i in range(4):
            e("s_add_u32 m0, s46, %d" % (sl * 4096 + i * 1024))
            e("s_add_u32 s35, s%d, %d" % (33 if k == "O" else 34, (64 * t + 16 * i) * 1280))
            e("buffer_load_dwordx4 v10, %s, s35 offen lds" % ("s[20:23]" if k == "O" else "s[12:15]"))
    def consume(it, sl):
        k, t = it
        for kk in range(2):
            for T in range(2):
                for a in range(2):
                    idx = ((2 * t + kk) * 2 + T) * 4 + 2 * a
                    d = ar(idx, 2) if k == "O" else vr(W2B + idx, 2)
                    e("ds_read_b64_tr_b16 %s, v%d offset:%d" % (d, 6 + T, sl * 4096 + kk * 2048 + a * 1024))
    infl = []
    for n in range(8): issue(items[n], n); infl.append((items[n], n))
    nxt = 8
    while infl:
        it, sl = infl.pop(0)
        e("s_waitcnt vmcnt(%d)" % (4 * len(infl)))
        consume(it, sl)
        e("s_waitcnt lgkmcnt(0)")
        if nxt < len(items): issue(items[nxt], sl); infl.append((items[nxt], sl)); nxt += 1
    e("v_and_b32 v2, 15, v0"); e("v_mul_u32_u24 v2, 1280, v2"); e("v_lshrrev_b32 v3, 4, v0"); e("v_lshl_add_u32 v2, v3, 3, v2")
    e("s_and_b32 s34, s26, 1"); e("s_lshl_b32 s33, s34, 5"); e("s_add_u32 s33, s33, s32")
    e("v_add_u32 v2, s33, v2")
    e("s_lshl_b32 s33, s26, 13"); e("v_add_u32 v3, s33, v1")
    e("s_lshl_b32 s33, s34, 10"); e("v_add_u32 v4, s33, v1")
    e("s_mov_b32 s50, 0xbfb8aa3b")
    e("s_barrier")

def emit_g2s_task(A, waitH=None, waitO=None, sc=""):
    e = A.e
    e("s_mul_i32 s36, s47, %d" % (HKS * 1024)); e("s_mul_i32 s33, s26, %d" % (14 * 1024)); e("s_add_u32 s36, s36, s33"); e("s_add_u32 s36, s36, 0x%x" % H_OFF)
    e("s_lshl_b32 s38, s47, 17"); e("s_lshl_b32 s33, s26, 15"); e("s_add_u32 s38, s38, s33"); e("s_add_u32 s38, s38, 0x%x" % O_OFF)
    e("s_mul_i32 s40, s47, 20480")
    def phase(n, sbase, acc, W):
        def ld(ks):
            e("s_add_u32 s33, s%d, %d" % (sbase, (ks >> 2) * 4096))
            e("buffer_load_dwordx4 %s, v1, s[4:7], s33 offen offset:%d%s" % (vr(RING + 4 * (ks % NR), 4), 1024 * (ks & 3), sc))
        for i in range(min(NR, n)): ld(i)
        for ks in range(n):
            e("s_waitcnt vmcnt(%d)" % min(NR - 1, n - 1 - ks))
            for T in range(2):
                d = vr(acc + T * 4, 4)
                e("%s %s, %s, %s, %s" % (MF32, d, W(ks, T), vr(RING + 4 * (ks % NR), 4), "0" if ks == 0 else d))
            if ks + NR < n: ld(ks + NR)
    if waitH: waitH()
    phase(14, 36, ACF, W2)
    e("buffer_load_dwordx2 v[8:9], v2, s[8:11], s40 offen")
    if waitO: waitO()
    e("s_waitcnt vmcnt(0)")
    phase(32, 38, ACF + 8, WO)
    e("s_nop 7")
    for q in range(4): e("ds_write_b128 v3, %s offset:%d" % (vr(ACF + 4 * q, 4), 1024 * q))
    e("s_waitcnt lgkmcnt(0)"); e("s_barrier")
    for w in range(4):
        e("ds_read_b128 %s, v4 offset:%d" % (vr(RING + 4 * w, 4), 8192 * w))
        e("ds_read_b128 %s, v4 offset:%d" % (vr(RING + 16 + 4 * w, 4), 8192 * w + 2048))
    e("v_lshlrev_b32 v12, 16, v8"); e("v_and_b32 v13, 0xffff0000, v8"); e("v_lshlrev_b32 v14, 16, v9"); e("v_and_b32 v15, 0xffff0000, v9")
    e("s_waitcnt lgkmcnt(0)"); e("s_barrier")
    sk = A.newlabel("Lg2sk")
    e("s_cmp_ge_u32 s26, 2"); e("s_cbranch_scc1 %s" % sk)
    F, S = RING, RING + 16
    for b in (F, S):
        for i in range(4):
            e("v_add_f32 v%d, v%d, v%d" % (b + i, b + i, b + 4 + i)); e("v_add_f32 v%d, v%d, v%d" % (b + 8 + i, b + 8 + i, b + 12 + i))
        for i in range(4): e("v_add_f32 v%d, v%d, v%d" % (b + i, b + i, b + 8 + i))
    t = F + 4
    for i in range(4): e("v_mul_f32 v%d, s50, v%d" % (t + i, F + i))
    for i in range(4): e("v_exp_f32 v%d, v%d" % (t + i, t + i))
    for i in range(4): e("v_add_f32 v%d, 1.0, v%d" % (t + i, t + i))
    for i in range(4): e("v_rcp_f32 v%d, v%d" % (t + i, t + i))
    for i in range(4): e("v_mul_f32 v%d, v%d, v%d" % (F + i, F + i, S + i))
    for i in range(4): e("v_fma_f32 v%d, v%d, v%d, v%d" % (12 + i, F + i, t + i, 12 + i))
    e("v_cvt_pk_bf16_f32 v12, v12, v13"); e("v_cvt_pk_bf16_f32 v13, v14, v15")
    e("buffer_store_dwordx2 v[12:13], v2, s[16:19], s40 offen")
    A.label(sk)

def emit_g2s_kernel(A):
    e = A.e
    kernel_header(A, "g2_kernel")
    e("s_cmp_ge_u32 s2, 160"); e("s_cbranch_scc1 L_g2_end")
    e("s_load_dwordx2 s[52:53], s[0:1], 0")
    e("s_load_dwordx2 s[54:55], s[0:1], 40")
    e("s_load_dwordx4 s[56:59], s[0:1], 80")
    e("s_load_dwordx2 s[60:61], s[0:1], 104")
    e("v_lshrrev_b32 v1, 6, v0"); e("v_and_b32 v0, 63, v0"); e("v_readfirstlane_b32 s26, v1")
    e("s_waitcnt lgkmcnt(0)")
    srd(e, 4, 60, WS_BYTES); srd(e, 8, 52, 2621440); srd(e, 16, 58, 2621440); srd(e, 12, 56, 1728 * 1280); srd(e, 20, 54, 5242880)
    e("s_and_b32 s47, s2, 7"); e("s_lshr_b32 s28, s2, 3")
    emit_g2s_prologue(A)
    A.label("L_g2_loop")
    emit_g2s_task(A)
    e("s_add_u32 s47, s47, 8"); e("s_cmp_lt_u32 s47, 64"); e("s_cbranch_scc1 L_g2_loop")
    A.label("L_g2_end")
    e("s_endpgm")
```

```python
from asmlib import *
from layout import *

SMF = "v_smfmac_f32_16x16x64_bf16"
MF32 = "v_mfma_f32_16x16x32_bf16"
MF16 = "v_mfma_f32_16x16x16_bf16"

SPIN_LIMIT = 20000
R_AT = 0
KX_L, AC_L, QKX_L, SEL_L, MISC_L, WV_L = 0, 16384, 26624, 30720, 31744, 32768
OX_L = AC_L + 5120
VX_L = 8192
NSLOT = 8
WB = 80
def FR(f): return R(WB + 8 * f, 8)
LSLOT = {("K", 0): 0, ("K", 2): 1, ("K", 4): 2, ("V", 1): 3, ("V", 3): 4, ("Q", 5): 5, ("O", 3): 6, ("O", 4): 7}
_res = [(m, j) for m in "QKV" for j in range(10) if (m, j) not in LSLOT] + [("O", t) for t in range(3)]
RIDX = {k: i for i, k in enumerate(_res)}
assert len(_res) == 27
def FX(m, j, T): return 2 * RIDX[(m, j)] + T
def AA(j): return 12 + 4 * j
GG, ACQ, ACK, ACV, TMP = 32, 40, 48, 56, 64
D_GAP = 2
DIS = 0
PUBSC = ""
KVSC = ""
TRACE_STEP = 40
MEGA = False

def emit_rec(A, instr=False, d_first=4, d_red=4, steps=64, exit_label="L_end", worker_label=None):
    e = A.e
    e("s_load_dwordx4 s[52:55], s[0:1], 16")
    e("s_load_dwordx4 s[56:59], s[0:1], 32")
    e("s_load_dwordx4 s[60:63], s[0:1], 96")
    e("v_lshrrev_b32 v11, 6, v0"); e("v_and_b32 v0, 63, v0"); e("v_readfirstlane_b32 s28, v11")
    e("s_waitcnt lgkmcnt(0)")
    for (d, s, n) in ((4, 62, WS_BYTES), (8, 52, 5242880), (12, 54, 5242880), (16, 56, 5242880), (20, 58, 5242880), (24, 60, 256)):
        e("s_mov_b32 s%d, s%d" % (d, s)); e("s_mov_b32 s%d, s%d" % (d + 1, s + 1)); e("s_mov_b32 s%d, 0x%x" % (d + 2, n)); e("s_mov_b32 s%d, 0x20000" % (d + 3))
    tick(A, 0, 20, 28)
    e("s_mov_b32 s74, 0")
    e("s_getreg_b32 s52, hwreg(HW_REG_XCC_ID)"); e("s_and_b32 s52, s52, 7")
    e("s_lshl_b32 s53, s52, 4")
    e("v_mov_b32 v1, 1"); e("v_mov_b32 v2, s53"); e("v_mov_b32 v3, %d" % MISC_L); e("v_lshlrev_b32 v5, 4, v0")
    e("s_cmp_lg_u32 s28, 0"); e("s_cbranch_scc1 L_el_done")
    e("s_mov_b64 exec, 1")
    e("buffer_atomic_add v1, v2, s[24:27], 0 offen offset:%d sc0 sc1" % DBG_XC); e("s_waitcnt vmcnt(0)")
    e("v_readfirstlane_b32 s54, v1"); e("s_nop 3")
    e("s_lshl_b32 s55, s52, 5"); e("s_add_u32 s55, s55, s54")
    e("s_cmp_lt_u32 s54, 32"); e("s_cbranch_scc1 L_el_dec")
    e("v_mov_b32 v1, 1"); e("v_mov_b32 v2, 0")
    e("buffer_atomic_add v1, v2, s[24:27], 0 offen offset:%d sc0 sc1" % DBG_OVF); e("s_waitcnt vmcnt(0)")
    e("v_readfirstlane_b32 s54, v1")
    e("s_mov_b64 exec, 0xff")
    A.label("L_el_poll")
    e("buffer_load_dword v4, v5, s[24:27], 0 offen offset:%d sc1" % DBG_XC); e("s_waitcnt vmcnt(0)")
    e("s_mov_b32 s56, 0")
    for i in range(8):
        e("v_readlane_b32 s%d, v4, %d" % (64 + i, i))
    e("s_nop 3")
    for i in range(8): e("s_add_u32 s56, s56, s%d" % (64 + i))
    e("s_cmp_ge_u32 s56, 256"); e("s_cbranch_scc1 L_el_hole")
    e("s_add_u32 s74, s74, 1"); e("s_cmp_gt_u32 s74, %d" % SPIN_LIMIT); e("s_cbranch_scc1 L_abort")
    e("s_sleep 4"); e("s_branch L_el_poll")
    A.label("L_el_hole")
    for i in range(8):
        e("s_min_u32 s56, s%d, 32" % (64 + i)); e("s_sub_u32 s57, 32, s56")
        e("s_add_u32 s55, s56, s54"); e("s_add_u32 s55, s55, %d" % (32 * i))
        e("s_cmp_lt_u32 s54, s57"); e("s_cbranch_scc1 L_el_dec")
        e("s_sub_u32 s54, s54, s57")
    e("s_branch L_abort")
    A.label("L_el_dec")
    e("s_mov_b64 exec, 1")
    e("v_mov_b32 v1, s55")
    e("ds_write_b32 v3, v1"); e("s_waitcnt lgkmcnt(0)")
    e("s_mov_b64 exec, -1")
    A.label("L_el_done")
    e("s_barrier")
    e("ds_read_b32 v4, v3"); e("s_waitcnt lgkmcnt(0)")
    e("v_readfirstlane_b32 s55, v4"); e("s_nop 3")
    e("s_barrier")
    e("s_cmp_ge_u32 s55, 64"); e("s_cbranch_scc1 %s" % (worker_label or exit_label))
    e("s_lshr_b32 s29, s55, 5"); e("s_and_b32 s30, s55, 31")
    tick(A, 1, 20, 28)
    if MEGA: team_init(A)
    tick(A, 2, 20, 28)
    e("v_lshlrev_b32 v1, 4, v0")
    e("v_and_b32 v11, 1, v0"); e("v_cmp_eq_u32 vcc, 1, v11"); e("v_mov_b32 v2, 0x4444"); e("v_mov_b32 v11, 0xeeee"); e("v_cndmask_b32 v2, v2, v11, vcc")
    C, G, RR, CP, T0, T1 = 64, 65, 66, 67, 68, 69
    e("v_and_b32 v%d, 15, v0" % C); e("v_lshrrev_b32 v%d, 4, v0" % G)
    e("v_bfe_u32 v%d, v0, 2, 2" % RR); e("v_and_b32 v%d, 3, v0" % CP)
    e("v_and_b32 v%d, 1, v%d" % (T0, RR)); e("v_lshlrev_b32 v3, 4, v%d" % T0)
    e("v_lshrrev_b32 v%d, 1, v%d" % (T1, G)); e("v_lshl_add_u32 v3, v%d, 2, v3" % T1)
    e("v_lshrrev_b32 v%d, 1, v%d" % (T1, RR)); e("v_lshl_add_u32 v3, v%d, 1, v3" % T1)
    e("v_and_b32 v%d, 1, v%d" % (T1, G)); e("v_add_u32 v3, v3, v%d" % T1)
    e("v_lshlrev_b32 v3, 6, v3"); e("v_lshl_add_u32 v3, v%d, 3, v3" % CP); e("v_lshl_add_u32 v3, v%d, 5, v3" % T0)
    e("s_mul_i32 s52, s28, %d" % (NSLOT * 4096)); e("s_add_u32 s52, s52, %d" % WV_L)
    e("v_add_u32 v3, s52, v3"); e("v_xor_b32 v4, 32, v3")
    e("s_lshl_b32 s53, s28, 10"); e("s_add_u32 s53, s53, %d" % QKX_L)
    e("v_lshlrev_b32 v5, 5, v%d" % C); e("v_lshl_add_u32 v5, v%d, 3, v5" % G); e("v_add_u32 v5, s53, v5")
    e("v_lshlrev_b32 v6, 3, v0")
    e("v_lshrrev_b32 v%d, 2, v%d" % (T0, C)); e("v_and_b32 v%d, 1, v%d" % (T1, C)); e("v_lshl_add_u32 v%d, v%d, 1, v%d" % (T0, T0, T1))
    e("v_mul_u32_u24 v7, 320, v%d" % T0); e("v_lshl_add_u32 v7, v%d, 3, v7" % G)
    e("s_lshl_b32 s53, s28, 6"); e("s_add_u32 s53, s53, %d" % OX_L); e("v_add_u32 v7, s53, v7")
    e("v_lshrrev_b32 v%d, 1, v%d" % (T0, C)); e("v_mul_u32_u24 v8, 320, v%d" % T0); e("v_lshl_add_u32 v8, v%d, 5, v8" % G)
    e("v_lshl_add_u32 v8, v%d, 4, v8" % T1); e("v_add_u32 v8, %d, v8" % OX_L)
    e("v_lshlrev_b32 v9, 13, v%d" % G); e("v_lshrrev_b32 v%d, 3, v%d" % (T0, C)); e("v_lshl_add_u32 v9, v%d, 12, v9" % T0)
    e("v_and_b32 v%d, 7, v%d" % (T0, C)); e("v_lshl_add_u32 v9, v%d, 4, v9" % T0)
    e("s_lshl_b32 s42, s28, 5"); e("s_add_u32 s42, s42, s30")
    e("s_and_b32 s53, s42, 1"); e("s_lshl_b32 s53, s53, 3")
    e("v_add_u32 v%d, s53, v%d" % (T0, T0))
    e("v_lshrrev_b32 v10, 2, v%d" % T0); e("v_lshlrev_b32 v10, 8, v10")
    e("v_bfe_u32 v%d, v%d, 1, 1" % (T1, T0)); e("v_lshl_add_u32 v10, v%d, 4, v10" % T1)
    e("v_and_b32 v%d, 1, v%d" % (T1, T0)); e("v_lshl_add_u32 v10, v%d, 3, v10" % T1)
    e("v_and_b32 v%d, 1, v%d" % (T1, G)); e("v_lshl_add_u32 v10, v%d, 5, v10" % T1)
    e("s_bfe_u32 s53, s42, 0x20001"); e("s_lshl_b32 s53, s53, 6")
    e("s_lshr_b32 s54, s42, 3"); e("s_lshl_b32 s54, s54, 10"); e("s_add_u32 s53, s53, s54")
    e("v_add_u32 v10, s53, v10")
    e("s_lshl_b32 s53, s29, 18"); e("s_add_u32 s53, s53, 0x%x" % PB_OFF)
    e("s_lshl_b32 s54, s30, 7"); e("s_add_u32 s54, s54, s53")
    e("s_lshl_b32 s43, s28, 15"); e("s_add_u32 s43, s43, s54")
    e("s_lshl_b32 s44, s28, 2"); e("s_add_u32 s44, s44, s54"); e("s_add_u32 s44, s44, 0x20000")
    e("s_lshl_b32 s45, s42, 12"); e("s_add_u32 s45, s45, s53")
    e("s_lshl_b32 s53, s29, 19")
    e("s_add_u32 s38, s53, 0x%x" % ML_OFF)
    e("s_add_u32 s40, s53, 0x%x" % MR_OFF)
    e("s_xor_b32 s53, s53, 0x80000"); e("s_add_u32 s39, s53, 0x%x" % MR_OFF)
    e("s_lshl_b32 s53, s30, 20"); e("s_lshl_b32 s54, s28, 11"); e("s_add_u32 s53, s53, s54")
    e("s_add_u32 s46, s53, 0x%x" % KV_OFF); e("s_add_u32 s47, s46, 8192")
    e("s_lshr_b32 s54, s53, 1"); e("s_add_u32 s48, s54, 0x%x" % XV_OFF)
    e("s_lshl_b32 s53, s30, 19"); e("s_lshl_b32 s54, s28, 9"); e("s_add_u32 s49, s53, s54"); e("s_add_u32 s49, s49, 0x%x" % (XV_OFF + 4096))
    e("s_lshl_b32 s50, s28, 11")
    GE, GO, GW4, GW1 = 70, 71, 72, 73
    e("v_lshrrev_b32 v%d, 2, v0" % T0); e("v_lshlrev_b32 v%d, 13, v%d" % (GE, T0)); e("v_lshl_add_u32 v%d, v%d, 4, v%d" % (GE, CP, GE))
    e("s_lshl_b32 s53, s30, 8"); e("s_lshl_b32 s54, s28, 6"); e("s_add_u32 s53, s53, s54")
    e("v_add_u32 v%d, s53, v%d" % (GE, GE)); e("v_xor_b32 v%d, 32, v%d" % (GO, GE))
    e("v_lshrrev_b32 v%d, 1, v0" % T0); e("v_mul_u32_u24 v%d, 1280, v%d" % (GW1, T0)); e("v_and_b32 v%d, 1, v0" % T0); e("v_lshl_add_u32 v%d, v%d, 4, v%d" % (GW1, T0, GW1))
    e("s_mul_i32 s53, s30, 163840"); e("s_mul_i32 s54, s29, 640"); e("s_add_u32 s53, s53, s54")
    e("s_lshl_b32 s54, s28, 7"); e("s_add_u32 s54, s54, s53"); e("v_add_u32 v%d, s54, v%d" % (GW4, GW1))
    e("s_lshl_b32 s54, s28, 5"); e("s_add_u32 s54, s54, s53"); e("s_add_u32 s54, s54, 512"); e("v_add_u32 v%d, s54, v%d" % (GW1, GW1))
    e("v_lshrrev_b32 v%d, 1, v%d" % (T0, G)); e("v_lshlrev_b32 v%d, 4, v%d" % (T0, T0))
    e("v_lshrrev_b32 v%d, 1, v%d" % (T1, RR)); e("v_lshl_add_u32 v%d, v%d, 3, v%d" % (T0, T1, T0))
    e("v_and_b32 v%d, 1, v%d" % (T1, G)); e("v_lshl_add_u32 v%d, v%d, 2, v%d" % (T0, T1, T0))
    e("v_and_b32 v%d, 1, v%d" % (T1, RR)); e("v_add_u32 v%d, v%d, v%d" % (T0, T0, T1))
    e("v_lshlrev_b32 v0, 5, v%d" % T0); e("v_lshl_add_u32 v0, v%d, 3, v0" % CP); e("v_add_u32 v0, s52, v0")
    e("s_mul_i32 s53, s29, 5"); e("s_sub_u32 s54, 5, s53")
    for j in range(10):
        e("s_add_u32 s%d, s%d, %d" % (64 + j, 53 if j < 5 else 54, j % 5)); e("s_lshl_b32 s%d, s%d, 19" % (64 + j, 64 + j))
    e("v_mov_b32 v21, 0x3f80"); e("v_mov_b32 v22, 0x3f800000")
    e("v_cmp_gt_u32 vcc, 4, v%d" % C); e("s_nop 1"); e("v_cndmask_b32 v21, v22, v21, vcc")
    e("v_cmp_gt_u32 vcc, 8, v%d" % C); e("s_nop 1"); e("v_cndmask_b32 v21, 0, v21, vcc")
    for d in range(4):
        e("v_cmp_eq_u32 vcc, %d, v%d" % (d, CP)); e("s_nop 1"); e("v_cndmask_b32 v%d, 0, v21, vcc" % (16 + d))
    e("ds_write_b128 v1, v[16:19] offset:%d" % SEL_L)
    e("s_lshl_b32 s33, s28, 10"); e("s_lshl_b32 s34, s28, 8"); e("s_add_u32 s34, s34, 4096")
    items = list(_res)
    final = sorted(LSLOT, key=lambda k: LSLOT[k])
    def issue(it, slot):
        k, j = it
        for i in range(4):
            e("s_add_u32 m0, s52, %d" % (slot * 4096 + i * 1024))
            if k == "O":
                e("s_mov_b32 s53, %d" % (i * 32 * 1280 + (32 * j if j < 4 else 0)))
                e("buffer_load_dwordx4 v%d, s[20:23], s53 offen lds" % (GW4 if j < 4 else GW1))
            else:
                e("s_add_u32 s53, s%d, %d" % (64 + j, i * 16 * 8192))
                e("buffer_load_dwordx4 v%d, %s, s53 offen lds" % (GO if i & 1 else GE, {"Q": "s[8:11]", "K": "s[12:15]", "V": "s[16:19]"}[k]))
    def consume(it, slot):
        k, j = it
        for T in range(2):
            f = FX(k, j, T)
            for a in range(4):
                if k == "O": e("ds_read_b64_tr_b16 %s, v0 offset:%d" % (R(WB + 8 * f + 2 * a, 2), slot * 4096 + (64 * T + 32 * (a >> 1) + 2 * (a & 1)) * 32))
                else: e("ds_read_b64_tr_b16 %s, v%d offset:%d" % (R(WB + 8 * f + 2 * a, 2), 3 + T, slot * 4096 + 2048 * (a & 1) + 512 * (a >> 1)))
    inflight = []
    for n in range(NSLOT):
        issue(items[n], n); inflight.append((items[n], n))
    nxt = NSLOT
    done = set()
    while inflight and inflight[0][0] != "F":
        it, sl = inflight.pop(0)
        e("s_waitcnt vmcnt(%d)" % (4 * len(inflight)))
        consume(it, sl)
        e("s_waitcnt lgkmcnt(0)")
        if nxt < len(items):
            issue(items[nxt], sl); inflight.append((items[nxt], sl)); nxt += 1
        else:
            issue(final[sl], sl); inflight.append(("F", sl)); done.add(sl)
    assert len(done) == NSLOT
    e("s_waitcnt vmcnt(0)")
    e("v_add_u32 v11, s52, v1")
    for sl in range(NSLOT):
        k, j = final[sl]
        for T in range(2):
            for a in range(4):
                d = 16 + 8 * T + 2 * a
                if k == "O": e("ds_read_b64_tr_b16 v[%d:%d], v0 offset:%d" % (d, d + 1, sl * 4096 + (64 * T + 32 * (a >> 1) + 2 * (a & 1)) * 32))
                else: e("ds_read_b64_tr_b16 v[%d:%d], v%d offset:%d" % (d, d + 1, 3 + T, sl * 4096 + 2048 * (a & 1) + 512 * (a >> 1)))
        e("s_waitcnt lgkmcnt(0)")
        for q in range(4): e("ds_write_b128 v11, v[%d:%d] offset:%d" % (16 + 4 * q, 19 + 4 * q, sl * 4096 + 1024 * q))
    e("v_mov_b32 v3, v11")
    e("v_lshrrev_b32 v0, 2, v1")
    e("v_lshlrev_b32 v4, 2, v1")
    e("s_lshl_b32 s35, s28, 8"); e("s_add_u32 s35, s35, %d" % MISC_L)
    e("s_and_b32 s36, s42, 63"); e("s_lshl_b32 s36, s36, 7"); e("s_add_u32 s36, s36, 10240")
    e("s_lshl_b32 s50, s28, 12"); e("s_lshl_b32 s46, s30, 20"); e("s_add_u32 s46, s46, s50"); e("s_add_u32 s46, s46, 0x%x" % KV_OFF)
    e("s_lshl_b32 s56, s28, 10"); e("s_lshl_b32 s57, s28, 9")
    e("s_add_u32 s54, s57, 4096"); e("s_cmp_eq_u32 s29, 0"); e("s_cselect_b32 s54, s56, s54")
    e("s_lshl_b32 s48, s30, 19"); e("s_add_u32 s48, s48, s54"); e("s_add_u32 s48, s48, 0x%x" % (XV_OFF - 0x2000))
    e("s_lshl_b32 s47, s28, 11"); e("s_add_u32 s47, s47, %d" % VX_L)
    e("s_lshl_b32 s63, s29, 7"); e("s_add_u32 s63, s63, s42"); e("s_xor_b32 s63, s63, %d" % (96 + 20))
    for r in range(ACQ, ACQ + 24): e("v_mov_b32 v%d, 0" % r)
    e("s_mov_b32 s32, 0")
    e("s_mov_b32 s51, 0x3e0293ee")
    tick(A, 3, 20, 28)
    A.label("L_md_poll")
    e("buffer_load_dword v11, v0, s[24:27], 0 offen sc1"); e("s_waitcnt vmcnt(0)")
    for i in range(8): e("v_readlane_b32 s%d, v11, %d" % (64 + i, DBG_XC // 4 + 4 * i))
    e("v_readlane_b32 s72, v11, %d" % (DBG_INIT // 4))
    e("v_and_b32 v11, 0x3ff, v11"); e("v_cmp_le_u32 vcc, 128, v11"); e("s_nop 3")
    e("s_lshr_b32 s49, vcc_lo, %d" % (DBG_G1 // 4)); e("s_ff0_i32_b32 s49, s49")
    e("s_cmp_eq_u32 s49, 16"); e("s_cmov_b32 s49, 17")
    if MEGA:
        e("s_cmp_lt_u32 s72, 64"); e("s_cbranch_scc1 L_md_no")
        e("s_cmp_eq_u32 s49, 0"); e("s_cbranch_scc1 L_md_no")
    e("s_mov_b32 s31, 0")
    e("s_min_u32 s53, s64, s65"); e("s_cmp_ge_u32 s53, 32"); e("s_cbranch_scc1 L_md_ok")
    e("s_mov_b32 s31, 1"); e("s_mov_b32 s53, 0")
    for i in range(8): e("s_add_u32 s53, s53, s%d" % (64 + i))
    e("s_cmp_ge_u32 s53, 256"); e("s_cbranch_scc1 L_md_ok")
    A.label("L_md_no")
    e("s_add_u32 s74, s74, 1"); e("s_cmp_gt_u32 s74, %d" % SPIN_LIMIT); e("s_cbranch_scc1 L_abort")
    e("s_sleep 4"); e("s_branch L_md_poll")
    A.label("L_md_ok")
    e("s_waitcnt vmcnt(0)")
    e("s_barrier")
    if instr in (1, 2):
        for r in range(80, 96): e("s_mov_b32 s%d, 0" % r)
        e("s_memtime s[76:77]"); e("s_waitcnt lgkmcnt(0)"); e("s_mov_b32 s78, s76"); e("s_mov_b32 s95, s76")
    TP = [64, 66, 68, 70, 72] + list(range(76, 102, 2))
    tstate = {"n": 0}
    def stamp(i, fine=False):
        if not instr: return
        if instr == 3:
            n = tstate["n"]
            e("s_memtime s[%d:%d]" % (TP[n], TP[n] + 1)); A.c("stamp %d (%s)" % (n, i))
            tstate["n"] = n + 1
            if i == 8:
                l = A.newlabel("Lst")
                e("s_cmp_lg_u32 s32, %d" % TRACE_STEP); e("s_cbranch_scc1 %s" % l)
                e("s_waitcnt lgkmcnt(0)")
                e("s_lshl_b32 s53, s29, 5"); e("s_add_u32 s53, s53, s30"); e("s_lshl_b32 s53, s53, 2"); e("s_add_u32 s53, s53, s28"); e("s_lshl_b32 s53, s53, 7"); e("s_add_u32 s53, s53, 0x%x" % ST_OFF)
                e("v_mov_b32 v37, 0")
                for k in range(tstate["n"]):
                    e("v_mov_b32 v11, s%d" % TP[k]); e("buffer_store_dword v11, v37, s[4:7], s53 offen offset:%d" % (4 * k))
                A.label(l)
                tstate["n"] = 0
            return
        if fine: return
        if instr == 2:
            l = A.newlabel("Lst")
            e("s_cmp_lg_u32 s32, %d" % TRACE_STEP); e("s_cbranch_scc1 %s" % l)
            e("s_memrealtime s[76:77]"); e("s_waitcnt lgkmcnt(0)"); e("s_mov_b32 s%d, s76" % (80 + i))
            A.label(l)
            return
        e("s_memtime s[76:77]"); e("s_waitcnt lgkmcnt(0)")
        e("s_sub_u32 s79, s76, s78"); e("s_add_u32 s%d, s%d, s79" % (80 + i, 80 + i)); e("s_mov_b32 s78, s76")
        if i == 8:
            l = A.newlabel("Lst")
            e("s_cmp_lg_u32 s32, 3"); e("s_cbranch_scc1 %s" % l)
            for r in range(80, 95): e("s_mov_b32 s%d, 0" % r)
            e("s_mov_b32 s95, s76")
            A.label(l)
    tick(A, 4, 20, 28)
    e("s_cmp_lg_u32 s31, 0"); e("s_cbranch_scc1 L_loop_slow")
    for mode in ("fast", "slow"):
        sc = "" if mode == "fast" else " sc1"
        A.label("L_loop_" + mode)
        for par in (1, 0):
            emit_step(A, par, sc, stamp, d_first, d_red, instr in (1, 2))
        if TICK["on"]:
            e("s_lshr_b32 s99, s32, 1"); tick(A, 5, 12, 28, 99)
        e("s_cmp_lt_u32 s32, %d" % steps); e("s_cbranch_scc1 L_loop_" + mode)
        e("s_branch L_rec_done")
    A.label("L_rec_last")
    e("s_barrier")
    e("s_cmp_eq_u32 s29, 0"); e("s_cbranch_scc1 L_rec_l2")
    e("v_add_u32 v11, s57, v0")
    e("ds_write_b32 v11, v76 offset:%d" % QKX_L); e("ds_write_b32 v11, v78 offset:%d" % (QKX_L + 256))
    A.label("L_rec_l2")
    e("s_mov_b32 s32, 64")
    A.label("L_rec_done")
    publish(A)
    if MEGA:
        e("s_waitcnt vmcnt(0)"); e("s_barrier")
        signal_fin(A)
    if instr in (1, 2):
        e("s_memtime s[76:77]"); e("s_waitcnt lgkmcnt(0)"); e("s_sub_u32 s95, s76, s95")
        e("s_lshl_b32 s53, s29, 5"); e("s_add_u32 s53, s53, s30"); e("s_lshl_b32 s53, s53, 2"); e("s_add_u32 s53, s53, s28"); e("s_lshl_b32 s53, s53, 6"); e("s_add_u32 s53, s53, 0x%x" % ST_OFF)
        e("v_mov_b32 v0, 0")
        for i in range(16):
            e("v_mov_b32 v11, s%d" % (80 + i)); e("buffer_store_dword v11, v0, s[4:7], s53 offen offset:%d" % (4 * i))

    e("s_branch %s" % exit_label)
    A.label("L_abort")
    e("s_mov_b64 exec, 1")
    e("v_mov_b32 v0, %d" % DBG_ABORT); e("v_mov_b32 v11, 1")
    e("buffer_store_dword v11, v0, s[24:27], 0 offen")

def fload(A, dst, slot, T):
    for q in range(2):
        A.e("ds_read_b128 v[%d:%d], v3 offset:%d" % (dst + 4 * q, dst + 4 * q + 3, slot * 4096 + 2048 * T + 1024 * q))

def team_init(A):
    e = A.e
    e("s_load_dwordx2 s[52:53], s[0:1], 8")
    e("s_lshl_b32 s54, s28, 6"); e("v_add_u32 v12, s54, v0")
    e("v_lshlrev_b32 v13, 4, v12")
    for i in range(12): e("v_mov_b32 v%d, -1" % (16 + i))
    e("s_waitcnt lgkmcnt(0)")
    e("s_mov_b32 s56, s52"); e("s_mov_b32 s57, s53"); e("s_mov_b32 s58, 10240"); e("s_mov_b32 s59, 0x20000")
    e("s_cmp_lg_u32 s30, 0"); e("s_cbranch_scc1 L_ti_st")
    e("s_mul_i32 s54, s29, 640")
    for half in range(2):
        d = 16 + 4 * half
        e("v_bfe_u32 v14, v12, 1, 3"); e("v_mul_u32_u24 v14, 1280, v14")
        e("v_bfe_u32 v15, v12, 4, 2"); e("v_lshl_add_u32 v14, v15, 3, v14")
        e("v_and_b32 v15, 1, v12"); e("v_lshl_add_u32 v14, v15, 2, v14")
        if half == 0:
            e("v_lshrrev_b32 v15, 6, v12"); e("v_lshl_add_u32 v14, v15, 7, v14")
        else:
            e("v_add_u32 v14, 512, v14")
            e("s_cmp_lg_u32 s28, 0"); e("s_cbranch_scc1 L_ti_st")
        for t in range(4): e("buffer_load_dword v%d, v14, s[56:59], s54 offen offset:%d" % (28 + t, 32 * t))
        e("s_mov_b32 s52, 0x05040100"); e("s_mov_b32 s53, 0x07060302")
        e("s_waitcnt vmcnt(0)")
        e("v_perm_b32 v%d, v29, v28, s52" % d); e("v_perm_b32 v%d, v31, v30, s52" % (d + 1))
        e("v_perm_b32 v%d, v29, v28, s53" % (d + 2)); e("v_perm_b32 v%d, v31, v30, s53" % (d + 3))
        for i in range(4): e("v_min_u32 v%d, -2, v%d" % (d + i, d + i))
    A.label("L_ti_st")
    e("s_lshl_b32 s52, s29, 19"); e("s_mul_i32 s53, s30, 12288"); e("s_add_u32 s52, s52, s53")
    for base in (ML_OFF, MR_OFF):
        for i in range(3):
            e("s_add_u32 s53, s52, 0x%x" % (base + 4096 * i))
            e("buffer_store_dwordx4 v[%d:%d], v13, s[4:7], s53 offen sc1" % (16 + 4 * i, 19 + 4 * i))
    for i in range(4): e("v_mov_b32 v%d, 0" % (32 + i))
    e("s_lshl_b32 s52, s29, 18"); e("s_lshl_b32 s53, s30, 13"); e("s_add_u32 s52, s52, s53")
    for i in range(2):
        e("s_add_u32 s53, s52, 0x%x" % (PB_OFF + 4096 * i))
        e("buffer_store_dwordx4 v[32:35], v13, s[4:7], s53 offen sc1")
    e("s_lshl_b32 s52, s29, 5"); e("s_add_u32 s52, s52, s30"); e("s_lshl_b32 s52, s52, 8"); e("s_add_u32 s52, s52, 0x%x" % CT_OFF)
    e("v_lshlrev_b32 v14, 2, v0")
    e("buffer_store_dword v32, v14, s[4:7], s52 offen sc1")
    e("s_waitcnt vmcnt(0)"); e("s_barrier")
    e("s_cmp_lg_u32 s28, 0"); e("s_cbranch_scc1 L_ti_done")
    e("s_mov_b64 exec, 1"); e("v_mov_b32 v14, %d" % DBG_INIT); e("v_mov_b32 v15, 1")
    e("buffer_atomic_add v15, v14, s[24:27], 0 offen sc1")
    e("s_mov_b64 exec, -1")
    A.label("L_ti_done")

def kv_poll(A, need_sreg):
    e = A.e
    lp = A.newlabel("Lkv"); ok = A.newlabel("Lkvok")
    e("s_cmp_lt_u32 s%d, s49" % need_sreg); e("s_cbranch_scc1 %s" % ok)
    A.label(lp)
    e("buffer_load_dword v11, v0, s[24:27], 0 offen offset:%d sc1" % DBG_G1); e("s_waitcnt vmcnt(0)")
    e("v_and_b32 v11, 0x3ff, v11"); e("v_cmp_le_u32 vcc, 128, v11"); e("s_nop 3")
    e("s_and_b32 s49, vcc_lo, 0xffff"); e("s_ff0_i32_b32 s49, s49")
    e("s_cmp_eq_u32 s49, 16"); e("s_cmov_b32 s49, 17")
    e("s_cmp_lt_u32 s%d, s49" % need_sreg); e("s_cbranch_scc1 %s" % ok)
    e("s_add_u32 s74, s74, 1"); e("s_cmp_gt_u32 s74, %d" % SPIN_LIMIT); e("s_cbranch_scc1 L_abort")
    e("s_sleep 8"); e("s_branch %s" % lp)
    A.label(ok)

def signal_prog(A):
    e = A.e
    l = A.newlabel("Lsg")
    e("s_cmp_lg_u32 s63, 0"); e("s_cbranch_scc1 %s" % l)
    e("s_max_u32 s53, s32, 2"); e("s_sub_u32 s53, s53, 2")
    e("s_mov_b64 exec, 1"); e("v_mov_b32 v11, s53"); e("s_mov_b32 s53, 0x%x" % CT_OFF)
    e("buffer_store_dword v11, v0, s[4:7], s53 offen sc1")
    e("s_mov_b64 exec, -1")
    A.label(l)

def signal_fin(A):
    e = A.e
    l = A.newlabel("Lsg")
    e("s_cmp_lg_u32 s28, 0"); e("s_cbranch_scc1 %s" % l)
    e("s_mov_b64 exec, 1"); e("v_mov_b32 v11, 1"); e("s_mov_b32 s53, 0x%x" % CT_OFF)
    e("buffer_atomic_add v11, v0, s[4:7], s53 offen offset:4 sc1")
    e("s_mov_b64 exec, -1")
    A.label(l)

def publish(A, lds=None, wait_for=None, mm=None):
    e = A.e
    e("v_add_u32 v36, s56, v6"); e("v_add_u32 v37, s57, v6")
    e("ds_read_b64_tr_b16 v[32:33], v36 offset:%d" % QKX_L); e("ds_read_b64_tr_b16 v[34:35], v36 offset:%d" % (QKX_L + 512))
    e("ds_read_b64 v[38:39], v37 offset:%d" % QKX_L)
    if lds: lds("PB", 3)
    seq = (6, 7, 9, 5, 8) if mm else (9,)
    for j in seq:
        if mm:
            wait_for(("A", j))
            for T in range(2): mm("Q", j, T)
        if j == 9:
            if mm: wait_for("PB")
            else: e("s_waitcnt lgkmcnt(0)")
            t1 = A.newlabel("Lt1"); tj = A.newlabel("Ltj")
            e("s_cmp_eq_u32 s32, 0"); e("s_cbranch_scc1 %s" % tj)
            e("s_cmp_lg_u32 s29, 0"); e("s_cbranch_scc1 %s" % t1)
            if not DIS & 1: e("buffer_store_dwordx4 v[32:35], v1, s[4:7], s48 offen%s" % PUBSC)
            e("s_branch %s" % tj)
            A.label(t1)
            if not DIS & 1: e("buffer_store_dwordx2 v[38:39], v6, s[4:7], s48 offen%s" % PUBSC)
            A.label(tj)
            e("s_add_u32 s48, s48, 0x2000")

def emit_step(A, par, sc, stamp, d_first, d_red, instr):
    e = A.e
    KXC = KX_L
    ACC = {"Q": ACQ, "K": ACK, "V": ACV}
    def smf(acc, a, b): e("%s v[%d:%d], %s, %s, v2" % (SMF, acc, acc + 3, vr(a, 4), b))
    def spin():
        e("s_add_u32 s74, s74, 1"); e("s_cmp_gt_u32 s74, %d" % SPIN_LIMIT); e("s_cbranch_scc1 L_abort")
    def gl_load(reg, s):
        e("buffer_load_dwordx4 v[%d:%d], v37, s[4:7], s%d offen sc1" % (reg, reg + 3, s))
        e("buffer_load_dword v%d, v38, s[4:7], s%d offen sc1" % (reg + 4, s))
    def gl_check(reg):
        e("v_max3_u32 v11, v%d, v%d, v%d" % (reg, reg + 1, reg + 2)); e("v_max3_u32 v11, v11, v%d, v%d" % (reg + 3, reg + 4))
        e("v_cmp_eq_u32 vcc, -1, v11")
    def gl_write(reg, half):
        e("ds_write_b128 v37, v[%d:%d] offset:%d" % (reg, reg + 3, AC_L + 5120 * half))
        e("ds_write_b32 v38, v%d offset:%d" % (reg + 4, AC_L + 5120 * half))
    Lseq = [(m, j, T) for (m, j) in [("K", 0), ("K", 2), ("K", 4), ("V", 1), ("V", 3), ("Q", 5)] for T in range(2)]
    lstate = {"issued": 0, "other": 0}
    pend = []
    def lds(tag, n=1):
        pend.extend([tag] * n)
    def wait_for(tag):
        if tag not in pend: return
        last = len(pend) - 1 - pend[::-1].index(tag)
        n = len(pend) - 1 - last
        e("s_waitcnt lgkmcnt(%d)" % n)
        del pend[:last + 1]
    def wait_all():
        e("s_waitcnt lgkmcnt(0)"); del pend[:]
    def Lissue():
        i = lstate["issued"]
        if i >= len(Lseq): return
        m, j, T = Lseq[i]
        fload(A, TMP + 8 * (i % 2), LSLOT[(m, j)], T); lds(("L", i), 2)
        lstate["issued"] = i + 1
    def mm(m, j, T):
        a = AA(j % 5)
        if (m, j) in LSLOT:
            i = Lseq.index((m, j, T))
            wait_for(("L", i))
            smf(ACC[m] + 4 * T, a, vr(TMP + 8 * (i % 2), 8))
            Lissue()
        else:
            smf(ACC[m] + 4 * T, a, FR(FX(m, j, T)))
    def rdA(j):
        e("ds_read_b128 v[%d:%d], v1 offset:%d" % (AA(j % 5), AA(j % 5) + 3, AC_L + 1024 * j)); lds(("A", j))
    def zero(lo, hi):
        for r in range(lo, hi, 2): e("v_mov_b64 v[%d:%d], 0" % (r, r + 1))
    e("v_add_u32 v37, s33, v1"); e("v_add_u32 v38, s34, v0")
    if d_first: e("s_sleep %d" % d_first)
    GA, GB = 12, 20
    gl_load(GA, 38)
    stamp("issueA", True)
    if D_GAP: e("s_sleep %d" % D_GAP)
    e("s_mov_b32 m0, s50")
    gl_load(GB, 38)
    for i in range(4): e("buffer_load_dwordx4 v1, s[4:7], s46 offen offset:%d%s lds" % (1024 * i, KVSC))
    lp = A.newlabel("Lgl"); okA = A.newlabel("LglA"); okB = A.newlabel("LglB"); ok = A.newlabel("Lglok"); re = A.newlabel("Lglre")
    e("s_waitcnt vmcnt(6)")
    A.label(lp)
    gl_check(GA); e("s_cbranch_vccnz %s" % re)
    gl_write(GA, 0)
    A.label(ok)
    lds("W", 2)
    stamp("gotL", True)
    Lissue(); Lissue()
    wait_for("W")
    stamp(0)
    e("s_barrier")
    e("s_waitcnt vmcnt(0)")
    stamp("B4", True)
    for j in range(5): rdA(j)
    gl_load(GG, 39)
    for j in range(5):
        wait_for(("A", j))
        if j % 2 == 0: order = [("K", 0), ("Q", 0), ("Q", 1), ("K", 1)]
        else: order = [("Q", 0), ("K", 0), ("Q", 1), ("K", 1)]
        for m, T in order: mm(m, j, T)

    stamp(1)
    lpr = A.newlabel("Lgr"); rer = A.newlabel("Lgrre")
    A.label(lpr)
    e("s_waitcnt vmcnt(0)"); gl_check(GG); e("s_cbranch_vccnz %s" % rer)
    gl_write(GG, 1); lds("W", 2)
    stamp(9)
    mm("V", 0, 0)
    if MEGA and not par:
        e("s_add_u32 s54, s32, 1"); e("s_lshr_b32 s54, s54, 2")
        kv_poll(A, 54)
    e("s_mov_b32 m0, s35"); e("s_add_u32 s46, s46, 0x4000")
    e("buffer_load_dword v4, s[4:7], s46 offen%s lds" % KVSC)
    mm("V", 1, 0)
    nml = A.newlabel("Lnml")
    e("s_cmp_lg_u32 s30, 31"); e("s_cbranch_scc1 %s" % nml)
    e("s_add_u32 s54, s38, s50"); e("s_add_u32 s54, s54, 10240")
    e("buffer_load_dword v4, s[4:7], s54 offen lds")
    A.label(nml)
    mm("V", 0, 1); mm("V", 1, 1)
    wait_for("W")
    e("s_barrier")
    stamp("B5", True)
    rdA(5); rdA(6)
    if MEGA: signal_prog(A)
    VXR = GG
    mm("V", 2, 0); mm("V", 2, 1); rdA(7)
    mm("V", 4, 0); mm("V", 4, 1); rdA(9)
    mm("V", 3, 0); mm("V", 3, 1); rdA(8)
    publish(A, lds, wait_for, mm)
    for j in range(5, 10):
        for T in range(2):
            mm("K", j, T)
            if j < 7:
                ks = 2 * (j - 5) + T
                e("ds_read_b128 v[%d:%d], v1 offset:%d" % (TMP + 4 * ks, TMP + 3 + 4 * ks, KXC + 4096 + 1024 * ks)); lds("K1")
            if j == 8:
                q = ACQ + 4 * T
                e("v_add_f32 v%d, v%d, v%d" % (q, q, q + 1)); e("v_add_f32 v%d, v%d, v%d" % (q + 2, q + 2, q + 3))
            if j == 9:
                q = ACQ + 4 * T
                e("v_cvt_pk_bf16_f32 v%d, v%d, v%d" % (q + 1, q, q + 2))
    stamp(2)
    for j in (5, 6):
        for T in range(2): mm("V", j, T)
    e("s_nop 1")
    for T in range(2):
        q, k = ACQ + 4 * T, ACK + 4 * T
        e("v_add_f32 v%d, v%d, v%d" % (k, k, k + 1)); e("v_add_f32 v%d, v%d, v%d" % (k + 2, k + 2, k + 3))
        e("v_cvt_pk_bf16_f32 v%d, v%d, v%d" % (q, k, k + 2))
        e("ds_write_b64 v5, v[%d:%d] offset:%d" % (q, q + 1, 512 * T)); lds("W")
    for j in (7, 8):
        for T in range(2): mm("V", j, T)
    wait_all()
    e("s_barrier")
    stamp("B1", True)
    X, KT0 = 12, 40
    for ks in range(4):
        for a in range(2): e("ds_read_b64_tr_b16 v[%d:%d], v6 offset:%d" % (X + 4 * ks + 2 * a, X + 4 * ks + 2 * a + 1, QKX_L + 1024 * ks + 512 * a))
        lds(("X", ks), 2)
        if ks == 1: mm("V", 9, 0)
        if ks == 3: mm("V", 9, 1)
    for ks in range(4): e("ds_read_b128 v[%d:%d], v1 offset:%d" % (KT0 + 4 * ks, KT0 + 3 + 4 * ks, KXC + 1024 * ks)); lds("K0")
    e("v_add_u32 v11, s47, v1")
    e("ds_read_b128 v[32:35], v11"); e("ds_read_b128 v[36:39], v11 offset:1024"); lds("VX", 2)
    stamp(3)
    S2, S0, S1 = 28, 64, 68
    for ks in range(4):
        wait_for(("X", ks))
        e("%s v[%d:%d], %s, %s, %s" % (MF32, S2, S2 + 3, vr(TMP + 4 * ks, 4), vr(X + 4 * ks, 4), "0" if ks == 0 else vr(S2, 4)))
    for ks in range(4):
        e("%s v[%d:%d], %s, %s, %s" % (MF32, S0, S0 + 3, vr(X + 4 * ks, 4), vr(X + 4 * ks, 4), "0" if ks == 0 else vr(S0, 4)))
    wait_all()
    VM = 76
    for ks in range(4):
        e("%s v[%d:%d], %s, %s, %s" % (MF32, S1, S1 + 3, vr(KT0 + 4 * ks, 4), vr(X + 4 * ks, 4), "0" if ks == 0 else vr(S1, 4)))
        if ks < 2:
            v = ACV + 4 * ks
            e("v_add_f32 v%d, v%d, v%d" % (v, v, v + 1)); e("v_add_f32 v%d, v%d, v%d" % (v + 2, v + 2, v + 3))
        else:
            v = ACV + 4 * (ks - 2)
            e("v_cvt_pk_bf16_f32 v%d, v%d, v%d" % (VM + 2 * (ks - 2), v, v + 2)); e("v_mov_b32 v%d, 0" % (VM + 1 + 2 * (ks - 2)))
    if not par:
        e("s_cmp_eq_u32 s32, 63"); e("s_cbranch_scc1 L_rec_last")
    fload(A, 40, 7, 0); fload(A, 48, 7, 1); lds("O4", 4)
    e("v_max3_f32 v11, v%d, v%d, v%d" % (S2, S2 + 1, S2 + 2)); e("v_max3_f32 v11, v11, v%d, v%d" % (S2 + 3, S0))
    P1, P0, ONES, OA, LS = 12, 16, 20, 56, 24
    e("v_max3_f32 v11, v11, v%d, v%d" % (S0 + 1, S1)); e("v_max3_f32 v11, v11, v%d, v%d" % (S1 + 1, S1 + 2))
    e("v_max_f32 v11, v11, v%d" % (S1 + 3)); e("v_mov_b32 v66, v11")
    e("v_mov_b32 v%d, 0x3f803f80" % ONES); e("v_mov_b32 v%d, 0x3f803f80" % (ONES + 1))
    e("v_permlane16_swap_b32 v11, v66"); e("v_max_f32 v11, v11, v66"); e("v_mov_b32 v66, v11")
    e("v_mov_b64 v[%d:%d], v[%d:%d]" % (ONES + 2, ONES + 3, ONES, ONES + 1)); e("v_mov_b32 v%d, 0" % (P0 + 1))
    e("v_permlane32_swap_b32 v11, v66"); e("v_max_f32 v11, v11, v66")
    e("v_mul_f32 v11, s51, v11")
    vals = [S0, S0 + 1] + [S1 + i for i in range(4)] + [S2 + i for i in range(4)]
    for i, v in enumerate(vals):
        e("v_fma_f32 v%d, v%d, s51, -v11" % (v, v))
        if i >= 1: e("v_exp_f32 v%d, v%d" % (vals[i - 1], vals[i - 1]))
        if i == 3: e("v_cvt_pk_bf16_f32 v%d, v%d, v%d" % (P0, S0, S0 + 1))
        if i == 5:
            e("v_cvt_pk_bf16_f32 v%d, v%d, v%d" % (P1, S1, S1 + 1))
            e("%s v[%d:%d], %s, %s, 0" % (MF16, LS, LS + 3, vr(ONES, 2), vr(P0, 2)))
        if i == 6: e("%s v[%d:%d], %s, %s, 0" % (MF16, OA, OA + 3, vr(VM, 2), vr(P0, 2)))
        if i == 7:
            e("v_cvt_pk_bf16_f32 v%d, v%d, v%d" % (P1 + 1, S1 + 2, S1 + 3))
            e("%s v[%d:%d], %s, %s, 0" % (MF16, OA + 4, OA + 7, vr(VM + 2, 2), vr(P0, 2)))
    e("v_exp_f32 v%d, v%d" % (vals[9], vals[9]))
    e("v_cvt_pk_bf16_f32 v%d, v%d, v%d" % (P1 + 2, S2, S2 + 1)); e("v_cvt_pk_bf16_f32 v%d, v%d, v%d" % (P1 + 3, S2 + 2, S2 + 3))
    stamp(4)
    e("s_nop 1")
    stamp("vx", True)
    e("%s v[%d:%d], %s, %s, %s" % (MF32, LS, LS + 3, vr(ONES, 4), vr(P1, 4), vr(LS, 4)))
    for T in range(2): e("%s v[%d:%d], %s, %s, %s" % (MF32, OA + 4 * T, OA + 4 * T + 3, vr(VXR + 4 * T, 4), vr(P1, 4), vr(OA + 4 * T, 4)))
    WA = 12
    zero(12, 24)
    e("v_rcp_f32 v11, v%d" % LS)

    e("s_mov_b32 exec_lo, 0xcccccccc"); e("s_mov_b32 exec_hi, 0xcccccccc")
    for T in range(2):
        o = OA + 4 * T
        for i in range(4): e("v_mul_f32 v%d, v%d, v11" % (o + i, o + i))
        e("v_cvt_pk_bf16_f32 v%d, v%d, v%d" % (o, o, o + 1)); e("v_cvt_pk_bf16_f32 v%d, v%d, v%d" % (o + 1, o + 2, o + 3))
        e("ds_write_b64 v7, v[%d:%d] offset:%d" % (o, o + 1, 32 * T)); lds("W")
    e("s_mov_b64 exec, -1")
    fload(A, 32, 6, 0); fload(A, 64, 6, 1); lds("O3", 4)
    zero(24, 32)
    wait_for("W")
    stamp("preB2", True)
    e("s_barrier")
    stamp("B2", True)
    OF = 56
    for ks in range(2): e("ds_read_b128 v[%d:%d], v8 offset:%d" % (OF + 4 * ks, OF + 3 + 4 * ks, 128 * ks)); lds(("OF", ks))
    stamp(5)
    WF = {(4, 0): vr(40, 8), (4, 1): vr(48, 8), (3, 0): vr(32, 8), (3, 1): vr(64, 8)}
    for t in range(3):
        for ks in range(2): WF[(t, ks)] = FR(FX("O", t, ks))
    wait_for(("OF", 0))
    smf(WA + 16, OF, WF[(4, 0)])
    wait_for(("OF", 1))
    smf(WA + 16, OF + 4, WF[(4, 1)])
    tagop = (lambda d: "v_or_b32 v%d, 1, v%d" % (d, d)) if par else (lambda d: "v_and_b32 v%d, -2, v%d" % (d, d))
    def packl(t, dst):
        d = WA + 4 * t
        return ["v_add_f32 v%d, v%d, v%d" % (d, d, d + 1), "v_add_f32 v%d, v%d, v%d" % (d + 2, d + 2, d + 3),
                "v_cvt_pk_bf16_f32 v%d, v%d, v%d" % (dst, d, d + 2), tagop(dst)]
    for t in (0, 1, 2):
        for ks in range(2): smf(WA + 4 * t, OF + 4 * ks, WF[(t, ks)])
    e("s_nop 1")
    p4 = packl(4, 44)
    e(p4[0]); e(p4[1]); smf(WA + 12, OF, WF[(3, 0)]); e(p4[2]); e(p4[3]); smf(WA + 12, OF + 4, WF[(3, 1)])
    e("buffer_store_dword v44, v9, s[4:7], s44 offen%s" % sc)
    for t in range(4):
        for x in packl(t, 40 + t): e(x)
    e("buffer_store_dwordx4 v[40:43], v9, s[4:7], s43 offen%s" % sc)
    stamp(6)
    tv = A.newlabel("Ltv")
    e("s_cmp_eq_u32 s29, 0"); e("s_cbranch_scc1 %s" % tv)
    e("v_add_u32 v11, s57, v0")
    e("ds_write_b32 v11, v%d offset:%d" % (VM, QKX_L)); e("ds_write_b32 v11, v%d offset:%d" % (VM + 2, QKX_L + 256))
    A.label(tv)
    e("s_add_u32 s38, s38, 5120"); e("s_add_u32 s39, s39, 5120"); e("s_add_u32 s40, s40, 5120")
    e("ds_read_b128 v[28:31], v1 offset:%d" % SEL_L)
    zero(ACQ, ACQ + 24)
    nored = A.newlabel("Lnored"); join = A.newlabel("Ljoin")
    e("s_cmp_ge_u32 s42, 40"); e("s_cbranch_scc1 %s" % nored)
    if d_red: e("s_sleep %d" % d_red)
    op = "v_bitop3_b32 v11, v11, v%d, v%d bitop3:0x80" if par else "v_or3_b32 v11, v11, v%d, v%d"
    RA, RB = 64, 12
    def rload(b):
        for j in range(4): e("buffer_load_dwordx4 v[%d:%d], v1, s[4:7], s45 offen offset:%d sc1" % (b + 4 * j, b + 3 + 4 * j, 1024 * j))
        if instr: e("s_add_u32 s91, s91, 1")
    def rcheck(b):
        e("v_mov_b32 v11, %d" % par)
        for j in range(4):
            e("s_waitcnt vmcnt(%d)" % (7 - j))
            e("%s v[32:35], v[28:31], %s, %s" % (MF32, vr(b + 4 * j, 4), "0" if j == 0 else "v[32:35]"))
            e(op % (b + 4 * j, b + 4 * j + 1)); e(op % (b + 4 * j + 2, b + 4 * j + 3))
        e("v_and_b32 v11, 1, v11")
        e("v_cmp_ne_u32 vcc, %d, v11" % par)
    rload(RA)
    if D_GAP: e("s_sleep %d" % D_GAP)
    rload(RB)
    e("s_waitcnt lgkmcnt(0)")
    lpd = A.newlabel("Lrd"); okd = A.newlabel("Lrdok"); A.label(lpd)
    rcheck(RA); e("s_cbranch_vccz %s" % okd); rload(RA)
    rcheck(RB); e("s_cbranch_vccz %s" % okd); rload(RB)
    spin()
    e("s_branch %s" % lpd)
    A.label(re)
    gl_load(GA, 38)
    if instr: e("s_add_u32 s90, s90, 1")
    e("s_waitcnt vmcnt(2)"); gl_check(GB); e("s_cbranch_vccz %s" % okB)
    gl_load(GB, 38)
    if instr: e("s_add_u32 s90, s90, 1")
    spin()
    e("s_waitcnt vmcnt(2)")
    e("s_branch %s" % lp)
    A.label(okB); gl_write(GB, 0); e("s_branch %s" % ok)
    A.label(rer)
    gl_load(GG, 39)
    if instr: e("s_add_u32 s92, s92, 1")
    spin()
    e("s_branch %s" % lpr)
    A.label(nored)
    e("s_waitcnt lgkmcnt(0)")
    e("s_branch %s" % join)
    A.label(okd)
    e("s_nop 2")
    for i in range(4): e("v_add_f32_dpp v%d, v%d, v%d row_ror:8 row_mask:0xf bank_mask:0xf" % (36 + i, 32 + i, 32 + i))
    e("s_mov_b32 exec_lo, 0x00ff00ff"); e("s_mov_b32 exec_hi, 0")
    e("v_cvt_pk_bf16_f32 v32, v36, v37"); e("v_cvt_pk_bf16_f32 v33, v38, v39")
    e("v_min_u32 v32, -2, v32"); e("v_min_u32 v33, -2, v33")
    e("buffer_store_dwordx2 v[32:33], v10, s[4:7], s38 offen%s" % sc)
    e("buffer_store_dwordx2 v[32:33], v10, s[4:7], s40 offen sc1")
    e("s_mov_b64 exec, -1")
    A.label(join)
    stamp(7)
    e("s_barrier")
    stamp(8)
    e("s_add_u32 s32, s32, 1")

def gen(**kw):
    A = Asm()
    A.raw("; @launch kernel=rec_kernel grid=(256,1,1) block=(256,1,1) lds=163840")
    A.raw('.amdgcn_target "amdgcn-amd-amdhsa--gfx950"')
    A.raw(".text")
    kernel_header(A, "rec_kernel")
    A.e("s_cmp_ge_u32 s2, 256"); A.e("s_cbranch_scc1 L_end")
    emit_rec(A, **kw)
    A.label("L_end")
    A.e("s_endpgm")
    A.raw('.section .rodata,"a"'); A.raw(".p2align 6")
    A.raw(kernel_desc("rec_kernel", 512, 102, 256))
    return A.text()

if __name__ == "__main__":
    import sys
    for spec in sys.argv[1:]:
        d1, dr, ra, ins = map(int, spec.split(","))
        DIS = d1 >> 4; d1 &= 15
        KVSC = " sc1" if DIS & 8 else ""
        PUBSC = " sc1" if DIS & 16 else ""
        D_GAP = ra
        open("rec_%d_%d_%d_%d.s" % (d1 + 16 * DIS, dr, ra, ins), "w").write(gen(instr=ins, d_first=d1, d_red=dr))
```

```python
import sys
from asmlib import *
from layout import *
import gen_g1, gen_rec, gen_att, gen_g2s
from gen_g1 import srd
NAME = "recurrent_scan__memory_aug_recurrent_mem_tr__glu_gated_swiglu__prompt"
HEAD = open("cdna_kernels/%s.s.ref" % NAME).read().split("; Override launch")[0]
LIM = 20000

SL1 = 40
def poll(A, srdname, soff, voff_imm, shift, target, vtmp, sleep=8, tail=None):
    e = A.e
    lp = A.newlabel("Lp"); ok = A.newlabel("Lpok")
    A.label(lp)
    e("v_mov_b32 v%d, 0" % vtmp)
    e("buffer_load_dword v%d, v%d, %s, %s offen offset:%d sc1" % (vtmp, vtmp, srdname, soff, voff_imm)); e("s_waitcnt vmcnt(0)")
    e("v_readfirstlane_b32 s68, v%d" % vtmp); e("s_nop 3")
    for (sh, tg) in zip(shift, target):
        e("s_bfe_u32 s69, s68, 0x%x" % ((10 << 16) | sh)); e("s_cmp_lt_u32 s69, %d" % tg); e("s_cbranch_scc1 %s_n" % lp)
    e("s_branch %s" % ok)
    A.label(lp + "_n")
    e("s_add_u32 s74, s74, 1"); e("s_cmp_gt_u32 s74, %d" % LIM); e("s_cbranch_scc1 L_wabort")
    e("s_sleep %d" % sleep)
    if tail:
        e("s_cmp_ge_u32 s47, %d" % tail); e("s_cbranch_scc1 %s" % lp); e("s_sleep 64")
    e("s_branch %s" % lp)
    A.label(ok)

def poll_prog(A, segreg, vtmp, near):
    e = A.e
    lp = A.newlabel("Lpp"); ok = A.newlabel("Lppok")
    A.label(lp)
    e("v_mov_b32 v%d, 0" % vtmp); e("s_mov_b32 s69, 0x%x" % CT_OFF)
    e("buffer_load_dwordx2 v[%d:%d], v%d, s[4:7], s69 offen sc1" % (vtmp, vtmp + 1, vtmp)); e("s_waitcnt vmcnt(0)")
    e("v_readfirstlane_b32 s68, v%d" % vtmp); e("v_readfirstlane_b32 s69, v%d" % (vtmp + 1)); e("s_nop 3")
    e("s_cmp_gt_u32 s68, s%d" % segreg); e("s_cbranch_scc1 %s" % ok)
    e("s_cmp_ge_u32 s69, 64"); e("s_cbranch_scc1 %s" % ok)
    e("s_add_u32 s74, s74, 1"); e("s_cmp_gt_u32 s74, %d" % LIM); e("s_cbranch_scc1 L_wabort")
    e("s_sleep %d" % near)
    e("s_cmp_ge_u32 s68, 61"); e("s_cbranch_scc1 %s" % lp)
    e("s_sleep %d" % SL1); e("s_branch %s" % lp)
    A.label(ok)

def build(instr=0, d_first=2, d_red=3, listform=False):
    A = Asm(); e = A.e
    A.raw(HEAD.rstrip())
    if listform: A.raw("; @launch kernel=%s_kernel grid=(256,1,1) block=(256,1,1) lds=163840" % NAME)
    else: A.raw("; @launch grid=(256,1,1) block=(256,1,1) lds=163840")
    A.raw('.amdgcn_target "amdgcn-amd-amdhsa--gfx950"')
    A.raw(".text")
    kernel_header(A, NAME + "_kernel")
    e("s_cmp_ge_u32 s2, 256"); e("s_cbranch_scc1 L_end")
    gen_rec.MEGA = True; gen_rec.PUBSC = " sc1"; gen_rec.KVSC = " sc1"
    gen_rec.emit_rec(A, instr=instr, d_first=d_first, d_red=d_red, worker_label="L_worker")
    e("s_branch L_end")
    A.label("L_worker")
    e("s_mov_b32 s26, s28")
    e("s_sub_u32 s70, s55, 64")
    e("s_mov_b32 s64, s24"); e("s_mov_b32 s65, s25"); e("s_mov_b32 s66, 256"); e("s_mov_b32 s67, 0x20000")
    e("s_load_dwordx2 s[54:55], s[0:1], 0")
    e("s_load_dwordx4 s[16:19], s[0:1], 16")
    e("s_load_dwordx2 s[20:21], s[0:1], 32")
    e("s_load_dwordx4 s[56:59], s[0:1], 64")
    e("s_load_dwordx2 s[62:63], s[0:1], 40")
    e("s_waitcnt lgkmcnt(0)")
    e("s_mov_b64 s[22:23], s[56:57]"); e("s_mov_b64 s[24:25], s[58:59]")
    srd(e, 8, 54, 2621440)
    e("s_and_b32 s27, s70, 3"); e("s_lshr_b32 s28, s70, 2")
    tick(A, 1, 12, 26); e("s_mov_b32 s99, 0")
    gen_g1.emit_g1(A, NPART=48, mega=True, NT=4)
    tick(A, 30, 12, 26)
    poll(A, "s[64:67]", "0", DBG_INIT, [0], [64], 11)
    e("s_mul_i32 s33, s70, 171"); e("s_lshr_b32 s71, s33, 10")
    e("s_mul_i32 s33, s71, 6"); e("s_sub_u32 s72, s70, s33")
    e("s_cmp_eq_u32 s72, 5"); e("s_cbranch_scc1 L_att_role")
    e("s_load_dwordx2 s[54:55], s[0:1], 40")
    e("s_load_dwordx4 s[56:59], s[0:1], 80")
    e("s_mul_i32 s33, s71, 5"); e("s_add_u32 s33, s33, s72")
    e("s_mul_i32 s47, s33, 205"); e("s_lshr_b32 s47, s47, 12")
    e("s_mul_i32 s34, s47, 20"); e("s_sub_u32 s28, s33, s34")
    e("s_waitcnt lgkmcnt(0)")
    srd(e, 16, 58, 2621440); srd(e, 12, 56, 1728 * 1280); srd(e, 20, 54, 5242880)
    e("s_barrier")
    gen_g2s.emit_g2s_prologue(A)
    tick(A, 31, 12, 26)
    A.label("L_g2_loop")
    def waitH():
        e("s_lshr_b32 s41, s47, 3"); e("s_lshl_b32 s41, s41, 2")
        poll(A, "s[64:67]", "s41", DBG_G1, [20], [56], 11, sleep=32)
    def waitO():
        e("s_lshr_b32 s41, s47, 1")
        e("s_cmp_lg_u32 s26, 0"); e("s_cbranch_scc1 L_g2_nopoll")
        poll_prog(A, 41, 10, 24)
        e("s_lshl_b32 s41, s41, 7"); e("s_add_u32 s41, s41, 0x%x" % (CT_OFF + 0x2000))
        poll(A, "s[4:7]", "s41", 0, [0], [32], 11, sleep=4)
        A.label("L_g2_nopoll")
        e("s_barrier")
    gen_g2s.emit_g2s_task(A, waitH, waitO, " sc1")
    if TICK["on"]:
        e("s_lshr_b32 s99, s47, 4"); tick(A, 32, 14, 26, 99)
    e("s_add_u32 s47, s47, 8"); e("s_cmp_lt_u32 s47, 128"); e("s_cbranch_scc1 L_g2_loop")
    e("s_branch L_end")
    A.label("L_att_role")
    gen_att.emit_att_setup(A)
    e("v_lshrrev_b32 v0, 6, v0")
    e("s_mov_b32 s47, s73")
    A.label("L_att_loop")
    e("s_lshl_b32 s30, s71, 6"); e("s_add_u32 s30, s30, s47")
    def waitQ():
        e("s_lshr_b32 s44, s47, 2"); e("s_lshl_b32 s44, s44, 2")
        poll(A, "s[64:67]", "s44", DBG_G1, [0, 10], [128, 64], 15, sleep=32)
    def waitM():
        poll_prog(A, 47, 14, 3)
    gen_att.emit_att(A, " sc1", waitQ, waitM)
    e("s_waitcnt vmcnt(0)")
    e("s_lshl_b32 s44, s47, 7"); e("s_add_u32 s44, s44, 0x%x" % (CT_OFF + 0x2000))
    e("s_mov_b64 exec, 1"); e("v_mov_b32 v15, 1")
    e("buffer_atomic_add v15, v0, s[4:7], s44 offen sc1")
    e("s_mov_b64 exec, -1")
    if TICK["on"]:
        e("s_lshr_b32 s99, s47, 2"); tick(A, 44, 8, 73, 99)
    e("s_add_u32 s47, s47, 4"); e("s_cmp_lt_u32 s47, 64"); e("s_cbranch_scc1 L_att_loop")
    e("s_branch L_end")
    A.label("L_wabort")
    e("s_mov_b64 exec, 1"); e("v_mov_b32 v0, %d" % (DBG_ABORT + 4)); e("v_mov_b32 v11, 1")
    e("buffer_store_dword v11, v0, s[64:67], 0 offen")
    A.label("L_end"); e("s_endpgm")
    A.raw('.section .rodata,"a"'); A.raw(".p2align 6")
    A.raw(kernel_desc(NAME + "_kernel", 512, 102, 256))
    txt = A.text()
    return txt.replace("    s_mov_b32 s26, s28\n", "    s_mov_b32 s26, s28\n    s_mov_b32 s73, s28\n", 1)
if __name__ == "__main__":
    open("cdna_kernels/%s.s" % NAME, "w").write(build())
    open("mega_list.s", "w").write(build(listform=True))
    open("mega_3.s", "w").write(build(listform=True, instr=3))
    TICK["on"] = True
    open("mega_tick.s", "w").write(build(listform=True))
```

```python
from asmlib import *
from layout import *

SMF = "v_smfmac_f32_16x16x64_bf16"
MF32 = "v_mfma_f32_16x16x32_bf16"
MF16 = "v_mfma_f32_16x16x16_bf16"

SPIN_LIMIT = 20000
R_AT = 0
KX_L, AC_L, QKX_L, SEL_L, MISC_L, WV_L = 0, 16384, 26624, 30720, 31744, 32768
OX_L = AC_L + 5120
VX_L = 8192
NSLOT = 8
WB = 80
def FR(f): return R(WB + 8 * f, 8)
LSLOT = {("K", 0): 0, ("K", 2): 1, ("K", 4): 2, ("V", 1): 3, ("V", 3): 4, ("Q", 5): 5, ("O", 3): 6, ("O", 4): 7}
_res = [(m, j) for m in "QKV" for j in range(10) if (m, j) not in LSLOT] + [("O", t) for t in range(3)]
RIDX = {k: i for i, k in enumerate(_res)}
assert len(_res) == 27
def FX(m, j, T): return 2 * RIDX[(m, j)] + T
def AA(j): return 12 + 4 * j
GG, ACQ, ACK, ACV, TMP = 32, 40, 48, 56, 64
D_GAP = 2
DIS = 0
PUBSC = ""
KVSC = ""
TRACE_STEP = 40
MEGA = False
NEARSEL = None

def emit_rec(A, instr=False, d_first=4, d_red=4, steps=64, exit_label="L_end", worker_label=None):
    e = A.e
    e("s_load_dwordx4 s[52:55], s[0:1], 16")
    e("s_load_dwordx4 s[56:59], s[0:1], 32")
    e("s_load_dwordx4 s[60:63], s[0:1], 96")
    e("v_lshrrev_b32 v11, 6, v0"); e("v_and_b32 v0, 63, v0"); e("v_readfirstlane_b32 s28, v11")
    e("s_waitcnt lgkmcnt(0)")
    for (d, s, n) in ((4, 62, WS_BYTES), (8, 52, 5242880), (12, 54, 5242880), (16, 56, 5242880), (20, 58, 5242880), (24, 60, 256)):
        e("s_mov_b32 s%d, s%d" % (d, s)); e("s_mov_b32 s%d, s%d" % (d + 1, s + 1)); e("s_mov_b32 s%d, 0x%x" % (d + 2, n)); e("s_mov_b32 s%d, 0x20000" % (d + 3))
    tick(A, 0, 20, 28)
    e("s_mov_b32 s74, 0")
    e("s_getreg_b32 s52, hwreg(HW_REG_XCC_ID)"); e("s_and_b32 s52, s52, 7")
    e("s_lshl_b32 s53, s52, 4")
    e("v_mov_b32 v1, 1"); e("v_mov_b32 v2, s53"); e("v_mov_b32 v3, %d" % MISC_L); e("v_lshlrev_b32 v5, 4, v0")
    e("s_cmp_lg_u32 s28, 0"); e("s_cbranch_scc1 L_el_done")
    e("s_mov_b64 exec, 1")
    e("buffer_atomic_add v1, v2, s[24:27], 0 offen offset:%d sc0 sc1" % DBG_XC); e("s_waitcnt vmcnt(0)")
    e("v_readfirstlane_b32 s54, v1"); e("s_nop 3")
    e("s_lshl_b32 s55, s52, 5"); e("s_add_u32 s55, s55, s54")
    e("s_cmp_lt_u32 s54, 32"); e("s_cbranch_scc1 L_el_dec")
    e("v_mov_b32 v1, 1"); e("v_mov_b32 v2, 0")
    e("buffer_atomic_add v1, v2, s[24:27], 0 offen offset:%d sc0 sc1" % DBG_OVF); e("s_waitcnt vmcnt(0)")
    e("v_readfirstlane_b32 s54, v1")
    e("s_mov_b64 exec, 0xff")
    A.label("L_el_poll")
    e("buffer_load_dword v4, v5, s[24:27], 0 offen offset:%d sc1" % DBG_XC); e("s_waitcnt vmcnt(0)")
    e("s_mov_b32 s56, 0")
    for i in range(8):
        e("v_readlane_b32 s%d, v4, %d" % (64 + i, i))
    e("s_nop 3")
    for i in range(8): e("s_add_u32 s56, s56, s%d" % (64 + i))
    e("s_cmp_ge_u32 s56, 256"); e("s_cbranch_scc1 L_el_hole")
    e("s_add_u32 s74, s74, 1"); e("s_cmp_gt_u32 s74, %d" % SPIN_LIMIT); e("s_cbranch_scc1 L_abort")
    e("s_sleep 4"); e("s_branch L_el_poll")
    A.label("L_el_hole")
    for i in range(8):
        e("s_min_u32 s56, s%d, 32" % (64 + i)); e("s_sub_u32 s57, 32, s56")
        e("s_add_u32 s55, s56, s54"); e("s_add_u32 s55, s55, %d" % (32 * i))
        e("s_cmp_lt_u32 s54, s57"); e("s_cbranch_scc1 L_el_dec")
        e("s_sub_u32 s54, s54, s57")
    e("s_branch L_abort")
    A.label("L_el_dec")
    e("s_mov_b64 exec, 1")
    e("v_mov_b32 v1, s55")
    e("ds_write_b32 v3, v1"); e("s_waitcnt lgkmcnt(0)")
    e("s_mov_b64 exec, -1")
    A.label("L_el_done")
    e("s_barrier")
    e("ds_read_b32 v4, v3"); e("s_waitcnt lgkmcnt(0)")
    e("v_readfirstlane_b32 s55, v4"); e("s_nop 3")
    e("s_barrier")
    e("s_cmp_ge_u32 s55, 64"); e("s_cbranch_scc1 %s" % (worker_label or exit_label))
    e("s_lshr_b32 s29, s55, 5"); e("s_and_b32 s30, s55, 31")
    tick(A, 1, 20, 28)
    e("s_add_u32 s41, s4, 0x%x" % (MR2_OFF + 0x1fffff)); e("s_and_b32 s41, s41, 0xffe00000"); e("s_sub_u32 s41, s41, s4")
    e("s_cmp_lg_u32 s55, 63"); e("s_cbranch_scc1 L_pr_done")
    e("s_cmp_lg_u32 s28, 0"); e("s_cbranch_scc1 L_pr_bar")
    e("s_mov_b64 exec, 1"); e("v_mov_b32 v12, 0"); e("v_mov_b32 v13, -1")
    e("s_add_u32 s52, s41, 0x%x" % (63 * 16384 + 6144)); e("s_add_u32 s53, s52, 8192")
    e("s_mov_b32 s56, -1"); e("s_mov_b32 s57, -1")
    for rep in range(4):
        for c in range(2):
            e("s_memtime s[64:65]"); e("s_waitcnt lgkmcnt(0)")
            e("buffer_store_dword v13, v12, s[4:7], s%d offen sc1" % (52 + c)); e("s_waitcnt vmcnt(0)")
            e("s_memtime s[66:67]"); e("s_waitcnt lgkmcnt(0)")
            e("s_sub_u32 s68, s66, s64"); e("s_min_u32 s%d, s%d, s68" % (56 + c, 56 + c))
    e("s_cmp_lt_u32 s57, s56"); e("s_cselect_b32 s52, 2, 1")
    e("v_mov_b32 v13, s52")
    e("buffer_store_dword v13, v12, s[24:27], 0 offen offset:%d sc1" % DBG_NEAR)
    e("s_mov_b64 exec, -1")
    A.label("L_pr_bar")
    e("s_barrier")
    A.label("L_pr_done")
    if MEGA: team_init(A)
    tick(A, 2, 20, 28)
    e("v_lshlrev_b32 v1, 4, v0")
    e("v_and_b32 v11, 1, v0"); e("v_cmp_eq_u32 vcc, 1, v11"); e("v_mov_b32 v2, 0x4444"); e("v_mov_b32 v11, 0xeeee"); e("v_cndmask_b32 v2, v2, v11, vcc")
    C, G, RR, CP, T0, T1 = 64, 65, 66, 67, 68, 69
    e("v_and_b32 v%d, 15, v0" % C); e("v_lshrrev_b32 v%d, 4, v0" % G)
    e("v_bfe_u32 v%d, v0, 2, 2" % RR); e("v_and_b32 v%d, 3, v0" % CP)
    e("v_and_b32 v%d, 1, v%d" % (T0, RR)); e("v_lshlrev_b32 v3, 4, v%d" % T0)
    e("v_lshrrev_b32 v%d, 1, v%d" % (T1, G)); e("v_lshl_add_u32 v3, v%d, 2, v3" % T1)
    e("v_lshrrev_b32 v%d, 1, v%d" % (T1, RR)); e("v_lshl_add_u32 v3, v%d, 1, v3" % T1)
    e("v_and_b32 v%d, 1, v%d" % (T1, G)); e("v_add_u32 v3, v3, v%d" % T1)
    e("v_lshlrev_b32 v3, 6, v3"); e("v_lshl_add_u32 v3, v%d, 3, v3" % CP); e("v_lshl_add_u32 v3, v%d, 5, v3" % T0)
    e("s_mul_i32 s52, s28, %d" % (NSLOT * 4096)); e("s_add_u32 s52, s52, %d" % WV_L)
    e("v_add_u32 v3, s52, v3"); e("v_xor_b32 v4, 32, v3")
    e("s_lshl_b32 s53, s28, 10"); e("s_add_u32 s53, s53, %d" % QKX_L)
    e("v_lshlrev_b32 v5, 5, v%d" % C); e("v_lshl_add_u32 v5, v%d, 3, v5" % G); e("v_add_u32 v5, s53, v5")
    e("v_lshlrev_b32 v6, 3, v0")
    e("v_lshrrev_b32 v%d, 2, v%d" % (T0, C)); e("v_and_b32 v%d, 1, v%d" % (T1, C)); e("v_lshl_add_u32 v%d, v%d, 1, v%d" % (T0, T0, T1))
    e("v_mul_u32_u24 v7, 320, v%d" % T0); e("v_lshl_add_u32 v7, v%d, 3, v7" % G)
    e("s_lshl_b32 s53, s28, 6"); e("s_add_u32 s53, s53, %d" % OX_L); e("v_add_u32 v7, s53, v7")
    e("v_lshrrev_b32 v%d, 1, v%d" % (T0, C)); e("v_mul_u32_u24 v8, 320, v%d" % T0); e("v_lshl_add_u32 v8, v%d, 5, v8" % G)
    e("v_lshl_add_u32 v8, v%d, 4, v8" % T1); e("v_add_u32 v8, %d, v8" % OX_L)
    e("v_lshlrev_b32 v9, 13, v%d" % G); e("v_lshrrev_b32 v%d, 3, v%d" % (T0, C)); e("v_lshl_add_u32 v9, v%d, 12, v9" % T0)
    e("v_and_b32 v%d, 7, v%d" % (T0, C)); e("v_lshl_add_u32 v9, v%d, 4, v9" % T0)
    e("s_lshl_b32 s42, s28, 5"); e("s_add_u32 s42, s42, s30")
    e("s_and_b32 s53, s42, 1"); e("s_lshl_b32 s53, s53, 3")
    e("v_add_u32 v%d, s53, v%d" % (T0, T0))
    e("v_lshrrev_b32 v10, 2, v%d" % T0); e("v_lshlrev_b32 v10, 8, v10")
    e("v_bfe_u32 v%d, v%d, 1, 1" % (T1, T0)); e("v_lshl_add_u32 v10, v%d, 4, v10" % T1)
    e("v_and_b32 v%d, 1, v%d" % (T1, T0)); e("v_lshl_add_u32 v10, v%d, 3, v10" % T1)
    e("v_and_b32 v%d, 1, v%d" % (T1, G)); e("v_lshl_add_u32 v10, v%d, 5, v10" % T1)
    e("s_bfe_u32 s53, s42, 0x20001"); e("s_lshl_b32 s53, s53, 6")
    e("s_lshr_b32 s54, s42, 3"); e("s_lshl_b32 s54, s54, 10"); e("s_add_u32 s53, s53, s54")
    e("v_add_u32 v10, s53, v10")
    e("s_lshl_b32 s53, s29, 18"); e("s_add_u32 s53, s53, 0x%x" % PB_OFF)
    e("s_lshl_b32 s54, s30, 7"); e("s_add_u32 s54, s54, s53")
    e("s_lshl_b32 s43, s28, 15"); e("s_add_u32 s43, s43, s54")
    e("s_lshl_b32 s44, s28, 2"); e("s_add_u32 s44, s44, s54"); e("s_add_u32 s44, s44, 0x20000")
    e("s_lshl_b32 s45, s42, 12"); e("s_add_u32 s45, s45, s53")
    e("s_lshl_b32 s53, s29, 19")
    e("s_add_u32 s38, s53, 0x%x" % ML_OFF)
    e("s_lshl_b32 s53, s29, 20")
    e("s_add_u32 s40, s53, s41")
    e("s_xor_b32 s53, s53, 0x100000"); e("s_add_u32 s39, s53, s41")
    e("s_lshl_b32 s53, s30, 20"); e("s_lshl_b32 s54, s28, 11"); e("s_add_u32 s53, s53, s54")
    e("s_add_u32 s46, s53, 0x%x" % KV_OFF); e("s_add_u32 s47, s46, 8192")
    e("s_lshr_b32 s54, s53, 1"); e("s_add_u32 s48, s54, 0x%x" % XV_OFF)
    e("s_lshl_b32 s53, s30, 19"); e("s_lshl_b32 s54, s28, 9"); e("s_add_u32 s49, s53, s54"); e("s_add_u32 s49, s49, 0x%x" % (XV_OFF + 4096))
    e("s_lshl_b32 s50, s28, 11")
    GE, GO, GW4, GW1 = 70, 71, 72, 73
    e("v_lshrrev_b32 v%d, 2, v0" % T0); e("v_lshlrev_b32 v%d, 13, v%d" % (GE, T0)); e("v_lshl_add_u32 v%d, v%d, 4, v%d" % (GE, CP, GE))
    e("s_lshl_b32 s53, s30, 8"); e("s_lshl_b32 s54, s28, 6"); e("s_add_u32 s53, s53, s54")
    e("v_add_u32 v%d, s53, v%d" % (GE, GE)); e("v_xor_b32 v%d, 32, v%d" % (GO, GE))
    e("v_lshrrev_b32 v%d, 1, v0" % T0); e("v_mul_u32_u24 v%d, 1280, v%d" % (GW1, T0)); e("v_and_b32 v%d, 1, v0" % T0); e("v_lshl_add_u32 v%d, v%d, 4, v%d" % (GW1, T0, GW1))
    e("s_mul_i32 s53, s30, 163840"); e("s_mul_i32 s54, s29, 640"); e("s_add_u32 s53, s53, s54")
    e("s_lshl_b32 s54, s28, 7"); e("s_add_u32 s54, s54, s53"); e("v_add_u32 v%d, s54, v%d" % (GW4, GW1))
    e("s_lshl_b32 s54, s28, 5"); e("s_add_u32 s54, s54, s53"); e("s_add_u32 s54, s54, 512"); e("v_add_u32 v%d, s54, v%d" % (GW1, GW1))
    e("v_lshrrev_b32 v%d, 1, v%d" % (T0, G)); e("v_lshlrev_b32 v%d, 4, v%d" % (T0, T0))
    e("v_lshrrev_b32 v%d, 1, v%d" % (T1, RR)); e("v_lshl_add_u32 v%d, v%d, 3, v%d" % (T0, T1, T0))
    e("v_and_b32 v%d, 1, v%d" % (T1, G)); e("v_lshl_add_u32 v%d, v%d, 2, v%d" % (T0, T1, T0))
    e("v_and_b32 v%d, 1, v%d" % (T1, RR)); e("v_add_u32 v%d, v%d, v%d" % (T0, T0, T1))
    e("v_lshlrev_b32 v0, 5, v%d" % T0); e("v_lshl_add_u32 v0, v%d, 3, v0" % CP); e("v_add_u32 v0, s52, v0")
    e("s_mul_i32 s53, s29, 5"); e("s_sub_u32 s54, 5, s53")
    for j in range(10):
        e("s_add_u32 s%d, s%d, %d" % (64 + j, 53 if j < 5 else 54, j % 5)); e("s_lshl_b32 s%d, s%d, 19" % (64 + j, 64 + j))
    e("v_mov_b32 v21, 0x3f80"); e("v_mov_b32 v22, 0x3f800000")
    e("v_cmp_gt_u32 vcc, 4, v%d" % C); e("s_nop 1"); e("v_cndmask_b32 v21, v22, v21, vcc")
    e("v_cmp_gt_u32 vcc, 8, v%d" % C); e("s_nop 1"); e("v_cndmask_b32 v21, 0, v21, vcc")
    for d in range(4):
        e("v_cmp_eq_u32 vcc, %d, v%d" % (d, CP)); e("s_nop 1"); e("v_cndmask_b32 v%d, 0, v21, vcc" % (16 + d))
    e("ds_write_b128 v1, v[16:19] offset:%d" % SEL_L)
    e("s_lshl_b32 s33, s28, 10"); e("s_lshl_b32 s34, s28, 8"); e("s_add_u32 s34, s34, 4096")
    items = list(_res)
    final = sorted(LSLOT, key=lambda k: LSLOT[k])
    def issue(it, slot):
        k, j = it
        for i in range(4):
            e("s_add_u32 m0, s52, %d" % (slot * 4096 + i * 1024))
            if k == "O":
                e("s_mov_b32 s53, %d" % (i * 32 * 1280 + (32 * j if j < 4 else 0)))
                e("buffer_load_dwordx4 v%d, s[20:23], s53 offen lds" % (GW4 if j < 4 else GW1))
            else:
                e("s_add_u32 s53, s%d, %d" % (64 + j, i * 16 * 8192))
                e("buffer_load_dwordx4 v%d, %s, s53 offen lds" % (GO if i & 1 else GE, {"Q": "s[8:11]", "K": "s[12:15]", "V": "s[16:19]"}[k]))
    def consume(it, slot):
        k, j = it
        for T in range(2):
            f = FX(k, j, T)
            for a in range(4):
                if k == "O": e("ds_read_b64_tr_b16 %s, v0 offset:%d" % (R(WB + 8 * f + 2 * a, 2), slot * 4096 + (64 * T + 32 * (a >> 1) + 2 * (a & 1)) * 32))
                else: e("ds_read_b64_tr_b16 %s, v%d offset:%d" % (R(WB + 8 * f + 2 * a, 2), 3 + T, slot * 4096 + 2048 * (a & 1) + 512 * (a >> 1)))
    inflight = []
    for n in range(NSLOT):
        issue(items[n], n); inflight.append((items[n], n))
    nxt = NSLOT
    done = set()
    while inflight and inflight[0][0] != "F":
        it, sl = inflight.pop(0)
        e("s_waitcnt vmcnt(%d)" % (4 * len(inflight)))
        consume(it, sl)
        e("s_waitcnt lgkmcnt(0)")
        if nxt < len(items):
            issue(items[nxt], sl); inflight.append((items[nxt], sl)); nxt += 1
        else:
            issue(final[sl], sl); inflight.append(("F", sl)); done.add(sl)
    assert len(done) == NSLOT
    e("s_waitcnt vmcnt(0)")
    e("v_add_u32 v11, s52, v1")
    for sl in range(NSLOT):
        k, j = final[sl]
        for T in range(2):
            for a in range(4):
                d = 16 + 8 * T + 2 * a
                if k == "O": e("ds_read_b64_tr_b16 v[%d:%d], v0 offset:%d" % (d, d + 1, sl * 4096 + (64 * T + 32 * (a >> 1) + 2 * (a & 1)) * 32))
                else: e("ds_read_b64_tr_b16 v[%d:%d], v%d offset:%d" % (d, d + 1, 3 + T, sl * 4096 + 2048 * (a & 1) + 512 * (a >> 1)))
        e("s_waitcnt lgkmcnt(0)")
        for q in range(4): e("ds_write_b128 v11, v[%d:%d] offset:%d" % (16 + 4 * q, 19 + 4 * q, sl * 4096 + 1024 * q))
    e("v_mov_b32 v3, v11")
    e("v_lshrrev_b32 v0, 2, v1")
    e("v_lshlrev_b32 v4, 2, v1")
    e("s_lshl_b32 s35, s28, 8"); e("s_add_u32 s35, s35, %d" % MISC_L)
    e("s_and_b32 s36, s42, 63"); e("s_lshl_b32 s36, s36, 7"); e("s_add_u32 s36, s36, 10240")
    e("s_lshl_b32 s50, s28, 12"); e("s_lshl_b32 s46, s30, 20"); e("s_add_u32 s46, s46, s50"); e("s_add_u32 s46, s46, 0x%x" % KV_OFF)
    e("s_lshl_b32 s56, s28, 10"); e("s_lshl_b32 s57, s28, 9")
    e("s_add_u32 s54, s57, 4096"); e("s_cmp_eq_u32 s29, 0"); e("s_cselect_b32 s54, s56, s54")
    e("s_lshl_b32 s48, s30, 19"); e("s_add_u32 s48, s48, s54"); e("s_add_u32 s48, s48, 0x%x" % (XV_OFF - 0x2000))
    e("s_lshl_b32 s47, s28, 11"); e("s_add_u32 s47, s47, %d" % VX_L)
    e("s_lshl_b32 s63, s29, 7"); e("s_add_u32 s63, s63, s42"); e("s_xor_b32 s63, s63, %d" % (96 + 20))
    for r in range(ACQ, ACQ + 24): e("v_mov_b32 v%d, 0" % r)
    e("s_mov_b32 s32, 0")
    e("s_mov_b32 s51, 0x3e0293ee")
    tick(A, 3, 20, 28)
    A.label("L_md_poll")
    e("buffer_load_dword v11, v0, s[24:27], 0 offen sc1"); e("s_waitcnt vmcnt(0)")
    for i in range(8): e("v_readlane_b32 s%d, v11, %d" % (64 + i, DBG_XC // 4 + 4 * i))
    e("v_readlane_b32 s72, v11, %d" % (DBG_INIT // 4)); e("v_readlane_b32 s73, v11, %d" % (DBG_NEAR // 4))
    e("v_and_b32 v11, 0x3ff, v11"); e("v_cmp_le_u32 vcc, 128, v11"); e("s_nop 3")
    e("s_lshr_b32 s49, vcc_lo, %d" % (DBG_G1 // 4)); e("s_ff0_i32_b32 s49, s49")
    e("s_cmp_eq_u32 s49, 16"); e("s_cmov_b32 s49, 17")
    e("s_cmp_eq_u32 s73, 0"); e("s_cbranch_scc1 L_md_no")
    if MEGA:
        e("s_cmp_lt_u32 s72, 64"); e("s_cbranch_scc1 L_md_no")
        e("s_cmp_eq_u32 s49, 0"); e("s_cbranch_scc1 L_md_no")
    e("s_mov_b32 s31, 0")
    e("s_min_u32 s53, s64, s65"); e("s_cmp_ge_u32 s53, 32"); e("s_cbranch_scc1 L_md_ok")
    e("s_mov_b32 s31, 1"); e("s_mov_b32 s53, 0")
    for i in range(8): e("s_add_u32 s53, s53, s%d" % (64 + i))
    e("s_cmp_ge_u32 s53, 256"); e("s_cbranch_scc1 L_md_ok")
    A.label("L_md_no")
    e("s_add_u32 s74, s74, 1"); e("s_cmp_gt_u32 s74, %d" % SPIN_LIMIT); e("s_cbranch_scc1 L_abort")
    e("s_sleep 4"); e("s_branch L_md_poll")
    A.label("L_md_ok")
    if NEARSEL is None:
        e("s_sub_u32 s73, s73, 1"); e("s_lshl_b32 s73, s73, 13")
    else:
        e("s_sub_u32 s73, s73, 1"); e("s_xor_b32 s73, s73, 1"); e("s_lshl_b32 s73, s73, 13")
    e("s_add_u32 s39, s39, s73"); e("s_add_u32 s40, s40, s73")
    e("s_waitcnt vmcnt(0)")
    e("s_barrier")
    if instr in (1, 2):
        for r in range(80, 96): e("s_mov_b32 s%d, 0" % r)
        e("s_memtime s[76:77]"); e("s_waitcnt lgkmcnt(0)"); e("s_mov_b32 s78, s76"); e("s_mov_b32 s95, s76")
    TP = [64, 66, 68, 70, 72] + list(range(76, 102, 2))
    tstate = {"n": 0}
    def stamp(i, fine=False):
        if not instr: return
        if instr == 4:
            if i == 8:
                l = A.newlabel("Lst")
                e("s_cmp_lg_u32 s32, 2"); e("s_cbranch_scc1 %s" % l)
                e("s_memtime s[76:77]"); e("s_memrealtime s[78:79]")
                A.label(l)
                l = A.newlabel("Lst")
                e("s_cmp_lg_u32 s32, 62"); e("s_cbranch_scc1 %s" % l)
                e("s_memtime s[80:81]"); e("s_memrealtime s[82:83]"); e("s_waitcnt lgkmcnt(0)")
                e("s_sub_u32 s80, s80, s76"); e("s_sub_u32 s82, s82, s78")
                e("s_lshl_b32 s53, s29, 5"); e("s_add_u32 s53, s53, s30"); e("s_lshl_b32 s53, s53, 2"); e("s_add_u32 s53, s53, s28"); e("s_lshl_b32 s53, s53, 7"); e("s_add_u32 s53, s53, 0x%x" % ST_OFF)
                e("v_mov_b32 v37, 0"); e("v_mov_b32 v11, s80"); e("buffer_store_dword v11, v37, s[4:7], s53 offen")
                e("v_mov_b32 v11, s82"); e("buffer_store_dword v11, v37, s[4:7], s53 offen offset:4")
                A.label(l)
            return
        if instr == 3:
            n = tstate["n"]
            e("s_memtime s[%d:%d]" % (TP[n], TP[n] + 1)); A.c("stamp %d (%s)" % (n, i))
            tstate["n"] = n + 1
            if i == 8:
                l = A.newlabel("Lst")
                e("s_cmp_lg_u32 s32, %d" % TRACE_STEP); e("s_cbranch_scc1 %s" % l)
                e("s_waitcnt lgkmcnt(0)")
                e("s_lshl_b32 s53, s29, 5"); e("s_add_u32 s53, s53, s30"); e("s_lshl_b32 s53, s53, 2"); e("s_add_u32 s53, s53, s28"); e("s_lshl_b32 s53, s53, 7"); e("s_add_u32 s53, s53, 0x%x" % ST_OFF)
                e("v_mov_b32 v37, 0")
                for k in range(tstate["n"]):
                    e("v_mov_b32 v11, s%d" % TP[k]); e("buffer_store_dword v11, v37, s[4:7], s53 offen offset:%d" % (4 * k))
                A.label(l)
                tstate["n"] = 0
            return
        if fine: return
        if instr == 2:
            l = A.newlabel("Lst")
            e("s_cmp_lg_u32 s32, %d" % TRACE_STEP); e("s_cbranch_scc1 %s" % l)
            e("s_memrealtime s[76:77]"); e("s_waitcnt lgkmcnt(0)"); e("s_mov_b32 s%d, s76" % (80 + i))
            A.label(l)
            return
        e("s_memtime s[76:77]"); e("s_waitcnt lgkmcnt(0)")
        e("s_sub_u32 s79, s76, s78"); e("s_add_u32 s%d, s%d, s79" % (80 + i, 80 + i)); e("s_mov_b32 s78, s76")
        if i == 8:
            l = A.newlabel("Lst")
            e("s_cmp_lg_u32 s32, 3"); e("s_cbranch_scc1 %s" % l)
            for r in range(80, 95): e("s_mov_b32 s%d, 0" % r)
            e("s_mov_b32 s95, s76")
            A.label(l)
    tick(A, 4, 20, 28)
    e("s_cmp_lg_u32 s31, 0"); e("s_cbranch_scc1 L_loop_slow")
    for mode in ("fast", "slow"):
        sc = "" if mode == "fast" else " sc1"
        A.label("L_loop_" + mode)
        for par in (1, 0):
            emit_step(A, par, sc, stamp, d_first, d_red, instr in (1, 2))
        if TICK["on"]:
            e("s_lshr_b32 s99, s32, 1"); tick(A, 5, 12, 28, 99)
        e("s_cmp_lt_u32 s32, %d" % steps); e("s_cbranch_scc1 L_loop_" + mode)
        e("s_branch L_rec_done")
    A.label("L_rec_last")
    e("s_barrier")
    e("s_cmp_eq_u32 s29, 0"); e("s_cbranch_scc1 L_rec_l2")
    e("v_add_u32 v11, s56, v0")
    e("ds_write_b32 v11, v76 offset:%d" % QKX_L); e("ds_write_b32 v11, v78 offset:%d" % (QKX_L + 256))
    A.label("L_rec_l2")
    e("s_mov_b32 s32, 64")
    A.label("L_rec_done")
    publish(A)
    if MEGA:
        e("s_waitcnt vmcnt(0)"); e("s_barrier")
        signal_fin(A)
    if instr in (1, 2):
        e("s_memtime s[76:77]"); e("s_waitcnt lgkmcnt(0)"); e("s_sub_u32 s95, s76, s95")
        e("s_lshl_b32 s53, s29, 5"); e("s_add_u32 s53, s53, s30"); e("s_lshl_b32 s53, s53, 2"); e("s_add_u32 s53, s53, s28"); e("s_lshl_b32 s53, s53, 6"); e("s_add_u32 s53, s53, 0x%x" % ST_OFF)
        e("v_mov_b32 v0, 0")
        for i in range(16):
            e("v_mov_b32 v11, s%d" % (80 + i)); e("buffer_store_dword v11, v0, s[4:7], s53 offen offset:%d" % (4 * i))

    e("s_branch %s" % exit_label)
    A.label("L_abort")
    e("s_mov_b64 exec, 1")
    e("v_mov_b32 v0, %d" % DBG_ABORT); e("v_mov_b32 v11, 1")
    e("buffer_store_dword v11, v0, s[24:27], 0 offen")

def fload(A, dst, slot, T):
    for q in range(2):
        A.e("ds_read_b128 v[%d:%d], v3 offset:%d" % (dst + 4 * q, dst + 4 * q + 3, slot * 4096 + 2048 * T + 1024 * q))

def team_init(A):
    e = A.e
    e("s_load_dwordx2 s[52:53], s[0:1], 8")
    e("s_lshl_b32 s54, s28, 6"); e("v_add_u32 v12, s54, v0")
    e("v_lshlrev_b32 v13, 4, v12")
    for i in range(12): e("v_mov_b32 v%d, -1" % (16 + i))
    e("s_waitcnt lgkmcnt(0)")
    e("s_mov_b32 s56, s52"); e("s_mov_b32 s57, s53"); e("s_mov_b32 s58, 10240"); e("s_mov_b32 s59, 0x20000")
    e("s_cmp_lg_u32 s30, 0"); e("s_cbranch_scc1 L_ti_st")
    e("s_mul_i32 s54, s29, 640")
    for half in range(2):
        d = 16 + 4 * half
        e("v_bfe_u32 v14, v12, 1, 3"); e("v_mul_u32_u24 v14, 1280, v14")
        e("v_bfe_u32 v15, v12, 4, 2"); e("v_lshl_add_u32 v14, v15, 3, v14")
        e("v_and_b32 v15, 1, v12"); e("v_lshl_add_u32 v14, v15, 2, v14")
        if half == 0:
            e("v_lshrrev_b32 v15, 6, v12"); e("v_lshl_add_u32 v14, v15, 7, v14")
        else:
            e("v_add_u32 v14, 512, v14")
            e("s_cmp_lg_u32 s28, 0"); e("s_cbranch_scc1 L_ti_st")
        for t in range(4): e("buffer_load_dword v%d, v14, s[56:59], s54 offen offset:%d" % (28 + t, 32 * t))
        e("s_mov_b32 s52, 0x05040100"); e("s_mov_b32 s53, 0x07060302")
        e("s_waitcnt vmcnt(0)")
        e("v_perm_b32 v%d, v29, v28, s52" % d); e("v_perm_b32 v%d, v31, v30, s52" % (d + 1))
        e("v_perm_b32 v%d, v29, v28, s53" % (d + 2)); e("v_perm_b32 v%d, v31, v30, s53" % (d + 3))
        for i in range(4): e("v_min_u32 v%d, -2, v%d" % (d + i, d + i))
    A.label("L_ti_st")
    e("s_lshl_b32 s52, s29, 19"); e("s_mul_i32 s53, s30, 12288"); e("s_add_u32 s52, s52, s53")
    for i in range(3):
        e("s_add_u32 s53, s52, 0x%x" % (ML_OFF + 4096 * i))
        e("buffer_store_dwordx4 v[%d:%d], v13, s[4:7], s53 offen sc1" % (16 + 4 * i, 19 + 4 * i))
    e("s_lshl_b32 s52, s29, 20"); e("s_lshl_b32 s53, s30, 15"); e("s_add_u32 s52, s52, s53"); e("s_add_u32 s52, s52, s41")
    for i in range(8):
        d = 16 + 4 * (i & 1) if i < 4 else 24
        e("s_add_u32 s53, s52, %d" % (4096 * i))
        e("buffer_store_dwordx4 v[%d:%d], v13, s[4:7], s53 offen sc1" % (d, d + 3))
    for i in range(4): e("v_mov_b32 v%d, 0" % (32 + i))
    e("s_lshl_b32 s52, s29, 18"); e("s_lshl_b32 s53, s30, 13"); e("s_add_u32 s52, s52, s53")
    for i in range(2):
        e("s_add_u32 s53, s52, 0x%x" % (PB_OFF + 4096 * i))
        e("buffer_store_dwordx4 v[32:35], v13, s[4:7], s53 offen sc1")
    e("s_lshl_b32 s52, s29, 5"); e("s_add_u32 s52, s52, s30"); e("s_lshl_b32 s52, s52, 8"); e("s_add_u32 s52, s52, 0x%x" % CT_OFF)
    e("v_lshlrev_b32 v14, 2, v0")
    e("buffer_store_dword v32, v14, s[4:7], s52 offen sc1")
    e("s_waitcnt vmcnt(0)"); e("s_barrier")
    e("s_cmp_lg_u32 s28, 0"); e("s_cbranch_scc1 L_ti_done")
    e("s_mov_b64 exec, 1"); e("v_mov_b32 v14, %d" % DBG_INIT); e("v_mov_b32 v15, 1")
    e("buffer_atomic_add v15, v14, s[24:27], 0 offen sc1")
    e("s_mov_b64 exec, -1")
    A.label("L_ti_done")

def kv_poll(A, need_sreg):
    e = A.e
    lp = A.newlabel("Lkv"); ok = A.newlabel("Lkvok")
    e("s_cmp_lt_u32 s%d, s49" % need_sreg); e("s_cbranch_scc1 %s" % ok)
    A.label(lp)
    e("buffer_load_dword v11, v0, s[24:27], 0 offen offset:%d sc1" % DBG_G1); e("s_waitcnt vmcnt(0)")
    e("v_and_b32 v11, 0x3ff, v11"); e("v_cmp_le_u32 vcc, 128, v11"); e("s_nop 3")
    e("s_and_b32 s49, vcc_lo, 0xffff"); e("s_ff0_i32_b32 s49, s49")
    e("s_cmp_eq_u32 s49, 16"); e("s_cmov_b32 s49, 17")
    e("s_cmp_lt_u32 s%d, s49" % need_sreg); e("s_cbranch_scc1 %s" % ok)
    e("s_add_u32 s74, s74, 1"); e("s_cmp_gt_u32 s74, %d" % SPIN_LIMIT); e("s_cbranch_scc1 L_abort")
    e("s_sleep 8"); e("s_branch %s" % lp)
    A.label(ok)

def signal_prog(A):
    e = A.e
    l = A.newlabel("Lsg")
    e("s_cmp_lg_u32 s63, 0"); e("s_cbranch_scc1 %s" % l)
    e("s_max_u32 s53, s32, 2"); e("s_sub_u32 s53, s53, 2")
    e("s_mov_b64 exec, 1"); e("v_mov_b32 v11, s53"); e("s_mov_b32 s53, 0x%x" % CT_OFF)
    e("buffer_store_dword v11, v0, s[4:7], s53 offen sc1")
    e("s_mov_b64 exec, -1")
    A.label(l)

def signal_fin(A):
    e = A.e
    l = A.newlabel("Lsg")
    e("s_cmp_lg_u32 s28, 0"); e("s_cbranch_scc1 %s" % l)
    e("s_mov_b64 exec, 1"); e("v_mov_b32 v11, 1"); e("s_mov_b32 s53, 0x%x" % CT_OFF)
    e("buffer_atomic_add v11, v0, s[4:7], s53 offen offset:4 sc1")
    e("s_mov_b64 exec, -1")
    A.label(l)

def publish(A, lds=None, wait_for=None, mm=None):
    e = A.e
    e("v_add_u32 v36, s56, v6")
    e("ds_read_b64_tr_b16 v[32:33], v36 offset:%d" % QKX_L); e("ds_read_b64_tr_b16 v[34:35], v36 offset:%d" % (QKX_L + 512))
    e("ds_read_b64 v[38:39], v36 offset:%d" % QKX_L)
    if lds: lds("PB", 3)
    seq = (6, 7, 9, 5, 8) if mm else (9,)
    for j in seq:
        if mm:
            wait_for(("A", j))
            for T in range(2): mm("Q", j, T)
        if j == 9:
            if mm: wait_for("PB")
            else: e("s_waitcnt lgkmcnt(0)")
            t1 = A.newlabel("Lt1"); tj = A.newlabel("Ltj")
            e("s_cmp_eq_u32 s32, 0"); e("s_cbranch_scc1 %s" % tj)
            e("s_cmp_lg_u32 s29, 0"); e("s_cbranch_scc1 %s" % t1)
            if not DIS & 1: e("buffer_store_dwordx4 v[32:35], v1, s[4:7], s48 offen%s" % PUBSC)
            e("s_branch %s" % tj)
            A.label(t1)
            if not DIS & 1: e("buffer_store_dwordx2 v[38:39], v6, s[4:7], s48 offen%s" % PUBSC)
            A.label(tj)
            e("s_add_u32 s48, s48, 0x2000")

def emit_step(A, par, sc, stamp, d_first, d_red, instr):
    e = A.e
    KXC = KX_L
    ACC = {"Q": ACQ, "K": ACK, "V": ACV}
    def smf(acc, a, b): e("%s v[%d:%d], %s, %s, v2" % (SMF, acc, acc + 3, vr(a, 4), b))
    def spin():
        e("s_add_u32 s74, s74, 1"); e("s_cmp_gt_u32 s74, %d" % SPIN_LIMIT); e("s_cbranch_scc1 L_abort")
    def gl_load(reg, s):
        e("buffer_load_dwordx4 v[%d:%d], v37, s[4:7], s%d offen sc1" % (reg, reg + 3, s))
        e("buffer_load_dword v%d, v38, s[4:7], s%d offen sc1" % (reg + 4, s))
    def gl_check(reg):
        e("v_max3_u32 v11, v%d, v%d, v%d" % (reg, reg + 1, reg + 2)); e("v_max3_u32 v11, v11, v%d, v%d" % (reg + 3, reg + 4))
        e("v_cmp_eq_u32 vcc, -1, v11")
    def gl_write(reg, half):
        e("ds_write_b128 v37, v[%d:%d] offset:%d" % (reg, reg + 3, AC_L + 5120 * half))
        e("ds_write_b32 v38, v%d offset:%d" % (reg + 4, AC_L + 5120 * half))
    Lseq = [(m, j, T) for (m, j) in [("K", 0), ("K", 2), ("K", 4), ("V", 1), ("V", 3), ("Q", 5)] for T in range(2)]
    lstate = {"issued": 0, "other": 0}
    pend = []
    def lds(tag, n=1):
        pend.extend([tag] * n)
    def wait_for(tag):
        if tag not in pend: return
        last = len(pend) - 1 - pend[::-1].index(tag)
        n = len(pend) - 1 - last
        e("s_waitcnt lgkmcnt(%d)" % n)
        del pend[:last + 1]
    def wait_all():
        e("s_waitcnt lgkmcnt(0)"); del pend[:]
    def Lissue():
        i = lstate["issued"]
        if i >= len(Lseq): return
        m, j, T = Lseq[i]
        fload(A, TMP + 8 * (i % 2), LSLOT[(m, j)], T); lds(("L", i), 2)
        lstate["issued"] = i + 1
    def mm(m, j, T):
        a = AA(j % 5)
        if (m, j) in LSLOT:
            i = Lseq.index((m, j, T))
            wait_for(("L", i))
            smf(ACC[m] + 4 * T, a, vr(TMP + 8 * (i % 2), 8))
            Lissue()
        else:
            smf(ACC[m] + 4 * T, a, FR(FX(m, j, T)))
    def rdA(j):
        e("ds_read_b128 v[%d:%d], v1 offset:%d" % (AA(j % 5), AA(j % 5) + 3, AC_L + 1024 * j)); lds(("A", j))
    def zero(lo, hi):
        for r in range(lo, hi, 2): e("v_mov_b64 v[%d:%d], 0" % (r, r + 1))
    e("v_add_u32 v37, s33, v1"); e("v_add_u32 v38, s34, v0")
    if d_first: e("s_sleep %d" % d_first)
    GA, GB = 12, 20
    gl_load(GA, 38)
    stamp("issueA", True)
    if D_GAP: e("s_sleep %d" % D_GAP)
    e("s_mov_b32 m0, s50")
    gl_load(GB, 38)
    for i in range(4): e("buffer_load_dwordx4 v1, s[4:7], s46 offen offset:%d%s lds" % (1024 * i, KVSC))
    lp = A.newlabel("Lgl"); okA = A.newlabel("LglA"); okB = A.newlabel("LglB"); ok = A.newlabel("Lglok"); re = A.newlabel("Lglre")
    e("s_waitcnt vmcnt(6)")
    A.label(lp)
    gl_check(GA); e("s_cbranch_vccnz %s" % re)
    gl_write(GA, 0)
    A.label(ok)
    lds("W", 2)
    stamp("gotL", True)
    Lissue(); Lissue()
    wait_for("W")
    stamp(0)
    e("s_barrier")
    e("s_waitcnt vmcnt(0)")
    stamp("B4", True)
    for j in range(5): rdA(j)
    gl_load(GG, 39)
    for j in range(5):
        wait_for(("A", j))
        if j % 2 == 0: order = [("K", 0), ("Q", 0), ("Q", 1), ("K", 1)]
        else: order = [("Q", 0), ("K", 0), ("Q", 1), ("K", 1)]
        for m, T in order: mm(m, j, T)

    stamp(1)
    lpr = A.newlabel("Lgr"); rer = A.newlabel("Lgrre")
    A.label(lpr)
    e("s_waitcnt vmcnt(0)"); gl_check(GG); e("s_cbranch_vccnz %s" % rer)
    gl_write(GG, 1); lds("W", 2)
    stamp(9)
    mm("V", 0, 0)
    if MEGA and not par:
        e("s_add_u32 s54, s32, 1"); e("s_lshr_b32 s54, s54, 2")
        kv_poll(A, 54)
    e("s_mov_b32 m0, s35"); e("s_add_u32 s46, s46, 0x4000")
    e("buffer_load_dword v4, s[4:7], s46 offen%s lds" % KVSC)
    mm("V", 1, 0)
    nml = A.newlabel("Lnml")
    e("s_cmp_lg_u32 s30, 31"); e("s_cbranch_scc1 %s" % nml)
    e("s_add_u32 s54, s38, s50"); e("s_add_u32 s54, s54, 10240")
    e("buffer_load_dword v4, s[4:7], s54 offen lds")
    A.label(nml)
    mm("V", 0, 1); mm("V", 1, 1)
    wait_for("W")
    e("s_barrier")
    stamp("B5", True)
    rdA(5); rdA(6)
    if MEGA: signal_prog(A)
    VXR = GG
    mm("V", 2, 0); mm("V", 2, 1); rdA(7)
    mm("V", 4, 0); mm("V", 4, 1); rdA(9)
    mm("V", 3, 0); mm("V", 3, 1); rdA(8)
    publish(A, lds, wait_for, mm)
    for j in range(5, 10):
        for T in range(2):
            mm("K", j, T)
            if j < 7:
                ks = 2 * (j - 5) + T
                e("ds_read_b128 v[%d:%d], v1 offset:%d" % (TMP + 4 * ks, TMP + 3 + 4 * ks, KXC + 4096 + 1024 * ks)); lds("K1")
            if j == 8:
                q = ACQ + 4 * T
                e("v_add_f32 v%d, v%d, v%d" % (q, q, q + 1)); e("v_add_f32 v%d, v%d, v%d" % (q + 2, q + 2, q + 3))
            if j == 9:
                q = ACQ + 4 * T
                e("v_cvt_pk_bf16_f32 v%d, v%d, v%d" % (q + 1, q, q + 2))
    stamp(2)
    for j in (5, 6):
        for T in range(2): mm("V", j, T)
    e("s_nop 1")
    for T in range(2):
        q, k = ACQ + 4 * T, ACK + 4 * T
        e("v_add_f32 v%d, v%d, v%d" % (k, k, k + 1)); e("v_add_f32 v%d, v%d, v%d" % (k + 2, k + 2, k + 3))
        e("v_cvt_pk_bf16_f32 v%d, v%d, v%d" % (q, k, k + 2))
        e("ds_write_b64 v5, v[%d:%d] offset:%d" % (q, q + 1, 512 * T)); lds("W")
    for j in (7, 8):
        for T in range(2): mm("V", j, T)
    wait_all()
    e("s_barrier")
    stamp("B1", True)
    X, KT0 = 12, 40
    for ks in range(4):
        for a in range(2): e("ds_read_b64_tr_b16 v[%d:%d], v6 offset:%d" % (X + 4 * ks + 2 * a, X + 4 * ks + 2 * a + 1, QKX_L + 1024 * ks + 512 * a))
        lds(("X", ks), 2)
        if ks == 1: mm("V", 9, 0)
        if ks == 3: mm("V", 9, 1)
    for ks in range(4): e("ds_read_b128 v[%d:%d], v1 offset:%d" % (KT0 + 4 * ks, KT0 + 3 + 4 * ks, KXC + 1024 * ks)); lds("K0")
    e("v_add_u32 v11, s47, v1")
    e("ds_read_b128 v[32:35], v11"); e("ds_read_b128 v[36:39], v11 offset:1024"); lds("VX", 2)
    stamp(3)
    S2, S0, S1 = 28, 64, 68
    for ks in range(4):
        wait_for(("X", ks))
        e("%s v[%d:%d], %s, %s, %s" % (MF32, S2, S2 + 3, vr(TMP + 4 * ks, 4), vr(X + 4 * ks, 4), "0" if ks == 0 else vr(S2, 4)))
    for ks in range(4):
        e("%s v[%d:%d], %s, %s, %s" % (MF32, S0, S0 + 3, vr(X + 4 * ks, 4), vr(X + 4 * ks, 4), "0" if ks == 0 else vr(S0, 4)))
    wait_all()
    VM = 76
    for ks in range(4):
        e("%s v[%d:%d], %s, %s, %s" % (MF32, S1, S1 + 3, vr(KT0 + 4 * ks, 4), vr(X + 4 * ks, 4), "0" if ks == 0 else vr(S1, 4)))
        if ks < 2:
            v = ACV + 4 * ks
            e("v_add_f32 v%d, v%d, v%d" % (v, v, v + 1)); e("v_add_f32 v%d, v%d, v%d" % (v + 2, v + 2, v + 3))
        else:
            v = ACV + 4 * (ks - 2)
            e("v_cvt_pk_bf16_f32 v%d, v%d, v%d" % (VM + 2 * (ks - 2), v, v + 2)); e("v_mov_b32 v%d, 0" % (VM + 1 + 2 * (ks - 2)))
    if not par:
        e("s_cmp_eq_u32 s32, 63"); e("s_cbranch_scc1 L_rec_last")
    fload(A, 40, 7, 0); fload(A, 48, 7, 1); lds("O4", 4)
    e("v_max3_f32 v11, v%d, v%d, v%d" % (S2, S2 + 1, S2 + 2)); e("v_max3_f32 v11, v11, v%d, v%d" % (S2 + 3, S0))
    P1, P0, ONES, OA, LS = 12, 16, 20, 56, 24
    e("v_max3_f32 v11, v11, v%d, v%d" % (S0 + 1, S1)); e("v_max3_f32 v11, v11, v%d, v%d" % (S1 + 1, S1 + 2))
    e("v_max_f32 v11, v11, v%d" % (S1 + 3)); e("v_mov_b32 v66, v11")
    e("v_mov_b32 v%d, 0x3f803f80" % ONES); e("v_mov_b32 v%d, 0x3f803f80" % (ONES + 1))
    e("v_permlane16_swap_b32 v11, v66"); e("v_max_f32 v11, v11, v66"); e("v_mov_b32 v66, v11")
    e("v_mov_b64 v[%d:%d], v[%d:%d]" % (ONES + 2, ONES + 3, ONES, ONES + 1)); e("v_mov_b32 v%d, 0" % (P0 + 1))
    e("v_permlane32_swap_b32 v11, v66"); e("v_max_f32 v11, v11, v66")
    e("v_mul_f32 v11, s51, v11")
    vals = [S0, S0 + 1] + [S1 + i for i in range(4)] + [S2 + i for i in range(4)]
    for i, v in enumerate(vals):
        e("v_fma_f32 v%d, v%d, s51, -v11" % (v, v))
        if i >= 1: e("v_exp_f32 v%d, v%d" % (vals[i - 1], vals[i - 1]))
        if i == 3: e("v_cvt_pk_bf16_f32 v%d, v%d, v%d" % (P0, S0, S0 + 1))
        if i == 5:
            e("v_cvt_pk_bf16_f32 v%d, v%d, v%d" % (P1, S1, S1 + 1))
            e("%s v[%d:%d], %s, %s, 0" % (MF16, LS, LS + 3, vr(ONES, 2), vr(P0, 2)))
        if i == 6: e("%s v[%d:%d], %s, %s, 0" % (MF16, OA, OA + 3, vr(VM, 2), vr(P0, 2)))
        if i == 7:
            e("v_cvt_pk_bf16_f32 v%d, v%d, v%d" % (P1 + 1, S1 + 2, S1 + 3))
            e("%s v[%d:%d], %s, %s, 0" % (MF16, OA + 4, OA + 7, vr(VM + 2, 2), vr(P0, 2)))
    e("v_exp_f32 v%d, v%d" % (vals[9], vals[9]))
    e("v_cvt_pk_bf16_f32 v%d, v%d, v%d" % (P1 + 2, S2, S2 + 1)); e("v_cvt_pk_bf16_f32 v%d, v%d, v%d" % (P1 + 3, S2 + 2, S2 + 3))
    stamp(4)
    e("s_nop 1")
    stamp("vx", True)
    e("%s v[%d:%d], %s, %s, %s" % (MF32, LS, LS + 3, vr(ONES, 4), vr(P1, 4), vr(LS, 4)))
    for T in range(2): e("%s v[%d:%d], %s, %s, %s" % (MF32, OA + 4 * T, OA + 4 * T + 3, vr(VXR + 4 * T, 4), vr(P1, 4), vr(OA + 4 * T, 4)))
    WA = 12
    zero(12, 24)
    e("v_rcp_f32 v11, v%d" % LS)

    e("s_mov_b32 exec_lo, 0xcccccccc"); e("s_mov_b32 exec_hi, 0xcccccccc")
    for T in range(2):
        o = OA + 4 * T
        for i in range(4): e("v_mul_f32 v%d, v%d, v11" % (o + i, o + i))
        e("v_cvt_pk_bf16_f32 v%d, v%d, v%d" % (o, o, o + 1)); e("v_cvt_pk_bf16_f32 v%d, v%d, v%d" % (o + 1, o + 2, o + 3))
        e("ds_write_b64 v7, v[%d:%d] offset:%d" % (o, o + 1, 32 * T)); lds("W")
    e("s_mov_b64 exec, -1")
    fload(A, 32, 6, 0); fload(A, 64, 6, 1); lds("O3", 4)
    zero(24, 32)
    wait_for("W")
    stamp("preB2", True)
    e("s_barrier")
    stamp("B2", True)
    OF = 56
    for ks in range(2): e("ds_read_b128 v[%d:%d], v8 offset:%d" % (OF + 4 * ks, OF + 3 + 4 * ks, 128 * ks)); lds(("OF", ks))
    stamp(5)
    WF = {(4, 0): vr(40, 8), (4, 1): vr(48, 8), (3, 0): vr(32, 8), (3, 1): vr(64, 8)}
    for t in range(3):
        for ks in range(2): WF[(t, ks)] = FR(FX("O", t, ks))
    wait_for(("OF", 0))
    smf(WA + 16, OF, WF[(4, 0)])
    wait_for(("OF", 1))
    smf(WA + 16, OF + 4, WF[(4, 1)])
    tagop = (lambda d: "v_or_b32 v%d, 1, v%d" % (d, d)) if par else (lambda d: "v_and_b32 v%d, -2, v%d" % (d, d))
    def packl(t, dst):
        d = WA + 4 * t
        return ["v_add_f32 v%d, v%d, v%d" % (d, d, d + 1), "v_add_f32 v%d, v%d, v%d" % (d + 2, d + 2, d + 3),
                "v_cvt_pk_bf16_f32 v%d, v%d, v%d" % (dst, d, d + 2), tagop(dst)]
    for t in (0, 1, 2):
        for ks in range(2): smf(WA + 4 * t, OF + 4 * ks, WF[(t, ks)])
    e("s_nop 1")
    p4 = packl(4, 44)
    e(p4[0]); e(p4[1]); smf(WA + 12, OF, WF[(3, 0)]); e(p4[2]); e(p4[3]); smf(WA + 12, OF + 4, WF[(3, 1)])
    e("buffer_store_dword v44, v9, s[4:7], s44 offen%s" % sc)
    for t in range(4):
        for x in packl(t, 40 + t): e(x)
    e("buffer_store_dwordx4 v[40:43], v9, s[4:7], s43 offen%s" % sc)
    stamp(6)
    tv = A.newlabel("Ltv")
    e("s_cmp_eq_u32 s29, 0"); e("s_cbranch_scc1 %s" % tv)
    e("v_add_u32 v11, s56, v0")
    e("ds_write_b32 v11, v%d offset:%d" % (VM, QKX_L)); e("ds_write_b32 v11, v%d offset:%d" % (VM + 2, QKX_L + 256))
    A.label(tv)
    e("s_add_u32 s38, s38, 5120"); e("s_add_u32 s39, s39, 16384"); e("s_add_u32 s40, s40, 16384")
    e("ds_read_b128 v[28:31], v1 offset:%d" % SEL_L)
    zero(ACQ, ACQ + 24)
    nored = A.newlabel("Lnored"); join = A.newlabel("Ljoin")
    e("s_cmp_ge_u32 s42, 40"); e("s_cbranch_scc1 %s" % nored)
    if d_red: e("s_sleep %d" % d_red)
    op = "v_bitop3_b32 v11, v11, v%d, v%d bitop3:0x80" if par else "v_or3_b32 v11, v11, v%d, v%d"
    RA, RB = 64, 12
    def rload(b):
        for j in range(4): e("buffer_load_dwordx4 v[%d:%d], v1, s[4:7], s45 offen offset:%d sc1" % (b + 4 * j, b + 3 + 4 * j, 1024 * j))
        if instr: e("s_add_u32 s91, s91, 1")
    def rcheck(b):
        e("v_mov_b32 v11, %d" % par)
        for j in range(4):
            e("s_waitcnt vmcnt(%d)" % (7 - j))
            e("%s v[32:35], v[28:31], %s, %s" % (MF32, vr(b + 4 * j, 4), "0" if j == 0 else "v[32:35]"))
            e(op % (b + 4 * j, b + 4 * j + 1)); e(op % (b + 4 * j + 2, b + 4 * j + 3))
        e("v_and_b32 v11, 1, v11")
        e("v_cmp_ne_u32 vcc, %d, v11" % par)
    rload(RA)
    if D_GAP: e("s_sleep %d" % D_GAP)
    rload(RB)
    e("s_waitcnt lgkmcnt(0)")
    lpd = A.newlabel("Lrd"); okd = A.newlabel("Lrdok"); A.label(lpd)
    rcheck(RA); e("s_cbranch_vccz %s" % okd); rload(RA)
    rcheck(RB); e("s_cbranch_vccz %s" % okd); rload(RB)
    spin()
    e("s_branch %s" % lpd)
    A.label(re)
    gl_load(GA, 38)
    if instr: e("s_add_u32 s90, s90, 1")
    e("s_waitcnt vmcnt(2)"); gl_check(GB); e("s_cbranch_vccz %s" % okB)
    gl_load(GB, 38)
    if instr: e("s_add_u32 s90, s90, 1")
    spin()
    e("s_waitcnt vmcnt(2)")
    e("s_branch %s" % lp)
    A.label(okB); gl_write(GB, 0); e("s_branch %s" % ok)
    A.label(rer)
    gl_load(GG, 39)
    if instr: e("s_add_u32 s92, s92, 1")
    spin()
    e("s_branch %s" % lpr)
    A.label(nored)
    e("s_waitcnt lgkmcnt(0)")
    e("s_branch %s" % join)
    A.label(okd)
    e("s_nop 2")
    for i in range(4): e("v_add_f32_dpp v%d, v%d, v%d row_ror:8 row_mask:0xf bank_mask:0xf" % (36 + i, 32 + i, 32 + i))
    e("s_mov_b32 exec_lo, 0x00ff00ff"); e("s_mov_b32 exec_hi, 0")
    e("v_cvt_pk_bf16_f32 v32, v36, v37"); e("v_cvt_pk_bf16_f32 v33, v38, v39")
    e("v_min_u32 v32, -2, v32"); e("v_min_u32 v33, -2, v33")
    e("buffer_store_dwordx2 v[32:33], v10, s[4:7], s38 offen%s" % sc)
    e("buffer_store_dwordx2 v[32:33], v10, s[4:7], s40 offen sc1")
    e("s_mov_b64 exec, -1")
    A.label(join)
    stamp(7)
    e("s_barrier")
    stamp(8)
    e("s_add_u32 s32, s32, 1")

def gen(**kw):
    A = Asm()
    A.raw("; @launch kernel=rec_kernel grid=(256,1,1) block=(256,1,1) lds=163840")
    A.raw('.amdgcn_target "amdgcn-amd-amdhsa--gfx950"')
    A.raw(".text")
    kernel_header(A, "rec_kernel")
    A.e("s_cmp_ge_u32 s2, 256"); A.e("s_cbranch_scc1 L_end")
    emit_rec(A, **kw)
    A.label("L_end")
    A.e("s_endpgm")
    A.raw('.section .rodata,"a"'); A.raw(".p2align 6")
    A.raw(kernel_desc("rec_kernel", 512, 102, 256))
    return A.text()

if __name__ == "__main__":
    import sys
    for spec in sys.argv[1:]:
        d1, dr, ra, ins = map(int, spec.split(","))
        DIS = d1 >> 4; d1 &= 15
        NEARSEL = 1 if DIS & 32 else None
        KVSC = " sc1" if DIS & 8 else ""
        PUBSC = " sc1" if DIS & 16 else ""
        D_GAP = ra
        open("rec_%d_%d_%d_%d.s" % (d1 + 16 * DIS, dr, ra, ins), "w").write(gen(instr=ins, d_first=d1, d_red=dr))
```

```python
from asmlib import *
from layout import *

SMF = "v_smfmac_f32_16x16x64_bf16"
MF32 = "v_mfma_f32_16x16x32_bf16"
MF16 = "v_mfma_f32_16x16x16_bf16"

SPIN_LIMIT = 20000
R_AT = 0
KX_L, AC_L, QKX_L, SEL_L, MISC_L, WV_L = 0, 16384, 26624, 30720, 31744, 32768
OX_L = AC_L + 5120
VX_L = 8192
NSLOT = 8
WB = 80
def FR(f): return R(WB + 8 * f, 8)
LSLOT = {("K", 0): 0, ("K", 2): 1, ("K", 4): 2, ("V", 1): 3, ("V", 3): 4, ("Q", 5): 5, ("O", 3): 6, ("O", 4): 7}
_res = [(m, j) for m in "QKV" for j in range(10) if (m, j) not in LSLOT] + [("O", t) for t in range(3)]
RIDX = {k: i for i, k in enumerate(_res)}
assert len(_res) == 27
def FX(m, j, T): return 2 * RIDX[(m, j)] + T
def AA(j): return 12 + 4 * j
GG, ACQ, ACK, ACV, TMP = 32, 40, 48, 56, 64
D_GAP = 2
DIS = 0
PUBSC = ""
KVSC = ""
TRACE_STEP = 40
MEGA = False
NEARSEL = None
KVPOS = 5
GREARLY = 0
WARM = 0

def emit_rec(A, instr=False, d_first=4, d_red=4, steps=64, exit_label="L_end", worker_label=None):
    e = A.e
    e("s_load_dwordx4 s[52:55], s[0:1], 16")
    e("s_load_dwordx4 s[56:59], s[0:1], 32")
    e("s_load_dwordx4 s[60:63], s[0:1], 96")
    e("v_lshrrev_b32 v11, 6, v0"); e("v_and_b32 v0, 63, v0"); e("v_readfirstlane_b32 s28, v11")
    e("s_waitcnt lgkmcnt(0)")
    for (d, s, n) in ((4, 62, WS_BYTES), (8, 52, 5242880), (12, 54, 5242880), (16, 56, 5242880), (20, 58, 5242880), (24, 60, 256)):
        e("s_mov_b32 s%d, s%d" % (d, s)); e("s_mov_b32 s%d, s%d" % (d + 1, s + 1)); e("s_mov_b32 s%d, 0x%x" % (d + 2, n)); e("s_mov_b32 s%d, 0x20000" % (d + 3))
    tick(A, 0, 20, 28)
    e("s_mov_b32 s74, 0")
    e("s_getreg_b32 s52, hwreg(HW_REG_XCC_ID)"); e("s_and_b32 s52, s52, 7")
    e("s_lshl_b32 s53, s52, 4")
    e("v_mov_b32 v1, 1"); e("v_mov_b32 v2, s53"); e("v_mov_b32 v3, %d" % MISC_L); e("v_lshlrev_b32 v5, 4, v0")
    e("s_cmp_lg_u32 s28, 0"); e("s_cbranch_scc1 L_el_done")
    e("s_mov_b64 exec, 1")
    e("buffer_atomic_add v1, v2, s[24:27], 0 offen offset:%d sc0 sc1" % DBG_XC); e("s_waitcnt vmcnt(0)")
    e("v_readfirstlane_b32 s54, v1"); e("s_nop 3")
    e("s_lshl_b32 s55, s52, 5"); e("s_add_u32 s55, s55, s54")
    e("s_cmp_lt_u32 s54, 32"); e("s_cbranch_scc1 L_el_dec")
    e("v_mov_b32 v1, 1"); e("v_mov_b32 v2, 0")
    e("buffer_atomic_add v1, v2, s[24:27], 0 offen offset:%d sc0 sc1" % DBG_OVF); e("s_waitcnt vmcnt(0)")
    e("v_readfirstlane_b32 s54, v1")
    e("s_mov_b64 exec, 0xff")
    A.label("L_el_poll")
    e("buffer_load_dword v4, v5, s[24:27], 0 offen offset:%d sc1" % DBG_XC); e("s_waitcnt vmcnt(0)")
    e("s_mov_b32 s56, 0")
    for i in range(8):
        e("v_readlane_b32 s%d, v4, %d" % (64 + i, i))
    e("s_nop 3")
    for i in range(8): e("s_add_u32 s56, s56, s%d" % (64 + i))
    e("s_cmp_ge_u32 s56, 256"); e("s_cbranch_scc1 L_el_hole")
    e("s_add_u32 s74, s74, 1"); e("s_cmp_gt_u32 s74, %d" % SPIN_LIMIT); e("s_cbranch_scc1 L_abort")
    e("s_sleep 4"); e("s_branch L_el_poll")
    A.label("L_el_hole")
    for i in range(8):
        e("s_min_u32 s56, s%d, 32" % (64 + i)); e("s_sub_u32 s57, 32, s56")
        e("s_add_u32 s55, s56, s54"); e("s_add_u32 s55, s55, %d" % (32 * i))
        e("s_cmp_lt_u32 s54, s57"); e("s_cbranch_scc1 L_el_dec")
        e("s_sub_u32 s54, s54, s57")
    e("s_branch L_abort")
    A.label("L_el_dec")
    e("s_mov_b64 exec, 1")
    e("v_mov_b32 v1, s55")
    e("ds_write_b32 v3, v1"); e("s_waitcnt lgkmcnt(0)")
    e("s_mov_b64 exec, -1")
    A.label("L_el_done")
    e("s_barrier")
    e("ds_read_b32 v4, v3"); e("s_waitcnt lgkmcnt(0)")
    e("v_readfirstlane_b32 s55, v4"); e("s_nop 3")
    e("s_barrier")
    e("s_cmp_ge_u32 s55, 64"); e("s_cbranch_scc1 %s" % (worker_label or exit_label))
    e("s_lshr_b32 s29, s55, 5"); e("s_and_b32 s30, s55, 31")
    tick(A, 1, 20, 28)
    e("s_add_u32 s41, s4, 0x%x" % (MR2_OFF + 0x1fffff)); e("s_and_b32 s41, s41, 0xffe00000"); e("s_sub_u32 s41, s41, s4")
    e("s_cmp_lg_u32 s55, 63"); e("s_cbranch_scc1 L_pr_done")
    e("s_cmp_lg_u32 s28, 0"); e("s_cbranch_scc1 L_pr_bar")
    e("s_mov_b64 exec, 1"); e("v_mov_b32 v12, 0"); e("v_mov_b32 v13, -1")
    e("s_add_u32 s52, s41, 0x%x" % (63 * 16384 + 6144)); e("s_add_u32 s53, s52, 8192")
    e("s_mov_b32 s56, -1"); e("s_mov_b32 s57, -1")
    for rep in range(4):
        for c in range(2):
            e("s_memtime s[64:65]"); e("s_waitcnt lgkmcnt(0)")
            e("buffer_store_dword v13, v12, s[4:7], s%d offen sc1" % (52 + c)); e("s_waitcnt vmcnt(0)")
            e("s_memtime s[66:67]"); e("s_waitcnt lgkmcnt(0)")
            e("s_sub_u32 s68, s66, s64"); e("s_min_u32 s%d, s%d, s68" % (56 + c, 56 + c))
    e("s_cmp_lt_u32 s57, s56"); e("s_cselect_b32 s52, 2, 1")
    e("v_mov_b32 v13, s52")
    e("buffer_store_dword v13, v12, s[24:27], 0 offen offset:%d sc1" % DBG_NEAR)
    e("s_mov_b64 exec, -1")
    A.label("L_pr_bar")
    e("s_barrier")
    A.label("L_pr_done")
    if MEGA: team_init(A)
    tick(A, 2, 20, 28)
    e("v_lshlrev_b32 v1, 4, v0")
    e("v_and_b32 v11, 1, v0"); e("v_cmp_eq_u32 vcc, 1, v11"); e("v_mov_b32 v2, 0x4444"); e("v_mov_b32 v11, 0xeeee"); e("v_cndmask_b32 v2, v2, v11, vcc")
    C, G, RR, CP, T0, T1 = 64, 65, 66, 67, 68, 69
    e("v_and_b32 v%d, 15, v0" % C); e("v_lshrrev_b32 v%d, 4, v0" % G)
    e("v_bfe_u32 v%d, v0, 2, 2" % RR); e("v_and_b32 v%d, 3, v0" % CP)
    e("v_and_b32 v%d, 1, v%d" % (T0, RR)); e("v_lshlrev_b32 v3, 4, v%d" % T0)
    e("v_lshrrev_b32 v%d, 1, v%d" % (T1, G)); e("v_lshl_add_u32 v3, v%d, 2, v3" % T1)
    e("v_lshrrev_b32 v%d, 1, v%d" % (T1, RR)); e("v_lshl_add_u32 v3, v%d, 1, v3" % T1)
    e("v_and_b32 v%d, 1, v%d" % (T1, G)); e("v_add_u32 v3, v3, v%d" % T1)
    e("v_lshlrev_b32 v3, 6, v3"); e("v_lshl_add_u32 v3, v%d, 3, v3" % CP); e("v_lshl_add_u32 v3, v%d, 5, v3" % T0)
    e("s_mul_i32 s52, s28, %d" % (NSLOT * 4096)); e("s_add_u32 s52, s52, %d" % WV_L)
    e("v_add_u32 v3, s52, v3"); e("v_xor_b32 v4, 32, v3")
    e("s_lshl_b32 s53, s28, 10"); e("s_add_u32 s53, s53, %d" % QKX_L)
    e("v_lshlrev_b32 v5, 5, v%d" % C); e("v_lshl_add_u32 v5, v%d, 3, v5" % G); e("v_add_u32 v5, s53, v5")
    e("v_lshlrev_b32 v6, 3, v0")
    e("v_lshrrev_b32 v%d, 2, v%d" % (T0, C)); e("v_and_b32 v%d, 1, v%d" % (T1, C)); e("v_lshl_add_u32 v%d, v%d, 1, v%d" % (T0, T0, T1))
    e("v_mul_u32_u24 v7, 320, v%d" % T0); e("v_lshl_add_u32 v7, v%d, 3, v7" % G)
    e("s_lshl_b32 s53, s28, 6"); e("s_add_u32 s53, s53, %d" % OX_L); e("v_add_u32 v7, s53, v7")
    e("v_lshrrev_b32 v%d, 1, v%d" % (T0, C)); e("v_mul_u32_u24 v8, 320, v%d" % T0); e("v_lshl_add_u32 v8, v%d, 5, v8" % G)
    e("v_lshl_add_u32 v8, v%d, 4, v8" % T1); e("v_add_u32 v8, %d, v8" % OX_L)
    e("v_lshlrev_b32 v9, 13, v%d" % G); e("v_lshrrev_b32 v%d, 3, v%d" % (T0, C)); e("v_lshl_add_u32 v9, v%d, 12, v9" % T0)
    e("v_and_b32 v%d, 7, v%d" % (T0, C)); e("v_lshl_add_u32 v9, v%d, 4, v9" % T0)
    e("s_lshl_b32 s42, s28, 5"); e("s_add_u32 s42, s42, s30")
    e("s_and_b32 s53, s42, 1"); e("s_lshl_b32 s53, s53, 3")
    e("v_add_u32 v%d, s53, v%d" % (T0, T0))
    e("v_lshrrev_b32 v10, 2, v%d" % T0); e("v_lshlrev_b32 v10, 8, v10")
    e("v_bfe_u32 v%d, v%d, 1, 1" % (T1, T0)); e("v_lshl_add_u32 v10, v%d, 4, v10" % T1)
    e("v_and_b32 v%d, 1, v%d" % (T1, T0)); e("v_lshl_add_u32 v10, v%d, 3, v10" % T1)
    e("v_and_b32 v%d, 1, v%d" % (T1, G)); e("v_lshl_add_u32 v10, v%d, 5, v10" % T1)
    e("s_bfe_u32 s53, s42, 0x20001"); e("s_lshl_b32 s53, s53, 6")
    e("s_lshr_b32 s54, s42, 3"); e("s_lshl_b32 s54, s54, 10"); e("s_add_u32 s53, s53, s54")
    e("v_add_u32 v10, s53, v10")
    e("s_lshl_b32 s53, s29, 18"); e("s_add_u32 s53, s53, 0x%x" % PB_OFF)
    e("s_lshl_b32 s54, s30, 7"); e("s_add_u32 s54, s54, s53")
    e("s_lshl_b32 s43, s28, 15"); e("s_add_u32 s43, s43, s54")
    e("s_lshl_b32 s44, s28, 2"); e("s_add_u32 s44, s44, s54"); e("s_add_u32 s44, s44, 0x20000")
    e("s_lshl_b32 s45, s42, 12"); e("s_add_u32 s45, s45, s53")
    e("s_lshl_b32 s53, s29, 19")
    e("s_add_u32 s38, s53, 0x%x" % ML_OFF)
    e("s_lshl_b32 s53, s29, 20")
    e("s_add_u32 s40, s53, s41")
    e("s_xor_b32 s53, s53, 0x100000"); e("s_add_u32 s39, s53, s41")
    e("s_lshl_b32 s53, s30, 20"); e("s_lshl_b32 s54, s28, 11"); e("s_add_u32 s53, s53, s54")
    e("s_add_u32 s46, s53, 0x%x" % KV_OFF); e("s_add_u32 s47, s46, 8192")
    e("s_lshr_b32 s54, s53, 1"); e("s_add_u32 s48, s54, 0x%x" % XV_OFF)
    e("s_lshl_b32 s53, s30, 19"); e("s_lshl_b32 s54, s28, 9"); e("s_add_u32 s49, s53, s54"); e("s_add_u32 s49, s49, 0x%x" % (XV_OFF + 4096))
    e("s_lshl_b32 s50, s28, 11")
    GE, GO, GW4, GW1 = 70, 71, 72, 73
    e("v_lshrrev_b32 v%d, 2, v0" % T0); e("v_lshlrev_b32 v%d, 13, v%d" % (GE, T0)); e("v_lshl_add_u32 v%d, v%d, 4, v%d" % (GE, CP, GE))
    e("s_lshl_b32 s53, s30, 8"); e("s_lshl_b32 s54, s28, 6"); e("s_add_u32 s53, s53, s54")
    e("v_add_u32 v%d, s53, v%d" % (GE, GE)); e("v_xor_b32 v%d, 32, v%d" % (GO, GE))
    e("v_lshrrev_b32 v%d, 1, v0" % T0); e("v_mul_u32_u24 v%d, 1280, v%d" % (GW1, T0)); e("v_and_b32 v%d, 1, v0" % T0); e("v_lshl_add_u32 v%d, v%d, 4, v%d" % (GW1, T0, GW1))
    e("s_mul_i32 s53, s30, 163840"); e("s_mul_i32 s54, s29, 640"); e("s_add_u32 s53, s53, s54")
    e("s_lshl_b32 s54, s28, 7"); e("s_add_u32 s54, s54, s53"); e("v_add_u32 v%d, s54, v%d" % (GW4, GW1))
    e("s_lshl_b32 s54, s28, 5"); e("s_add_u32 s54, s54, s53"); e("s_add_u32 s54, s54, 512"); e("v_add_u32 v%d, s54, v%d" % (GW1, GW1))
    e("v_lshrrev_b32 v%d, 1, v%d" % (T0, G)); e("v_lshlrev_b32 v%d, 4, v%d" % (T0, T0))
    e("v_lshrrev_b32 v%d, 1, v%d" % (T1, RR)); e("v_lshl_add_u32 v%d, v%d, 3, v%d" % (T0, T1, T0))
    e("v_and_b32 v%d, 1, v%d" % (T1, G)); e("v_lshl_add_u32 v%d, v%d, 2, v%d" % (T0, T1, T0))
    e("v_and_b32 v%d, 1, v%d" % (T1, RR)); e("v_add_u32 v%d, v%d, v%d" % (T0, T0, T1))
    e("v_lshlrev_b32 v0, 5, v%d" % T0); e("v_lshl_add_u32 v0, v%d, 3, v0" % CP); e("v_add_u32 v0, s52, v0")
    e("s_mul_i32 s53, s29, 5"); e("s_sub_u32 s54, 5, s53")
    for j in range(10):
        e("s_add_u32 s%d, s%d, %d" % (64 + j, 53 if j < 5 else 54, j % 5)); e("s_lshl_b32 s%d, s%d, 19" % (64 + j, 64 + j))
    e("v_mov_b32 v21, 0x3f80"); e("v_mov_b32 v22, 0x3f800000")
    e("v_cmp_gt_u32 vcc, 4, v%d" % C); e("s_nop 1"); e("v_cndmask_b32 v21, v22, v21, vcc")
    e("v_cmp_gt_u32 vcc, 8, v%d" % C); e("s_nop 1"); e("v_cndmask_b32 v21, 0, v21, vcc")
    for d in range(4):
        e("v_cmp_eq_u32 vcc, %d, v%d" % (d, CP)); e("s_nop 1"); e("v_cndmask_b32 v%d, 0, v21, vcc" % (16 + d))
    e("ds_write_b128 v1, v[16:19] offset:%d" % SEL_L)
    e("s_lshl_b32 s33, s28, 10"); e("s_lshl_b32 s34, s28, 8"); e("s_add_u32 s34, s34, 4096")
    items = list(_res)
    final = sorted(LSLOT, key=lambda k: LSLOT[k])
    def issue(it, slot):
        k, j = it
        for i in range(4):
            e("s_add_u32 m0, s52, %d" % (slot * 4096 + i * 1024))
            if k == "O":
                e("s_mov_b32 s53, %d" % (i * 32 * 1280 + (32 * j if j < 4 else 0)))
                e("buffer_load_dwordx4 v%d, s[20:23], s53 offen lds" % (GW4 if j < 4 else GW1))
            else:
                e("s_add_u32 s53, s%d, %d" % (64 + j, i * 16 * 8192))
                e("buffer_load_dwordx4 v%d, %s, s53 offen lds" % (GO if i & 1 else GE, {"Q": "s[8:11]", "K": "s[12:15]", "V": "s[16:19]"}[k]))
    def consume(it, slot):
        k, j = it
        for T in range(2):
            f = FX(k, j, T)
            for a in range(4):
                if k == "O": e("ds_read_b64_tr_b16 %s, v0 offset:%d" % (R(WB + 8 * f + 2 * a, 2), slot * 4096 + (64 * T + 32 * (a >> 1) + 2 * (a & 1)) * 32))
                else: e("ds_read_b64_tr_b16 %s, v%d offset:%d" % (R(WB + 8 * f + 2 * a, 2), 3 + T, slot * 4096 + 2048 * (a & 1) + 512 * (a >> 1)))
    inflight = []
    for n in range(NSLOT):
        issue(items[n], n); inflight.append((items[n], n))
    nxt = NSLOT
    done = set()
    while inflight and inflight[0][0] != "F":
        it, sl = inflight.pop(0)
        e("s_waitcnt vmcnt(%d)" % (4 * len(inflight)))
        consume(it, sl)
        e("s_waitcnt lgkmcnt(0)")
        if nxt < len(items):
            issue(items[nxt], sl); inflight.append((items[nxt], sl)); nxt += 1
        else:
            issue(final[sl], sl); inflight.append(("F", sl)); done.add(sl)
    assert len(done) == NSLOT
    e("s_waitcnt vmcnt(0)")
    e("v_add_u32 v11, s52, v1")
    for sl in range(NSLOT):
        k, j = final[sl]
        for T in range(2):
            for a in range(4):
                d = 16 + 8 * T + 2 * a
                if k == "O": e("ds_read_b64_tr_b16 v[%d:%d], v0 offset:%d" % (d, d + 1, sl * 4096 + (64 * T + 32 * (a >> 1) + 2 * (a & 1)) * 32))
                else: e("ds_read_b64_tr_b16 v[%d:%d], v%d offset:%d" % (d, d + 1, 3 + T, sl * 4096 + 2048 * (a & 1) + 512 * (a >> 1)))
        e("s_waitcnt lgkmcnt(0)")
        for q in range(4): e("ds_write_b128 v11, v[%d:%d] offset:%d" % (16 + 4 * q, 19 + 4 * q, sl * 4096 + 1024 * q))
    e("v_mov_b32 v3, v11")
    e("v_lshrrev_b32 v0, 2, v1")
    e("v_lshlrev_b32 v4, 2, v1")
    e("s_lshl_b32 s35, s28, 8"); e("s_add_u32 s35, s35, %d" % MISC_L)
    e("s_and_b32 s36, s42, 63"); e("s_lshl_b32 s36, s36, 7"); e("s_add_u32 s36, s36, 10240")
    e("s_lshl_b32 s50, s28, 12"); e("s_lshl_b32 s46, s30, 20"); e("s_add_u32 s46, s46, s50"); e("s_add_u32 s46, s46, 0x%x" % KV_OFF)
    e("s_lshl_b32 s56, s28, 10"); e("s_lshl_b32 s57, s28, 9")
    e("s_add_u32 s54, s57, 4096"); e("s_cmp_eq_u32 s29, 0"); e("s_cselect_b32 s54, s56, s54")
    e("s_lshl_b32 s48, s30, 19"); e("s_add_u32 s48, s48, s54"); e("s_add_u32 s48, s48, 0x%x" % (XV_OFF - 0x2000))
    e("s_lshl_b32 s47, s28, 11"); e("s_add_u32 s47, s47, %d" % VX_L)
    e("s_and_b32 s60, s28, 1"); e("s_lshl_b32 s60, s60, 13"); e("s_sub_u32 s61, s60, s50")
    e("s_lshl_b32 s63, s29, 7"); e("s_add_u32 s63, s63, s42"); e("s_xor_b32 s63, s63, %d" % (96 + 20))
    for r in range(ACQ, ACQ + 24): e("v_mov_b32 v%d, 0" % r)
    e("s_mov_b32 s32, 0")
    e("s_mov_b32 s51, 0x3e0293ee")
    tick(A, 3, 20, 28)
    A.label("L_md_poll")
    e("buffer_load_dword v11, v0, s[24:27], 0 offen sc1"); e("s_waitcnt vmcnt(0)")
    for i in range(8): e("v_readlane_b32 s%d, v11, %d" % (64 + i, DBG_XC // 4 + 4 * i))
    e("v_readlane_b32 s72, v11, %d" % (DBG_INIT // 4)); e("v_readlane_b32 s73, v11, %d" % (DBG_NEAR // 4))
    e("v_and_b32 v11, 0x3ff, v11"); e("v_cmp_le_u32 vcc, 128, v11"); e("s_nop 3")
    e("s_lshr_b32 s49, vcc_lo, %d" % (DBG_G1 // 4)); e("s_ff0_i32_b32 s49, s49")
    e("s_cmp_eq_u32 s49, 16"); e("s_cmov_b32 s49, 17")
    e("s_cmp_eq_u32 s73, 0"); e("s_cbranch_scc1 L_md_no")
    if MEGA:
        e("s_cmp_lt_u32 s72, 64"); e("s_cbranch_scc1 L_md_no")
        e("s_cmp_eq_u32 s49, 0"); e("s_cbranch_scc1 L_md_no")
    e("s_mov_b32 s31, 0")
    e("s_min_u32 s53, s64, s65"); e("s_cmp_ge_u32 s53, 32"); e("s_cbranch_scc1 L_md_ok")
    e("s_mov_b32 s31, 1"); e("s_mov_b32 s53, 0")
    for i in range(8): e("s_add_u32 s53, s53, s%d" % (64 + i))
    e("s_cmp_ge_u32 s53, 256"); e("s_cbranch_scc1 L_md_ok")
    A.label("L_md_no")
    e("s_add_u32 s74, s74, 1"); e("s_cmp_gt_u32 s74, %d" % SPIN_LIMIT); e("s_cbranch_scc1 L_abort")
    e("s_sleep 4"); e("s_branch L_md_poll")
    A.label("L_md_ok")
    if NEARSEL is None:
        e("s_sub_u32 s73, s73, 1"); e("s_lshl_b32 s73, s73, 13")
    else:
        e("s_sub_u32 s73, s73, 1"); e("s_xor_b32 s73, s73, 1"); e("s_lshl_b32 s73, s73, 13")
    e("s_add_u32 s39, s39, s73"); e("s_add_u32 s40, s40, s73")
    e("s_waitcnt vmcnt(0)")
    e("s_barrier")
    if instr in (1, 2):
        for r in range(80, 96): e("s_mov_b32 s%d, 0" % r)
        e("s_memtime s[76:77]"); e("s_waitcnt lgkmcnt(0)"); e("s_mov_b32 s78, s76"); e("s_mov_b32 s95, s76")
    TP = [64, 66, 68, 70, 72] + list(range(76, 102, 2))
    tstate = {"n": 0}
    def stamp(i, fine=False):
        if not instr: return
        if instr == 5:
            if i == 6:
                l = A.newlabel("Lst")
                e("s_cmp_lg_u32 s28, 3"); e("s_cbranch_scc1 %s" % l)
                e("s_memtime s[76:77]"); e("s_waitcnt lgkmcnt(0)")
                e("s_lshl_b32 s53, s29, 5"); e("s_add_u32 s53, s53, s30"); e("s_lshl_b32 s53, s53, 6"); e("s_add_u32 s53, s53, s32"); e("s_lshl_b32 s53, s53, 3"); e("s_add_u32 s53, s53, 0x%x" % ST_OFF)
                e("s_mov_b64 exec, 1"); e("v_mov_b32 v12, s76"); e("v_mov_b32 v13, s74"); e("buffer_store_dwordx2 v[12:13], v0, s[4:7], s53 offen"); e("s_mov_b64 exec, -1")
                A.label(l)
            return
        if instr == 4:
            if i == 8:
                l = A.newlabel("Lst")
                e("s_cmp_lg_u32 s32, 2"); e("s_cbranch_scc1 %s" % l)
                e("s_memtime s[76:77]"); e("s_memrealtime s[78:79]")
                A.label(l)
                l = A.newlabel("Lst")
                e("s_cmp_lg_u32 s32, 62"); e("s_cbranch_scc1 %s" % l)
                e("s_memtime s[80:81]"); e("s_memrealtime s[82:83]"); e("s_waitcnt lgkmcnt(0)")
                e("s_sub_u32 s80, s80, s76"); e("s_sub_u32 s82, s82, s78")
                e("s_lshl_b32 s53, s29, 5"); e("s_add_u32 s53, s53, s30"); e("s_lshl_b32 s53, s53, 2"); e("s_add_u32 s53, s53, s28"); e("s_lshl_b32 s53, s53, 7"); e("s_add_u32 s53, s53, 0x%x" % ST_OFF)
                e("v_mov_b32 v37, 0"); e("v_mov_b32 v11, s80"); e("buffer_store_dword v11, v37, s[4:7], s53 offen")
                e("v_mov_b32 v11, s82"); e("buffer_store_dword v11, v37, s[4:7], s53 offen offset:4")
                A.label(l)
            return
        if instr == 3:
            n = tstate["n"]
            e("s_memtime s[%d:%d]" % (TP[n], TP[n] + 1)); A.c("stamp %d (%s)" % (n, i))
            tstate["n"] = n + 1
            if i == 8:
                l = A.newlabel("Lst")
                e("s_cmp_lg_u32 s32, %d" % TRACE_STEP); e("s_cbranch_scc1 %s" % l)
                e("s_waitcnt lgkmcnt(0)")
                e("s_lshl_b32 s53, s29, 5"); e("s_add_u32 s53, s53, s30"); e("s_lshl_b32 s53, s53, 2"); e("s_add_u32 s53, s53, s28"); e("s_lshl_b32 s53, s53, 7"); e("s_add_u32 s53, s53, 0x%x" % ST_OFF)
                e("v_mov_b32 v37, 0")
                for k in range(tstate["n"]):
                    e("v_mov_b32 v11, s%d" % TP[k]); e("buffer_store_dword v11, v37, s[4:7], s53 offen offset:%d" % (4 * k))
                A.label(l)
                tstate["n"] = 0
            return
        if fine: return
        if instr == 2:
            l = A.newlabel("Lst")
            e("s_cmp_lg_u32 s32, %d" % TRACE_STEP); e("s_cbranch_scc1 %s" % l)
            e("s_memrealtime s[76:77]"); e("s_waitcnt lgkmcnt(0)"); e("s_mov_b32 s%d, s76" % (80 + i))
            A.label(l)
            return
        e("s_memtime s[76:77]"); e("s_waitcnt lgkmcnt(0)")
        e("s_sub_u32 s79, s76, s78"); e("s_add_u32 s%d, s%d, s79" % (80 + i, 80 + i)); e("s_mov_b32 s78, s76")
        if i == 8:
            l = A.newlabel("Lst")
            e("s_cmp_lg_u32 s32, 3"); e("s_cbranch_scc1 %s" % l)
            for r in range(80, 95): e("s_mov_b32 s%d, 0" % r)
            e("s_mov_b32 s95, s76")
            A.label(l)
    if KVPOS in (1, 2, 4, 5):
        e("s_mov_b32 m0, s50"); e("s_nop 0")
        for i in range(4): e("buffer_load_dwordx4 v1, s[4:7], s46 offen offset:%d%s lds" % (1024 * i, KVSC))
    tick(A, 4, 20, 28)
    e("s_cmp_lg_u32 s31, 0"); e("s_cbranch_scc1 L_loop_slow")
    for mode in ("fast", "slow"):
        sc = "" if mode == "fast" else " sc1"
        A.label("L_loop_" + mode)
        for par in (1, 0):
            emit_step(A, par, sc, stamp, d_first, d_red, instr in (1, 2))
        if TICK["on"]:
            e("s_lshr_b32 s99, s32, 1"); tick(A, 5, 12, 28, 99)
        e("s_cmp_lt_u32 s32, %d" % steps); e("s_cbranch_scc1 L_loop_" + mode)
        e("s_branch L_rec_done")
    A.label("L_rec_last")
    e("s_barrier")
    e("s_cmp_eq_u32 s29, 0"); e("s_cbranch_scc1 L_rec_l2")
    e("v_add_u32 v11, s56, v0")
    e("ds_write_b32 v11, v76 offset:%d" % QKX_L); e("ds_write_b32 v11, v78 offset:%d" % (QKX_L + 256))
    A.label("L_rec_l2")
    e("s_mov_b32 s32, 64")
    A.label("L_rec_done")
    publish(A)
    if MEGA:
        e("s_waitcnt vmcnt(0)"); e("s_barrier")
        signal_fin(A)
    if instr in (1, 2):
        e("s_memtime s[76:77]"); e("s_waitcnt lgkmcnt(0)"); e("s_sub_u32 s95, s76, s95")
        e("s_lshl_b32 s53, s29, 5"); e("s_add_u32 s53, s53, s30"); e("s_lshl_b32 s53, s53, 2"); e("s_add_u32 s53, s53, s28"); e("s_lshl_b32 s53, s53, 6"); e("s_add_u32 s53, s53, 0x%x" % ST_OFF)
        e("v_mov_b32 v0, 0")
        for i in range(16):
            e("v_mov_b32 v11, s%d" % (80 + i)); e("buffer_store_dword v11, v0, s[4:7], s53 offen offset:%d" % (4 * i))

    e("s_branch %s" % exit_label)
    A.label("L_abort")
    e("s_mov_b64 exec, 1")
    e("v_mov_b32 v0, %d" % DBG_ABORT); e("v_mov_b32 v11, 1")
    e("buffer_store_dword v11, v0, s[24:27], 0 offen")

def fload(A, dst, slot, T):
    for q in range(2):
        A.e("ds_read_b128 v[%d:%d], v3 offset:%d" % (dst + 4 * q, dst + 4 * q + 3, slot * 4096 + 2048 * T + 1024 * q))

def team_init(A):
    e = A.e
    e("s_load_dwordx2 s[52:53], s[0:1], 8")
    e("s_lshl_b32 s54, s28, 6"); e("v_add_u32 v12, s54, v0")
    e("v_lshlrev_b32 v13, 4, v12")
    for i in range(12): e("v_mov_b32 v%d, -1" % (16 + i))
    e("s_waitcnt lgkmcnt(0)")
    e("s_mov_b32 s56, s52"); e("s_mov_b32 s57, s53"); e("s_mov_b32 s58, 10240"); e("s_mov_b32 s59, 0x20000")
    e("s_cmp_lg_u32 s30, 0"); e("s_cbranch_scc1 L_ti_st")
    e("s_mul_i32 s54, s29, 640")
    for half in range(2):
        d = 16 + 4 * half
        e("v_bfe_u32 v14, v12, 1, 3"); e("v_mul_u32_u24 v14, 1280, v14")
        e("v_bfe_u32 v15, v12, 4, 2"); e("v_lshl_add_u32 v14, v15, 3, v14")
        e("v_and_b32 v15, 1, v12"); e("v_lshl_add_u32 v14, v15, 2, v14")
        if half == 0:
            e("v_lshrrev_b32 v15, 6, v12"); e("v_lshl_add_u32 v14, v15, 7, v14")
        else:
            e("v_add_u32 v14, 512, v14")
            e("s_cmp_lg_u32 s28, 0"); e("s_cbranch_scc1 L_ti_st")
        for t in range(4): e("buffer_load_dword v%d, v14, s[56:59], s54 offen offset:%d" % (28 + t, 32 * t))
        e("s_mov_b32 s52, 0x05040100"); e("s_mov_b32 s53, 0x07060302")
        e("s_waitcnt vmcnt(0)")
        e("v_perm_b32 v%d, v29, v28, s52" % d); e("v_perm_b32 v%d, v31, v30, s52" % (d + 1))
        e("v_perm_b32 v%d, v29, v28, s53" % (d + 2)); e("v_perm_b32 v%d, v31, v30, s53" % (d + 3))
        for i in range(4): e("v_min_u32 v%d, -2, v%d" % (d + i, d + i))
    A.label("L_ti_st")
    e("s_lshl_b32 s52, s29, 19"); e("s_mul_i32 s53, s30, 12288"); e("s_add_u32 s52, s52, s53")
    for i in range(3):
        e("s_add_u32 s53, s52, 0x%x" % (ML_OFF + 4096 * i))
        e("buffer_store_dwordx4 v[%d:%d], v13, s[4:7], s53 offen sc1" % (16 + 4 * i, 19 + 4 * i))
    e("s_lshl_b32 s52, s29, 20"); e("s_lshl_b32 s53, s30, 15"); e("s_add_u32 s52, s52, s53"); e("s_add_u32 s52, s52, s41")
    for i in range(8):
        d = 16 + 4 * (i & 1) if i < 4 else 24
        e("s_add_u32 s53, s52, %d" % (4096 * i))
        e("buffer_store_dwordx4 v[%d:%d], v13, s[4:7], s53 offen sc1" % (d, d + 3))
    for i in range(4): e("v_mov_b32 v%d, 0" % (32 + i))
    e("s_lshl_b32 s52, s29, 18"); e("s_lshl_b32 s53, s30, 13"); e("s_add_u32 s52, s52, s53")
    for i in range(2):
        e("s_add_u32 s53, s52, 0x%x" % (PB_OFF + 4096 * i))
        e("buffer_store_dwordx4 v[32:35], v13, s[4:7], s53 offen sc1")
    e("s_lshl_b32 s52, s29, 5"); e("s_add_u32 s52, s52, s30"); e("s_lshl_b32 s52, s52, 8"); e("s_add_u32 s52, s52, 0x%x" % CT_OFF)
    e("v_lshlrev_b32 v14, 2, v0")
    e("buffer_store_dword v32, v14, s[4:7], s52 offen sc1")
    e("s_waitcnt vmcnt(0)"); e("s_barrier")
    e("s_cmp_lg_u32 s28, 0"); e("s_cbranch_scc1 L_ti_done")
    e("s_mov_b64 exec, 1"); e("v_mov_b32 v14, %d" % DBG_INIT); e("v_mov_b32 v15, 1")
    e("buffer_atomic_add v15, v14, s[24:27], 0 offen sc1")
    e("s_mov_b64 exec, -1")
    A.label("L_ti_done")

def kv_poll(A, need_sreg):
    e = A.e
    lp = A.newlabel("Lkv"); ok = A.newlabel("Lkvok")
    e("s_cmp_lt_u32 s%d, s49" % need_sreg); e("s_cbranch_scc1 %s" % ok)
    A.label(lp)
    e("buffer_load_dword v11, v0, s[24:27], 0 offen offset:%d sc1" % DBG_G1); e("s_waitcnt vmcnt(0)")
    e("v_and_b32 v11, 0x3ff, v11"); e("v_cmp_le_u32 vcc, 128, v11"); e("s_nop 3")
    e("s_and_b32 s49, vcc_lo, 0xffff"); e("s_ff0_i32_b32 s49, s49")
    e("s_cmp_eq_u32 s49, 16"); e("s_cmov_b32 s49, 17")
    e("s_cmp_lt_u32 s%d, s49" % need_sreg); e("s_cbranch_scc1 %s" % ok)
    e("s_add_u32 s74, s74, 1"); e("s_cmp_gt_u32 s74, %d" % SPIN_LIMIT); e("s_cbranch_scc1 L_abort")
    e("s_sleep 8"); e("s_branch %s" % lp)
    A.label(ok)

def signal_prog(A):
    e = A.e
    l = A.newlabel("Lsg")
    e("s_cmp_lg_u32 s63, 0"); e("s_cbranch_scc1 %s" % l)
    e("s_max_u32 s53, s32, 2"); e("s_sub_u32 s53, s53, 2")
    e("s_mov_b64 exec, 1"); e("v_mov_b32 v11, s53"); e("s_mov_b32 s53, 0x%x" % CT_OFF)
    e("buffer_store_dword v11, v0, s[4:7], s53 offen sc1")
    e("s_mov_b64 exec, -1")
    A.label(l)

def signal_fin(A):
    e = A.e
    l = A.newlabel("Lsg")
    e("s_cmp_lg_u32 s28, 0"); e("s_cbranch_scc1 %s" % l)
    e("s_mov_b64 exec, 1"); e("v_mov_b32 v11, 1"); e("s_mov_b32 s53, 0x%x" % CT_OFF)
    e("buffer_atomic_add v11, v0, s[4:7], s53 offen offset:4 sc1")
    e("s_mov_b64 exec, -1")
    A.label(l)

def publish(A, lds=None, wait_for=None, mm=None):
    e = A.e
    e("v_add_u32 v36, s56, v6")
    e("ds_read_b64_tr_b16 v[32:33], v36 offset:%d" % QKX_L); e("ds_read_b64_tr_b16 v[34:35], v36 offset:%d" % (QKX_L + 512))
    e("ds_read_b64 v[38:39], v36 offset:%d" % QKX_L)
    if lds: lds("PB", 3)
    seq = (6, 7, 9, 5, 8) if mm else (9,)
    for j in seq:
        if mm:
            wait_for(("A", j))
            for T in range(2): mm("Q", j, T)
        if j == 9:
            if mm: wait_for("PB")
            else: e("s_waitcnt lgkmcnt(0)")
            t1 = A.newlabel("Lt1"); tj = A.newlabel("Ltj")
            e("s_cmp_eq_u32 s32, 0"); e("s_cbranch_scc1 %s" % tj)
            e("s_cmp_lg_u32 s29, 0"); e("s_cbranch_scc1 %s" % t1)
            if not DIS & 1: e("buffer_store_dwordx4 v[32:35], v1, s[4:7], s48 offen%s" % PUBSC)
            e("s_branch %s" % tj)
            A.label(t1)
            if not DIS & 1: e("buffer_store_dwordx2 v[38:39], v6, s[4:7], s48 offen%s" % PUBSC)
            A.label(tj)
            e("s_add_u32 s48, s48, 0x2000")

def emit_step(A, par, sc, stamp, d_first, d_red, instr):
    e = A.e
    KXC = KX_L
    ACC = {"Q": ACQ, "K": ACK, "V": ACV}
    def smf(acc, a, b): e("%s v[%d:%d], %s, %s, v2" % (SMF, acc, acc + 3, vr(a, 4), b))
    def spin():
        e("s_add_u32 s74, s74, 1"); e("s_cmp_gt_u32 s74, %d" % SPIN_LIMIT); e("s_cbranch_scc1 L_abort")
    def gl_load(reg, s):
        e("buffer_load_dwordx4 v[%d:%d], v37, s[4:7], s%d offen sc1" % (reg, reg + 3, s))
        e("buffer_load_dword v%d, v38, s[4:7], s%d offen sc1" % (reg + 4, s))
    def gl_check(reg):
        e("v_max3_u32 v11, v%d, v%d, v%d" % (reg, reg + 1, reg + 2)); e("v_max3_u32 v11, v11, v%d, v%d" % (reg + 3, reg + 4))
        e("v_cmp_eq_u32 vcc, -1, v11")
    def gl_write(reg, half):
        e("ds_write_b128 v37, v[%d:%d] offset:%d" % (reg, reg + 3, AC_L + 5120 * half))
        e("ds_write_b32 v38, v%d offset:%d" % (reg + 4, AC_L + 5120 * half))
    Lseq = [(m, j, T) for (m, j) in [("K", 0), ("K", 2), ("K", 4), ("V", 1), ("V", 3), ("Q", 5)] for T in range(2)]
    lstate = {"issued": 0, "other": 0}
    pend = []
    def lds(tag, n=1):
        pend.extend([tag] * n)
    def wait_for(tag):
        if tag not in pend: return
        last = len(pend) - 1 - pend[::-1].index(tag)
        n = len(pend) - 1 - last
        e("s_waitcnt lgkmcnt(%d)" % n)
        del pend[:last + 1]
    def wait_all():
        e("s_waitcnt lgkmcnt(0)"); del pend[:]
    def Lissue():
        i = lstate["issued"]
        if i >= len(Lseq): return
        m, j, T = Lseq[i]
        fload(A, TMP + 8 * (i % 2), LSLOT[(m, j)], T); lds(("L", i), 2)
        lstate["issued"] = i + 1
    def mm(m, j, T):
        a = AA(j % 5)
        if (m, j) in LSLOT:
            i = Lseq.index((m, j, T))
            wait_for(("L", i))
            smf(ACC[m] + 4 * T, a, vr(TMP + 8 * (i % 2), 8))
            Lissue()
        else:
            smf(ACC[m] + 4 * T, a, FR(FX(m, j, T)))
    def rdA(j):
        e("ds_read_b128 v[%d:%d], v1 offset:%d" % (AA(j % 5), AA(j % 5) + 3, AC_L + 1024 * j)); lds(("A", j))
    def zero(lo, hi):
        for r in range(lo, hi, 2): e("v_mov_b64 v[%d:%d], 0" % (r, r + 1))
    e("v_add_u32 v37, s33, v1"); e("v_add_u32 v38, s34, v0")
    if d_first: e("s_sleep %d" % d_first)
    GA, GB = 12, 20
    gl_load(GA, 38)
    stamp("issueA", True)
    if D_GAP: e("s_sleep %d" % D_GAP)
    e("s_mov_b32 m0, s50")
    gl_load(GB, 38)
    for i in range(4):
        if KVPOS == 0: e("buffer_load_dwordx4 v1, s[4:7], s46 offen offset:%d%s lds" % (1024 * i, KVSC))
    lp = A.newlabel("Lgl"); okA = A.newlabel("LglA"); okB = A.newlabel("LglB"); ok = A.newlabel("Lglok"); re = A.newlabel("Lglre")
    e("s_waitcnt vmcnt(%d)" % (2 if KVPOS else 6))
    A.label(lp)
    gl_check(GA); e("s_cbranch_vccnz %s" % re)
    gl_write(GA, 0)
    A.label(ok)
    lds("W", 2)
    stamp("gotL", True)
    if GREARLY: gl_load(GG, 39)
    Lissue(); Lissue()
    wait_for("W")
    stamp(0)
    e("s_barrier")
    e("s_waitcnt vmcnt(%d)" % (2 if GREARLY else 0))
    stamp("B4", True)
    for j in range(5): rdA(j)
    if not GREARLY: gl_load(GG, 39)
    if KVPOS == 3:
        for i in range(4): e("buffer_load_dwordx4 v1, s[4:7], s46 offen offset:%d%s lds" % (1024 * i, KVSC))
    for j in range(5):
        wait_for(("A", j))
        if j % 2 == 0: order = [("K", 0), ("Q", 0), ("Q", 1), ("K", 1)]
        else: order = [("Q", 0), ("K", 0), ("Q", 1), ("K", 1)]
        for m, T in order: mm(m, j, T)

    stamp(1)
    lpr = A.newlabel("Lgr"); rer = A.newlabel("Lgrre")
    e("s_waitcnt vmcnt(%d)" % (4 if KVPOS == 3 else 0))
    A.label(lpr)
    gl_check(GG); e("s_cbranch_vccnz %s" % rer)
    gl_write(GG, 1); lds("W", 2)
    stamp(9)
    mm("V", 0, 0)
    if MEGA and not par:
        e("s_add_u32 s54, s32, %d" % (3 if KVPOS in (1, 2, 4, 5) else 1)); e("s_lshr_b32 s54, s54, 2")
        kv_poll(A, 54)
    if KVPOS == 3:
        mm("V", 0, 1); e("s_waitcnt vmcnt(0)")
    e("s_mov_b32 m0, s35"); e("s_add_u32 s46, s46, 0x4000")
    if KVPOS in (1, 2, 4, 5):
        e("s_add_u32 s53, s46, 0x4000"); e("buffer_load_dword v4, s[4:7], s53 offen%s lds" % KVSC)
    else: e("buffer_load_dword v4, s[4:7], s46 offen%s lds" % KVSC)
    mm("V", 1, 0)
    nml = A.newlabel("Lnml")
    e("s_cmp_lg_u32 s30, 31"); e("s_cbranch_scc1 %s" % nml)
    e("s_add_u32 s54, s38, s50"); e("s_add_u32 s54, s54, 10240")
    e("buffer_load_dword v4, s[4:7], s54 offen lds")
    A.label(nml)
    if KVPOS != 3: mm("V", 0, 1)
    mm("V", 1, 1)
    wait_for("W")
    e("s_barrier")
    stamp("B5", True)
    rdA(5); rdA(6)
    if MEGA: signal_prog(A)
    VXR = GG
    mm("V", 2, 0); mm("V", 2, 1); rdA(7)
    mm("V", 4, 0); mm("V", 4, 1); rdA(9)
    mm("V", 3, 0); mm("V", 3, 1); rdA(8)
    publish(A, lds, wait_for, mm)
    for j in range(5, 10):
        for T in range(2):
            mm("K", j, T)
            if j < 7:
                ks = 2 * (j - 5) + T
                e("ds_read_b128 v[%d:%d], v1 offset:%d" % (TMP + 4 * ks, TMP + 3 + 4 * ks, KXC + 4096 + 1024 * ks)); lds("K1")
            if j == 8:
                q = ACQ + 4 * T
                e("v_add_f32 v%d, v%d, v%d" % (q, q, q + 1)); e("v_add_f32 v%d, v%d, v%d" % (q + 2, q + 2, q + 3))
            if j == 9:
                q = ACQ + 4 * T
                e("v_cvt_pk_bf16_f32 v%d, v%d, v%d" % (q + 1, q, q + 2))
    stamp(2)
    for j in (5, 6):
        for T in range(2): mm("V", j, T)
    e("s_nop 1")
    for T in range(2):
        q, k = ACQ + 4 * T, ACK + 4 * T
        e("v_add_f32 v%d, v%d, v%d" % (k, k, k + 1)); e("v_add_f32 v%d, v%d, v%d" % (k + 2, k + 2, k + 3))
        e("v_cvt_pk_bf16_f32 v%d, v%d, v%d" % (q, k, k + 2))
        e("ds_write_b64 v5, v[%d:%d] offset:%d" % (q, q + 1, 512 * T)); lds("W")
    for j in (7, 8):
        for T in range(2): mm("V", j, T)
    wait_all()
    e("s_barrier")
    stamp("B1", True)
    X, KT0 = 12, 40
    for ks in range(4):
        for a in range(2): e("ds_read_b64_tr_b16 v[%d:%d], v6 offset:%d" % (X + 4 * ks + 2 * a, X + 4 * ks + 2 * a + 1, QKX_L + 1024 * ks + 512 * a))
        lds(("X", ks), 2)
        if ks == 1: mm("V", 9, 0)
        if ks == 3: mm("V", 9, 1)
    for ks in range(4): e("ds_read_b128 v[%d:%d], v1 offset:%d" % (KT0 + 4 * ks, KT0 + 3 + 4 * ks, KXC + 1024 * ks)); lds("K0")
    e("v_add_u32 v11, s47, v1")
    e("ds_read_b128 v[32:35], v11"); e("ds_read_b128 v[36:39], v11 offset:1024"); lds("VX", 2)
    stamp(3)
    S2, S0, S1 = 28, 64, 68
    for ks in range(4):
        wait_for(("X", ks))
        e("%s v[%d:%d], %s, %s, %s" % (MF32, S2, S2 + 3, vr(TMP + 4 * ks, 4), vr(X + 4 * ks, 4), "0" if ks == 0 else vr(S2, 4)))
    for ks in range(4):
        e("%s v[%d:%d], %s, %s, %s" % (MF32, S0, S0 + 3, vr(X + 4 * ks, 4), vr(X + 4 * ks, 4), "0" if ks == 0 else vr(S0, 4)))
    wait_all()
    if KVPOS in (4, 5): e("s_mov_b32 m0, s50"); e("s_barrier")
    VM = 76
    for ks in range(4):
        e("%s v[%d:%d], %s, %s, %s" % (MF32, S1, S1 + 3, vr(KT0 + 4 * ks, 4), vr(X + 4 * ks, 4), "0" if ks == 0 else vr(S1, 4)))
        if KVPOS == 4 or (KVPOS == 5 and ks >= 2): e("buffer_load_dwordx4 v1, s[4:7], s46 offen offset:%d%s lds" % (1024 * ks, KVSC))
        if ks < 2:
            v = ACV + 4 * ks
            e("v_add_f32 v%d, v%d, v%d" % (v, v, v + 1)); e("v_add_f32 v%d, v%d, v%d" % (v + 2, v + 2, v + 3))
        else:
            v = ACV + 4 * (ks - 2)
            e("v_cvt_pk_bf16_f32 v%d, v%d, v%d" % (VM + 2 * (ks - 2), v, v + 2)); e("v_mov_b32 v%d, 0" % (VM + 1 + 2 * (ks - 2)))
    if not par:
        e("s_cmp_eq_u32 s32, 63"); e("s_cbranch_scc1 L_rec_last")
    fload(A, 40, 7, 0); fload(A, 48, 7, 1); lds("O4", 4)
    e("v_max3_f32 v11, v%d, v%d, v%d" % (S2, S2 + 1, S2 + 2)); e("v_max3_f32 v11, v11, v%d, v%d" % (S2 + 3, S0))
    P1, P0, ONES, OA, LS = 12, 16, 20, 56, 24
    e("v_max3_f32 v11, v11, v%d, v%d" % (S0 + 1, S1)); e("v_max3_f32 v11, v11, v%d, v%d" % (S1 + 1, S1 + 2))
    e("v_max_f32 v11, v11, v%d" % (S1 + 3)); e("v_mov_b32 v66, v11")
    e("v_mov_b32 v%d, 0x3f803f80" % ONES); e("v_mov_b32 v%d, 0x3f803f80" % (ONES + 1))
    e("v_permlane16_swap_b32 v11, v66"); e("v_max_f32 v11, v11, v66"); e("v_mov_b32 v66, v11")
    e("v_mov_b64 v[%d:%d], v[%d:%d]" % (ONES + 2, ONES + 3, ONES, ONES + 1)); e("v_mov_b32 v%d, 0" % (P0 + 1))
    e("v_permlane32_swap_b32 v11, v66"); e("v_max_f32 v11, v11, v66")
    e("v_mul_f32 v11, s51, v11")
    vals = [S0, S0 + 1] + [S1 + i for i in range(4)] + [S2 + i for i in range(4)]
    for i, v in enumerate(vals):
        e("v_fma_f32 v%d, v%d, s51, -v11" % (v, v))
        if i >= 1: e("v_exp_f32 v%d, v%d" % (vals[i - 1], vals[i - 1]))
        if i == 3: e("v_cvt_pk_bf16_f32 v%d, v%d, v%d" % (P0, S0, S0 + 1))
        if i == 5:
            e("v_cvt_pk_bf16_f32 v%d, v%d, v%d" % (P1, S1, S1 + 1))
            e("%s v[%d:%d], %s, %s, 0" % (MF16, LS, LS + 3, vr(ONES, 2), vr(P0, 2)))
        if i == 6: e("%s v[%d:%d], %s, %s, 0" % (MF16, OA, OA + 3, vr(VM, 2), vr(P0, 2)))
        if i == 7:
            e("v_cvt_pk_bf16_f32 v%d, v%d, v%d" % (P1 + 1, S1 + 2, S1 + 3))
            e("%s v[%d:%d], %s, %s, 0" % (MF16, OA + 4, OA + 7, vr(VM + 2, 2), vr(P0, 2)))
    e("v_exp_f32 v%d, v%d" % (vals[9], vals[9]))
    e("v_cvt_pk_bf16_f32 v%d, v%d, v%d" % (P1 + 2, S2, S2 + 1)); e("v_cvt_pk_bf16_f32 v%d, v%d, v%d" % (P1 + 3, S2 + 2, S2 + 3))
    stamp(4)
    e("s_nop 1")
    stamp("vx", True)
    e("%s v[%d:%d], %s, %s, %s" % (MF32, LS, LS + 3, vr(ONES, 4), vr(P1, 4), vr(LS, 4)))
    for T in range(2): e("%s v[%d:%d], %s, %s, %s" % (MF32, OA + 4 * T, OA + 4 * T + 3, vr(VXR + 4 * T, 4), vr(P1, 4), vr(OA + 4 * T, 4)))
    WA = 12
    zero(12, 24)
    e("v_rcp_f32 v11, v%d" % LS)

    e("s_mov_b32 exec_lo, 0xcccccccc"); e("s_mov_b32 exec_hi, 0xcccccccc")
    for T in range(2):
        o = OA + 4 * T
        for i in range(4): e("v_mul_f32 v%d, v%d, v11" % (o + i, o + i))
        e("v_cvt_pk_bf16_f32 v%d, v%d, v%d" % (o, o, o + 1)); e("v_cvt_pk_bf16_f32 v%d, v%d, v%d" % (o + 1, o + 2, o + 3))
        e("ds_write_b64 v7, v[%d:%d] offset:%d" % (o, o + 1, 32 * T)); lds("W")
    e("s_mov_b64 exec, -1")
    fload(A, 32, 6, 0); fload(A, 64, 6, 1); lds("O3", 4)
    zero(24, 32)
    if KVPOS == 5:
        for i in range(2): e("buffer_load_dwordx4 v1, s[4:7], s46 offen offset:%d%s lds" % (1024 * i, KVSC))
    wait_for("W")
    stamp("preB2", True)
    e("s_barrier")
    stamp("B2", True)
    OF = 56
    for ks in range(2): e("ds_read_b128 v[%d:%d], v8 offset:%d" % (OF + 4 * ks, OF + 3 + 4 * ks, 128 * ks)); lds(("OF", ks))
    if KVPOS == 1:
        e("s_mov_b32 m0, s50"); e("s_nop 0")
        for i in range(4): e("buffer_load_dwordx4 v1, s[4:7], s46 offen offset:%d%s lds" % (1024 * i, KVSC))
    stamp(5)
    WF = {(4, 0): vr(40, 8), (4, 1): vr(48, 8), (3, 0): vr(32, 8), (3, 1): vr(64, 8)}
    for t in range(3):
        for ks in range(2): WF[(t, ks)] = FR(FX("O", t, ks))
    wait_for(("OF", 0))
    smf(WA + 16, OF, WF[(4, 0)])
    wait_for(("OF", 1))
    smf(WA + 16, OF + 4, WF[(4, 1)])
    tagop = (lambda d: "v_or_b32 v%d, 1, v%d" % (d, d)) if par else (lambda d: "v_and_b32 v%d, -2, v%d" % (d, d))
    def packl(t, dst):
        d = WA + 4 * t
        return ["v_add_f32 v%d, v%d, v%d" % (d, d, d + 1), "v_add_f32 v%d, v%d, v%d" % (d + 2, d + 2, d + 3),
                "v_cvt_pk_bf16_f32 v%d, v%d, v%d" % (dst, d, d + 2), tagop(dst)]
    for t in (0, 1, 2):
        for ks in range(2): smf(WA + 4 * t, OF + 4 * ks, WF[(t, ks)])
    e("s_nop 1")
    p4 = packl(4, 44)
    e(p4[0]); e(p4[1]); smf(WA + 12, OF, WF[(3, 0)]); e(p4[2]); e(p4[3]); smf(WA + 12, OF + 4, WF[(3, 1)])
    e("buffer_store_dword v44, v9, s[4:7], s44 offen%s" % sc)
    for t in range(4):
        for x in packl(t, 40 + t): e(x)
    e("buffer_store_dwordx4 v[40:43], v9, s[4:7], s43 offen%s" % sc)
    stamp(6)
    tv = A.newlabel("Ltv")
    e("s_cmp_eq_u32 s29, 0"); e("s_cbranch_scc1 %s" % tv)
    e("v_add_u32 v11, s56, v0")
    e("ds_write_b32 v11, v%d offset:%d" % (VM, QKX_L)); e("ds_write_b32 v11, v%d offset:%d" % (VM + 2, QKX_L + 256))
    A.label(tv)
    e("s_add_u32 s38, s38, 5120"); e("s_add_u32 s39, s39, 16384"); e("s_add_u32 s40, s40, 16384")
    e("ds_read_b128 v[28:31], v1 offset:%d" % SEL_L)
    if not WARM: zero(ACQ, ACQ + 24)
    nored = A.newlabel("Lnored"); join = A.newlabel("Ljoin")
    e("s_cmp_ge_u32 s42, 40"); e("s_cbranch_scc1 %s" % nored)
    if d_red: e("s_sleep %d" % d_red)
    op = "v_bitop3_b32 v11, v11, v%d, v%d bitop3:0x80" if par else "v_or3_b32 v11, v11, v%d, v%d"
    RA, RB = 64, 12
    def rload(b):
        for j in range(4): e("buffer_load_dwordx4 v[%d:%d], v1, s[4:7], s45 offen offset:%d sc1" % (b + 4 * j, b + 3 + 4 * j, 1024 * j))
        if instr: e("s_add_u32 s91, s91, 1")
    def rcheck(b):
        e("v_mov_b32 v11, %d" % par)
        for j in range(4):
            e("s_waitcnt vmcnt(%d)" % (7 - j))
            e("%s v[32:35], v[28:31], %s, %s" % (MF32, vr(b + 4 * j, 4), "0" if j == 0 else "v[32:35]"))
            e(op % (b + 4 * j, b + 4 * j + 1)); e(op % (b + 4 * j + 2, b + 4 * j + 3))
        e("v_and_b32 v11, 1, v11")
        e("v_cmp_ne_u32 vcc, %d, v11" % par)
    rload(RA)
    if WARM:
        e("s_waitcnt lgkmcnt(0)")
        for r in range(ACQ, ACQ + 10): e("v_mov_b32 v%d, 0" % r)
        for j in range(4):
            e("buffer_load_dwordx4 v[%d:%d], v1, s[4:7], s45 offen offset:%d sc1" % (RB + 4 * j, RB + 3 + 4 * j, 1024 * j))
            e("v_mov_b32 v%d, 0" % (ACQ + 10 + j))
        for r in range(ACQ + 14, ACQ + 24):
            e("v_mov_b32 v%d, 0" % r)
            if WARM > 1: e("s_nop %d" % (WARM - 2))
    else:
        if D_GAP: e("s_sleep %d" % D_GAP)
        rload(RB)
        e("s_waitcnt lgkmcnt(0)")
    lpd = A.newlabel("Lrd"); okd = A.newlabel("Lrdok"); A.label(lpd)
    rcheck(RA); e("s_cbranch_vccz %s" % okd); rload(RA)
    rcheck(RB); e("s_cbranch_vccz %s" % okd); rload(RB)
    spin()
    e("s_branch %s" % lpd)
    A.label(re)
    gl_load(GA, 38)
    if instr: e("s_add_u32 s90, s90, 1")
    e("s_waitcnt vmcnt(2)"); gl_check(GB); e("s_cbranch_vccz %s" % okB)
    gl_load(GB, 38)
    if instr: e("s_add_u32 s90, s90, 1")
    spin()
    e("s_waitcnt vmcnt(2)")
    e("s_branch %s" % lp)
    A.label(okB); gl_write(GB, 0); e("s_branch %s" % ok)
    A.label(rer)
    gl_load(GG, 39)
    if instr: e("s_add_u32 s92, s92, 1")
    spin()
    e("s_waitcnt vmcnt(0)")
    e("s_branch %s" % lpr)
    A.label(nored)
    if KVPOS == 2:
        nk = A.newlabel("Lnk")
        e("s_cmp_lt_u32 s28, 2"); e("s_cbranch_scc1 %s" % nk)
        e("s_add_u32 s53, s46, s61"); e("s_mov_b32 m0, s60"); e("s_nop 0")
        for i in range(4): e("buffer_load_dwordx4 v1, s[4:7], s53 offen offset:%d%s lds" % (1024 * i, KVSC))
        e("s_add_u32 s53, s53, 4096"); e("s_add_u32 m0, s60, 4096"); e("s_nop 0")
        for i in range(4): e("buffer_load_dwordx4 v1, s[4:7], s53 offen offset:%d%s lds" % (1024 * i, KVSC))
        A.label(nk)
    if WARM: zero(ACQ, ACQ + 24)
    e("s_waitcnt lgkmcnt(0)")
    e("s_branch %s" % join)
    A.label(okd)
    e("s_nop 2")
    for i in range(4): e("v_add_f32_dpp v%d, v%d, v%d row_ror:8 row_mask:0xf bank_mask:0xf" % (36 + i, 32 + i, 32 + i))
    e("s_mov_b32 exec_lo, 0x00ff00ff"); e("s_mov_b32 exec_hi, 0")
    e("v_cvt_pk_bf16_f32 v32, v36, v37"); e("v_cvt_pk_bf16_f32 v33, v38, v39")
    e("v_min_u32 v32, -2, v32"); e("v_min_u32 v33, -2, v33")
    e("buffer_store_dwordx2 v[32:33], v10, s[4:7], s38 offen%s" % sc)
    e("buffer_store_dwordx2 v[32:33], v10, s[4:7], s40 offen sc1")
    e("s_mov_b64 exec, -1")
    A.label(join)
    stamp(7)
    e("s_barrier")
    stamp(8)
    e("s_add_u32 s32, s32, 1")

def gen(**kw):
    A = Asm()
    A.raw("; @launch kernel=rec_kernel grid=(256,1,1) block=(256,1,1) lds=163840")
    A.raw('.amdgcn_target "amdgcn-amd-amdhsa--gfx950"')
    A.raw(".text")
    kernel_header(A, "rec_kernel")
    A.e("s_cmp_ge_u32 s2, 256"); A.e("s_cbranch_scc1 L_end")
    emit_rec(A, **kw)
    A.label("L_end")
    A.e("s_endpgm")
    A.raw('.section .rodata,"a"'); A.raw(".p2align 6")
    A.raw(kernel_desc("rec_kernel", 512, 102, 256))
    return A.text()

if __name__ == "__main__":
    import sys
    for spec in sys.argv[1:]:
        d1, dr, ra, ins = map(int, spec.split(","))
        DIS = d1 >> 4; d1 &= 15
        NEARSEL = 1 if DIS & 32 else None
        KVSC = " sc1" if DIS & 8 else ""
        PUBSC = " sc1" if DIS & 16 else ""
        D_GAP = ra % 10; KVPOS = (ra // 10) % 10; WARM = ra // 100
        open("rec_%d_%d_%d_%d.s" % (d1 + 16 * DIS, dr, ra, ins), "w").write(gen(instr=ins, d_first=d1, d_red=dr))
```

```python
class Asm:
    def __init__(self):
        self.lines = []
        self._lab = 0
    def e(self, s):
        self.lines.append("    " + s)
    def c(self, s):
        self.lines.append("    ; " + s)
    def label(self, name):
        self.lines.append(name + ":")
    def newlabel(self, base="L"):
        self._lab += 1
        return "%s_%d" % (base, self._lab)
    def raw(self, s):
        self.lines.append(s)
    def text(self):
        return "\n".join(self.lines) + "\n"

def vr(a, n=1):
    return "v%d" % a if n == 1 else "v[%d:%d]" % (a, a + n - 1)
def ar(a, n=1):
    return "a%d" % a if n == 1 else "a[%d:%d]" % (a, a + n - 1)
def sr(a, n=1):
    return "s%d" % a if n == 1 else "s[%d:%d]" % (a, a + n - 1)
def R(a, n=1):
    if a < 256:
        assert a + n <= 256
        return vr(a, n)
    return ar(a - 256, n)

def kernel_header(A, name):
    A.raw(".globl %s" % name)
    A.raw(".p2align 8")
    A.raw(".type %s,@function" % name)
    A.label(name)

def kernel_desc(name, vgpr, sgpr, accum, wgy=False):
    s = ".amdhsa_kernel %s\n" % name
    s += "  .amdhsa_next_free_vgpr %d\n" % vgpr
    s += "  .amdhsa_next_free_sgpr %d\n" % sgpr
    s += "  .amdhsa_accum_offset %d\n" % accum
    s += "  .amdhsa_group_segment_fixed_size 0\n"
    s += "  .amdhsa_kernarg_size 112\n"
    s += "  .amdhsa_user_sgpr_count 2\n"
    s += "  .amdhsa_user_sgpr_kernarg_segment_ptr 1\n"
    s += "  .amdhsa_system_sgpr_workgroup_id_x 1\n"
    if wgy:
        s += "  .amdhsa_system_sgpr_workgroup_id_y 1\n"
    s += ".end_amdhsa_kernel\n"
    return s

TICK = {"on": False}
def tick(A, idx, vt, wavereg, sidx=None, st=(96, 97, 98)):
    if not TICK["on"]: return
    e = A.e
    a, b, c = st
    e("s_memrealtime s[%d:%d]" % (a, b))
    e("s_lshl_b32 s%d, s2, 2" % c); e("s_add_u32 s%d, s%d, s%d" % (c, c, wavereg)); e("s_lshl_b32 s%d, s%d, 6" % (c, c))
    if sidx is not None: e("s_add_u32 s%d, s%d, s%d" % (c, c, sidx))
    e("s_lshl_b32 s%d, s%d, 2" % (c, c)); e("s_add_u32 s%d, s%d, 0x%x" % (c, c, 0x5D00000 + 4 * idx))
    e("s_waitcnt lgkmcnt(0)")
    e("v_mov_b32 v%d, s%d" % (vt, a)); e("v_mov_b32 v%d, 0" % (vt + 1))
    e("buffer_store_dword v%d, v%d, s[4:7], s%d offen" % (vt, vt + 1, c))

DTICK = {"on": False}
def dtick(A, dw, vt, srd):
    if not DTICK["on"]: return
    e = A.e
    e("s_memrealtime s[96:97]"); e("s_waitcnt lgkmcnt(0)")
    e("s_mov_b64 s[98:99], exec"); e("s_mov_b64 exec, 1")
    e("v_mov_b32 v%d, s96" % vt); e("v_mov_b32 v%d, %d" % (vt + 1, 4 * dw))
    e("buffer_atomic_umax v%d, v%d, %s, 0 offen sc1" % (vt, vt + 1, srd))
    e("s_mov_b64 exec, s[98:99]")
```

```python
from asmlib import *
from layout import *
MF32 = "v_mfma_f32_16x16x32_bf16"

def srd(e, d, lo, n):
    e("s_mov_b32 s%d, s%d" % (d, lo)); e("s_mov_b32 s%d, s%d" % (d + 1, lo + 1)); e("s_mov_b32 s%d, 0x%x" % (d + 2, n)); e("s_mov_b32 s%d, 0x20000" % (d + 3))

def emit_init(A):
    e = A.e
    e("s_lshl_b32 s33, s2, 13"); e("s_add_u32 s33, s33, 0x%x" % ML_OFF)
    e("v_lshlrev_b32 v1, 4, v0")
    for i in range(4): e("v_mov_b32 v%d, -1" % (4 + i))
    for i in range(4): e("v_mov_b32 v%d, -1" % (8 + i))
    e("s_and_b32 s34, s2, 63"); e("s_cmp_lg_u32 s34, 0"); e("s_cbranch_scc1 L_init_st")
    e("s_bfe_u32 s34, s2, 0x10006"); e("s_mul_i32 s34, s34, 640")
    for half in range(2):
        d = 4 + 4 * half
        e("v_bfe_u32 v2, v0, 1, 3"); e("v_mul_u32_u24 v2, 1280, v2")
        e("v_bfe_u32 v3, v0, 4, 2"); e("v_lshl_add_u32 v2, v3, 3, v2")
        e("v_and_b32 v3, 1, v0"); e("v_lshl_add_u32 v2, v3, 2, v2")
        if half == 0:
            e("v_lshrrev_b32 v3, 6, v0"); e("v_lshl_add_u32 v2, v3, 7, v2")
        else:
            e("v_add_u32 v2, 512, v2")
            e("v_cmp_gt_u32 vcc, 64, v0"); e("s_and_saveexec_b64 s[36:37], vcc"); e("s_cbranch_execz L_init_r")
        for t in range(4): e("buffer_load_dword v%d, v2, s[40:43], s34 offen offset:%d" % (12 + t, 32 * t))
        e("s_mov_b32 s35, 0x05040100"); e("s_mov_b32 s38, 0x07060302")
        e("s_waitcnt vmcnt(0)")
        e("v_perm_b32 v%d, v13, v12, s35" % d); e("v_perm_b32 v%d, v15, v14, s35" % (d + 1))
        e("v_perm_b32 v%d, v13, v12, s38" % (d + 2)); e("v_perm_b32 v%d, v15, v14, s38" % (d + 3))
        for i in range(4): e("v_min_u32 v%d, -2, v%d" % (d + i, d + i))
    A.label("L_init_r")
    e("s_mov_b64 exec, -1")
    A.label("L_init_st")
    e("buffer_store_dwordx4 v[4:7], v1, s[4:7], s33 offen")
    e("s_add_u32 s33, s33, 4096")
    e("buffer_store_dwordx4 v[8:11], v1, s[4:7], s33 offen")
    e("s_lshl_b32 s33, s2, 11"); e("s_add_u32 s33, s33, 0x%x" % PB_OFF)
    e("v_lshlrev_b32 v1, 3, v0"); e("v_mov_b32 v2, 0"); e("v_mov_b32 v3, 0")
    e("buffer_store_dwordx2 v[2:3], v1, s[4:7], s33 offen")

XA0 = 96
XFL = ""
def XA(tt, kk): return XA0 + (tt * 20 + kk) * 4
BB, ACC, ET = 16, 48, 80
def acc(T, tt): return ACC + (T * 2 + tt) * 4

def emit_g1(A, NPART=16, NCG=248, mega=False, NT=8):
    e = A.e
    sc = " sc1" if mega else ""
    def signal(cgreg):
        l = A.newlabel("Lg1s")
        e("s_cmp_lg_u32 s26, 0"); e("s_cbranch_scc1 %s" % l)
        e("s_lshr_b32 s33, s%d, 6" % cgreg); e("s_mov_b32 s34, 1")
        e("s_cmp_eq_u32 s33, 2"); e("s_cmov_b32 s34, 0x400"); e("s_cmp_eq_u32 s33, 3"); e("s_cmov_b32 s34, 0x100000")
        e("s_lshl_b32 s33, s27, 2")
        e("s_mov_b64 exec, 1"); e("v_mov_b32 v11, s34"); e("v_mov_b32 v12, s33")
        e("buffer_atomic_add v11, v12, s[64:67], 0 offen offset:%d sc1" % DBG_G1)
        e("s_mov_b64 exec, -1")
        A.label(l)
    e("v_lshlrev_b32 v1, 4, v0")
    e("v_lshrrev_b32 v2, 2, v0")
    e("v_lshrrev_b32 v3, 5, v0"); e("v_lshlrev_b32 v3, 1, v3"); e("v_and_b32 v4, 3, v0"); e("v_xor_b32 v3, v3, v4"); e("v_lshlrev_b32 v3, 4, v3")
    e("v_lshrrev_b32 v5, 4, v0"); e("v_bfe_u32 v6, v0, 2, 2"); e("v_lshl_add_u32 v6, v5, 3, v6"); e("v_lshlrev_b32 v6, 6, v6")
    e("v_lshl_add_u32 v6, v4, 3, v6"); e("v_and_b32 v5, 1, v5"); e("v_lshl_add_u32 v6, v5, 5, v6")
    e("v_xor_b32 v7, 32, v6"); e("v_add_u32 v8, 0x10000, v6"); e("v_add_u32 v9, 0x10000, v7")
    e("s_lshr_b32 s44, s26, 1")
    e("s_and_b32 s45, s26, 1"); e("s_lshl_b32 s45, s45, 6")
    e("s_lshl_b32 s46, s26, 12")
    e("s_mov_b32 s15, 0x20000")
    def setup_dma():
        e("s_lshr_b32 s33, s30, 6"); e("s_and_b32 s34, s30, 63")
        e("s_cmp_eq_u32 s33, 0"); e("s_cselect_b64 s[12:13], s[18:19], s[20:21]")
        e("s_cmp_eq_u32 s33, 2"); e("s_cselect_b64 s[12:13], s[16:17], s[12:13]")
        e("s_cmp_eq_u32 s44, 0"); e("s_cselect_b64 s[36:37], s[22:23], s[24:25]")
        e("s_lshl_b32 s35, s34, 1"); e("s_add_u32 s35, s35, s44")
        e("s_cmp_eq_u32 s33, 3")
        e("s_cselect_b64 s[12:13], s[36:37], s[12:13]")
        e("s_mov_b32 s31, 8192"); e("s_cmov_b32 s31, 3456")
        e("s_mov_b32 s14, 5242880"); e("s_cmov_b32 s14, 2211840")
        e("s_cselect_b32 s35, s34, s35"); e("s_lshl_b32 s35, s35, 6")
        e("s_cmp_ge_u32 s30, %d" % NCG); e("s_cselect_b32 s14, 0, s14")
        e("s_mul_i32 s32, s45, s31"); e("s_add_u32 s32, s32, s35")
        e("v_mad_u32_u24 v10, v2, s31, v3")
    def dma(ks5):
        for i in range(4):
            e("s_add_u32 m0, s46, %d" % (ks5 * 16384 + i * 1024))
            e("s_mul_i32 s33, s31, %d" % (128 * ks5 + 16 * i)); e("s_add_u32 s33, s33, s32")
            e("buffer_load_dwordx4 v10, s[12:15], s33 offen lds")
    A.label("L_g1_pass")
    tick(A, 60, 12, 26)
    e("s_mov_b32 s51, 1")
    e("s_mov_b32 s29, s28"); e("s_mov_b32 s30, s28")
    e("s_lshl_b32 s33, s27, 2"); e("s_add_u32 s47, s33, s26")
    e("s_mul_i32 s33, s47, 40960")
    e("v_mul_u32_u24 v4, 1280, v2"); e("v_and_b32 v5, 3, v0"); e("v_lshl_add_u32 v4, v5, 4, v4")
    e("s_mul_i32 s38, s26, 20480"); e("s_add_u32 s38, s38, 81920"); e("s_mov_b32 s39, s33")
    e("v_and_b32 v5, 15, v0"); e("v_lshlrev_b32 v5, 6, v5"); e("v_lshrrev_b32 v11, 4, v0"); e("v_lshl_add_u32 v5, v11, 4, v5"); e("v_add_u32 v5, s38, v5")
    def xdma(tt):
        for kk in range(20):
            e("s_add_u32 m0, s38, %d" % (1024 * kk)); e("s_add_u32 s33, s39, %d" % (20480 * tt + 64 * kk))
            e("buffer_load_dwordx4 v4, s[8:11], s33 offen lds")
    def xread(tt):
        for kk in range(20):
            e("ds_read_b128 %s, v5 offset:%d" % (vr(XA(tt, kk), 4), 1024 * kk))
            if kk == 11: e("s_waitcnt lgkmcnt(6)")
        e("s_waitcnt lgkmcnt(0)")
    xdma(0)
    setup_dma()
    for k in range(2): dma(k)
    ON = BB
    for i in range(4): e("v_mov_b32 v%d, 0x3f803f80" % (ON + i))
    e("v_and_b32 v11, 3, v0"); e("v_bfe_u32 v12, v0, 2, 2"); e("v_lshrrev_b32 v13, 4, v0")
    for i in range(1, 4): e("v_cmp_eq_u32 s[%d:%d], %d, v11" % (76 + 2 * i, 77 + 2 * i, i))
    e("v_cmp_eq_u32 s[76:77], v12, v13")
    e("s_waitcnt vmcnt(8)")
    xread(0)
    xdma(1)
    for k in range(2, 4): dma(k)
    npf = 8
    if mega:
        npf = 15
        e("s_cmp_eq_u32 s26, 1"); e("s_cselect_b64 s[40:41], s[18:19], s[16:17]")
        e("s_cmp_eq_u32 s26, 2"); e("s_cselect_b64 s[40:41], s[20:21], s[40:41]")
        e("s_cmp_eq_u32 s26, 3"); e("s_cselect_b64 s[40:41], s[62:63], s[40:41]")
        e("s_mov_b32 s42, 5242880"); e("s_cmp_ge_u32 s27, %d" % NT); e("s_cmov_b32 s42, 0"); e("s_mov_b32 s43, 0x20000")
        e("v_lshlrev_b32 v11, 6, v0"); e("s_lshl_b32 s35, s26, 8"); e("s_add_u32 m0, s35, %d" % 65536); e("s_lshl_b32 s35, s70, 12")
        for k in range(7):
            e("buffer_load_dword v11, s[40:43], s35 offen lds"); e("s_add_u32 s35, s35, %d" % (192 * 4096))
    for tt in range(2):
        if tt == 1:
            tick(A, 61, 14, 26)
            e("s_waitcnt vmcnt(%d)" % npf)
            xread(1)
        d1, d2 = ACC + 8 * tt, ACC + 8 * tt + 4
        for kk in range(20):
            x = vr(XA(tt, kk), 4)
            e("%s %s, %s, %s, %s" % (MF32, vr(d1, 4), vr(ON, 4), x, "0" if kk == 0 else vr(d1, 4)))
            e("%s %s, %s, %s, %s" % (MF32, vr(d2, 4), x, x, "0" if kk == 0 else vr(d2, 4)))
        e("s_nop 7")
        for i in range(1, 4): e("v_cndmask_b32 v%d, v%d, v%d, s[%d:%d]" % (d2, d2, d2 + i, 76 + 2 * i, 77 + 2 * i))
        e("v_cndmask_b32 v%d, 0, v%d, s[76:77]" % (ET + 2, d2))
        for sw in ("v_permlane16_swap_b32", "v_permlane32_swap_b32"):
            e("v_mov_b32 v%d, v%d" % (ET + 3, ET + 2)); e("s_nop 1")
            e("%s v%d, v%d" % (sw, ET + 2, ET + 3))
            e("v_add_f32 v%d, v%d, v%d" % (ET + 2, ET + 2, ET + 3))
        e("v_mul_f32 v%d, 0x3acccccd, v%d" % (ET, d1))
        e("v_mul_f32 v%d, 0x3acccccd, v%d" % (ET + 2, ET + 2))
        e("v_fma_f32 v%d, -v%d, v%d, v%d" % (ET + 2, ET, ET, ET + 2))
        e("v_max_f32 v%d, 0, v%d" % (ET + 2, ET + 2)); e("v_add_f32 v%d, 0x3727c5ac, v%d" % (ET + 2, ET + 2))
        e("v_rsq_f32 v%d, v%d" % (ET + 2, ET + 2)); e("s_nop 0")
        e("v_mul_f32 v%d, v%d, v%d" % (ET, ET, ET + 2))
        for i in range(80):
            r = XA(tt, 0) + i; a = ET + 4 + 2 * (i & 3)
            e("v_lshlrev_b32 v%d, 16, v%d" % (a, r)); e("v_and_b32 v%d, 0xffff0000, v%d" % (a + 1, r))
            e("v_fma_f32 v%d, v%d, v%d, -v%d" % (a, a, ET + 2, ET)); e("v_fma_f32 v%d, v%d, v%d, -v%d" % (a + 1, a + 1, ET + 2, ET))
            e("v_cvt_pk_bf16_f32 v%d, v%d, v%d" % (r, a, a + 1))
    e("s_lshl_b32 s48, s47, 14")
    e("s_mul_i32 s49, s47, %d" % (2 * 56 * 1024)); e("s_add_u32 s49, s49, 0x%x" % H_OFF)
    e("s_mov_b32 s50, 0xbfb8aa3b")
    tick(A, 62, 14, 26)
    e("s_waitcnt vmcnt(0)")
    e("s_barrier")
    PD = 6
    def rd(f):
        f %= 80
        ks5, ks, T = f >> 4, (f >> 2) & 3, f & 3
        off = ks5 * 16384 + (T >> 1) * 8192 + ks * 2048
        base = 6 + (T & 1)
        if off >= 65536: off -= 65536; base += 2
        b = BB + 4 * (f & 7)
        for a in range(2): e("ds_read_b64_tr_b16 v[%d:%d], v%d offset:%d" % (b + 2 * a, b + 2 * a + 1, base, off + 256 * a))
    tick(A, 63, 14, 26)
    for f in range(PD): rd(f)
    A.label("L_g1_loop")
    e("s_lshr_b32 s33, s29, 6"); e("s_cmp_eq_u32 s33, 1"); e("s_cbranch_scc1 L_g1_bodyV")
    for kind in ("N", "V"):
        A.label("L_g1_body" + kind)
        for f in range(80):
            ks5, ks, T = f >> 4, (f >> 2) & 3, f & 3
            if f & 15 == 0:
                e("s_waitcnt vmcnt(8)"); e("s_barrier")
                if ks5 == 1:
                    e("s_add_u32 s30, s30, %d" % NPART); setup_dma()
                dma((ks5 + 4) % 5)
                if mega and ks5 == 2:
                    l = A.newlabel("Lg1f")
                    e("s_cmp_eq_u32 s51, 1"); e("s_mov_b32 s51, 0"); e("s_cbranch_scc1 %s" % l)
                    e("s_sub_u32 s37, s29, %d" % NPART); signal(37)
                    A.label(l)
            rd(f + PD)
            e("s_waitcnt lgkmcnt(%d)" % (2 * PD))
            b = vr(BB + 4 * (f & 7), 4)
            for tt in range(2):
                x = vr(XA(tt, 4 * ks5 + ks), 4); d = vr(acc(T, tt), 4)
                c = "0" if (ks5 == 0 and ks == 0) else d
                if kind == "N": e("%s %s, %s, %s, %s" % (MF32, d, b, x, c))
                else: e("%s %s, %s, %s, %s" % (MF32, d, x, b, c))
        e("s_and_b32 s34, s29, 63")
        e("s_lshr_b32 s35, s34, 1"); e("s_lshl_b32 s35, s35, 20"); e("s_add_u32 s35, s35, s48")
        e("s_and_b32 s36, s34, 1")
        if kind == "V":
            e("s_lshl_b32 s36, s36, 12"); e("s_add_u32 s35, s35, s36"); e("s_add_u32 s35, s35, 0x%x" % (KV_OFF + 8192))
            e("s_nop 1")
            for T in range(4):
                o = ET + 4 * T
                for tt in range(2):
                    a = acc(T, tt)
                    e("v_cvt_pk_bf16_f32 v%d, v%d, v%d" % (o + 2 * tt, a, a + 1)); e("v_cvt_pk_bf16_f32 v%d, v%d, v%d" % (o + 2 * tt + 1, a + 2, a + 3))
                e("buffer_store_dwordx4 v[%d:%d], v1, s[4:7], s35 offen offset:%d%s" % (o, o + 3, 1024 * T, sc))
        else:
            e("s_lshr_b32 s33, s29, 6"); e("s_cmp_eq_u32 s33, 3"); e("s_cbranch_scc1 L_g1_epiF")
            e("s_lshr_b32 s37, s35, 1"); e("s_add_u32 s37, s37, 0x%x" % QF_OFF); e("s_add_u32 s35, s35, 0x%x" % KV_OFF)
            e("s_cmp_eq_u32 s33, 0"); e("s_cselect_b32 s35, s35, s37")
            e("s_lshl_b32 s36, s36, 11"); e("s_add_u32 s35, s35, s36"); e("s_add_u32 s36, s35, 4096")
            for u in range(2):
                for tt in range(2):
                    o = ET + 4 * (2 * u + tt)
                    for i in range(2):
                        a = acc(2 * u + i, tt)
                        e("v_cvt_pk_bf16_f32 v%d, v%d, v%d" % (o + 2 * i, a, a + 1)); e("v_cvt_pk_bf16_f32 v%d, v%d, v%d" % (o + 2 * i + 1, a + 2, a + 3))
                    e("buffer_store_dwordx4 v[%d:%d], v1, s[4:7], s%d offen offset:%d%s" % (o, o + 3, 35 + tt, 1024 * u, sc))
            e("s_branch L_g1_next")
            A.label("L_g1_epiF")
            e("s_lshl_b32 s35, s34, 10"); e("s_add_u32 s35, s35, s49"); e("s_add_u32 s36, s35, %d" % (56 * 1024))
            for tt in range(2):
                gs = [acc(T, tt) + r for T in range(2) for r in range(4)]
                us = [acc(T + 2, tt) + r for T in range(2) for r in range(4)]
                for i in range(8): e("v_mul_f32 v%d, s50, v%d" % (ET + i, gs[i]))
                for i in range(8): e("v_exp_f32 v%d, v%d" % (ET + i, ET + i))
                for i in range(8): e("v_add_f32 v%d, 1.0, v%d" % (ET + i, ET + i))
                for i in range(8): e("v_rcp_f32 v%d, v%d" % (ET + i, ET + i))
                for i in range(8): e("v_mul_f32 v%d, v%d, v%d" % (gs[i], gs[i], us[i]))
                for i in range(8): e("v_mul_f32 v%d, v%d, v%d" % (gs[i], gs[i], ET + i))
                o = ET + 8 + 4 * tt
                for i in range(4): e("v_cvt_pk_bf16_f32 v%d, v%d, v%d" % (o + i, gs[2 * i], gs[2 * i + 1]))
                e("buffer_store_dwordx4 v[%d:%d], v1, s[4:7], s%d offen%s" % (o, o + 3, 35 + tt, sc))
            e("s_branch L_g1_next")
    A.label("L_g1_next")
    if TICK["on"]:
        e("s_add_u32 s99, s99, 1"); tick(A, 2, 12, 26, 99)
    if mega:
        e("s_cmp_ge_u32 s29, 128"); e("s_cbranch_scc1 L_g1_np")
        e("s_cmp_lt_u32 s29, %d" % (128 - NPART)); e("s_cbranch_scc1 L_g1_np")
        e("s_cmp_ge_u32 s27, %d" % NT); e("s_cbranch_scc1 L_g1_np")
        e("s_waitcnt vmcnt(0)"); e("s_barrier")
        signal(29); e("s_mov_b32 s51, 1")
        A.label("L_g1_np")
    e("s_add_u32 s29, s29, %d" % NPART); e("s_cmp_lt_u32 s29, %d" % NCG); e("s_cbranch_scc1 L_g1_loop")
    e("s_waitcnt vmcnt(0) lgkmcnt(0)")
    if mega:
        e("s_barrier")
        e("s_sub_u32 s37, s29, %d" % NPART); signal(37)
        e("s_add_u32 s28, s28, 8"); e("s_cmp_ge_u32 s28, %d" % NPART); e("s_cselect_b32 s33, %d, 0" % NPART); e("s_sub_u32 s28, s28, s33")
        e("s_add_u32 s27, s27, %d" % NT); e("s_cmp_lt_u32 s27, 16"); e("s_cbranch_scc1 L_g1_pass")

def emit_g1_kernel(A):
    e = A.e
    kernel_header(A, "g1_kernel")
    e("s_cmp_ge_u32 s2, 256"); e("s_cbranch_scc1 L_g1_end")
    e("s_load_dwordx4 s[52:55], s[0:1], 0")
    e("s_load_dwordx4 s[16:19], s[0:1], 16")
    e("s_load_dwordx2 s[20:21], s[0:1], 32")
    e("s_load_dwordx4 s[56:59], s[0:1], 64")
    e("s_load_dwordx2 s[60:61], s[0:1], 104")
    e("v_lshrrev_b32 v1, 6, v0"); e("s_nop 0"); e("v_readfirstlane_b32 s26, v1")
    e("s_waitcnt lgkmcnt(0)")
    e("s_mov_b64 s[22:23], s[56:57]"); e("s_mov_b64 s[24:25], s[58:59]")
    srd(e, 4, 60, WS_BYTES); srd(e, 8, 52, 2621440); srd(e, 40, 54, 10240)
    emit_init(A)
    e("v_and_b32 v0, 63, v0")
    e("s_and_b32 s28, s2, 7"); e("s_lshr_b32 s33, s2, 7"); e("s_lshl_b32 s33, s33, 3"); e("s_add_u32 s28, s28, s33")
    e("s_bfe_u32 s27, s2, 0x40003")
    emit_g1(A)
    A.label("L_g1_end")
    e("s_endpgm")

if __name__ == "__main__":
    A = Asm()
    A.raw("; @launch kernel=g1_kernel grid=(256,1,1) block=(256,1,1) lds=81920")
    A.raw('.amdgcn_target "amdgcn-amd-amdhsa--gfx950"')
    A.raw(".text")
    emit_g1_kernel(A)
    A.raw('.section .rodata,"a"'); A.raw(".p2align 6")
    A.raw(kernel_desc("g1_kernel", 256, 80, 256))
    open("g1_test.s", "w").write(A.text())
```

```python
from asmlib import *
from layout import *

SMF = "v_smfmac_f32_16x16x64_bf16"
MF32 = "v_mfma_f32_16x16x32_bf16"
MF16 = "v_mfma_f32_16x16x16_bf16"

SPIN_LIMIT = 60000
R_AT = 0
KX_L, AC_L, QKX_L, SEL_L, MISC_L, WV_L = 0, 16384, 26624, 30720, 31744, 32768
OX_L = AC_L + 5120
VX_L = 8192
NSLOT = 8
WB = 80
def FR(f): return R(WB + 8 * f, 8)
LSLOT = {("K", 0): 0, ("K", 2): 1, ("K", 4): 2, ("V", 1): 3, ("V", 3): 4, ("Q", 5): 5, ("O", 3): 6, ("O", 4): 7}
_res = [(m, j) for m in "QKV" for j in range(10) if (m, j) not in LSLOT] + [("O", t) for t in range(3)]
RIDX = {k: i for i, k in enumerate(_res)}
assert len(_res) == 27
def FX(m, j, T): return 2 * RIDX[(m, j)] + T
def AA(j): return 12 + 4 * j
GG, ACQ, ACK, ACV, TMP = 32, 40, 48, 56, 64
D_GAP = 2
DIS = 0
PUBSC = ""
KVSC = ""
TRACE_STEP = 40
MEGA = False
NEARSEL = None
FAKEXCC = 0
KVPOS = 5
GREARLY = 0
WARM = 0
TW = 0
PFD = 0
DEPTH = 8

def emit_rec(A, instr=False, d_first=4, d_red=4, steps=64, exit_label="L_end", worker_label=None):
    e = A.e
    e("s_load_dwordx4 s[52:55], s[0:1], 16")
    e("s_load_dwordx4 s[56:59], s[0:1], 32")
    e("s_load_dwordx4 s[60:63], s[0:1], 96")
    e("v_lshrrev_b32 v11, 6, v0"); e("v_and_b32 v0, 63, v0"); e("v_readfirstlane_b32 s28, v11")
    e("s_waitcnt lgkmcnt(0)")
    for (d, s, n) in ((4, 62, WS_BYTES), (8, 52, 5242880), (12, 54, 5242880), (16, 56, 5242880), (20, 58, 5242880), (24, 60, 256)):
        e("s_mov_b32 s%d, s%d" % (d, s)); e("s_mov_b32 s%d, s%d" % (d + 1, s + 1)); e("s_mov_b32 s%d, 0x%x" % (d + 2, n)); e("s_mov_b32 s%d, 0x20000" % (d + 3))
    tick(A, 0, 20, 28)
    dtick(A, 8, 20, 's[24:27]')
    e("s_mov_b32 s74, 0")
    e("s_getreg_b32 s52, hwreg(HW_REG_XCC_ID)"); e("s_and_b32 s52, s52, 7")
    if FAKEXCC: e("s_cmp_lt_u32 s2, %d" % FAKEXCC); e("s_cmov_b32 s52, 3")
    e("s_lshl_b32 s53, s52, 4")
    e("v_mov_b32 v1, 1"); e("v_mov_b32 v2, s53"); e("v_mov_b32 v3, %d" % MISC_L); e("v_lshlrev_b32 v5, 4, v0")
    e("s_cmp_lg_u32 s28, 0"); e("s_cbranch_scc1 L_el_done")
    e("s_mov_b64 exec, 1")
    e("buffer_atomic_add v1, v2, s[24:27], 0 offen offset:%d sc0 sc1" % DBG_XC); e("s_waitcnt vmcnt(0)")
    e("v_readfirstlane_b32 s54, v1"); e("s_nop 3")
    e("s_lshl_b32 s55, s52, 5"); e("s_add_u32 s55, s55, s54")
    e("s_cmp_lt_u32 s54, 32"); e("s_cbranch_scc1 L_el_dec")
    e("v_mov_b32 v1, 1"); e("v_mov_b32 v2, 0")
    e("buffer_atomic_add v1, v2, s[24:27], 0 offen offset:%d sc0 sc1" % DBG_OVF); e("s_waitcnt vmcnt(0)")
    e("v_readfirstlane_b32 s54, v1")
    e("s_mov_b64 exec, 0xff")
    A.label("L_el_poll")
    e("buffer_load_dword v4, v5, s[24:27], 0 offen offset:%d sc1" % DBG_XC); e("s_waitcnt vmcnt(0)")
    e("s_mov_b32 s56, 0")
    for i in range(8):
        e("v_readlane_b32 s%d, v4, %d" % (64 + i, i))
    e("s_nop 3")
    for i in range(8): e("s_add_u32 s56, s56, s%d" % (64 + i))
    e("s_cmp_ge_u32 s56, 256"); e("s_cbranch_scc1 L_el_hole")
    e("s_add_u32 s74, s74, 1"); e("s_cmp_gt_u32 s74, %d" % SPIN_LIMIT); e("s_cbranch_scc1 L_abort")
    e("s_sleep 4"); e("s_branch L_el_poll")
    A.label("L_el_hole")
    for i in range(8):
        e("s_min_u32 s56, s%d, 32" % (64 + i)); e("s_sub_u32 s57, 32, s56")
        e("s_add_u32 s55, s56, s54"); e("s_add_u32 s55, s55, %d" % (32 * i))
        e("s_cmp_lt_u32 s54, s57"); e("s_cbranch_scc1 L_el_dec")
        e("s_sub_u32 s54, s54, s57")
    e("s_branch L_abort")
    A.label("L_el_dec")
    e("s_mov_b64 exec, 1")
    e("v_mov_b32 v1, s55")
    e("ds_write_b32 v3, v1"); e("s_waitcnt lgkmcnt(0)")
    e("s_mov_b64 exec, -1")
    A.label("L_el_done")
    e("s_barrier")
    e("ds_read_b32 v4, v3"); e("s_waitcnt lgkmcnt(0)")
    e("v_readfirstlane_b32 s55, v4"); e("s_nop 3")
    e("s_barrier")
    e("s_add_u32 s41, s4, 0x%x" % (MR2_OFF + 0x1fffff)); e("s_and_b32 s41, s41, 0xffe00000"); e("s_sub_u32 s41, s41, s4")
    e("s_cmp_lg_u32 s55, 64"); e("s_cbranch_scc1 L_pr_done")
    e("s_cmp_lg_u32 s28, 0"); e("s_cbranch_scc1 L_pr_bar")
    e("s_mov_b64 exec, 1"); e("v_mov_b32 v12, 0"); e("v_mov_b32 v13, -1")
    e("s_add_u32 s52, s41, 0x%x" % (63 * 16384 + 6144)); e("s_add_u32 s53, s52, 8192")
    e("s_mov_b32 s56, -1"); e("s_mov_b32 s57, -1")
    for rep in range(4):
        for c in range(2):
            e("s_memtime s[64:65]"); e("s_waitcnt lgkmcnt(0)")
            e("buffer_store_dword v13, v12, s[4:7], s%d offen sc1" % (52 + c)); e("s_waitcnt vmcnt(0)")
            e("s_memtime s[66:67]"); e("s_waitcnt lgkmcnt(0)")
            e("s_sub_u32 s68, s66, s64"); e("s_min_u32 s%d, s%d, s68" % (56 + c, 56 + c))
    e("s_cmp_lt_u32 s57, s56"); e("s_cselect_b32 s52, 2, 1")
    e("v_mov_b32 v13, s52")
    e("buffer_store_dword v13, v12, s[24:27], 0 offen offset:%d sc1" % DBG_NEAR)
    e("s_mov_b64 exec, -1")
    A.label("L_pr_bar")
    e("s_barrier")
    A.label("L_pr_done")
    e("s_cmp_ge_u32 s55, 64"); e("s_cbranch_scc1 %s" % (worker_label or exit_label))
    e("s_lshr_b32 s29, s55, 5"); e("s_and_b32 s30, s55, 31")
    tick(A, 1, 20, 28)
    if MEGA: team_init(A)
    tick(A, 2, 20, 28)
    e("v_lshlrev_b32 v1, 4, v0")
    e("v_and_b32 v11, 1, v0"); e("v_cmp_eq_u32 vcc, 1, v11"); e("v_mov_b32 v2, 0x4444"); e("v_mov_b32 v11, 0xeeee"); e("v_cndmask_b32 v2, v2, v11, vcc")
    C, G, RR, CP, T0, T1 = 64, 65, 66, 67, 68, 69
    e("v_and_b32 v%d, 15, v0" % C); e("v_lshrrev_b32 v%d, 4, v0" % G)
    e("v_bfe_u32 v%d, v0, 2, 2" % RR); e("v_and_b32 v%d, 3, v0" % CP)
    e("v_and_b32 v%d, 1, v%d" % (T0, RR)); e("v_lshlrev_b32 v3, 4, v%d" % T0)
    e("v_lshrrev_b32 v%d, 1, v%d" % (T1, G)); e("v_lshl_add_u32 v3, v%d, 2, v3" % T1)
    e("v_lshrrev_b32 v%d, 1, v%d" % (T1, RR)); e("v_lshl_add_u32 v3, v%d, 1, v3" % T1)
    e("v_and_b32 v%d, 1, v%d" % (T1, G)); e("v_add_u32 v3, v3, v%d" % T1)
    e("v_lshlrev_b32 v3, 6, v3"); e("v_lshl_add_u32 v3, v%d, 3, v3" % CP); e("v_lshl_add_u32 v3, v%d, 5, v3" % T0)
    e("s_mul_i32 s52, s28, %d" % (NSLOT * 4096)); e("s_add_u32 s52, s52, %d" % WV_L)
    e("v_add_u32 v3, s52, v3"); e("v_xor_b32 v4, 32, v3")
    e("s_lshl_b32 s53, s28, 10"); e("s_add_u32 s53, s53, %d" % QKX_L)
    e("v_lshlrev_b32 v5, 5, v%d" % C); e("v_lshl_add_u32 v5, v%d, 3, v5" % G); e("v_add_u32 v5, s53, v5")
    e("v_lshlrev_b32 v6, 3, v0")
    e("v_lshrrev_b32 v%d, 2, v%d" % (T0, C)); e("v_and_b32 v%d, 1, v%d" % (T1, C)); e("v_lshl_add_u32 v%d, v%d, 1, v%d" % (T0, T0, T1))
    e("v_mul_u32_u24 v7, 320, v%d" % T0); e("v_lshl_add_u32 v7, v%d, 3, v7" % G)
    e("s_lshl_b32 s53, s28, 6"); e("s_add_u32 s53, s53, %d" % OX_L); e("v_add_u32 v7, s53, v7")
    e("v_lshrrev_b32 v%d, 1, v%d" % (T0, C)); e("v_mul_u32_u24 v8, 320, v%d" % T0); e("v_lshl_add_u32 v8, v%d, 5, v8" % G)
    e("v_lshl_add_u32 v8, v%d, 4, v8" % T1); e("v_add_u32 v8, %d, v8" % OX_L)
    e("v_lshlrev_b32 v9, 13, v%d" % G); e("v_lshrrev_b32 v%d, 3, v%d" % (T0, C)); e("v_lshl_add_u32 v9, v%d, 12, v9" % T0)
    e("v_and_b32 v%d, 7, v%d" % (T0, C)); e("v_lshl_add_u32 v9, v%d, 4, v9" % T0)
    e("s_lshl_b32 s42, s28, 5"); e("s_add_u32 s42, s42, s30")
    e("s_and_b32 s53, s42, 1"); e("s_lshl_b32 s53, s53, 3")
    e("v_add_u32 v%d, s53, v%d" % (T0, T0))
    e("v_lshrrev_b32 v10, 2, v%d" % T0); e("v_lshlrev_b32 v10, 8, v10")
    e("v_bfe_u32 v%d, v%d, 1, 1" % (T1, T0)); e("v_lshl_add_u32 v10, v%d, 4, v10" % T1)
    e("v_and_b32 v%d, 1, v%d" % (T1, T0)); e("v_lshl_add_u32 v10, v%d, 3, v10" % T1)
    e("v_and_b32 v%d, 1, v%d" % (T1, G)); e("v_lshl_add_u32 v10, v%d, 5, v10" % T1)
    e("s_bfe_u32 s53, s42, 0x20001"); e("s_lshl_b32 s53, s53, 6")
    e("s_lshr_b32 s54, s42, 3"); e("s_lshl_b32 s54, s54, 10"); e("s_add_u32 s53, s53, s54")
    e("v_add_u32 v10, s53, v10")
    e("s_lshl_b32 s53, s29, 18"); e("s_add_u32 s53, s53, 0x%x" % PB_OFF)
    e("s_lshl_b32 s54, s30, 7"); e("s_add_u32 s54, s54, s53")
    e("s_lshl_b32 s43, s28, 15"); e("s_add_u32 s43, s43, s54")
    e("s_lshl_b32 s44, s28, 2"); e("s_add_u32 s44, s44, s54"); e("s_add_u32 s44, s44, 0x20000")
    e("s_lshl_b32 s45, s42, 12"); e("s_add_u32 s45, s45, s53")
    e("s_lshl_b32 s53, s29, 19")
    e("s_add_u32 s38, s53, 0x%x" % ML_OFF)
    e("s_lshl_b32 s53, s29, 20")
    e("s_add_u32 s40, s53, s41")
    e("s_xor_b32 s53, s53, 0x100000"); e("s_add_u32 s39, s53, s41")
    e("s_lshl_b32 s53, s30, 20"); e("s_lshl_b32 s54, s28, 11"); e("s_add_u32 s53, s53, s54")
    e("s_add_u32 s46, s53, 0x%x" % KV_OFF); e("s_add_u32 s47, s46, 8192")
    e("s_lshr_b32 s54, s53, 1"); e("s_add_u32 s48, s54, 0x%x" % XV_OFF)
    e("s_lshl_b32 s53, s30, 19"); e("s_lshl_b32 s54, s28, 9"); e("s_add_u32 s49, s53, s54"); e("s_add_u32 s49, s49, 0x%x" % (XV_OFF + 4096))
    e("s_lshl_b32 s50, s28, 11")
    GE, GO, GW4, GW1 = 70, 71, 72, 73
    e("v_lshrrev_b32 v%d, 2, v0" % T0); e("v_lshlrev_b32 v%d, 13, v%d" % (GE, T0)); e("v_lshl_add_u32 v%d, v%d, 4, v%d" % (GE, CP, GE))
    e("s_lshl_b32 s53, s30, 8"); e("s_lshl_b32 s54, s28, 6"); e("s_add_u32 s53, s53, s54")
    e("v_add_u32 v%d, s53, v%d" % (GE, GE)); e("v_xor_b32 v%d, 32, v%d" % (GO, GE))
    e("v_lshrrev_b32 v%d, 1, v0" % T0); e("v_mul_u32_u24 v%d, 1280, v%d" % (GW1, T0)); e("v_and_b32 v%d, 1, v0" % T0); e("v_lshl_add_u32 v%d, v%d, 4, v%d" % (GW1, T0, GW1))
    e("s_mul_i32 s53, s30, 163840"); e("s_mul_i32 s54, s29, 640"); e("s_add_u32 s53, s53, s54")
    e("s_lshl_b32 s54, s28, 7"); e("s_add_u32 s54, s54, s53"); e("v_add_u32 v%d, s54, v%d" % (GW4, GW1))
    e("s_lshl_b32 s54, s28, 5"); e("s_add_u32 s54, s54, s53"); e("s_add_u32 s54, s54, 512"); e("v_add_u32 v%d, s54, v%d" % (GW1, GW1))
    e("v_lshrrev_b32 v%d, 1, v%d" % (T0, G)); e("v_lshlrev_b32 v%d, 4, v%d" % (T0, T0))
    e("v_lshrrev_b32 v%d, 1, v%d" % (T1, RR)); e("v_lshl_add_u32 v%d, v%d, 3, v%d" % (T0, T1, T0))
    e("v_and_b32 v%d, 1, v%d" % (T1, G)); e("v_lshl_add_u32 v%d, v%d, 2, v%d" % (T0, T1, T0))
    e("v_and_b32 v%d, 1, v%d" % (T1, RR)); e("v_add_u32 v%d, v%d, v%d" % (T0, T0, T1))
    e("v_lshlrev_b32 v0, 5, v%d" % T0); e("v_lshl_add_u32 v0, v%d, 3, v0" % CP); e("v_add_u32 v0, s52, v0")
    e("s_mul_i32 s53, s29, 5"); e("s_sub_u32 s54, 5, s53")
    for j in range(10):
        e("s_add_u32 s%d, s%d, %d" % (64 + j, 53 if j < 5 else 54, j % 5)); e("s_lshl_b32 s%d, s%d, 19" % (64 + j, 64 + j))
    e("v_mov_b32 v21, 0x3f80"); e("v_mov_b32 v22, 0x3f800000")
    e("v_cmp_gt_u32 vcc, 4, v%d" % C); e("s_nop 1"); e("v_cndmask_b32 v21, v22, v21, vcc")
    e("v_cmp_gt_u32 vcc, 8, v%d" % C); e("s_nop 1"); e("v_cndmask_b32 v21, 0, v21, vcc")
    for d in range(4):
        e("v_cmp_eq_u32 vcc, %d, v%d" % (d, CP)); e("s_nop 1"); e("v_cndmask_b32 v%d, 0, v21, vcc" % (16 + d))
    e("ds_write_b128 v1, v[16:19] offset:%d" % SEL_L)
    e("s_lshl_b32 s33, s28, 10"); e("s_lshl_b32 s34, s28, 8"); e("s_add_u32 s34, s34, 4096")
    items = list(_res)
    final = sorted(LSLOT, key=lambda k: LSLOT[k])
    def issue(it, slot):
        k, j = it
        for i in range(4):
            e("s_add_u32 m0, s52, %d" % (slot * 4096 + i * 1024))
            if k == "O":
                e("s_mov_b32 s53, %d" % (i * 32 * 1280 + (32 * j if j < 4 else 0)))
                e("buffer_load_dwordx4 v%d, s[20:23], s53 offen lds" % (GW4 if j < 4 else GW1))
            else:
                e("s_add_u32 s53, s%d, %d" % (64 + j, i * 16 * 8192))
                e("buffer_load_dwordx4 v%d, %s, s53 offen lds" % (GO if i & 1 else GE, {"Q": "s[8:11]", "K": "s[12:15]", "V": "s[16:19]"}[k]))
    def consume(it, slot):
        k, j = it
        for T in range(2):
            f = FX(k, j, T)
            for a in range(4):
                if k == "O": e("ds_read_b64_tr_b16 %s, v0 offset:%d" % (R(WB + 8 * f + 2 * a, 2), slot * 4096 + (64 * T + 32 * (a >> 1) + 2 * (a & 1)) * 32))
                else: e("ds_read_b64_tr_b16 %s, v%d offset:%d" % (R(WB + 8 * f + 2 * a, 2), 3 + T, slot * 4096 + 2048 * (a & 1) + 512 * (a >> 1)))
    order = [(it, n % NSLOT) for n, it in enumerate(items)]
    nreg = len(order)
    order += [(final[(nreg + i) % NSLOT], (nreg + i) % NSLOT) for i in range(NSLOT)]
    e("v_lshlrev_b32 v74, 2, v1")
    e("s_lshl_b32 s54, s30, 14"); e("s_lshl_b32 s55, s28, 12"); e("s_add_u32 s55, s55, s54")
    e("s_lshl_b32 s54, s28, 8"); e("s_add_u32 s54, s54, %d" % MISC_L)
    q = []
    def pf(n):
        if not PFD or n >= len(order) or order[n][0][0] == "O": return
        k, j = order[n][0]
        e("s_mov_b32 m0, s54"); e("s_add_u32 s53, s%d, s55" % (64 + j))
        e("buffer_load_dword v74, %s, s53 offen lds" % {"Q": "s[8:11]", "K": "s[12:15]", "V": "s[16:19]"}[k]); q.append(None)
    def iss(n):
        pf(n + PFD)
        issue(*order[n]); q.extend([n] * 4)
    if PFD:
        for n in range(PFD): pf(n)
    for n in range(DEPTH): iss(n)
    if MEGA: team_init_finish(A, len(q))
    for n in range(len(order)):
        if n < nreg:
            last = len(q) - 1 - q[::-1].index(n)
            e("s_waitcnt vmcnt(%d)" % (len(q) - 1 - last)); del q[:last + 1]
            consume(*order[n])
            e("s_waitcnt lgkmcnt(0)")
        if n + DEPTH < len(order): iss(n + DEPTH)
    e("s_waitcnt vmcnt(0)")
    e("v_add_u32 v11, s52, v1")
    for sl in range(NSLOT):
        k, j = final[sl]
        for T in range(2):
            for a in range(4):
                d = 16 + 8 * T + 2 * a
                if k == "O": e("ds_read_b64_tr_b16 v[%d:%d], v0 offset:%d" % (d, d + 1, sl * 4096 + (64 * T + 32 * (a >> 1) + 2 * (a & 1)) * 32))
                else: e("ds_read_b64_tr_b16 v[%d:%d], v%d offset:%d" % (d, d + 1, 3 + T, sl * 4096 + 2048 * (a & 1) + 512 * (a >> 1)))
        e("s_waitcnt lgkmcnt(0)")
        for q in range(4): e("ds_write_b128 v11, v[%d:%d] offset:%d" % (16 + 4 * q, 19 + 4 * q, sl * 4096 + 1024 * q))
    e("v_mov_b32 v3, v11")
    e("v_lshrrev_b32 v0, 2, v1")
    e("v_lshlrev_b32 v4, 2, v1")
    e("s_lshl_b32 s35, s28, 8"); e("s_add_u32 s35, s35, %d" % MISC_L)
    e("s_and_b32 s36, s42, 63"); e("s_lshl_b32 s36, s36, 7"); e("s_add_u32 s36, s36, 10240")
    e("s_lshl_b32 s50, s28, 12"); e("s_lshl_b32 s46, s30, 20"); e("s_add_u32 s46, s46, s50"); e("s_add_u32 s46, s46, 0x%x" % KV_OFF)
    e("s_lshl_b32 s56, s28, 10"); e("s_lshl_b32 s57, s28, 9")
    e("s_add_u32 s54, s57, 4096"); e("s_cmp_eq_u32 s29, 0"); e("s_cselect_b32 s54, s56, s54")
    e("s_lshl_b32 s48, s30, 19"); e("s_add_u32 s48, s48, s54"); e("s_add_u32 s48, s48, 0x%x" % (XV_OFF - 0x2000))
    e("s_lshl_b32 s47, s28, 11"); e("s_add_u32 s47, s47, %d" % VX_L)
    e("s_and_b32 s60, s28, 1"); e("s_lshl_b32 s60, s60, 13"); e("s_sub_u32 s61, s60, s50")
    e("s_lshl_b32 s63, s29, 7"); e("s_add_u32 s63, s63, s42"); e("s_xor_b32 s63, s63, %d" % (96 + 20))
    for r in range(ACQ, ACQ + 24): e("v_mov_b32 v%d, 0" % r)
    e("s_mov_b32 s32, 0")
    e("s_mov_b32 s51, 0x3e0293ee")
    tick(A, 3, 20, 28)
    dtick(A, 9, 20, 's[24:27]')
    A.label("L_md_poll")
    e("buffer_load_dword v11, v0, s[24:27], 0 offen sc1"); e("s_waitcnt vmcnt(0)")
    for i in range(8): e("v_readlane_b32 s%d, v11, %d" % (64 + i, DBG_XC // 4 + 4 * i))
    e("v_readlane_b32 s72, v11, %d" % (DBG_INIT // 4)); e("v_readlane_b32 s73, v11, %d" % (DBG_NEAR // 4))
    e("v_and_b32 v11, 0x3ff, v11"); e("v_cmp_le_u32 vcc, 128, v11"); e("s_nop 3")
    e("s_lshr_b32 s49, vcc_lo, %d" % (DBG_G1 // 4)); e("s_ff0_i32_b32 s49, s49")
    e("s_cmp_eq_u32 s49, 16"); e("s_cmov_b32 s49, 17")
    e("s_cmp_eq_u32 s73, 0"); e("s_cbranch_scc1 L_md_no")
    if MEGA:
        e("s_cmp_lt_u32 s72, 64"); e("s_cbranch_scc1 L_md_no")
        e("s_cmp_eq_u32 s49, 0"); e("s_cbranch_scc1 L_md_no")
    e("s_mov_b32 s31, 0")
    e("s_min_u32 s53, s64, s65"); e("s_cmp_ge_u32 s53, 32"); e("s_cbranch_scc1 L_md_ok")
    e("s_mov_b32 s31, 1"); e("s_mov_b32 s53, 0")
    for i in range(8): e("s_add_u32 s53, s53, s%d" % (64 + i))
    e("s_cmp_ge_u32 s53, 256"); e("s_cbranch_scc1 L_md_ok")
    A.label("L_md_no")
    e("s_add_u32 s74, s74, 1"); e("s_cmp_gt_u32 s74, %d" % SPIN_LIMIT); e("s_cbranch_scc1 L_abort")
    e("s_sleep 4"); e("s_branch L_md_poll")
    A.label("L_md_ok")
    if NEARSEL is None:
        e("s_sub_u32 s73, s73, 1"); e("s_lshl_b32 s73, s73, 13")
    else:
        e("s_sub_u32 s73, s73, 1"); e("s_xor_b32 s73, s73, 1"); e("s_lshl_b32 s73, s73, 13")
    e("s_add_u32 s39, s39, s73"); e("s_add_u32 s40, s40, s73")
    e("s_waitcnt vmcnt(0)")
    e("s_barrier")
    if instr in (1, 2):
        for r in range(80, 96): e("s_mov_b32 s%d, 0" % r)
        e("s_memtime s[76:77]"); e("s_waitcnt lgkmcnt(0)"); e("s_mov_b32 s78, s76"); e("s_mov_b32 s95, s76")
    TP = [64, 66, 68, 70, 72] + list(range(76, 102, 2))
    tstate = {"n": 0}
    def stamp(i, fine=False):
        if not instr: return
        if instr == 5:
            if i == 6:
                l = A.newlabel("Lst")
                e("s_cmp_lg_u32 s28, 3"); e("s_cbranch_scc1 %s" % l)
                e("s_memtime s[76:77]"); e("s_waitcnt lgkmcnt(0)")
                e("s_lshl_b32 s53, s29, 5"); e("s_add_u32 s53, s53, s30"); e("s_lshl_b32 s53, s53, 6"); e("s_add_u32 s53, s53, s32"); e("s_lshl_b32 s53, s53, 3"); e("s_add_u32 s53, s53, 0x%x" % ST_OFF)
                e("s_mov_b64 exec, 1"); e("v_mov_b32 v12, s76"); e("v_mov_b32 v13, s74"); e("buffer_store_dwordx2 v[12:13], v0, s[4:7], s53 offen"); e("s_mov_b64 exec, -1")
                A.label(l)
            return
        if instr == 4:
            if i == 8:
                l = A.newlabel("Lst")
                e("s_cmp_lg_u32 s32, 2"); e("s_cbranch_scc1 %s" % l)
                e("s_memtime s[76:77]"); e("s_memrealtime s[78:79]")
                A.label(l)
                l = A.newlabel("Lst")
                e("s_cmp_lg_u32 s32, 62"); e("s_cbranch_scc1 %s" % l)
                e("s_memtime s[80:81]"); e("s_memrealtime s[82:83]"); e("s_waitcnt lgkmcnt(0)")
                e("s_sub_u32 s80, s80, s76"); e("s_sub_u32 s82, s82, s78")
                e("s_lshl_b32 s53, s29, 5"); e("s_add_u32 s53, s53, s30"); e("s_lshl_b32 s53, s53, 2"); e("s_add_u32 s53, s53, s28"); e("s_lshl_b32 s53, s53, 7"); e("s_add_u32 s53, s53, 0x%x" % ST_OFF)
                e("v_mov_b32 v37, 0"); e("v_mov_b32 v11, s80"); e("buffer_store_dword v11, v37, s[4:7], s53 offen")
                e("v_mov_b32 v11, s82"); e("buffer_store_dword v11, v37, s[4:7], s53 offen offset:4")
                A.label(l)
            return
        if instr == 3:
            n = tstate["n"]
            e("s_memtime s[%d:%d]" % (TP[n], TP[n] + 1)); A.c("stamp %d (%s)" % (n, i))
            tstate["n"] = n + 1
            if i == 8:
                l = A.newlabel("Lst")
                e("s_cmp_lg_u32 s32, %d" % TRACE_STEP); e("s_cbranch_scc1 %s" % l)
                e("s_waitcnt lgkmcnt(0)")
                e("s_lshl_b32 s53, s29, 5"); e("s_add_u32 s53, s53, s30"); e("s_lshl_b32 s53, s53, 2"); e("s_add_u32 s53, s53, s28"); e("s_lshl_b32 s53, s53, 7"); e("s_add_u32 s53, s53, 0x%x" % ST_OFF)
                e("v_mov_b32 v37, 0")
                for k in range(tstate["n"]):
                    e("v_mov_b32 v11, s%d" % TP[k]); e("buffer_store_dword v11, v37, s[4:7], s53 offen offset:%d" % (4 * k))
                A.label(l)
                tstate["n"] = 0
            return
        if fine: return
        if instr == 2:
            l = A.newlabel("Lst")
            e("s_cmp_lg_u32 s32, %d" % TRACE_STEP); e("s_cbranch_scc1 %s" % l)
            e("s_memrealtime s[76:77]"); e("s_waitcnt lgkmcnt(0)"); e("s_mov_b32 s%d, s76" % (80 + i))
            A.label(l)
            return
        e("s_memtime s[76:77]"); e("s_waitcnt lgkmcnt(0)")
        e("s_sub_u32 s79, s76, s78"); e("s_add_u32 s%d, s%d, s79" % (80 + i, 80 + i)); e("s_mov_b32 s78, s76")
        if i == 8:
            l = A.newlabel("Lst")
            e("s_cmp_lg_u32 s32, 3"); e("s_cbranch_scc1 %s" % l)
            for r in range(80, 95): e("s_mov_b32 s%d, 0" % r)
            e("s_mov_b32 s95, s76")
            A.label(l)
    if KVPOS in (1, 2, 4, 5):
        e("s_mov_b32 m0, s50"); e("s_nop 0")
        for i in range(4): e("buffer_load_dwordx4 v1, s[4:7], s46 offen offset:%d%s lds" % (1024 * i, KVSC))
    tick(A, 4, 20, 28)
    dtick(A, 10, 20, 's[24:27]')
    e("s_cmp_lg_u32 s31, 0"); e("s_cbranch_scc1 L_loop_slow")
    for mode in ("fast", "slow"):
        sc = "" if mode == "fast" else " sc1"
        A.label("L_loop_" + mode)
        for par in (1, 0):
            emit_step(A, par, sc, stamp, d_first, d_red, instr in (1, 2))
        if TICK["on"]:
            e("s_lshr_b32 s99, s32, 1"); tick(A, 5, 12, 28, 99)
        e("s_cmp_lt_u32 s32, %d" % steps); e("s_cbranch_scc1 L_loop_" + mode)
        e("s_branch L_rec_done")
    A.label("L_rec_last")
    e("s_barrier")
    e("s_cmp_eq_u32 s29, 0"); e("s_cbranch_scc1 L_rec_l2")
    e("v_add_u32 v11, s56, v0")
    e("ds_write_b32 v11, v76 offset:%d" % QKX_L); e("ds_write_b32 v11, v78 offset:%d" % (QKX_L + 256))
    A.label("L_rec_l2")
    e("s_mov_b32 s32, 64")
    A.label("L_rec_done")
    publish(A)
    if MEGA:
        e("s_waitcnt vmcnt(0)"); e("s_barrier")
        signal_fin(A)
        dtick(A, 11, 20, 's[24:27]')
    if instr in (1, 2):
        e("s_memtime s[76:77]"); e("s_waitcnt lgkmcnt(0)"); e("s_sub_u32 s95, s76, s95")
        e("s_lshl_b32 s53, s29, 5"); e("s_add_u32 s53, s53, s30"); e("s_lshl_b32 s53, s53, 2"); e("s_add_u32 s53, s53, s28"); e("s_lshl_b32 s53, s53, 6"); e("s_add_u32 s53, s53, 0x%x" % ST_OFF)
        e("v_mov_b32 v0, 0")
        for i in range(16):
            e("v_mov_b32 v11, s%d" % (80 + i)); e("buffer_store_dword v11, v0, s[4:7], s53 offen offset:%d" % (4 * i))

    e("s_branch %s" % exit_label)
    A.label("L_abort")
    e("s_mov_b64 exec, 1")
    e("v_mov_b32 v0, %d" % DBG_ABORT); e("v_mov_b32 v11, 1")
    e("buffer_store_dword v11, v0, s[24:27], 0 offen")

def fload(A, dst, slot, T):
    for q in range(2):
        A.e("ds_read_b128 v[%d:%d], v3 offset:%d" % (dst + 4 * q, dst + 4 * q + 3, slot * 4096 + 2048 * T + 1024 * q))

def team_init(A):
    e = A.e
    e("s_load_dwordx2 s[52:53], s[0:1], 8")
    e("s_lshl_b32 s54, s28, 6"); e("v_add_u32 v12, s54, v0")
    e("v_lshlrev_b32 v13, 4, v12")
    for i in range(12): e("v_mov_b32 v%d, -1" % (16 + i))
    e("s_waitcnt lgkmcnt(0)")
    e("s_mov_b32 s56, s52"); e("s_mov_b32 s57, s53"); e("s_mov_b32 s58, 10240"); e("s_mov_b32 s59, 0x20000")
    e("s_cmp_lg_u32 s30, 0"); e("s_cbranch_scc1 L_ti_st")
    e("s_mul_i32 s54, s29, 640")
    e("v_bfe_u32 v14, v12, 1, 3"); e("v_mul_u32_u24 v14, 1280, v14")
    e("v_bfe_u32 v15, v12, 4, 2"); e("v_lshl_add_u32 v14, v15, 3, v14")
    e("v_and_b32 v15, 1, v12"); e("v_lshl_add_u32 v14, v15, 2, v14")
    e("v_lshrrev_b32 v15, 6, v12"); e("v_lshl_add_u32 v15, v15, 7, v14")
    for t in range(4): e("buffer_load_dword v%d, v15, s[56:59], s54 offen offset:%d" % (28 + t, 32 * t))
    for t in range(4): e("buffer_load_dword v%d, v14, s[56:59], s54 offen offset:%d" % (36 + t, 512 + 32 * t))
    e("s_mov_b32 s52, 0x05040100"); e("s_mov_b32 s53, 0x07060302")
    e("s_waitcnt vmcnt(0)")
    for half in range(2):
        d = 16 + 4 * half; q = 28 + 8 * half
        if half == 1: e("s_cmp_lg_u32 s28, 0"); e("s_cbranch_scc1 L_ti_st")
        e("v_perm_b32 v%d, v%d, v%d, s52" % (d, q + 1, q)); e("v_perm_b32 v%d, v%d, v%d, s52" % (d + 1, q + 3, q + 2))
        e("v_perm_b32 v%d, v%d, v%d, s53" % (d + 2, q + 1, q)); e("v_perm_b32 v%d, v%d, v%d, s53" % (d + 3, q + 3, q + 2))
        for i in range(4): e("v_min_u32 v%d, -2, v%d" % (d + i, d + i))
    A.label("L_ti_st")
    e("s_lshl_b32 s52, s29, 19"); e("s_mul_i32 s53, s30, 12288"); e("s_add_u32 s52, s52, s53")
    for i in range(3):
        e("s_add_u32 s53, s52, 0x%x" % (ML_OFF + 4096 * i))
        e("buffer_store_dwordx4 v[%d:%d], v13, s[4:7], s53 offen sc1" % (16 + 4 * i, 19 + 4 * i))
    e("s_lshl_b32 s52, s29, 20"); e("s_lshl_b32 s53, s30, 15"); e("s_add_u32 s52, s52, s53"); e("s_add_u32 s52, s52, s41")
    for i in range(8):
        d = 16 + 4 * (i & 1) if i < 4 else 24
        e("s_add_u32 s53, s52, %d" % (4096 * i))
        e("buffer_store_dwordx4 v[%d:%d], v13, s[4:7], s53 offen sc1" % (d, d + 3))
    for i in range(4): e("v_mov_b32 v%d, 0" % (32 + i))
    e("s_lshl_b32 s52, s29, 18"); e("s_lshl_b32 s53, s30, 13"); e("s_add_u32 s52, s52, s53")
    for i in range(2):
        e("s_add_u32 s53, s52, 0x%x" % (PB_OFF + 4096 * i))
        e("buffer_store_dwordx4 v[32:35], v13, s[4:7], s53 offen sc1")
    e("s_lshl_b32 s52, s29, 5"); e("s_add_u32 s52, s52, s30"); e("s_lshl_b32 s52, s52, 8"); e("s_add_u32 s52, s52, 0x%x" % CT_OFF)
    e("v_lshlrev_b32 v14, 2, v0")
    e("buffer_store_dword v32, v14, s[4:7], s52 offen sc1")

def team_init_finish(A, younger):
    e = A.e
    e("s_waitcnt vmcnt(%d)" % younger); e("s_barrier")
    e("s_cmp_lg_u32 s28, 0"); e("s_cbranch_scc1 L_ti_done")
    e("s_mov_b64 exec, 1"); e("v_mov_b32 v14, %d" % DBG_INIT); e("v_mov_b32 v15, 1")
    e("buffer_atomic_add v15, v14, s[24:27], 0 offen sc1")
    e("s_mov_b64 exec, -1")
    A.label("L_ti_done")

def kv_poll(A, need_sreg):
    e = A.e
    lp = A.newlabel("Lkv"); ok = A.newlabel("Lkvok")
    e("s_cmp_lt_u32 s%d, s49" % need_sreg); e("s_cbranch_scc1 %s" % ok)
    A.label(lp)
    e("buffer_load_dword v11, v0, s[24:27], 0 offen offset:%d sc1" % DBG_G1); e("s_waitcnt vmcnt(0)")
    e("v_and_b32 v11, 0x3ff, v11"); e("v_cmp_le_u32 vcc, 128, v11"); e("s_nop 3")
    e("s_and_b32 s49, vcc_lo, 0xffff"); e("s_ff0_i32_b32 s49, s49")
    e("s_cmp_eq_u32 s49, 16"); e("s_cmov_b32 s49, 17")
    e("s_cmp_lt_u32 s%d, s49" % need_sreg); e("s_cbranch_scc1 %s" % ok)
    e("s_add_u32 s74, s74, 1"); e("s_cmp_gt_u32 s74, %d" % SPIN_LIMIT); e("s_cbranch_scc1 L_abort")
    e("s_sleep 8"); e("s_branch %s" % lp)
    A.label(ok)

def signal_prog(A):
    e = A.e
    l = A.newlabel("Lsg")
    e("s_cmp_lg_u32 s63, 0"); e("s_cbranch_scc1 %s" % l)
    e("s_max_u32 s53, s32, 2"); e("s_sub_u32 s53, s53, 2")
    e("s_mov_b64 exec, 1"); e("v_mov_b32 v11, s53"); e("s_mov_b32 s53, 0x%x" % CT_OFF)
    e("buffer_store_dword v11, v0, s[4:7], s53 offen sc1")
    e("s_mov_b64 exec, -1")
    A.label(l)

def signal_fin(A):
    e = A.e
    l = A.newlabel("Lsg")
    e("s_cmp_lg_u32 s28, 0"); e("s_cbranch_scc1 %s" % l)
    e("s_lshl_b32 s53, s30, 7"); e("s_lshl_b32 s54, s29, 2"); e("s_add_u32 s53, s53, s54"); e("s_add_u32 s53, s53, 0x%x" % (CT_OFF + 128))
    e("s_mov_b64 exec, 1"); e("v_mov_b32 v11, 1")
    e("buffer_store_dword v11, v0, s[4:7], s53 offen sc1")
    e("s_mov_b64 exec, -1")
    A.label(l)

def publish(A, lds=None, wait_for=None, mm=None):
    e = A.e
    e("v_add_u32 v36, s56, v6")
    e("ds_read_b64_tr_b16 v[32:33], v36 offset:%d" % QKX_L); e("ds_read_b64_tr_b16 v[34:35], v36 offset:%d" % (QKX_L + 512))
    e("ds_read_b64 v[38:39], v36 offset:%d" % QKX_L)
    if lds: lds("PB", 3)
    seq = (6, 7, 9, 5, 8) if mm else (9,)
    for j in seq:
        if mm:
            wait_for(("A", j))
            for T in range(2): mm("Q", j, T)
        if j == 9:
            if mm: wait_for("PB")
            else: e("s_waitcnt lgkmcnt(0)")
            t1 = A.newlabel("Lt1"); tj = A.newlabel("Ltj")
            e("s_cmp_eq_u32 s32, 0"); e("s_cbranch_scc1 %s" % tj)
            e("s_cmp_lg_u32 s29, 0"); e("s_cbranch_scc1 %s" % t1)
            if not DIS & 1: e("buffer_store_dwordx4 v[32:35], v1, s[4:7], s48 offen%s" % PUBSC)
            e("s_branch %s" % tj)
            A.label(t1)
            if not DIS & 1: e("buffer_store_dwordx2 v[38:39], v6, s[4:7], s48 offen%s" % PUBSC)
            A.label(tj)
            e("s_add_u32 s48, s48, 0x2000")

def emit_step(A, par, sc, stamp, d_first, d_red, instr):
    e = A.e
    KXC = KX_L
    ACC = {"Q": ACQ, "K": ACK, "V": ACV}
    def smf(acc, a, b): e("%s v[%d:%d], %s, %s, v2" % (SMF, acc, acc + 3, vr(a, 4), b))
    def spin():
        e("s_add_u32 s74, s74, 1"); e("s_cmp_gt_u32 s74, %d" % SPIN_LIMIT); e("s_cbranch_scc1 L_abort")
    def gl_load(reg, s):
        e("buffer_load_dwordx4 v[%d:%d], v37, s[4:7], s%d offen sc1" % (reg, reg + 3, s))
        e("buffer_load_dword v%d, v38, s[4:7], s%d offen sc1" % (reg + 4, s))
    def gl_check(reg):
        e("v_max3_u32 v11, v%d, v%d, v%d" % (reg, reg + 1, reg + 2)); e("v_max3_u32 v11, v11, v%d, v%d" % (reg + 3, reg + 4))
        e("v_cmp_eq_u32 vcc, -1, v11")
    def gl_write(reg, half):
        e("ds_write_b128 v37, v[%d:%d] offset:%d" % (reg, reg + 3, AC_L + 5120 * half))
        e("ds_write_b32 v38, v%d offset:%d" % (reg + 4, AC_L + 5120 * half))
    Lseq = [(m, j, T) for (m, j) in [("K", 0), ("K", 2), ("K", 4), ("V", 1), ("V", 3), ("Q", 5)] for T in range(2)]
    lstate = {"issued": 0, "other": 0}
    pend = []
    def lds(tag, n=1):
        pend.extend([tag] * n)
    def wait_for(tag):
        if tag not in pend: return
        last = len(pend) - 1 - pend[::-1].index(tag)
        n = len(pend) - 1 - last
        e("s_waitcnt lgkmcnt(%d)" % n)
        del pend[:last + 1]
    def wait_all():
        e("s_waitcnt lgkmcnt(0)"); del pend[:]
    def Lissue():
        i = lstate["issued"]
        if i >= len(Lseq): return
        m, j, T = Lseq[i]
        fload(A, TMP + 8 * (i % 2), LSLOT[(m, j)], T); lds(("L", i), 2)
        lstate["issued"] = i + 1
    def mm(m, j, T):
        a = AA(j % 5)
        if (m, j) in LSLOT:
            i = Lseq.index((m, j, T))
            wait_for(("L", i))
            smf(ACC[m] + 4 * T, a, vr(TMP + 8 * (i % 2), 8))
            Lissue()
        else:
            smf(ACC[m] + 4 * T, a, FR(FX(m, j, T)))
    def rdA(j):
        e("ds_read_b128 v[%d:%d], v1 offset:%d" % (AA(j % 5), AA(j % 5) + 3, AC_L + 1024 * j)); lds(("A", j))
    def zero(lo, hi):
        for r in range(lo, hi, 2): e("v_mov_b64 v[%d:%d], 0" % (r, r + 1))
    e("v_add_u32 v37, s33, v1"); e("v_add_u32 v38, s34, v0")
    if d_first: e("s_sleep %d" % d_first)
    GA, GB = 12, 20
    gl_load(GA, 38)
    stamp("issueA", True)
    if D_GAP: e("s_sleep %d" % D_GAP)
    e("s_mov_b32 m0, s50")
    gl_load(GB, 38)
    for i in range(4):
        if KVPOS == 0: e("buffer_load_dwordx4 v1, s[4:7], s46 offen offset:%d%s lds" % (1024 * i, KVSC))
    lp = A.newlabel("Lgl"); okA = A.newlabel("LglA"); okB = A.newlabel("LglB"); ok = A.newlabel("Lglok"); re = A.newlabel("Lglre")
    e("s_waitcnt vmcnt(%d)" % (2 if KVPOS else 6))
    A.label(lp)
    gl_check(GA); e("s_cbranch_vccnz %s" % re)
    gl_write(GA, 0)
    A.label(ok)
    lds("W", 2)
    stamp("gotL", True)
    if GREARLY: gl_load(GG, 39)
    Lissue(); Lissue()
    wait_for("W")
    stamp(0)
    e("s_barrier")
    e("s_waitcnt vmcnt(%d)" % (2 if GREARLY else 0))
    stamp("B4", True)
    for j in range(5): rdA(j)
    if not GREARLY: gl_load(GG, 39)
    if KVPOS == 3:
        for i in range(4): e("buffer_load_dwordx4 v1, s[4:7], s46 offen offset:%d%s lds" % (1024 * i, KVSC))
    for j in range(5):
        wait_for(("A", j))
        if j % 2 == 0: order = [("K", 0), ("Q", 0), ("Q", 1), ("K", 1)]
        else: order = [("Q", 0), ("K", 0), ("Q", 1), ("K", 1)]
        for m, T in order: mm(m, j, T)

    stamp(1)
    lpr = A.newlabel("Lgr"); rer = A.newlabel("Lgrre")
    e("s_waitcnt vmcnt(%d)" % (4 if KVPOS == 3 else 0))
    A.label(lpr)
    gl_check(GG); e("s_cbranch_vccnz %s" % rer)
    gl_write(GG, 1); lds("W", 2)
    stamp(9)
    mm("V", 0, 0)
    if MEGA and not par:
        e("s_add_u32 s54, s32, %d" % (3 if KVPOS in (1, 2, 4, 5) else 1)); e("s_lshr_b32 s54, s54, 2")
        kv_poll(A, 54)
    if KVPOS == 3:
        mm("V", 0, 1); e("s_waitcnt vmcnt(0)")
    e("s_mov_b32 m0, s35"); e("s_add_u32 s46, s46, 0x4000")
    if KVPOS in (1, 2, 4, 5):
        e("s_add_u32 s53, s46, 0x4000"); e("buffer_load_dword v4, s[4:7], s53 offen%s lds" % KVSC)
    else: e("buffer_load_dword v4, s[4:7], s46 offen%s lds" % KVSC)
    mm("V", 1, 0)
    nml = A.newlabel("Lnml")
    e("s_cmp_lg_u32 s30, 31"); e("s_cbranch_scc1 %s" % nml)
    e("s_add_u32 s54, s38, s50"); e("s_add_u32 s54, s54, 10240")
    e("buffer_load_dword v4, s[4:7], s54 offen lds")
    A.label(nml)
    if KVPOS != 3: mm("V", 0, 1)
    mm("V", 1, 1)
    wait_for("W")
    e("s_barrier")
    stamp("B5", True)
    rdA(5); rdA(6)
    if MEGA: signal_prog(A)
    VXR = GG
    mm("V", 2, 0); mm("V", 2, 1); rdA(7)
    mm("V", 4, 0); mm("V", 4, 1); rdA(9)
    mm("V", 3, 0); mm("V", 3, 1); rdA(8)
    publish(A, lds, wait_for, mm)
    for j in range(5, 10):
        for T in range(2):
            mm("K", j, T)
            if j < 7:
                ks = 2 * (j - 5) + T
                e("ds_read_b128 v[%d:%d], v1 offset:%d" % (TMP + 4 * ks, TMP + 3 + 4 * ks, KXC + 4096 + 1024 * ks)); lds("K1")
            if j == 8:
                q = ACQ + 4 * T
                e("v_add_f32 v%d, v%d, v%d" % (q, q, q + 1)); e("v_add_f32 v%d, v%d, v%d" % (q + 2, q + 2, q + 3))
            if j == 9:
                q = ACQ + 4 * T
                e("v_cvt_pk_bf16_f32 v%d, v%d, v%d" % (q + 1, q, q + 2))
    stamp(2)
    if TW & 1:
        for T in range(2): mm("V", 5, T)
        e("s_nop 3")
        for T in range(2):
            q, k = ACQ + 4 * T, ACK + 4 * T
            e("v_add_f32 v%d, v%d, v%d" % (k, k, k + 1)); e("v_add_f32 v%d, v%d, v%d" % (k + 2, k + 2, k + 3))
            if T == 0: mm("V", 6, 0)
            e("v_cvt_pk_bf16_f32 v%d, v%d, v%d" % (q, k, k + 2))
            e("ds_write_b64 v5, v[%d:%d] offset:%d" % (q, q + 1, 512 * T)); lds("W")
        mm("V", 6, 1)
    else:
        for j in (5, 6):
            for T in range(2): mm("V", j, T)
        e("s_nop 1")
        for T in range(2):
            q, k = ACQ + 4 * T, ACK + 4 * T
            e("v_add_f32 v%d, v%d, v%d" % (k, k, k + 1)); e("v_add_f32 v%d, v%d, v%d" % (k + 2, k + 2, k + 3))
            e("v_cvt_pk_bf16_f32 v%d, v%d, v%d" % (q, k, k + 2))
            e("ds_write_b64 v5, v[%d:%d] offset:%d" % (q, q + 1, 512 * T)); lds("W")
    for j in (7, 8):
        for T in range(2): mm("V", j, T)
    wait_all()
    e("s_barrier")
    stamp("B1", True)
    X, KT0 = 12, 40
    for ks in range(4):
        for a in range(2): e("ds_read_b64_tr_b16 v[%d:%d], v6 offset:%d" % (X + 4 * ks + 2 * a, X + 4 * ks + 2 * a + 1, QKX_L + 1024 * ks + 512 * a))
        lds(("X", ks), 2)
        if ks == 1: mm("V", 9, 0)
        if ks == 3: mm("V", 9, 1)
    if not TW & 2:
        for ks in range(4): e("ds_read_b128 v[%d:%d], v1 offset:%d" % (KT0 + 4 * ks, KT0 + 3 + 4 * ks, KXC + 1024 * ks)); lds("K0")
        e("v_add_u32 v11, s47, v1")
        e("ds_read_b128 v[32:35], v11"); e("ds_read_b128 v[36:39], v11 offset:1024"); lds("VX", 2)
    else: e("v_add_u32 v11, s47, v1")
    stamp(3)
    S2, S0, S1 = 28, 64, 68
    for ks in range(4):
        wait_for(("X", ks))
        e("%s v[%d:%d], %s, %s, %s" % (MF32, S2, S2 + 3, vr(TMP + 4 * ks, 4), vr(X + 4 * ks, 4), "0" if ks == 0 else vr(S2, 4)))
        if TW & 2:
            e("ds_read_b128 v[%d:%d], v1 offset:%d" % (KT0 + 4 * ks, KT0 + 3 + 4 * ks, KXC + 1024 * ks)); lds("K0")
    if TW & 2:
        e("ds_read_b128 v[32:35], v11"); e("ds_read_b128 v[36:39], v11 offset:1024"); lds("VX", 2)
    for ks in range(4):
        e("%s v[%d:%d], %s, %s, %s" % (MF32, S0, S0 + 3, vr(X + 4 * ks, 4), vr(X + 4 * ks, 4), "0" if ks == 0 else vr(S0, 4)))
    wait_all()
    if KVPOS in (4, 5): e("s_mov_b32 m0, s50"); e("s_barrier")
    VM = 76
    for ks in range(4):
        e("%s v[%d:%d], %s, %s, %s" % (MF32, S1, S1 + 3, vr(KT0 + 4 * ks, 4), vr(X + 4 * ks, 4), "0" if ks == 0 else vr(S1, 4)))
        if KVPOS == 4 or (KVPOS == 5 and ks >= 2): e("buffer_load_dwordx4 v1, s[4:7], s46 offen offset:%d%s lds" % (1024 * ks, KVSC))
        if ks < 2:
            v = ACV + 4 * ks
            e("v_add_f32 v%d, v%d, v%d" % (v, v, v + 1)); e("v_add_f32 v%d, v%d, v%d" % (v + 2, v + 2, v + 3))
        else:
            v = ACV + 4 * (ks - 2)
            e("v_cvt_pk_bf16_f32 v%d, v%d, v%d" % (VM + 2 * (ks - 2), v, v + 2)); e("v_mov_b32 v%d, 0" % (VM + 1 + 2 * (ks - 2)))
    if not par:
        e("s_cmp_eq_u32 s32, 63"); e("s_cbranch_scc1 L_rec_last")
    fload(A, 40, 7, 0); fload(A, 48, 7, 1); lds("O4", 4)
    e("v_max3_f32 v11, v%d, v%d, v%d" % (S2, S2 + 1, S2 + 2)); e("v_max3_f32 v11, v11, v%d, v%d" % (S2 + 3, S0))
    P1, P0, ONES, OA, LS = 12, 16, 20, 56, 24
    e("v_max3_f32 v11, v11, v%d, v%d" % (S0 + 1, S1)); e("v_max3_f32 v11, v11, v%d, v%d" % (S1 + 1, S1 + 2))
    e("v_max_f32 v11, v11, v%d" % (S1 + 3)); e("v_mov_b32 v66, v11")
    e("v_mov_b32 v%d, 0x3f803f80" % ONES); e("v_mov_b32 v%d, 0x3f803f80" % (ONES + 1))
    e("v_permlane16_swap_b32 v11, v66"); e("v_max_f32 v11, v11, v66"); e("v_mov_b32 v66, v11")
    e("v_mov_b64 v[%d:%d], v[%d:%d]" % (ONES + 2, ONES + 3, ONES, ONES + 1)); e("v_mov_b32 v%d, 0" % (P0 + 1))
    e("v_permlane32_swap_b32 v11, v66"); e("v_max_f32 v11, v11, v66")
    e("v_mul_f32 v11, s51, v11")
    vals = [S0, S0 + 1] + [S1 + i for i in range(4)] + [S2 + i for i in range(4)]
    for i, v in enumerate(vals):
        e("v_fma_f32 v%d, v%d, s51, -v11" % (v, v))
        if i >= 1: e("v_exp_f32 v%d, v%d" % (vals[i - 1], vals[i - 1]))
        if i == 3: e("v_cvt_pk_bf16_f32 v%d, v%d, v%d" % (P0, S0, S0 + 1))
        if i == 5:
            e("v_cvt_pk_bf16_f32 v%d, v%d, v%d" % (P1, S1, S1 + 1))
            e("%s v[%d:%d], %s, %s, 0" % (MF16, LS, LS + 3, vr(ONES, 2), vr(P0, 2)))
        if i == 6: e("%s v[%d:%d], %s, %s, 0" % (MF16, OA, OA + 3, vr(VM, 2), vr(P0, 2)))
        if i == 7:
            e("v_cvt_pk_bf16_f32 v%d, v%d, v%d" % (P1 + 1, S1 + 2, S1 + 3))
            e("%s v[%d:%d], %s, %s, 0" % (MF16, OA + 4, OA + 7, vr(VM + 2, 2), vr(P0, 2)))
    e("v_exp_f32 v%d, v%d" % (vals[9], vals[9]))
    e("v_cvt_pk_bf16_f32 v%d, v%d, v%d" % (P1 + 2, S2, S2 + 1)); e("v_cvt_pk_bf16_f32 v%d, v%d, v%d" % (P1 + 3, S2 + 2, S2 + 3))
    stamp(4)
    e("s_nop 1")
    stamp("vx", True)
    e("%s v[%d:%d], %s, %s, %s" % (MF32, LS, LS + 3, vr(ONES, 4), vr(P1, 4), vr(LS, 4)))
    for T in range(2): e("%s v[%d:%d], %s, %s, %s" % (MF32, OA + 4 * T, OA + 4 * T + 3, vr(VXR + 4 * T, 4), vr(P1, 4), vr(OA + 4 * T, 4)))
    WA = 12
    zero(12, 24)
    e("v_rcp_f32 v11, v%d" % LS)

    e("s_mov_b32 exec_lo, 0xcccccccc"); e("s_mov_b32 exec_hi, 0xcccccccc")
    for T in range(2):
        o = OA + 4 * T
        for i in range(4): e("v_mul_f32 v%d, v%d, v11" % (o + i, o + i))
        e("v_cvt_pk_bf16_f32 v%d, v%d, v%d" % (o, o, o + 1)); e("v_cvt_pk_bf16_f32 v%d, v%d, v%d" % (o + 1, o + 2, o + 3))
        e("ds_write_b64 v7, v[%d:%d] offset:%d" % (o, o + 1, 32 * T)); lds("W")
    e("s_mov_b64 exec, -1")
    fload(A, 32, 6, 0); fload(A, 64, 6, 1); lds("O3", 4)
    zero(24, 32)
    if KVPOS == 5:
        for i in range(2): e("buffer_load_dwordx4 v1, s[4:7], s46 offen offset:%d%s lds" % (1024 * i, KVSC))
    wait_for("W")
    stamp("preB2", True)
    e("s_barrier")
    stamp("B2", True)
    OF = 56
    for ks in range(2): e("ds_read_b128 v[%d:%d], v8 offset:%d" % (OF + 4 * ks, OF + 3 + 4 * ks, 128 * ks)); lds(("OF", ks))
    if KVPOS == 1:
        e("s_mov_b32 m0, s50"); e("s_nop 0")
        for i in range(4): e("buffer_load_dwordx4 v1, s[4:7], s46 offen offset:%d%s lds" % (1024 * i, KVSC))
    stamp(5)
    WF = {(4, 0): vr(40, 8), (4, 1): vr(48, 8), (3, 0): vr(32, 8), (3, 1): vr(64, 8)}
    for t in range(3):
        for ks in range(2): WF[(t, ks)] = FR(FX("O", t, ks))
    wait_for(("OF", 0))
    smf(WA + 16, OF, WF[(4, 0)])
    wait_for(("OF", 1))
    smf(WA + 16, OF + 4, WF[(4, 1)])
    tagop = (lambda d: "v_or_b32 v%d, 1, v%d" % (d, d)) if par else (lambda d: "v_and_b32 v%d, -2, v%d" % (d, d))
    def packl(t, dst):
        d = WA + 4 * t
        return ["v_add_f32 v%d, v%d, v%d" % (d, d, d + 1), "v_add_f32 v%d, v%d, v%d" % (d + 2, d + 2, d + 3),
                "v_cvt_pk_bf16_f32 v%d, v%d, v%d" % (dst, d, d + 2), tagop(dst)]
    for t in (0, 1, 2):
        for ks in range(2): smf(WA + 4 * t, OF + 4 * ks, WF[(t, ks)])
    e("s_nop 1")
    p4 = packl(4, 44)
    e(p4[0]); e(p4[1]); smf(WA + 12, OF, WF[(3, 0)]); e(p4[2]); e(p4[3]); smf(WA + 12, OF + 4, WF[(3, 1)])
    e("buffer_store_dword v44, v9, s[4:7], s44 offen%s" % sc)
    for t in range(4):
        for x in packl(t, 40 + t): e(x)
    e("buffer_store_dwordx4 v[40:43], v9, s[4:7], s43 offen%s" % sc)
    stamp(6)
    tv = A.newlabel("Ltv")
    e("s_cmp_eq_u32 s29, 0"); e("s_cbranch_scc1 %s" % tv)
    e("v_add_u32 v11, s56, v0")
    e("ds_write_b32 v11, v%d offset:%d" % (VM, QKX_L)); e("ds_write_b32 v11, v%d offset:%d" % (VM + 2, QKX_L + 256))
    A.label(tv)
    e("s_add_u32 s38, s38, 5120"); e("s_add_u32 s39, s39, 16384"); e("s_add_u32 s40, s40, 16384")
    e("ds_read_b128 v[28:31], v1 offset:%d" % SEL_L)
    if not WARM: zero(ACQ, ACQ + 24)
    nored = A.newlabel("Lnored"); join = A.newlabel("Ljoin")
    e("s_cmp_ge_u32 s42, 40"); e("s_cbranch_scc1 %s" % nored)
    if d_red: e("s_sleep %d" % d_red)
    op = "v_bitop3_b32 v11, v11, v%d, v%d bitop3:0x80" if par else "v_or3_b32 v11, v11, v%d, v%d"
    RA, RB = 64, 12
    def rload(b):
        for j in range(4): e("buffer_load_dwordx4 v[%d:%d], v1, s[4:7], s45 offen offset:%d sc1" % (b + 4 * j, b + 3 + 4 * j, 1024 * j))
        if instr: e("s_add_u32 s91, s91, 1")
    def rcheck(b):
        e("v_mov_b32 v11, %d" % par)
        for j in range(4):
            e("s_waitcnt vmcnt(%d)" % (7 - j))
            e("%s v[32:35], v[28:31], %s, %s" % (MF32, vr(b + 4 * j, 4), "0" if j == 0 else "v[32:35]"))
            e(op % (b + 4 * j, b + 4 * j + 1)); e(op % (b + 4 * j + 2, b + 4 * j + 3))
        e("v_and_b32 v11, 1, v11")
        e("v_cmp_ne_u32 vcc, %d, v11" % par)
    rload(RA)
    if WARM:
        e("s_waitcnt lgkmcnt(0)")
        for r in range(ACQ, ACQ + 10): e("v_mov_b32 v%d, 0" % r)
        for j in range(4):
            e("buffer_load_dwordx4 v[%d:%d], v1, s[4:7], s45 offen offset:%d sc1" % (RB + 4 * j, RB + 3 + 4 * j, 1024 * j))
            e("v_mov_b32 v%d, 0" % (ACQ + 10 + j))
        for r in range(ACQ + 14, ACQ + 24):
            e("v_mov_b32 v%d, 0" % r)
            if WARM > 1: e("s_nop %d" % (WARM - 2))
    else:
        if D_GAP: e("s_sleep %d" % D_GAP)
        rload(RB)
        e("s_waitcnt lgkmcnt(0)")
    lpd = A.newlabel("Lrd"); okd = A.newlabel("Lrdok"); A.label(lpd)
    rcheck(RA); e("s_cbranch_vccz %s" % okd); rload(RA)
    rcheck(RB); e("s_cbranch_vccz %s" % okd); rload(RB)
    spin()
    e("s_branch %s" % lpd)
    A.label(re)
    gl_load(GA, 38)
    if instr: e("s_add_u32 s90, s90, 1")
    e("s_waitcnt vmcnt(2)"); gl_check(GB); e("s_cbranch_vccz %s" % okB)
    gl_load(GB, 38)
    if instr: e("s_add_u32 s90, s90, 1")
    spin()
    e("s_waitcnt vmcnt(2)")
    e("s_branch %s" % lp)
    A.label(okB); gl_write(GB, 0); e("s_branch %s" % ok)
    A.label(rer)
    gl_load(GG, 39)
    if instr: e("s_add_u32 s92, s92, 1")
    spin()
    e("s_waitcnt vmcnt(0)")
    e("s_branch %s" % lpr)
    A.label(nored)
    if KVPOS == 2:
        nk = A.newlabel("Lnk")
        e("s_cmp_lt_u32 s28, 2"); e("s_cbranch_scc1 %s" % nk)
        e("s_add_u32 s53, s46, s61"); e("s_mov_b32 m0, s60"); e("s_nop 0")
        for i in range(4): e("buffer_load_dwordx4 v1, s[4:7], s53 offen offset:%d%s lds" % (1024 * i, KVSC))
        e("s_add_u32 s53, s53, 4096"); e("s_add_u32 m0, s60, 4096"); e("s_nop 0")
        for i in range(4): e("buffer_load_dwordx4 v1, s[4:7], s53 offen offset:%d%s lds" % (1024 * i, KVSC))
        A.label(nk)
    if WARM: zero(ACQ, ACQ + 24)
    e("s_waitcnt lgkmcnt(0)")
    e("s_branch %s" % join)
    A.label(okd)
    e("s_nop 2")
    for i in range(4): e("v_add_f32_dpp v%d, v%d, v%d row_ror:8 row_mask:0xf bank_mask:0xf" % (36 + i, 32 + i, 32 + i))
    e("s_mov_b32 exec_lo, 0x00ff00ff"); e("s_mov_b32 exec_hi, 0")
    e("v_cvt_pk_bf16_f32 v32, v36, v37"); e("v_cvt_pk_bf16_f32 v33, v38, v39")
    e("v_min_u32 v32, -2, v32"); e("v_min_u32 v33, -2, v33")
    e("buffer_store_dwordx2 v[32:33], v10, s[4:7], s38 offen%s" % sc)
    e("buffer_store_dwordx2 v[32:33], v10, s[4:7], s40 offen sc1")
    e("s_mov_b64 exec, -1")
    A.label(join)
    stamp(7)
    e("s_barrier")
    stamp(8)
    e("s_add_u32 s32, s32, 1")

def gen(**kw):
    A = Asm()
    A.raw("; @launch kernel=rec_kernel grid=(256,1,1) block=(256,1,1) lds=163840")
    A.raw('.amdgcn_target "amdgcn-amd-amdhsa--gfx950"')
    A.raw(".text")
    kernel_header(A, "rec_kernel")
    A.e("s_cmp_ge_u32 s2, 256"); A.e("s_cbranch_scc1 L_end")
    emit_rec(A, **kw)
    A.label("L_end")
    A.e("s_endpgm")
    A.raw('.section .rodata,"a"'); A.raw(".p2align 6")
    A.raw(kernel_desc("rec_kernel", 512, 102, 256))
    return A.text()

if __name__ == "__main__":
    import sys
    for spec in sys.argv[1:]:
        d1, dr, ra, ins = map(int, spec.split(","))
        DIS = d1 >> 4; d1 &= 15
        NEARSEL = 1 if DIS & 32 else None
        KVSC = " sc1" if DIS & 8 else ""
        PUBSC = " sc1" if DIS & 16 else ""
        D_GAP = ra % 10; KVPOS = (ra // 10) % 10; TW = ra // 100
        open("rec_%d_%d_%d_%d.s" % (d1 + 16 * DIS, dr, ra, ins), "w").write(gen(instr=ins, d_first=d1, d_red=dr))
```

```python
import sys
from asmlib import *
from layout import *
import gen_g1, gen_rec, gen_att, gen_g2s
from gen_g1 import srd
NAME = "recurrent_scan__memory_aug_recurrent_mem_tr__glu_gated_swiglu__prompt"
HEAD = open("cdna_kernels/%s.s.ref" % NAME).read().split("; Override launch")[0]
LIM = 60000

SL1 = 40
def poll(A, srdname, soff, voff_imm, shift, target, vtmp, sleep=8, tail=None):
    e = A.e
    lp = A.newlabel("Lp"); ok = A.newlabel("Lpok")
    A.label(lp)
    e("v_mov_b32 v%d, 0" % vtmp)
    e("buffer_load_dword v%d, v%d, %s, %s offen offset:%d sc1" % (vtmp, vtmp, srdname, soff, voff_imm)); e("s_waitcnt vmcnt(0)")
    e("v_readfirstlane_b32 s68, v%d" % vtmp); e("s_nop 3")
    for (sh, tg) in zip(shift, target):
        e("s_bfe_u32 s69, s68, 0x%x" % ((10 << 16) | sh)); e("s_cmp_lt_u32 s69, %d" % tg); e("s_cbranch_scc1 %s_n" % lp)
    e("s_branch %s" % ok)
    A.label(lp + "_n")
    e("s_add_u32 s74, s74, 1"); e("s_cmp_gt_u32 s74, %d" % LIM); e("s_cbranch_scc1 L_wabort")
    e("s_sleep %d" % sleep)
    if tail:
        e("s_cmp_ge_u32 s47, %d" % tail); e("s_cbranch_scc1 %s" % lp); e("s_sleep 64")
    e("s_branch %s" % lp)
    A.label(ok)

def poll_prog(A, segreg, vtmp, head=None):
    e = A.e
    lp = A.newlabel("Lpp"); ok = A.newlabel("Lppok"); done = A.newlabel("Lppd")
    e("s_min_u32 s75, s%d, 60" % segreg)
    A.label(lp)
    e("v_mov_b32 v%d, 0" % vtmp); e("s_mov_b32 s69, 0x%x" % CT_OFF)
    e("buffer_load_dword v%d, v%d, s[4:7], s69 offen sc1" % (vtmp, vtmp)); e("s_waitcnt vmcnt(0)")
    e("v_readfirstlane_b32 s68, v%d" % vtmp); e("s_nop 3")
    e("s_cmp_gt_u32 s68, s75"); e("s_cbranch_scc1 %s" % ok)
    e("s_add_u32 s74, s74, 1"); e("s_cmp_gt_u32 s74, %d" % LIM); e("s_cbranch_scc1 L_wabort")
    e("s_sleep 8")
    e("s_cmp_ge_u32 s68, s75"); e("s_cbranch_scc1 %s" % lp)
    e("s_sleep %d" % SL1); e("s_branch %s" % lp)
    A.label(ok)
    if head is not None:
        e("s_cmp_le_u32 s%d, 60" % segreg); e("s_cbranch_scc1 %s" % done)
        lf = A.newlabel("Lpf")
        A.label(lf)
        e("v_mov_b32 v%d, 0" % vtmp); e("s_lshl_b32 s69, s%d, 7" % head); e("s_add_u32 s69, s69, 0x%x" % (CT_OFF + 128))
        e("buffer_load_dwordx2 v[%d:%d], v%d, s[4:7], s69 offen sc1" % (vtmp, vtmp + 1, vtmp)); e("s_waitcnt vmcnt(0)")
        e("v_and_b32 v%d, v%d, v%d" % (vtmp, vtmp, vtmp + 1)); e("s_nop 0"); e("v_readfirstlane_b32 s68, v%d" % vtmp); e("s_nop 3")
        e("s_cmp_eq_u32 s68, 1"); e("s_cbranch_scc1 %s" % done)
        e("s_add_u32 s74, s74, 1"); e("s_cmp_gt_u32 s74, %d" % LIM); e("s_cbranch_scc1 L_wabort")
        e("s_sleep 2"); e("s_branch %s" % lf)
        A.label(done)

def build(instr=0, d_first=2, d_red=3, listform=False):
    A = Asm(); e = A.e
    A.raw(HEAD.rstrip())
    if listform: A.raw("; @launch kernel=%s_kernel grid=(256,1,1) block=(256,1,1) lds=163840" % NAME)
    else: A.raw("; @launch grid=(256,1,1) block=(256,1,1) lds=163840")
    A.raw('.amdgcn_target "amdgcn-amd-amdhsa--gfx950"')
    A.raw(".text")
    kernel_header(A, NAME + "_kernel")
    e("s_cmp_ge_u32 s2, 256"); e("s_cbranch_scc1 L_end")
    gen_rec.MEGA = True; gen_rec.PUBSC = " sc1"; gen_rec.KVSC = " sc1"
    gen_rec.emit_rec(A, instr=instr, d_first=d_first, d_red=d_red, worker_label="L_worker")
    e("s_branch L_end")
    A.label("L_worker")
    e("s_mov_b32 s26, s28")
    e("s_sub_u32 s70, s55, 64")
    e("s_mov_b32 s64, s24"); e("s_mov_b32 s65, s25"); e("s_mov_b32 s66, 256"); e("s_mov_b32 s67, 0x20000")
    e("s_load_dwordx2 s[54:55], s[0:1], 0")
    e("s_load_dwordx4 s[16:19], s[0:1], 16")
    e("s_load_dwordx2 s[20:21], s[0:1], 32")
    e("s_load_dwordx4 s[56:59], s[0:1], 64")
    e("s_load_dwordx2 s[62:63], s[0:1], 40")
    e("s_waitcnt lgkmcnt(0)")
    e("s_mov_b64 s[22:23], s[56:57]"); e("s_mov_b64 s[24:25], s[58:59]")
    srd(e, 8, 54, 2621440)
    e("s_and_b32 s27, s70, 3"); e("s_lshr_b32 s28, s70, 2"); e("s_sub_u32 s28, 47, s28")
    tick(A, 1, 12, 26); e("s_mov_b32 s99, 0")
    gen_g1.emit_g1(A, NPART=48, mega=True, NT=4)
    tick(A, 30, 12, 26)
    dtick(A, 12, 12, 's[64:67]')
    poll(A, "s[64:67]", "0", DBG_INIT, [0], [64], 11)
    e("s_mul_i32 s33, s70, 171"); e("s_lshr_b32 s71, s33, 10")
    e("s_mul_i32 s33, s71, 6"); e("s_sub_u32 s72, s70, s33")
    e("s_cmp_eq_u32 s72, 5"); e("s_cbranch_scc1 L_att_role")
    e("s_load_dwordx2 s[54:55], s[0:1], 40")
    e("s_load_dwordx4 s[56:59], s[0:1], 80")
    e("s_mul_i32 s33, s71, 5"); e("s_add_u32 s33, s33, s72")
    e("s_mul_i32 s47, s33, 205"); e("s_lshr_b32 s47, s47, 12")
    e("s_mul_i32 s34, s47, 20"); e("s_sub_u32 s28, s33, s34")
    e("s_waitcnt lgkmcnt(0)")
    srd(e, 16, 58, 2621440); srd(e, 12, 56, 1728 * 1280); srd(e, 20, 54, 5242880)
    e("s_barrier")
    gen_g2s.emit_g2s_prologue(A)
    tick(A, 31, 12, 26)
    A.label("L_g2_loop")
    def waitH():
        e("s_lshr_b32 s41, s47, 3"); e("s_lshl_b32 s41, s41, 2")
        poll(A, "s[64:67]", "s41", DBG_G1, [20], [56], 11, sleep=32)
    def waitO():
        e("s_lshr_b32 s41, s47, 1")
        e("s_cmp_lg_u32 s26, 0"); e("s_cbranch_scc1 L_g2_nopoll")
        poll_prog(A, 41, 10)
        e("s_lshl_b32 s41, s41, 7"); e("s_add_u32 s41, s41, 0x%x" % (CT_OFF + 0x2000))
        poll(A, "s[4:7]", "s41", 0, [0], [32], 11, sleep=4)
        A.label("L_g2_nopoll")
        e("s_barrier")
    gen_g2s.emit_g2s_task(A, waitH, waitO, " sc1")
    if TICK["on"]:
        e("s_lshr_b32 s99, s47, 4"); tick(A, 32, 14, 26, 99)
    e("s_add_u32 s47, s47, 8"); e("s_cmp_lt_u32 s47, 128"); e("s_cbranch_scc1 L_g2_loop")
    dtick(A, 14, 14, 's[64:67]')
    e("s_branch L_end")
    A.label("L_att_role")
    gen_att.emit_att_setup(A)
    e("v_lshrrev_b32 v0, 6, v0")
    e("s_mov_b32 s47, s73")
    A.label("L_att_loop")
    e("s_lshl_b32 s30, s71, 6"); e("s_add_u32 s30, s30, s47")
    def waitQ():
        e("s_lshr_b32 s44, s47, 2"); e("s_lshl_b32 s44, s44, 2")
        poll(A, "s[64:67]", "s44", DBG_G1, [0, 10], [128, 64], 15, sleep=32)
    def waitM():
        poll_prog(A, 47, 14, head=71)
    gen_att.emit_att(A, " sc1", waitQ, waitM)
    e("s_waitcnt vmcnt(0)")
    e("s_lshl_b32 s44, s47, 7"); e("s_add_u32 s44, s44, 0x%x" % (CT_OFF + 0x2000))
    e("s_mov_b64 exec, 1"); e("v_mov_b32 v15, 1")
    e("buffer_atomic_add v15, v0, s[4:7], s44 offen sc1")
    e("s_mov_b64 exec, -1")
    if TICK["on"]:
        e("s_lshr_b32 s99, s47, 2"); tick(A, 44, 8, 73, 99)
    e("s_add_u32 s47, s47, 4"); e("s_cmp_lt_u32 s47, 64"); e("s_cbranch_scc1 L_att_loop")
    dtick(A, 13, 8, 's[64:67]')
    e("s_branch L_end")
    A.label("L_wabort")
    e("s_mov_b64 exec, 1"); e("v_mov_b32 v0, %d" % (DBG_ABORT + 4)); e("v_mov_b32 v11, 1")
    e("buffer_store_dword v11, v0, s[64:67], 0 offen")
    A.label("L_end"); e("s_endpgm")
    A.raw('.section .rodata,"a"'); A.raw(".p2align 6")
    A.raw(kernel_desc(NAME + "_kernel", 512, 102, 256))
    txt = A.text()
    return txt.replace("    s_mov_b32 s26, s28\n", "    s_mov_b32 s26, s28\n    s_mov_b32 s73, s28\n", 1)
if __name__ == "__main__":
    open("cdna_kernels/%s.s" % NAME, "w").write(build())
    open("mega_list.s", "w").write(build(listform=True))
    open("mega_3.s", "w").write(build(listform=True, instr=3))
    gen_rec.FAKEXCC = 40
    open("mega_fake.s", "w").write(build(listform=True))
    gen_rec.FAKEXCC = 0
    DTICK["on"] = True
    open("dtick.s", "w").write(build())
    DTICK["on"] = False
    TICK["on"] = True
    open("mega_tick.s", "w").write(build(listform=True))
```

```python
from asmlib import *
from layout import *

SMF = "v_smfmac_f32_16x16x64_bf16"
MF32 = "v_mfma_f32_16x16x32_bf16"
MF16 = "v_mfma_f32_16x16x16_bf16"

SPIN_LIMIT = 60000
R_AT = 0
KX_L, AC_L, QKX_L, SEL_L, MISC_L, WV_L = 0, 16384, 26624, 30720, 31744, 32768
OX_L = AC_L + 5120
VX_L = 8192
NSLOT = 8
WB = 80
def FR(f): return R(WB + 8 * f, 8)
LSLOT = {("K", 0): 0, ("K", 2): 1, ("K", 4): 2, ("V", 1): 3, ("V", 3): 4, ("Q", 5): 5, ("O", 3): 6, ("O", 4): 7}
_res = [(m, j) for m in "QKV" for j in range(10) if (m, j) not in LSLOT] + [("O", t) for t in range(3)]
RIDX = {k: i for i, k in enumerate(_res)}
assert len(_res) == 27
def FX(m, j, T): return 2 * RIDX[(m, j)] + T
def AA(j): return 12 + 4 * j
GG, ACQ, ACK, ACV, TMP = 32, 40, 48, 56, 64
D_GAP = 2
DIS = 0
PUBSC = ""
KVSC = ""
TRACE_STEP = 40
MEGA = False
NEARSEL = None
FAKEXCC = 0
KVPOS = 5
GREARLY = 0
WARM = 0
TW = 0
PFD = 0
DEPTH = 8

def emit_rec(A, instr=False, d_first=4, d_red=4, steps=64, exit_label="L_end", worker_label=None):
    e = A.e
    e("s_load_dwordx4 s[52:55], s[0:1], 16")
    e("s_load_dwordx4 s[56:59], s[0:1], 32")
    e("s_load_dwordx4 s[60:63], s[0:1], 96")
    e("v_lshrrev_b32 v11, 6, v0"); e("v_and_b32 v0, 63, v0"); e("v_readfirstlane_b32 s28, v11")
    e("s_waitcnt lgkmcnt(0)")
    for (d, s, n) in ((4, 62, WS_BYTES), (8, 52, 5242880), (12, 54, 5242880), (16, 56, 5242880), (20, 58, 5242880), (24, 60, 256)):
        e("s_mov_b32 s%d, s%d" % (d, s)); e("s_mov_b32 s%d, s%d" % (d + 1, s + 1)); e("s_mov_b32 s%d, 0x%x" % (d + 2, n)); e("s_mov_b32 s%d, 0x20000" % (d + 3))
    tick(A, 0, 20, 28)
    dtick(A, 8, 20, 's[24:27]')
    e("s_mov_b32 s74, 0")
    e("s_getreg_b32 s52, hwreg(HW_REG_XCC_ID)"); e("s_and_b32 s52, s52, 7")
    if FAKEXCC: e("s_cmp_lt_u32 s2, %d" % FAKEXCC); e("s_cmov_b32 s52, 3")
    e("s_lshl_b32 s53, s52, 4")
    e("v_mov_b32 v1, 1"); e("v_mov_b32 v2, s53"); e("v_mov_b32 v3, %d" % MISC_L); e("v_lshlrev_b32 v5, 4, v0")
    e("s_cmp_lg_u32 s28, 0"); e("s_cbranch_scc1 L_el_done")
    e("s_mov_b64 exec, 1")
    e("buffer_atomic_add v1, v2, s[24:27], 0 offen offset:%d sc0 sc1" % DBG_XC); e("s_waitcnt vmcnt(0)")
    e("v_readfirstlane_b32 s54, v1"); e("s_nop 3")
    e("s_lshl_b32 s55, s52, 5"); e("s_add_u32 s55, s55, s54")
    e("s_cmp_lt_u32 s54, 32"); e("s_cbranch_scc1 L_el_dec")
    e("v_mov_b32 v1, 1"); e("v_mov_b32 v2, 0")
    e("buffer_atomic_add v1, v2, s[24:27], 0 offen offset:%d sc0 sc1" % DBG_OVF); e("s_waitcnt vmcnt(0)")
    e("v_readfirstlane_b32 s54, v1")
    e("s_mov_b64 exec, 0xff")
    A.label("L_el_poll")
    e("buffer_load_dword v4, v5, s[24:27], 0 offen offset:%d sc1" % DBG_XC); e("s_waitcnt vmcnt(0)")
    e("s_mov_b32 s56, 0")
    for i in range(8):
        e("v_readlane_b32 s%d, v4, %d" % (64 + i, i))
    e("s_nop 3")
    for i in range(8): e("s_add_u32 s56, s56, s%d" % (64 + i))
    e("s_cmp_ge_u32 s56, 256"); e("s_cbranch_scc1 L_el_hole")
    e("s_add_u32 s74, s74, 1"); e("s_cmp_gt_u32 s74, %d" % SPIN_LIMIT); e("s_cbranch_scc1 L_abort")
    e("s_sleep 4"); e("s_branch L_el_poll")
    A.label("L_el_hole")
    for i in range(8):
        e("s_min_u32 s56, s%d, 32" % (64 + i)); e("s_sub_u32 s57, 32, s56")
        e("s_add_u32 s55, s56, s54"); e("s_add_u32 s55, s55, %d" % (32 * i))
        e("s_cmp_lt_u32 s54, s57"); e("s_cbranch_scc1 L_el_dec")
        e("s_sub_u32 s54, s54, s57")
    e("s_branch L_abort")
    A.label("L_el_dec")
    e("s_mov_b64 exec, 1")
    e("v_mov_b32 v1, s55")
    e("ds_write_b32 v3, v1"); e("s_waitcnt lgkmcnt(0)")
    e("s_mov_b64 exec, -1")
    A.label("L_el_done")
    e("s_barrier")
    e("ds_read_b32 v4, v3"); e("s_waitcnt lgkmcnt(0)")
    e("v_readfirstlane_b32 s55, v4"); e("s_nop 3")
    e("s_barrier")
    e("s_add_u32 s41, s4, 0x%x" % (MR2_OFF + 0x1fffff)); e("s_and_b32 s41, s41, 0xffe00000"); e("s_sub_u32 s41, s41, s4")
    e("s_cmp_lg_u32 s55, 64"); e("s_cbranch_scc1 L_pr_done")
    e("s_cmp_lg_u32 s28, 0"); e("s_cbranch_scc1 L_pr_bar")
    e("s_mov_b64 exec, 1"); e("v_mov_b32 v12, 0"); e("v_mov_b32 v13, -1")
    e("s_add_u32 s52, s41, 0x%x" % (63 * 16384 + 6144)); e("s_add_u32 s53, s52, 8192")
    e("s_mov_b32 s56, -1"); e("s_mov_b32 s57, -1")
    for rep in range(4):
        for c in range(2):
            e("s_memtime s[64:65]"); e("s_waitcnt lgkmcnt(0)")
            e("buffer_store_dword v13, v12, s[4:7], s%d offen sc1" % (52 + c)); e("s_waitcnt vmcnt(0)")
            e("s_memtime s[66:67]"); e("s_waitcnt lgkmcnt(0)")
            e("s_sub_u32 s68, s66, s64"); e("s_min_u32 s%d, s%d, s68" % (56 + c, 56 + c))
    e("s_cmp_lt_u32 s57, s56"); e("s_cselect_b32 s52, 2, 1")
    e("v_mov_b32 v13, s52")
    e("buffer_store_dword v13, v12, s[24:27], 0 offen offset:%d sc1" % DBG_NEAR)
    e("s_mov_b64 exec, -1")
    A.label("L_pr_bar")
    e("s_barrier")
    A.label("L_pr_done")
    e("s_cmp_ge_u32 s55, 64"); e("s_cbranch_scc1 %s" % (worker_label or exit_label))
    e("s_lshr_b32 s29, s55, 5"); e("s_and_b32 s30, s55, 31")
    tick(A, 1, 20, 28)
    if MEGA: team_init(A)
    tick(A, 2, 20, 28)
    e("v_lshlrev_b32 v1, 4, v0")
    e("v_and_b32 v11, 1, v0"); e("v_cmp_eq_u32 vcc, 1, v11"); e("v_mov_b32 v2, 0x4444"); e("v_mov_b32 v11, 0xeeee"); e("v_cndmask_b32 v2, v2, v11, vcc")
    C, G, RR, CP, T0, T1 = 64, 65, 66, 67, 68, 69
    e("v_and_b32 v%d, 15, v0" % C); e("v_lshrrev_b32 v%d, 4, v0" % G)
    e("v_bfe_u32 v%d, v0, 2, 2" % RR); e("v_and_b32 v%d, 3, v0" % CP)
    e("v_and_b32 v%d, 1, v%d" % (T0, RR)); e("v_lshlrev_b32 v3, 4, v%d" % T0)
    e("v_lshrrev_b32 v%d, 1, v%d" % (T1, G)); e("v_lshl_add_u32 v3, v%d, 2, v3" % T1)
    e("v_lshrrev_b32 v%d, 1, v%d" % (T1, RR)); e("v_lshl_add_u32 v3, v%d, 1, v3" % T1)
    e("v_and_b32 v%d, 1, v%d" % (T1, G)); e("v_add_u32 v3, v3, v%d" % T1)
    e("v_lshlrev_b32 v3, 6, v3"); e("v_lshl_add_u32 v3, v%d, 3, v3" % CP); e("v_lshl_add_u32 v3, v%d, 5, v3" % T0)
    e("s_mul_i32 s52, s28, %d" % (NSLOT * 4096)); e("s_add_u32 s52, s52, %d" % WV_L)
    e("v_add_u32 v3, s52, v3"); e("v_xor_b32 v4, 32, v3")
    e("s_lshl_b32 s53, s28, 10"); e("s_add_u32 s53, s53, %d" % QKX_L)
    e("v_lshlrev_b32 v5, 5, v%d" % C); e("v_lshl_add_u32 v5, v%d, 3, v5" % G); e("v_add_u32 v5, s53, v5")
    e("v_lshlrev_b32 v6, 3, v0")
    e("v_lshrrev_b32 v%d, 2, v%d" % (T0, C)); e("v_and_b32 v%d, 1, v%d" % (T1, C)); e("v_lshl_add_u32 v%d, v%d, 1, v%d" % (T0, T0, T1))
    e("v_mul_u32_u24 v7, 320, v%d" % T0); e("v_lshl_add_u32 v7, v%d, 3, v7" % G)
    e("s_lshl_b32 s53, s28, 6"); e("s_add_u32 s53, s53, %d" % OX_L); e("v_add_u32 v7, s53, v7")
    e("v_lshrrev_b32 v%d, 1, v%d" % (T0, C)); e("v_mul_u32_u24 v8, 320, v%d" % T0); e("v_lshl_add_u32 v8, v%d, 5, v8" % G)
    e("v_lshl_add_u32 v8, v%d, 4, v8" % T1); e("v_add_u32 v8, %d, v8" % OX_L)
    e("v_lshlrev_b32 v9, 13, v%d" % G); e("v_lshrrev_b32 v%d, 3, v%d" % (T0, C)); e("v_lshl_add_u32 v9, v%d, 12, v9" % T0)
    e("v_and_b32 v%d, 7, v%d" % (T0, C)); e("v_lshl_add_u32 v9, v%d, 4, v9" % T0)
    e("s_lshl_b32 s42, s28, 5"); e("s_add_u32 s42, s42, s30")
    e("s_and_b32 s53, s42, 1"); e("s_lshl_b32 s53, s53, 3")
    e("v_add_u32 v%d, s53, v%d" % (T0, T0))
    e("v_lshrrev_b32 v10, 2, v%d" % T0); e("v_lshlrev_b32 v10, 8, v10")
    e("v_bfe_u32 v%d, v%d, 1, 1" % (T1, T0)); e("v_lshl_add_u32 v10, v%d, 4, v10" % T1)
    e("v_and_b32 v%d, 1, v%d" % (T1, T0)); e("v_lshl_add_u32 v10, v%d, 3, v10" % T1)
    e("v_and_b32 v%d, 1, v%d" % (T1, G)); e("v_lshl_add_u32 v10, v%d, 5, v10" % T1)
    e("s_bfe_u32 s53, s42, 0x20001"); e("s_lshl_b32 s53, s53, 6")
    e("s_lshr_b32 s54, s42, 3"); e("s_lshl_b32 s54, s54, 10"); e("s_add_u32 s53, s53, s54")
    e("v_add_u32 v10, s53, v10")
    e("s_lshl_b32 s53, s29, 18"); e("s_add_u32 s53, s53, 0x%x" % PB_OFF)
    e("s_lshl_b32 s54, s30, 7"); e("s_add_u32 s54, s54, s53")
    e("s_lshl_b32 s43, s28, 15"); e("s_add_u32 s43, s43, s54")
    e("s_lshl_b32 s44, s28, 2"); e("s_add_u32 s44, s44, s54"); e("s_add_u32 s44, s44, 0x20000")
    e("s_lshl_b32 s45, s42, 12"); e("s_add_u32 s45, s45, s53")
    e("s_lshl_b32 s53, s29, 19")
    e("s_add_u32 s38, s53, 0x%x" % ML_OFF)
    e("s_lshl_b32 s53, s29, 20")
    e("s_add_u32 s40, s53, s41")
    e("s_xor_b32 s53, s53, 0x100000"); e("s_add_u32 s39, s53, s41")
    e("s_lshl_b32 s53, s30, 20"); e("s_lshl_b32 s54, s28, 11"); e("s_add_u32 s53, s53, s54")
    e("s_add_u32 s46, s53, 0x%x" % KV_OFF); e("s_add_u32 s47, s46, 8192")
    e("s_lshr_b32 s54, s53, 1"); e("s_add_u32 s48, s54, 0x%x" % XV_OFF)
    e("s_lshl_b32 s53, s30, 19"); e("s_lshl_b32 s54, s28, 9"); e("s_add_u32 s49, s53, s54"); e("s_add_u32 s49, s49, 0x%x" % (XV_OFF + 4096))
    e("s_lshl_b32 s50, s28, 11")
    GE, GO, GW4, GW1 = 70, 71, 72, 73
    e("v_lshrrev_b32 v%d, 2, v0" % T0); e("v_lshlrev_b32 v%d, 13, v%d" % (GE, T0)); e("v_lshl_add_u32 v%d, v%d, 4, v%d" % (GE, CP, GE))
    e("s_lshl_b32 s53, s30, 8"); e("s_lshl_b32 s54, s28, 6"); e("s_add_u32 s53, s53, s54")
    e("v_add_u32 v%d, s53, v%d" % (GE, GE)); e("v_xor_b32 v%d, 32, v%d" % (GO, GE))
    e("v_lshrrev_b32 v%d, 1, v0" % T0); e("v_mul_u32_u24 v%d, 1280, v%d" % (GW1, T0)); e("v_and_b32 v%d, 1, v0" % T0); e("v_lshl_add_u32 v%d, v%d, 4, v%d" % (GW1, T0, GW1))
    e("s_mul_i32 s53, s30, 163840"); e("s_mul_i32 s54, s29, 640"); e("s_add_u32 s53, s53, s54")
    e("s_lshl_b32 s54, s28, 7"); e("s_add_u32 s54, s54, s53"); e("v_add_u32 v%d, s54, v%d" % (GW4, GW1))
    e("s_lshl_b32 s54, s28, 5"); e("s_add_u32 s54, s54, s53"); e("s_add_u32 s54, s54, 512"); e("v_add_u32 v%d, s54, v%d" % (GW1, GW1))
    e("v_lshrrev_b32 v%d, 1, v%d" % (T0, G)); e("v_lshlrev_b32 v%d, 4, v%d" % (T0, T0))
    e("v_lshrrev_b32 v%d, 1, v%d" % (T1, RR)); e("v_lshl_add_u32 v%d, v%d, 3, v%d" % (T0, T1, T0))
    e("v_and_b32 v%d, 1, v%d" % (T1, G)); e("v_lshl_add_u32 v%d, v%d, 2, v%d" % (T0, T1, T0))
    e("v_and_b32 v%d, 1, v%d" % (T1, RR)); e("v_add_u32 v%d, v%d, v%d" % (T0, T0, T1))
    e("v_lshlrev_b32 v0, 5, v%d" % T0); e("v_lshl_add_u32 v0, v%d, 3, v0" % CP); e("v_add_u32 v0, s52, v0")
    e("s_mul_i32 s53, s29, 5"); e("s_sub_u32 s54, 5, s53")
    for j in range(10):
        e("s_add_u32 s%d, s%d, %d" % (64 + j, 53 if j < 5 else 54, j % 5)); e("s_lshl_b32 s%d, s%d, 19" % (64 + j, 64 + j))
    e("v_mov_b32 v21, 0x3f80"); e("v_mov_b32 v22, 0x3f800000")
    e("v_cmp_gt_u32 vcc, 4, v%d" % C); e("s_nop 1"); e("v_cndmask_b32 v21, v22, v21, vcc")
    e("v_cmp_gt_u32 vcc, 8, v%d" % C); e("s_nop 1"); e("v_cndmask_b32 v21, 0, v21, vcc")
    for d in range(4):
        e("v_cmp_eq_u32 vcc, %d, v%d" % (d, CP)); e("s_nop 1"); e("v_cndmask_b32 v%d, 0, v21, vcc" % (16 + d))
    e("ds_write_b128 v1, v[16:19] offset:%d" % SEL_L)
    e("s_lshl_b32 s33, s28, 10"); e("s_lshl_b32 s34, s28, 8"); e("s_add_u32 s34, s34, 4096")
    items = list(_res)
    final = sorted(LSLOT, key=lambda k: LSLOT[k])
    def issue(it, slot):
        k, j = it
        for i in range(4):
            e("s_add_u32 m0, s52, %d" % (slot * 4096 + i * 1024))
            if k == "O":
                e("s_mov_b32 s53, %d" % (i * 32 * 1280 + (32 * j if j < 4 else 0)))
                e("buffer_load_dwordx4 v%d, s[20:23], s53 offen lds" % (GW4 if j < 4 else GW1))
            else:
                e("s_add_u32 s53, s%d, %d" % (64 + j, i * 16 * 8192))
                e("buffer_load_dwordx4 v%d, %s, s53 offen lds" % (GO if i & 1 else GE, {"Q": "s[8:11]", "K": "s[12:15]", "V": "s[16:19]"}[k]))
    def consume(it, slot):
        k, j = it
        for T in range(2):
            f = FX(k, j, T)
            for a in range(4):
                if k == "O": e("ds_read_b64_tr_b16 %s, v0 offset:%d" % (R(WB + 8 * f + 2 * a, 2), slot * 4096 + (64 * T + 32 * (a >> 1) + 2 * (a & 1)) * 32))
                else: e("ds_read_b64_tr_b16 %s, v%d offset:%d" % (R(WB + 8 * f + 2 * a, 2), 3 + T, slot * 4096 + 2048 * (a & 1) + 512 * (a >> 1)))
    order = [(it, n % NSLOT) for n, it in enumerate(items)]
    nreg = len(order)
    order += [(final[(nreg + i) % NSLOT], (nreg + i) % NSLOT) for i in range(NSLOT)]
    e("v_lshlrev_b32 v74, 2, v1")
    e("s_lshl_b32 s54, s30, 14"); e("s_lshl_b32 s55, s28, 12"); e("s_add_u32 s55, s55, s54")
    e("s_lshl_b32 s54, s28, 8"); e("s_add_u32 s54, s54, %d" % MISC_L)
    q = []
    def pf(n):
        if not PFD or n >= len(order) or order[n][0][0] == "O": return
        k, j = order[n][0]
        e("s_mov_b32 m0, s54"); e("s_add_u32 s53, s%d, s55" % (64 + j))
        e("buffer_load_dword v74, %s, s53 offen lds" % {"Q": "s[8:11]", "K": "s[12:15]", "V": "s[16:19]"}[k]); q.append(None)
    def iss(n):
        pf(n + PFD)
        issue(*order[n]); q.extend([n] * 4)
    if PFD:
        for n in range(PFD): pf(n)
    for n in range(DEPTH): iss(n)
    if MEGA: team_init_finish(A, len(q))
    for n in range(len(order)):
        if n < nreg:
            last = len(q) - 1 - q[::-1].index(n)
            e("s_waitcnt vmcnt(%d)" % (len(q) - 1 - last)); del q[:last + 1]
            consume(*order[n])
            e("s_waitcnt lgkmcnt(0)")
        if n + DEPTH < len(order): iss(n + DEPTH)
    e("s_waitcnt vmcnt(0)")
    e("v_add_u32 v11, s52, v1")
    for sl in range(NSLOT):
        k, j = final[sl]
        for T in range(2):
            for a in range(4):
                d = 16 + 8 * T + 2 * a
                if k == "O": e("ds_read_b64_tr_b16 v[%d:%d], v0 offset:%d" % (d, d + 1, sl * 4096 + (64 * T + 32 * (a >> 1) + 2 * (a & 1)) * 32))
                else: e("ds_read_b64_tr_b16 v[%d:%d], v%d offset:%d" % (d, d + 1, 3 + T, sl * 4096 + 2048 * (a & 1) + 512 * (a >> 1)))
        e("s_waitcnt lgkmcnt(0)")
        for q in range(4): e("ds_write_b128 v11, v[%d:%d] offset:%d" % (16 + 4 * q, 19 + 4 * q, sl * 4096 + 1024 * q))
    e("v_mov_b32 v3, v11")
    e("v_lshrrev_b32 v0, 2, v1")
    e("v_lshlrev_b32 v4, 2, v1")
    e("s_mov_b32 s35, %d" % MISC_L)
    e("s_lshl_b32 s37, s28, 7"); e("s_add_u32 s37, s37, %d" % (MISC_L + 256))
    e("v_add_u32 v11, s37, v0"); e("v_mov_b32 v12, 0"); e("s_mov_b32 exec_hi, 0"); e("ds_write_b32 v11, v12"); e("s_mov_b32 exec_hi, -1")
    e("s_and_b32 s36, s42, 63"); e("s_lshl_b32 s36, s36, 7"); e("s_add_u32 s36, s36, 10240")
    e("s_lshl_b32 s50, s28, 12"); e("s_lshl_b32 s46, s30, 20"); e("s_add_u32 s46, s46, s50"); e("s_add_u32 s46, s46, 0x%x" % KV_OFF)
    e("s_lshl_b32 s56, s28, 10"); e("s_lshl_b32 s57, s28, 9")
    e("s_add_u32 s54, s57, 4096"); e("s_cmp_eq_u32 s29, 0"); e("s_cselect_b32 s54, s56, s54")
    e("s_lshl_b32 s48, s30, 19"); e("s_add_u32 s48, s48, s54"); e("s_add_u32 s48, s48, 0x%x" % (XV_OFF - 0x2000))
    e("s_lshl_b32 s47, s28, 11"); e("s_add_u32 s47, s47, %d" % VX_L)
    e("s_and_b32 s60, s28, 1"); e("s_lshl_b32 s60, s60, 13"); e("s_sub_u32 s61, s60, s50")
    e("s_lshl_b32 s63, s29, 7"); e("s_add_u32 s63, s63, s42"); e("s_xor_b32 s63, s63, %d" % (96 + 20))
    for r in range(ACQ, ACQ + 24): e("v_mov_b32 v%d, 0" % r)
    e("s_mov_b32 s32, 0")
    e("s_mov_b32 s51, 0x3e0293ee")
    tick(A, 3, 20, 28)
    dtick(A, 9, 20, 's[24:27]')
    A.label("L_md_poll")
    e("buffer_load_dword v11, v0, s[24:27], 0 offen sc1"); e("s_waitcnt vmcnt(0)")
    for i in range(8): e("v_readlane_b32 s%d, v11, %d" % (64 + i, DBG_XC // 4 + 4 * i))
    e("v_readlane_b32 s72, v11, %d" % (DBG_INIT // 4)); e("v_readlane_b32 s73, v11, %d" % (DBG_NEAR // 4))
    e("v_and_b32 v11, 0x3ff, v11"); e("v_cmp_le_u32 vcc, 128, v11"); e("s_nop 3")
    e("s_lshr_b32 s49, vcc_lo, %d" % (DBG_G1 // 4)); e("s_ff0_i32_b32 s49, s49")
    e("s_cmp_eq_u32 s49, 16"); e("s_cmov_b32 s49, 18")
    e("s_cmp_eq_u32 s73, 0"); e("s_cbranch_scc1 L_md_no")
    if MEGA:
        e("s_cmp_lt_u32 s72, 64"); e("s_cbranch_scc1 L_md_no")
        e("s_cmp_eq_u32 s49, 0"); e("s_cbranch_scc1 L_md_no")
    e("s_mov_b32 s31, 0")
    e("s_min_u32 s53, s64, s65"); e("s_cmp_ge_u32 s53, 32"); e("s_cbranch_scc1 L_md_ok")
    e("s_mov_b32 s31, 1"); e("s_mov_b32 s53, 0")
    for i in range(8): e("s_add_u32 s53, s53, s%d" % (64 + i))
    e("s_cmp_ge_u32 s53, 256"); e("s_cbranch_scc1 L_md_ok")
    A.label("L_md_no")
    e("s_add_u32 s74, s74, 1"); e("s_cmp_gt_u32 s74, %d" % SPIN_LIMIT); e("s_cbranch_scc1 L_abort")
    e("s_sleep 4"); e("s_branch L_md_poll")
    A.label("L_md_ok")
    if NEARSEL is None:
        e("s_sub_u32 s73, s73, 1"); e("s_lshl_b32 s73, s73, 13")
    else:
        e("s_sub_u32 s73, s73, 1"); e("s_xor_b32 s73, s73, 1"); e("s_lshl_b32 s73, s73, 13")
    e("s_add_u32 s39, s39, s73"); e("s_add_u32 s40, s40, s73")
    e("s_waitcnt vmcnt(0)")
    e("s_barrier")
    if instr in (1, 2):
        for r in range(80, 96): e("s_mov_b32 s%d, 0" % r)
        e("s_memtime s[76:77]"); e("s_waitcnt lgkmcnt(0)"); e("s_mov_b32 s78, s76"); e("s_mov_b32 s95, s76")
    TP = [64, 66, 68, 70, 72] + list(range(76, 102, 2))
    tstate = {"n": 0}
    def stamp(i, fine=False):
        if not instr: return
        if instr == 5:
            if i == 6:
                l = A.newlabel("Lst")
                e("s_cmp_lg_u32 s28, 3"); e("s_cbranch_scc1 %s" % l)
                e("s_memtime s[76:77]"); e("s_waitcnt lgkmcnt(0)")
                e("s_lshl_b32 s53, s29, 5"); e("s_add_u32 s53, s53, s30"); e("s_lshl_b32 s53, s53, 6"); e("s_add_u32 s53, s53, s32"); e("s_lshl_b32 s53, s53, 3"); e("s_add_u32 s53, s53, 0x%x" % ST_OFF)
                e("s_mov_b64 exec, 1"); e("v_mov_b32 v12, s76"); e("v_mov_b32 v13, s74"); e("buffer_store_dwordx2 v[12:13], v0, s[4:7], s53 offen"); e("s_mov_b64 exec, -1")
                A.label(l)
            return
        if instr == 4:
            if i == 8:
                l = A.newlabel("Lst")
                e("s_cmp_lg_u32 s32, 2"); e("s_cbranch_scc1 %s" % l)
                e("s_memtime s[76:77]"); e("s_memrealtime s[78:79]")
                A.label(l)
                l = A.newlabel("Lst")
                e("s_cmp_lg_u32 s32, 62"); e("s_cbranch_scc1 %s" % l)
                e("s_memtime s[80:81]"); e("s_memrealtime s[82:83]"); e("s_waitcnt lgkmcnt(0)")
                e("s_sub_u32 s80, s80, s76"); e("s_sub_u32 s82, s82, s78")
                e("s_lshl_b32 s53, s29, 5"); e("s_add_u32 s53, s53, s30"); e("s_lshl_b32 s53, s53, 2"); e("s_add_u32 s53, s53, s28"); e("s_lshl_b32 s53, s53, 7"); e("s_add_u32 s53, s53, 0x%x" % ST_OFF)
                e("v_mov_b32 v37, 0"); e("v_mov_b32 v11, s80"); e("buffer_store_dword v11, v37, s[4:7], s53 offen")
                e("v_mov_b32 v11, s82"); e("buffer_store_dword v11, v37, s[4:7], s53 offen offset:4")
                A.label(l)
            return
        if instr == 3:
            n = tstate["n"]
            e("s_memtime s[%d:%d]" % (TP[n], TP[n] + 1)); A.c("stamp %d (%s)" % (n, i))
            tstate["n"] = n + 1
            if i == 8:
                l = A.newlabel("Lst")
                e("s_cmp_lg_u32 s32, %d" % TRACE_STEP); e("s_cbranch_scc1 %s" % l)
                e("s_waitcnt lgkmcnt(0)")
                e("s_lshl_b32 s53, s29, 5"); e("s_add_u32 s53, s53, s30"); e("s_lshl_b32 s53, s53, 2"); e("s_add_u32 s53, s53, s28"); e("s_lshl_b32 s53, s53, 7"); e("s_add_u32 s53, s53, 0x%x" % ST_OFF)
                e("v_mov_b32 v37, 0")
                for k in range(tstate["n"]):
                    e("v_mov_b32 v11, s%d" % TP[k]); e("buffer_store_dword v11, v37, s[4:7], s53 offen offset:%d" % (4 * k))
                A.label(l)
                tstate["n"] = 0
            return
        if fine: return
        if instr == 2:
            l = A.newlabel("Lst")
            e("s_cmp_lg_u32 s32, %d" % TRACE_STEP); e("s_cbranch_scc1 %s" % l)
            e("s_memrealtime s[76:77]"); e("s_waitcnt lgkmcnt(0)"); e("s_mov_b32 s%d, s76" % (80 + i))
            A.label(l)
            return
        e("s_memtime s[76:77]"); e("s_waitcnt lgkmcnt(0)")
        e("s_sub_u32 s79, s76, s78"); e("s_add_u32 s%d, s%d, s79" % (80 + i, 80 + i)); e("s_mov_b32 s78, s76")
        if i == 8:
            l = A.newlabel("Lst")
            e("s_cmp_lg_u32 s32, 3"); e("s_cbranch_scc1 %s" % l)
            for r in range(80, 95): e("s_mov_b32 s%d, 0" % r)
            e("s_mov_b32 s95, s76")
            A.label(l)
    if KVPOS in (1, 2, 4, 5):
        e("s_mov_b32 m0, s50"); e("s_nop 0")
        for i in range(4): e("buffer_load_dwordx4 v1, s[4:7], s46 offen offset:%d%s lds" % (1024 * i, KVSC))
    tick(A, 4, 20, 28)
    dtick(A, 10, 20, 's[24:27]')
    e("s_cmp_lg_u32 s31, 0"); e("s_cbranch_scc1 L_loop_slow")
    for mode in ("fast", "slow"):
        sc = "" if mode == "fast" else " sc1"
        A.label("L_loop_" + mode)
        for par in (1, 0):
            emit_step(A, par, sc, stamp, d_first, d_red, instr in (1, 2))
        if TICK["on"]:
            e("s_lshr_b32 s99, s32, 1"); tick(A, 5, 12, 28, 99)
        e("s_cmp_lt_u32 s32, %d" % steps); e("s_cbranch_scc1 L_loop_" + mode)
        e("s_branch L_rec_done")
    A.label("L_rec_last")
    tick(A, 39, 20, 28)
    e("s_barrier")
    e("s_cmp_eq_u32 s29, 0"); e("s_cbranch_scc1 L_rec_l2")
    e("v_add_u32 v11, s56, v0")
    e("ds_write_b32 v11, v76 offset:%d" % QKX_L); e("ds_write_b32 v11, v78 offset:%d" % (QKX_L + 256))
    A.label("L_rec_l2")
    e("s_mov_b32 s32, 64")
    A.label("L_rec_done")
    publish(A)
    if MEGA:
        e("s_waitcnt vmcnt(0)"); e("s_barrier")
        signal_fin(A)
        tick(A, 38, 20, 28)
        dtick(A, 11, 20, 's[24:27]')
    if instr in (1, 2):
        e("s_memtime s[76:77]"); e("s_waitcnt lgkmcnt(0)"); e("s_sub_u32 s95, s76, s95")
        e("s_lshl_b32 s53, s29, 5"); e("s_add_u32 s53, s53, s30"); e("s_lshl_b32 s53, s53, 2"); e("s_add_u32 s53, s53, s28"); e("s_lshl_b32 s53, s53, 6"); e("s_add_u32 s53, s53, 0x%x" % ST_OFF)
        e("v_mov_b32 v0, 0")
        for i in range(16):
            e("v_mov_b32 v11, s%d" % (80 + i)); e("buffer_store_dword v11, v0, s[4:7], s53 offen offset:%d" % (4 * i))

    e("s_branch %s" % exit_label)
    A.label("L_abort")
    e("s_mov_b64 exec, 1")
    e("v_mov_b32 v0, %d" % DBG_ABORT); e("v_mov_b32 v11, 1")
    e("buffer_store_dword v11, v0, s[24:27], 0 offen")

def fload(A, dst, slot, T):
    for q in range(2):
        A.e("ds_read_b128 v[%d:%d], v3 offset:%d" % (dst + 4 * q, dst + 4 * q + 3, slot * 4096 + 2048 * T + 1024 * q))

def team_init(A):
    e = A.e
    e("s_load_dwordx2 s[52:53], s[0:1], 8")
    e("s_lshl_b32 s54, s28, 6"); e("v_add_u32 v12, s54, v0")
    e("v_lshlrev_b32 v13, 4, v12")
    for i in range(12): e("v_mov_b32 v%d, -1" % (16 + i))
    e("s_waitcnt lgkmcnt(0)")
    e("s_mov_b32 s56, s52"); e("s_mov_b32 s57, s53"); e("s_mov_b32 s58, 10240"); e("s_mov_b32 s59, 0x20000")
    e("s_cmp_lg_u32 s30, 0"); e("s_cbranch_scc1 L_ti_st")
    e("s_mul_i32 s54, s29, 640")
    e("v_bfe_u32 v14, v12, 1, 3"); e("v_mul_u32_u24 v14, 1280, v14")
    e("v_bfe_u32 v15, v12, 4, 2"); e("v_lshl_add_u32 v14, v15, 3, v14")
    e("v_and_b32 v15, 1, v12"); e("v_lshl_add_u32 v14, v15, 2, v14")
    e("v_lshrrev_b32 v15, 6, v12"); e("v_lshl_add_u32 v15, v15, 7, v14")
    for t in range(4): e("buffer_load_dword v%d, v15, s[56:59], s54 offen offset:%d" % (28 + t, 32 * t))
    for t in range(4): e("buffer_load_dword v%d, v14, s[56:59], s54 offen offset:%d" % (36 + t, 512 + 32 * t))
    e("s_mov_b32 s52, 0x05040100"); e("s_mov_b32 s53, 0x07060302")
    e("s_waitcnt vmcnt(0)")
    for half in range(2):
        d = 16 + 4 * half; q = 28 + 8 * half
        if half == 1: e("s_cmp_lg_u32 s28, 0"); e("s_cbranch_scc1 L_ti_st")
        e("v_perm_b32 v%d, v%d, v%d, s52" % (d, q + 1, q)); e("v_perm_b32 v%d, v%d, v%d, s52" % (d + 1, q + 3, q + 2))
        e("v_perm_b32 v%d, v%d, v%d, s53" % (d + 2, q + 1, q)); e("v_perm_b32 v%d, v%d, v%d, s53" % (d + 3, q + 3, q + 2))
        for i in range(4): e("v_min_u32 v%d, -2, v%d" % (d + i, d + i))
    A.label("L_ti_st")
    e("s_lshl_b32 s52, s29, 19"); e("s_mul_i32 s53, s30, 12288"); e("s_add_u32 s52, s52, s53")
    for i in range(3):
        e("s_add_u32 s53, s52, 0x%x" % (ML_OFF + 4096 * i))
        e("buffer_store_dwordx4 v[%d:%d], v13, s[4:7], s53 offen sc1" % (16 + 4 * i, 19 + 4 * i))
    e("s_lshl_b32 s52, s29, 20"); e("s_lshl_b32 s53, s30, 15"); e("s_add_u32 s52, s52, s53"); e("s_add_u32 s52, s52, s41")
    for i in range(8):
        d = 16 + 4 * (i & 1) if i < 4 else 24
        e("s_add_u32 s53, s52, %d" % (4096 * i))
        e("buffer_store_dwordx4 v[%d:%d], v13, s[4:7], s53 offen sc1" % (d, d + 3))
    for i in range(4): e("v_mov_b32 v%d, 0" % (32 + i))
    e("s_lshl_b32 s52, s29, 18"); e("s_lshl_b32 s53, s30, 13"); e("s_add_u32 s52, s52, s53")
    for i in range(2):
        e("s_add_u32 s53, s52, 0x%x" % (PB_OFF + 4096 * i))
        e("buffer_store_dwordx4 v[32:35], v13, s[4:7], s53 offen sc1")
    e("s_lshl_b32 s52, s29, 5"); e("s_add_u32 s52, s52, s30"); e("s_lshl_b32 s52, s52, 8"); e("s_add_u32 s52, s52, 0x%x" % CT_OFF)
    e("v_lshlrev_b32 v14, 2, v0")
    e("buffer_store_dword v32, v14, s[4:7], s52 offen sc1")

def team_init_finish(A, younger):
    e = A.e
    e("s_waitcnt vmcnt(%d)" % younger); e("s_barrier")
    e("s_cmp_lg_u32 s28, 0"); e("s_cbranch_scc1 L_ti_done")
    e("s_mov_b64 exec, 1"); e("v_mov_b32 v14, %d" % DBG_INIT); e("v_mov_b32 v15, 1")
    e("buffer_atomic_add v15, v14, s[24:27], 0 offen sc1")
    e("s_mov_b64 exec, -1")
    A.label("L_ti_done")

def kv_poll(A, need_sreg):
    e = A.e
    lp = A.newlabel("Lkv"); ok = A.newlabel("Lkvok"); upd = A.newlabel("Lkvu"); need = A.newlabel("Lkvn")
    e("s_add_u32 s53, s32, 5"); e("s_lshr_b32 s53, s53, 2")
    e("s_cmp_lt_u32 s53, s49"); e("s_cbranch_scc1 %s" % ok)
    e("s_cmp_ge_u32 s%d, s49" % need_sreg); e("s_cbranch_scc1 %s" % need)
    e("s_mov_b32 m0, s37"); e("s_nop 0")
    e("s_mov_b32 exec_hi, 0")
    e("buffer_load_dword v0, s[24:27], 0 offen sc1 lds")
    e("s_mov_b32 exec_hi, -1")
    e("s_branch %s" % ok)
    A.label(need)
    e("v_add_u32 v11, s37, v0"); e("ds_read_b32 v11, v11"); e("s_waitcnt lgkmcnt(0)")
    e("s_branch %s" % upd)
    A.label(lp)
    e("buffer_load_dword v11, v0, s[24:27], 0 offen sc1"); e("s_waitcnt vmcnt(0)")
    A.label(upd)
    e("v_and_b32 v11, 0x3ff, v11"); e("v_cmp_le_u32 vcc, 128, v11"); e("s_nop 3")
    e("s_lshr_b32 s49, vcc_lo, %d" % (DBG_G1 // 4)); e("s_ff0_i32_b32 s49, s49")
    e("s_cmp_eq_u32 s49, 16"); e("s_cmov_b32 s49, 18")
    e("s_cmp_lt_u32 s%d, s49" % need_sreg); e("s_cbranch_scc1 %s" % ok)
    e("s_add_u32 s74, s74, 1"); e("s_cmp_gt_u32 s74, %d" % SPIN_LIMIT); e("s_cbranch_scc1 L_abort")
    e("s_sleep 2"); e("s_branch %s" % lp)
    A.label(ok)

def signal_prog(A):
    e = A.e
    l = A.newlabel("Lsg")
    e("s_cmp_lg_u32 s63, 0"); e("s_cbranch_scc1 %s" % l)
    e("s_max_u32 s53, s32, 2"); e("s_sub_u32 s53, s53, 2")
    e("s_mov_b64 exec, 1"); e("v_mov_b32 v11, s53"); e("s_mov_b32 s53, 0x%x" % CT_OFF)
    e("buffer_store_dword v11, v0, s[4:7], s53 offen sc1")
    e("s_mov_b64 exec, -1")
    A.label(l)

def signal_fin(A, back=0):
    e = A.e
    l = A.newlabel("Lsg")
    e("s_cmp_lg_u32 s28, 2"); e("s_cbranch_scc1 %s" % l)
    e("s_lshl_b32 s53, s30, 7"); e("s_lshl_b32 s54, s29, 2"); e("s_add_u32 s53, s53, s54"); e("s_add_u32 s53, s53, 0x%x" % (CT_OFF + 128))
    e("s_sub_u32 s54, s32, %d" % back)
    e("s_mov_b64 exec, 1"); e("v_mov_b32 v11, s54")
    e("buffer_store_dword v11, v0, s[4:7], s53 offen sc1")
    e("s_mov_b64 exec, -1")
    A.label(l)

def publish(A, lds=None, wait_for=None, mm=None):
    e = A.e
    e("v_add_u32 v36, s56, v6")
    e("ds_read_b64_tr_b16 v[32:33], v36 offset:%d" % QKX_L); e("ds_read_b64_tr_b16 v[34:35], v36 offset:%d" % (QKX_L + 512))
    e("ds_read_b64 v[38:39], v36 offset:%d" % QKX_L)
    if lds: lds("PB", 3)
    seq = (6, 7, 9, 5, 8) if mm else (9,)
    for j in seq:
        if mm:
            wait_for(("A", j))
            for T in range(2): mm("Q", j, T)
        if j == 9:
            if mm: wait_for("PB")
            else: e("s_waitcnt lgkmcnt(0)")
            t1 = A.newlabel("Lt1"); tj = A.newlabel("Ltj")
            e("s_cmp_eq_u32 s32, 0"); e("s_cbranch_scc1 %s" % tj)
            e("s_cmp_lg_u32 s29, 0"); e("s_cbranch_scc1 %s" % t1)
            if not DIS & 1: e("buffer_store_dwordx4 v[32:35], v1, s[4:7], s48 offen%s" % PUBSC)
            e("s_branch %s" % tj)
            A.label(t1)
            if not DIS & 1: e("buffer_store_dwordx2 v[38:39], v6, s[4:7], s48 offen%s" % PUBSC)
            A.label(tj)
            e("s_add_u32 s48, s48, 0x2000")

def emit_step(A, par, sc, stamp, d_first, d_red, instr):
    e = A.e
    KXC = KX_L
    ACC = {"Q": ACQ, "K": ACK, "V": ACV}
    def smf(acc, a, b): e("%s v[%d:%d], %s, %s, v2" % (SMF, acc, acc + 3, vr(a, 4), b))
    def spin():
        e("s_add_u32 s74, s74, 1"); e("s_cmp_gt_u32 s74, %d" % SPIN_LIMIT); e("s_cbranch_scc1 L_abort")
    def gl_load(reg, s):
        e("buffer_load_dwordx4 v[%d:%d], v37, s[4:7], s%d offen sc1" % (reg, reg + 3, s))
        e("buffer_load_dword v%d, v38, s[4:7], s%d offen sc1" % (reg + 4, s))
    def gl_check(reg):
        e("v_max3_u32 v11, v%d, v%d, v%d" % (reg, reg + 1, reg + 2)); e("v_max3_u32 v11, v11, v%d, v%d" % (reg + 3, reg + 4))
        e("v_cmp_eq_u32 vcc, -1, v11")
    def gl_write(reg, half):
        e("ds_write_b128 v37, v[%d:%d] offset:%d" % (reg, reg + 3, AC_L + 5120 * half))
        e("ds_write_b32 v38, v%d offset:%d" % (reg + 4, AC_L + 5120 * half))
    Lseq = [(m, j, T) for (m, j) in [("K", 0), ("K", 2), ("K", 4), ("V", 1), ("V", 3), ("Q", 5)] for T in range(2)]
    lstate = {"issued": 0, "other": 0}
    pend = []
    def lds(tag, n=1):
        pend.extend([tag] * n)
    def wait_for(tag):
        if tag not in pend: return
        last = len(pend) - 1 - pend[::-1].index(tag)
        n = len(pend) - 1 - last
        e("s_waitcnt lgkmcnt(%d)" % n)
        del pend[:last + 1]
    def wait_all():
        e("s_waitcnt lgkmcnt(0)"); del pend[:]
    def Lissue():
        i = lstate["issued"]
        if i >= len(Lseq): return
        m, j, T = Lseq[i]
        fload(A, TMP + 8 * (i % 2), LSLOT[(m, j)], T); lds(("L", i), 2)
        lstate["issued"] = i + 1
    def mm(m, j, T):
        a = AA(j % 5)
        if (m, j) in LSLOT:
            i = Lseq.index((m, j, T))
            wait_for(("L", i))
            smf(ACC[m] + 4 * T, a, vr(TMP + 8 * (i % 2), 8))
            Lissue()
        else:
            smf(ACC[m] + 4 * T, a, FR(FX(m, j, T)))
    def rdA(j):
        e("ds_read_b128 v[%d:%d], v1 offset:%d" % (AA(j % 5), AA(j % 5) + 3, AC_L + 1024 * j)); lds(("A", j))
    def zero(lo, hi):
        for r in range(lo, hi, 2): e("v_mov_b64 v[%d:%d], 0" % (r, r + 1))
    e("v_add_u32 v37, s33, v1"); e("v_add_u32 v38, s34, v0")
    if d_first: e("s_sleep %d" % d_first)
    GA, GB = 12, 20
    gl_load(GA, 38)
    stamp("issueA", True)
    if D_GAP: e("s_sleep %d" % D_GAP)
    e("s_mov_b32 m0, s50")
    gl_load(GB, 38)
    for i in range(4):
        if KVPOS == 0: e("buffer_load_dwordx4 v1, s[4:7], s46 offen offset:%d%s lds" % (1024 * i, KVSC))
    lp = A.newlabel("Lgl"); okA = A.newlabel("LglA"); okB = A.newlabel("LglB"); ok = A.newlabel("Lglok"); re = A.newlabel("Lglre")
    e("s_waitcnt vmcnt(%d)" % (2 if KVPOS else 6))
    A.label(lp)
    gl_check(GA); e("s_cbranch_vccnz %s" % re)
    gl_write(GA, 0)
    A.label(ok)
    lds("W", 2)
    stamp("gotL", True)
    if GREARLY: gl_load(GG, 39)
    Lissue(); Lissue()
    wait_for("W")
    stamp(0)
    e("s_barrier")
    e("s_waitcnt vmcnt(%d)" % (2 if GREARLY else 0))
    stamp("B4", True)
    for j in range(5): rdA(j)
    if not GREARLY: gl_load(GG, 39)
    if KVPOS == 3:
        for i in range(4): e("buffer_load_dwordx4 v1, s[4:7], s46 offen offset:%d%s lds" % (1024 * i, KVSC))
    for j in range(5):
        wait_for(("A", j))
        if j % 2 == 0: order = [("K", 0), ("Q", 0), ("Q", 1), ("K", 1)]
        else: order = [("Q", 0), ("K", 0), ("Q", 1), ("K", 1)]
        for m, T in order: mm(m, j, T)

    stamp(1)
    lpr = A.newlabel("Lgr"); rer = A.newlabel("Lgrre")
    e("s_waitcnt vmcnt(%d)" % (4 if KVPOS == 3 else 0))
    A.label(lpr)
    gl_check(GG); e("s_cbranch_vccnz %s" % rer)
    gl_write(GG, 1); lds("W", 2)
    stamp(9)
    mm("V", 0, 0)
    if MEGA and not par:
        e("s_add_u32 s54, s32, %d" % (3 if KVPOS in (1, 2, 4, 5) else 1)); e("s_lshr_b32 s54, s54, 2")
        kv_poll(A, 54)
    if KVPOS == 3:
        mm("V", 0, 1); e("s_waitcnt vmcnt(0)")
    e("s_mov_b32 m0, s35"); e("s_add_u32 s46, s46, 0x4000")
    if KVPOS in (1, 2, 4, 5):
        e("s_add_u32 s53, s46, 0x4000"); e("buffer_load_dword v4, s[4:7], s53 offen%s lds" % KVSC)
    else: e("buffer_load_dword v4, s[4:7], s46 offen%s lds" % KVSC)
    mm("V", 1, 0)
    nml = A.newlabel("Lnml")
    e("s_cmp_lg_u32 s30, 31"); e("s_cbranch_scc1 %s" % nml)
    e("s_add_u32 s54, s38, s50"); e("s_add_u32 s54, s54, 10240")
    e("buffer_load_dword v4, s[4:7], s54 offen lds")
    A.label(nml)
    if KVPOS != 3: mm("V", 0, 1)
    mm("V", 1, 1)
    wait_for("W")
    e("s_barrier")
    stamp("B5", True)
    rdA(5); rdA(6)
    if MEGA:
        signal_prog(A)
        lf = A.newlabel("Lfn")
        e("s_cmp_lt_u32 s32, 61"); e("s_cbranch_scc1 %s" % lf)
        signal_fin(A, 1)
        A.label(lf)
    VXR = GG
    mm("V", 2, 0); mm("V", 2, 1); rdA(7)
    mm("V", 4, 0); mm("V", 4, 1); rdA(9)
    mm("V", 3, 0); mm("V", 3, 1); rdA(8)
    publish(A, lds, wait_for, mm)
    for j in range(5, 10):
        for T in range(2):
            mm("K", j, T)
            if j < 7:
                ks = 2 * (j - 5) + T
                e("ds_read_b128 v[%d:%d], v1 offset:%d" % (TMP + 4 * ks, TMP + 3 + 4 * ks, KXC + 4096 + 1024 * ks)); lds("K1")
            if j == 8:
                q = ACQ + 4 * T
                e("v_add_f32 v%d, v%d, v%d" % (q, q, q + 1)); e("v_add_f32 v%d, v%d, v%d" % (q + 2, q + 2, q + 3))
            if j == 9:
                q = ACQ + 4 * T
                e("v_cvt_pk_bf16_f32 v%d, v%d, v%d" % (q + 1, q, q + 2))
    stamp(2)
    if TW & 1:
        for T in range(2): mm("V", 5, T)
        e("s_nop 3")
        for T in range(2):
            q, k = ACQ + 4 * T, ACK + 4 * T
            e("v_add_f32 v%d, v%d, v%d" % (k, k, k + 1)); e("v_add_f32 v%d, v%d, v%d" % (k + 2, k + 2, k + 3))
            if T == 0: mm("V", 6, 0)
            e("v_cvt_pk_bf16_f32 v%d, v%d, v%d" % (q, k, k + 2))
            e("ds_write_b64 v5, v[%d:%d] offset:%d" % (q, q + 1, 512 * T)); lds("W")
        mm("V", 6, 1)
    else:
        for j in (5, 6):
            for T in range(2): mm("V", j, T)
        e("s_nop 1")
        for T in range(2):
            q, k = ACQ + 4 * T, ACK + 4 * T
            e("v_add_f32 v%d, v%d, v%d" % (k, k, k + 1)); e("v_add_f32 v%d, v%d, v%d" % (k + 2, k + 2, k + 3))
            e("v_cvt_pk_bf16_f32 v%d, v%d, v%d" % (q, k, k + 2))
            e("ds_write_b64 v5, v[%d:%d] offset:%d" % (q, q + 1, 512 * T)); lds("W")
    for j in (7, 8):
        for T in range(2): mm("V", j, T)
    wait_all()
    e("s_barrier")
    stamp("B1", True)
    X, KT0 = 12, 40
    for ks in range(4):
        for a in range(2): e("ds_read_b64_tr_b16 v[%d:%d], v6 offset:%d" % (X + 4 * ks + 2 * a, X + 4 * ks + 2 * a + 1, QKX_L + 1024 * ks + 512 * a))
        lds(("X", ks), 2)
        if ks == 1: mm("V", 9, 0)
        if ks == 3: mm("V", 9, 1)
    if not TW & 2:
        for ks in range(4): e("ds_read_b128 v[%d:%d], v1 offset:%d" % (KT0 + 4 * ks, KT0 + 3 + 4 * ks, KXC + 1024 * ks)); lds("K0")
        e("v_add_u32 v11, s47, v1")
        e("ds_read_b128 v[32:35], v11"); e("ds_read_b128 v[36:39], v11 offset:1024"); lds("VX", 2)
    else: e("v_add_u32 v11, s47, v1")
    stamp(3)
    S2, S0, S1 = 28, 64, 68
    for ks in range(4):
        wait_for(("X", ks))
        e("%s v[%d:%d], %s, %s, %s" % (MF32, S2, S2 + 3, vr(TMP + 4 * ks, 4), vr(X + 4 * ks, 4), "0" if ks == 0 else vr(S2, 4)))
        if TW & 2:
            e("ds_read_b128 v[%d:%d], v1 offset:%d" % (KT0 + 4 * ks, KT0 + 3 + 4 * ks, KXC + 1024 * ks)); lds("K0")
    if TW & 2:
        e("ds_read_b128 v[32:35], v11"); e("ds_read_b128 v[36:39], v11 offset:1024"); lds("VX", 2)
    for ks in range(4):
        e("%s v[%d:%d], %s, %s, %s" % (MF32, S0, S0 + 3, vr(X + 4 * ks, 4), vr(X + 4 * ks, 4), "0" if ks == 0 else vr(S0, 4)))
    wait_all()
    if KVPOS in (4, 5): e("s_mov_b32 m0, s50"); e("s_barrier")
    VM = 76
    for ks in range(4):
        e("%s v[%d:%d], %s, %s, %s" % (MF32, S1, S1 + 3, vr(KT0 + 4 * ks, 4), vr(X + 4 * ks, 4), "0" if ks == 0 else vr(S1, 4)))
        if KVPOS == 4 or (KVPOS == 5 and ks >= 2): e("buffer_load_dwordx4 v1, s[4:7], s46 offen offset:%d%s lds" % (1024 * ks, KVSC))
        if ks < 2:
            v = ACV + 4 * ks
            e("v_add_f32 v%d, v%d, v%d" % (v, v, v + 1)); e("v_add_f32 v%d, v%d, v%d" % (v + 2, v + 2, v + 3))
        else:
            v = ACV + 4 * (ks - 2)
            e("v_cvt_pk_bf16_f32 v%d, v%d, v%d" % (VM + 2 * (ks - 2), v, v + 2)); e("v_mov_b32 v%d, 0" % (VM + 1 + 2 * (ks - 2)))
    if not par:
        e("s_cmp_eq_u32 s32, 63"); e("s_cbranch_scc1 L_rec_last")
    fload(A, 40, 7, 0); fload(A, 48, 7, 1); lds("O4", 4)
    e("v_max3_f32 v11, v%d, v%d, v%d" % (S2, S2 + 1, S2 + 2)); e("v_max3_f32 v11, v11, v%d, v%d" % (S2 + 3, S0))
    P1, P0, ONES, OA, LS = 12, 16, 20, 56, 24
    e("v_max3_f32 v11, v11, v%d, v%d" % (S0 + 1, S1)); e("v_max3_f32 v11, v11, v%d, v%d" % (S1 + 1, S1 + 2))
    e("v_max_f32 v11, v11, v%d" % (S1 + 3)); e("v_mov_b32 v66, v11")
    e("v_mov_b32 v%d, 0x3f803f80" % ONES); e("v_mov_b32 v%d, 0x3f803f80" % (ONES + 1))
    e("v_permlane16_swap_b32 v11, v66"); e("v_max_f32 v11, v11, v66"); e("v_mov_b32 v66, v11")
    e("v_mov_b64 v[%d:%d], v[%d:%d]" % (ONES + 2, ONES + 3, ONES, ONES + 1)); e("v_mov_b32 v%d, 0" % (P0 + 1))
    e("v_permlane32_swap_b32 v11, v66"); e("v_max_f32 v11, v11, v66")
    e("v_mul_f32 v11, s51, v11")
    vals = [S0, S0 + 1] + [S1 + i for i in range(4)] + [S2 + i for i in range(4)]
    for i, v in enumerate(vals):
        e("v_fma_f32 v%d, v%d, s51, -v11" % (v, v))
        if i >= 1: e("v_exp_f32 v%d, v%d" % (vals[i - 1], vals[i - 1]))
        if i == 3: e("v_cvt_pk_bf16_f32 v%d, v%d, v%d" % (P0, S0, S0 + 1))
        if i == 5:
            e("v_cvt_pk_bf16_f32 v%d, v%d, v%d" % (P1, S1, S1 + 1))
            e("%s v[%d:%d], %s, %s, 0" % (MF16, LS, LS + 3, vr(ONES, 2), vr(P0, 2)))
        if i == 6: e("%s v[%d:%d], %s, %s, 0" % (MF16, OA, OA + 3, vr(VM, 2), vr(P0, 2)))
        if i == 7:
            e("v_cvt_pk_bf16_f32 v%d, v%d, v%d" % (P1 + 1, S1 + 2, S1 + 3))
            e("%s v[%d:%d], %s, %s, 0" % (MF16, OA + 4, OA + 7, vr(VM + 2, 2), vr(P0, 2)))
    e("v_exp_f32 v%d, v%d" % (vals[9], vals[9]))
    e("v_cvt_pk_bf16_f32 v%d, v%d, v%d" % (P1 + 2, S2, S2 + 1)); e("v_cvt_pk_bf16_f32 v%d, v%d, v%d" % (P1 + 3, S2 + 2, S2 + 3))
    stamp(4)
    e("s_nop 1")
    stamp("vx", True)
    e("%s v[%d:%d], %s, %s, %s" % (MF32, LS, LS + 3, vr(ONES, 4), vr(P1, 4), vr(LS, 4)))
    for T in range(2): e("%s v[%d:%d], %s, %s, %s" % (MF32, OA + 4 * T, OA + 4 * T + 3, vr(VXR + 4 * T, 4), vr(P1, 4), vr(OA + 4 * T, 4)))
    WA = 12
    zero(12, 24)
    e("v_rcp_f32 v11, v%d" % LS)

    e("s_mov_b32 exec_lo, 0xcccccccc"); e("s_mov_b32 exec_hi, 0xcccccccc")
    for T in range(2):
        o = OA + 4 * T
        for i in range(4): e("v_mul_f32 v%d, v%d, v11" % (o + i, o + i))
        e("v_cvt_pk_bf16_f32 v%d, v%d, v%d" % (o, o, o + 1)); e("v_cvt_pk_bf16_f32 v%d, v%d, v%d" % (o + 1, o + 2, o + 3))
        e("ds_write_b64 v7, v[%d:%d] offset:%d" % (o, o + 1, 32 * T)); lds("W")
    e("s_mov_b64 exec, -1")
    fload(A, 32, 6, 0); fload(A, 64, 6, 1); lds("O3", 4)
    zero(24, 32)
    if KVPOS == 5:
        for i in range(2): e("buffer_load_dwordx4 v1, s[4:7], s46 offen offset:%d%s lds" % (1024 * i, KVSC))
    wait_for("W")
    stamp("preB2", True)
    e("s_barrier")
    stamp("B2", True)
    OF = 56
    for ks in range(2): e("ds_read_b128 v[%d:%d], v8 offset:%d" % (OF + 4 * ks, OF + 3 + 4 * ks, 128 * ks)); lds(("OF", ks))
    if KVPOS == 1:
        e("s_mov_b32 m0, s50"); e("s_nop 0")
        for i in range(4): e("buffer_load_dwordx4 v1, s[4:7], s46 offen offset:%d%s lds" % (1024 * i, KVSC))
    stamp(5)
    WF = {(4, 0): vr(40, 8), (4, 1): vr(48, 8), (3, 0): vr(32, 8), (3, 1): vr(64, 8)}
    for t in range(3):
        for ks in range(2): WF[(t, ks)] = FR(FX("O", t, ks))
    wait_for(("OF", 0))
    smf(WA + 16, OF, WF[(4, 0)])
    wait_for(("OF", 1))
    smf(WA + 16, OF + 4, WF[(4, 1)])
    tagop = (lambda d: "v_or_b32 v%d, 1, v%d" % (d, d)) if par else (lambda d: "v_and_b32 v%d, -2, v%d" % (d, d))
    def packl(t, dst):
        d = WA + 4 * t
        return ["v_add_f32 v%d, v%d, v%d" % (d, d, d + 1), "v_add_f32 v%d, v%d, v%d" % (d + 2, d + 2, d + 3),
                "v_cvt_pk_bf16_f32 v%d, v%d, v%d" % (dst, d, d + 2), tagop(dst)]
    for t in (0, 1, 2):
        for ks in range(2): smf(WA + 4 * t, OF + 4 * ks, WF[(t, ks)])
    e("s_nop 1")
    p4 = packl(4, 44)
    e(p4[0]); e(p4[1]); smf(WA + 12, OF, WF[(3, 0)]); e(p4[2]); e(p4[3]); smf(WA + 12, OF + 4, WF[(3, 1)])
    e("buffer_store_dword v44, v9, s[4:7], s44 offen%s" % sc)
    for t in range(4):
        for x in packl(t, 40 + t): e(x)
    e("buffer_store_dwordx4 v[40:43], v9, s[4:7], s43 offen%s" % sc)
    stamp(6)
    tv = A.newlabel("Ltv")
    e("s_cmp_eq_u32 s29, 0"); e("s_cbranch_scc1 %s" % tv)
    e("v_add_u32 v11, s56, v0")
    e("ds_write_b32 v11, v%d offset:%d" % (VM, QKX_L)); e("ds_write_b32 v11, v%d offset:%d" % (VM + 2, QKX_L + 256))
    A.label(tv)
    e("s_add_u32 s38, s38, 5120"); e("s_add_u32 s39, s39, 16384"); e("s_add_u32 s40, s40, 16384")
    e("ds_read_b128 v[28:31], v1 offset:%d" % SEL_L)
    if not WARM: zero(ACQ, ACQ + 24)
    nored = A.newlabel("Lnored"); join = A.newlabel("Ljoin")
    e("s_cmp_ge_u32 s42, 40"); e("s_cbranch_scc1 %s" % nored)
    if d_red: e("s_sleep %d" % d_red)
    op = "v_bitop3_b32 v11, v11, v%d, v%d bitop3:0x80" if par else "v_or3_b32 v11, v11, v%d, v%d"
    RA, RB = 64, 12
    def rload(b):
        for j in range(4): e("buffer_load_dwordx4 v[%d:%d], v1, s[4:7], s45 offen offset:%d sc1" % (b + 4 * j, b + 3 + 4 * j, 1024 * j))
        if instr: e("s_add_u32 s91, s91, 1")
    def rcheck(b):
        e("v_mov_b32 v11, %d" % par)
        for j in range(4):
            e("s_waitcnt vmcnt(%d)" % (7 - j))
            e("%s v[32:35], v[28:31], %s, %s" % (MF32, vr(b + 4 * j, 4), "0" if j == 0 else "v[32:35]"))
            e(op % (b + 4 * j, b + 4 * j + 1)); e(op % (b + 4 * j + 2, b + 4 * j + 3))
        e("v_and_b32 v11, 1, v11")
        e("v_cmp_ne_u32 vcc, %d, v11" % par)
    rload(RA)
    if WARM:
        e("s_waitcnt lgkmcnt(0)")
        for r in range(ACQ, ACQ + 10): e("v_mov_b32 v%d, 0" % r)
        for j in range(4):
            e("buffer_load_dwordx4 v[%d:%d], v1, s[4:7], s45 offen offset:%d sc1" % (RB + 4 * j, RB + 3 + 4 * j, 1024 * j))
            e("v_mov_b32 v%d, 0" % (ACQ + 10 + j))
        for r in range(ACQ + 14, ACQ + 24):
            e("v_mov_b32 v%d, 0" % r)
            if WARM > 1: e("s_nop %d" % (WARM - 2))
    else:
        if D_GAP: e("s_sleep %d" % D_GAP)
        rload(RB)
        e("s_waitcnt lgkmcnt(0)")
    lpd = A.newlabel("Lrd"); okd = A.newlabel("Lrdok"); A.label(lpd)
    rcheck(RA); e("s_cbranch_vccz %s" % okd); rload(RA)
    rcheck(RB); e("s_cbranch_vccz %s" % okd); rload(RB)
    spin()
    e("s_branch %s" % lpd)
    A.label(re)
    gl_load(GA, 38)
    if instr: e("s_add_u32 s90, s90, 1")
    e("s_waitcnt vmcnt(2)"); gl_check(GB); e("s_cbranch_vccz %s" % okB)
    gl_load(GB, 38)
    if instr: e("s_add_u32 s90, s90, 1")
    spin()
    e("s_waitcnt vmcnt(2)")
    e("s_branch %s" % lp)
    A.label(okB); gl_write(GB, 0); e("s_branch %s" % ok)
    A.label(rer)
    gl_load(GG, 39)
    if instr: e("s_add_u32 s92, s92, 1")
    spin()
    e("s_waitcnt vmcnt(0)")
    e("s_branch %s" % lpr)
    A.label(nored)
    if KVPOS == 2:
        nk = A.newlabel("Lnk")
        e("s_cmp_lt_u32 s28, 2"); e("s_cbranch_scc1 %s" % nk)
        e("s_add_u32 s53, s46, s61"); e("s_mov_b32 m0, s60"); e("s_nop 0")
        for i in range(4): e("buffer_load_dwordx4 v1, s[4:7], s53 offen offset:%d%s lds" % (1024 * i, KVSC))
        e("s_add_u32 s53, s53, 4096"); e("s_add_u32 m0, s60, 4096"); e("s_nop 0")
        for i in range(4): e("buffer_load_dwordx4 v1, s[4:7], s53 offen offset:%d%s lds" % (1024 * i, KVSC))
        A.label(nk)
    if WARM: zero(ACQ, ACQ + 24)
    e("s_waitcnt lgkmcnt(0)")
    e("s_branch %s" % join)
    A.label(okd)
    e("s_nop 2")
    for i in range(4): e("v_add_f32_dpp v%d, v%d, v%d row_ror:8 row_mask:0xf bank_mask:0xf" % (36 + i, 32 + i, 32 + i))
    e("s_mov_b32 exec_lo, 0x00ff00ff"); e("s_mov_b32 exec_hi, 0")
    e("v_cvt_pk_bf16_f32 v32, v36, v37"); e("v_cvt_pk_bf16_f32 v33, v38, v39")
    e("v_min_u32 v32, -2, v32"); e("v_min_u32 v33, -2, v33")
    e("buffer_store_dwordx2 v[32:33], v10, s[4:7], s38 offen%s" % sc)
    e("buffer_store_dwordx2 v[32:33], v10, s[4:7], s40 offen sc1")
    e("s_mov_b64 exec, -1")
    A.label(join)
    stamp(7)
    e("s_barrier")
    stamp(8)
    e("s_add_u32 s32, s32, 1")

def gen(**kw):
    A = Asm()
    A.raw("; @launch kernel=rec_kernel grid=(256,1,1) block=(256,1,1) lds=163840")
    A.raw('.amdgcn_target "amdgcn-amd-amdhsa--gfx950"')
    A.raw(".text")
    kernel_header(A, "rec_kernel")
    A.e("s_cmp_ge_u32 s2, 256"); A.e("s_cbranch_scc1 L_end")
    emit_rec(A, **kw)
    A.label("L_end")
    A.e("s_endpgm")
    A.raw('.section .rodata,"a"'); A.raw(".p2align 6")
    A.raw(kernel_desc("rec_kernel", 512, 102, 256))
    return A.text()

if __name__ == "__main__":
    import sys
    for spec in sys.argv[1:]:
        d1, dr, ra, ins = map(int, spec.split(","))
        DIS = d1 >> 4; d1 &= 15
        NEARSEL = 1 if DIS & 32 else None
        KVSC = " sc1" if DIS & 8 else ""
        PUBSC = " sc1" if DIS & 16 else ""
        D_GAP = ra % 10; KVPOS = (ra // 10) % 10; TW = ra // 100
        open("rec_%d_%d_%d_%d.s" % (d1 + 16 * DIS, dr, ra, ins), "w").write(gen(instr=ins, d_first=d1, d_red=dr))
```

```python
import sys
from asmlib import *
from layout import *
import gen_g1, gen_rec, gen_att, gen_g2s
from gen_g1 import srd
NAME = "recurrent_scan__memory_aug_recurrent_mem_tr__glu_gated_swiglu__prompt"
HEAD = open("cdna_kernels/%s.s.ref" % NAME).read().split("; Override launch")[0]
LIM = 60000

SL1 = 40
def poll(A, srdname, soff, voff_imm, shift, target, vtmp, sleep=8, tail=None):
    e = A.e
    lp = A.newlabel("Lp"); ok = A.newlabel("Lpok")
    A.label(lp)
    e("v_mov_b32 v%d, 0" % vtmp)
    e("buffer_load_dword v%d, v%d, %s, %s offen offset:%d sc1" % (vtmp, vtmp, srdname, soff, voff_imm)); e("s_waitcnt vmcnt(0)")
    e("v_readfirstlane_b32 s68, v%d" % vtmp); e("s_nop 3")
    for (sh, tg) in zip(shift, target):
        e("s_bfe_u32 s69, s68, 0x%x" % ((10 << 16) | sh)); e("s_cmp_lt_u32 s69, %d" % tg); e("s_cbranch_scc1 %s_n" % lp)
    e("s_branch %s" % ok)
    A.label(lp + "_n")
    e("s_add_u32 s74, s74, 1"); e("s_cmp_gt_u32 s74, %d" % LIM); e("s_cbranch_scc1 L_wabort")
    e("s_sleep %d" % sleep)
    if tail:
        e("s_cmp_ge_u32 s47, %d" % tail); e("s_cbranch_scc1 %s" % lp); e("s_sleep 64")
    e("s_branch %s" % lp)
    A.label(ok)

def poll_prog(A, segreg, vtmp, head=None):
    e = A.e
    lp = A.newlabel("Lpp"); ok = A.newlabel("Lppok"); done = A.newlabel("Lppd")
    e("s_min_u32 s75, s%d, %d" % (segreg, 60 if head is None else 57))
    A.label(lp)
    e("v_mov_b32 v%d, 0" % vtmp); e("s_mov_b32 s69, 0x%x" % CT_OFF)
    e("buffer_load_dword v%d, v%d, s[4:7], s69 offen sc1" % (vtmp, vtmp)); e("s_waitcnt vmcnt(0)")
    e("v_readfirstlane_b32 s68, v%d" % vtmp); e("s_nop 3")
    e("s_cmp_gt_u32 s68, s75"); e("s_cbranch_scc1 %s" % ok)
    e("s_add_u32 s74, s74, 1"); e("s_cmp_gt_u32 s74, %d" % LIM); e("s_cbranch_scc1 L_wabort")
    e("s_sleep 8")
    e("s_cmp_ge_u32 s68, s75"); e("s_cbranch_scc1 %s" % lp)
    e("s_sleep %d" % SL1); e("s_branch %s" % lp)
    A.label(ok)
    if head is not None:
        e("s_cmp_gt_u32 s68, s%d" % segreg); e("s_cbranch_scc1 %s" % done)
        lf = A.newlabel("Lpf")
        A.label(lf)
        e("v_mov_b32 v%d, 0" % vtmp); e("s_lshl_b32 s69, s%d, 7" % head); e("s_add_u32 s69, s69, 0x%x" % (CT_OFF + 128))
        e("buffer_load_dwordx2 v[%d:%d], v%d, s[4:7], s69 offen sc1" % (vtmp, vtmp + 1, vtmp)); e("s_waitcnt vmcnt(0)")
        e("v_min_u32 v%d, v%d, v%d" % (vtmp, vtmp, vtmp + 1)); e("s_nop 0"); e("v_readfirstlane_b32 s68, v%d" % vtmp); e("s_nop 3")
        e("s_cmp_gt_u32 s68, s%d" % segreg); e("s_cbranch_scc1 %s" % done)
        e("s_add_u32 s74, s74, 1"); e("s_cmp_gt_u32 s74, %d" % LIM); e("s_cbranch_scc1 L_wabort")
        e("s_sleep 4"); e("s_branch %s" % lf)
        A.label(done)

def build(instr=0, d_first=2, d_red=3, listform=False):
    A = Asm(); e = A.e
    A.raw(HEAD.rstrip())
    if listform: A.raw("; @launch kernel=%s_kernel grid=(256,1,1) block=(256,1,1) lds=163840" % NAME)
    else: A.raw("; @launch grid=(256,1,1) block=(256,1,1) lds=163840")
    A.raw('.amdgcn_target "amdgcn-amd-amdhsa--gfx950"')
    A.raw(".text")
    kernel_header(A, NAME + "_kernel")
    e("s_cmp_ge_u32 s2, 256"); e("s_cbranch_scc1 L_end")
    gen_rec.MEGA = True; gen_rec.PUBSC = " sc1"; gen_rec.KVSC = " sc1"
    gen_rec.emit_rec(A, instr=instr, d_first=d_first, d_red=d_red, worker_label="L_worker")
    e("s_branch L_end")
    A.label("L_worker")
    e("s_mov_b32 s26, s28")
    e("s_sub_u32 s70, s55, 64")
    e("s_mov_b32 s64, s24"); e("s_mov_b32 s65, s25"); e("s_mov_b32 s66, 256"); e("s_mov_b32 s67, 0x20000")
    e("s_load_dwordx2 s[54:55], s[0:1], 0")
    e("s_load_dwordx4 s[16:19], s[0:1], 16")
    e("s_load_dwordx2 s[20:21], s[0:1], 32")
    e("s_load_dwordx4 s[56:59], s[0:1], 64")
    e("s_load_dwordx2 s[62:63], s[0:1], 40")
    e("s_waitcnt lgkmcnt(0)")
    e("s_mov_b64 s[22:23], s[56:57]"); e("s_mov_b64 s[24:25], s[58:59]")
    srd(e, 8, 54, 2621440)
    e("s_and_b32 s27, s70, 3"); e("s_lshr_b32 s28, s70, 2"); e("s_sub_u32 s28, 47, s28")
    tick(A, 1, 12, 26); e("s_mov_b32 s99, 0")
    gen_g1.emit_g1(A, NPART=48, mega=True, NT=4)
    tick(A, 30, 12, 26)
    dtick(A, 12, 12, 's[64:67]')
    poll(A, "s[64:67]", "0", DBG_INIT, [0], [64], 11)
    e("s_mul_i32 s33, s70, 171"); e("s_lshr_b32 s71, s33, 10")
    e("s_mul_i32 s33, s71, 6"); e("s_sub_u32 s72, s70, s33")
    e("s_cmp_eq_u32 s72, 5"); e("s_cbranch_scc1 L_att_role")
    e("s_load_dwordx2 s[54:55], s[0:1], 40")
    e("s_load_dwordx4 s[56:59], s[0:1], 80")
    e("s_mul_i32 s33, s71, 5"); e("s_add_u32 s33, s33, s72")
    e("s_mul_i32 s47, s33, 205"); e("s_lshr_b32 s47, s47, 12")
    e("s_mul_i32 s34, s47, 20"); e("s_sub_u32 s28, s33, s34")
    e("s_waitcnt lgkmcnt(0)")
    srd(e, 16, 58, 2621440); srd(e, 12, 56, 1728 * 1280); srd(e, 20, 54, 5242880)
    e("s_barrier")
    gen_g2s.emit_g2s_prologue(A)
    tick(A, 31, 12, 26)
    A.label("L_g2_loop")
    def waitH():
        e("s_lshr_b32 s41, s47, 3"); e("s_lshl_b32 s41, s41, 2")
        poll(A, "s[64:67]", "s41", DBG_G1, [20], [56], 11, sleep=32)
    def waitO():
        e("s_lshr_b32 s41, s47, 1")
        e("s_cmp_lg_u32 s26, 0"); e("s_cbranch_scc1 L_g2_nopoll")
        poll_prog(A, 41, 10)
        e("s_lshl_b32 s41, s41, 7"); e("s_add_u32 s41, s41, 0x%x" % (CT_OFF + 0x2000))
        poll(A, "s[4:7]", "s41", 0, [0], [32], 11, sleep=4)
        A.label("L_g2_nopoll")
        e("s_barrier")
    gen_g2s.emit_g2s_task(A, waitH, waitO, " sc1")
    if TICK["on"]:
        e("s_lshr_b32 s99, s47, 4"); tick(A, 32, 14, 26, 99)
    e("s_add_u32 s47, s47, 8"); e("s_cmp_lt_u32 s47, 128"); e("s_cbranch_scc1 L_g2_loop")
    dtick(A, 14, 14, 's[64:67]')
    e("s_branch L_end")
    A.label("L_att_role")
    gen_att.emit_att_setup(A)
    e("v_lshrrev_b32 v0, 6, v0")
    e("s_mov_b32 s47, s73")
    A.label("L_att_loop")
    e("s_lshl_b32 s30, s71, 6"); e("s_add_u32 s30, s30, s47")
    def waitQ():
        e("s_lshr_b32 s44, s47, 2"); e("s_lshl_b32 s44, s44, 2")
        poll(A, "s[64:67]", "s44", DBG_G1, [0, 10], [128, 64], 15, sleep=32)
    def waitM():
        poll_prog(A, 47, 14, head=71)
    gen_att.emit_att(A, " sc1", waitQ, waitM)
    tick(A, 42, 8, 73)
    e("s_waitcnt vmcnt(0)")
    e("s_lshl_b32 s44, s47, 7"); e("s_add_u32 s44, s44, 0x%x" % (CT_OFF + 0x2000))
    e("s_mov_b64 exec, 1"); e("v_mov_b32 v15, 1")
    e("buffer_atomic_add v15, v0, s[4:7], s44 offen sc1")
    e("s_mov_b64 exec, -1")
    if TICK["on"]:
        e("s_lshr_b32 s99, s47, 2"); tick(A, 44, 8, 73, 99)
    e("s_add_u32 s47, s47, 4"); e("s_cmp_lt_u32 s47, 64"); e("s_cbranch_scc1 L_att_loop")
    dtick(A, 13, 8, 's[64:67]')
    e("s_branch L_end")
    A.label("L_wabort")
    e("s_mov_b64 exec, 1"); e("v_mov_b32 v0, %d" % (DBG_ABORT + 4)); e("v_mov_b32 v11, 1")
    e("buffer_store_dword v11, v0, s[64:67], 0 offen")
    A.label("L_end"); e("s_endpgm")
    A.raw('.section .rodata,"a"'); A.raw(".p2align 6")
    A.raw(kernel_desc(NAME + "_kernel", 512, 102, 256))
    txt = A.text()
    return txt.replace("    s_mov_b32 s26, s28\n", "    s_mov_b32 s26, s28\n    s_mov_b32 s73, s28\n", 1)
if __name__ == "__main__":
    open("cdna_kernels/%s.s" % NAME, "w").write(build())
    open("mega_list.s", "w").write(build(listform=True))
    open("mega_3.s", "w").write(build(listform=True, instr=3))
    gen_rec.FAKEXCC = 40
    open("mega_fake.s", "w").write(build(listform=True))
    gen_rec.FAKEXCC = 0
    DTICK["on"] = True
    open("dtick.s", "w").write(build())
    DTICK["on"] = False
    TICK["on"] = True
    open("mega_tick.s", "w").write(build(listform=True))
```

```python
from asmlib import *
from layout import *
MF32 = "v_mfma_f32_16x16x32_bf16"

def srd(e, d, lo, n):
    e("s_mov_b32 s%d, s%d" % (d, lo)); e("s_mov_b32 s%d, s%d" % (d + 1, lo + 1)); e("s_mov_b32 s%d, 0x%x" % (d + 2, n)); e("s_mov_b32 s%d, 0x20000" % (d + 3))

def emit_init(A):
    e = A.e
    e("s_lshl_b32 s33, s2, 13"); e("s_add_u32 s33, s33, 0x%x" % ML_OFF)
    e("v_lshlrev_b32 v1, 4, v0")
    for i in range(4): e("v_mov_b32 v%d, -1" % (4 + i))
    for i in range(4): e("v_mov_b32 v%d, -1" % (8 + i))
    e("s_and_b32 s34, s2, 63"); e("s_cmp_lg_u32 s34, 0"); e("s_cbranch_scc1 L_init_st")
    e("s_bfe_u32 s34, s2, 0x10006"); e("s_mul_i32 s34, s34, 640")
    for half in range(2):
        d = 4 + 4 * half
        e("v_bfe_u32 v2, v0, 1, 3"); e("v_mul_u32_u24 v2, 1280, v2")
        e("v_bfe_u32 v3, v0, 4, 2"); e("v_lshl_add_u32 v2, v3, 3, v2")
        e("v_and_b32 v3, 1, v0"); e("v_lshl_add_u32 v2, v3, 2, v2")
        if half == 0:
            e("v_lshrrev_b32 v3, 6, v0"); e("v_lshl_add_u32 v2, v3, 7, v2")
        else:
            e("v_add_u32 v2, 512, v2")
            e("v_cmp_gt_u32 vcc, 64, v0"); e("s_and_saveexec_b64 s[36:37], vcc"); e("s_cbranch_execz L_init_r")
        for t in range(4): e("buffer_load_dword v%d, v2, s[40:43], s34 offen offset:%d" % (12 + t, 32 * t))
        e("s_mov_b32 s35, 0x05040100"); e("s_mov_b32 s38, 0x07060302")
        e("s_waitcnt vmcnt(0)")
        e("v_perm_b32 v%d, v13, v12, s35" % d); e("v_perm_b32 v%d, v15, v14, s35" % (d + 1))
        e("v_perm_b32 v%d, v13, v12, s38" % (d + 2)); e("v_perm_b32 v%d, v15, v14, s38" % (d + 3))
        for i in range(4): e("v_min_u32 v%d, -2, v%d" % (d + i, d + i))
    A.label("L_init_r")
    e("s_mov_b64 exec, -1")
    A.label("L_init_st")
    e("buffer_store_dwordx4 v[4:7], v1, s[4:7], s33 offen")
    e("s_add_u32 s33, s33, 4096")
    e("buffer_store_dwordx4 v[8:11], v1, s[4:7], s33 offen")
    e("s_lshl_b32 s33, s2, 11"); e("s_add_u32 s33, s33, 0x%x" % PB_OFF)
    e("v_lshlrev_b32 v1, 3, v0"); e("v_mov_b32 v2, 0"); e("v_mov_b32 v3, 0")
    e("buffer_store_dwordx2 v[2:3], v1, s[4:7], s33 offen")

XA0 = 96
XFL = ""
EARLYPF = 0
def XA(tt, kk): return XA0 + (tt * 20 + kk) * 4
BB, ACC, ET = 16, 48, 80
def acc(T, tt): return ACC + (T * 2 + tt) * 4

def emit_g1(A, NPART=16, NCG=248, mega=False, NT=8):
    e = A.e
    sc = " sc1" if mega else ""
    def signal(cgreg):
        l = A.newlabel("Lg1s")
        e("s_cmp_lg_u32 s26, 0"); e("s_cbranch_scc1 %s" % l)
        e("s_lshr_b32 s33, s%d, 6" % cgreg); e("s_mov_b32 s34, 1")
        e("s_cmp_eq_u32 s33, 2"); e("s_cmov_b32 s34, 0x400"); e("s_cmp_eq_u32 s33, 3"); e("s_cmov_b32 s34, 0x100000")
        e("s_lshl_b32 s33, s27, 2")
        e("s_mov_b64 exec, 1"); e("v_mov_b32 v11, s34"); e("v_mov_b32 v12, s33")
        e("buffer_atomic_add v11, v12, s[64:67], 0 offen offset:%d sc1" % DBG_G1)
        e("s_mov_b64 exec, -1")
        A.label(l)
    e("v_lshlrev_b32 v1, 4, v0")
    e("v_lshrrev_b32 v2, 2, v0")
    e("v_lshrrev_b32 v3, 5, v0"); e("v_lshlrev_b32 v3, 1, v3"); e("v_and_b32 v4, 3, v0"); e("v_xor_b32 v3, v3, v4"); e("v_lshlrev_b32 v3, 4, v3")
    e("v_lshrrev_b32 v5, 4, v0"); e("v_bfe_u32 v6, v0, 2, 2"); e("v_lshl_add_u32 v6, v5, 3, v6"); e("v_lshlrev_b32 v6, 6, v6")
    e("v_lshl_add_u32 v6, v4, 3, v6"); e("v_and_b32 v5, 1, v5"); e("v_lshl_add_u32 v6, v5, 5, v6")
    e("v_xor_b32 v7, 32, v6"); e("v_add_u32 v8, 0x10000, v6"); e("v_add_u32 v9, 0x10000, v7")
    e("s_lshr_b32 s44, s26, 1")
    e("s_and_b32 s45, s26, 1"); e("s_lshl_b32 s45, s45, 6")
    e("s_lshl_b32 s46, s26, 12")
    e("s_mov_b32 s15, 0x20000")
    def setup_dma():
        e("s_lshr_b32 s33, s30, 6"); e("s_and_b32 s34, s30, 63")
        e("s_cmp_eq_u32 s33, 0"); e("s_cselect_b64 s[12:13], s[18:19], s[20:21]")
        e("s_cmp_eq_u32 s33, 2"); e("s_cselect_b64 s[12:13], s[16:17], s[12:13]")
        e("s_cmp_eq_u32 s44, 0"); e("s_cselect_b64 s[36:37], s[22:23], s[24:25]")
        e("s_lshl_b32 s35, s34, 1"); e("s_add_u32 s35, s35, s44")
        e("s_cmp_eq_u32 s33, 3")
        e("s_cselect_b64 s[12:13], s[36:37], s[12:13]")
        e("s_mov_b32 s31, 8192"); e("s_cmov_b32 s31, 3456")
        e("s_mov_b32 s14, 5242880"); e("s_cmov_b32 s14, 2211840")
        e("s_cselect_b32 s35, s34, s35"); e("s_lshl_b32 s35, s35, 6")
        e("s_cmp_ge_u32 s30, %d" % NCG); e("s_cselect_b32 s14, 0, s14")
        e("s_mul_i32 s32, s45, s31"); e("s_add_u32 s32, s32, s35")
        e("v_mad_u32_u24 v10, v2, s31, v3")
    def dma(ks5):
        for i in range(4):
            e("s_add_u32 m0, s46, %d" % (ks5 * 16384 + i * 1024))
            e("s_mul_i32 s33, s31, %d" % (128 * ks5 + 16 * i)); e("s_add_u32 s33, s33, s32")
            e("buffer_load_dwordx4 v10, s[12:15], s33 offen lds")
    A.label("L_g1_pass")
    tick(A, 60, 12, 26)
    e("s_mov_b32 s51, 1")
    e("s_mov_b32 s29, s28"); e("s_mov_b32 s30, s28")
    e("s_lshl_b32 s33, s27, 2"); e("s_add_u32 s47, s33, s26")
    e("s_mul_i32 s33, s47, 40960")
    e("v_mul_u32_u24 v4, 1280, v2"); e("v_and_b32 v5, 3, v0"); e("v_lshl_add_u32 v4, v5, 4, v4")
    e("s_mul_i32 s38, s26, 20480"); e("s_add_u32 s38, s38, 81920"); e("s_mov_b32 s39, s33")
    e("v_and_b32 v5, 15, v0"); e("v_lshlrev_b32 v5, 6, v5"); e("v_lshrrev_b32 v11, 4, v0"); e("v_lshl_add_u32 v5, v11, 4, v5"); e("v_add_u32 v5, s38, v5")
    def xdma(tt):
        for kk in range(20):
            e("s_add_u32 m0, s38, %d" % (1024 * kk)); e("s_add_u32 s33, s39, %d" % (20480 * tt + 64 * kk))
            e("buffer_load_dwordx4 v4, s[8:11], s33 offen lds")
    def xread(tt):
        for kk in range(20):
            e("ds_read_b128 %s, v5 offset:%d" % (vr(XA(tt, kk), 4), 1024 * kk))
            if kk == 11: e("s_waitcnt lgkmcnt(6)")
        e("s_waitcnt lgkmcnt(0)")
    def mallpf():
        e("s_cmp_eq_u32 s26, 1"); e("s_cselect_b64 s[40:41], s[18:19], s[16:17]")
        e("s_cmp_eq_u32 s26, 2"); e("s_cselect_b64 s[40:41], s[20:21], s[40:41]")
        e("s_cmp_eq_u32 s26, 3"); e("s_cselect_b64 s[40:41], s[62:63], s[40:41]")
        e("s_mov_b32 s42, 5242880"); e("s_cmp_ge_u32 s27, %d" % NT); e("s_cmov_b32 s42, 0"); e("s_mov_b32 s43, 0x20000")
        e("v_lshlrev_b32 v11, 6, v0"); e("s_lshl_b32 s35, s26, 8"); e("s_add_u32 m0, s35, %d" % 65536); e("s_lshl_b32 s35, s70, 12")
        for k in range(7):
            e("buffer_load_dword v11, s[40:43], s35 offen lds"); e("s_add_u32 s35, s35, %d" % (192 * 4096))
    if mega and EARLYPF == 1: mallpf()
    xdma(0)
    if mega and EARLYPF == 2: mallpf()
    setup_dma()
    for k in range(2): dma(k)
    ON = BB
    for i in range(4): e("v_mov_b32 v%d, 0x3f803f80" % (ON + i))
    e("v_and_b32 v11, 3, v0"); e("v_bfe_u32 v12, v0, 2, 2"); e("v_lshrrev_b32 v13, 4, v0")
    for i in range(1, 4): e("v_cmp_eq_u32 s[%d:%d], %d, v11" % (76 + 2 * i, 77 + 2 * i, i))
    e("v_cmp_eq_u32 s[76:77], v12, v13")
    e("s_waitcnt vmcnt(%d)" % (15 if (mega and EARLYPF == 2) else 8))
    xread(0)
    xdma(1)
    for k in range(2, 4): dma(k)
    npf = 8
    if mega and not EARLYPF:
        npf = 15
        mallpf()
    for tt in range(2):
        if tt == 1:
            tick(A, 61, 14, 26)
            e("s_waitcnt vmcnt(%d)" % npf)
            xread(1)
        d1, d2 = ACC + 8 * tt, ACC + 8 * tt + 4
        for kk in range(20):
            x = vr(XA(tt, kk), 4)
            e("%s %s, %s, %s, %s" % (MF32, vr(d1, 4), vr(ON, 4), x, "0" if kk == 0 else vr(d1, 4)))
            e("%s %s, %s, %s, %s" % (MF32, vr(d2, 4), x, x, "0" if kk == 0 else vr(d2, 4)))
        e("s_nop 7")
        for i in range(1, 4): e("v_cndmask_b32 v%d, v%d, v%d, s[%d:%d]" % (d2, d2, d2 + i, 76 + 2 * i, 77 + 2 * i))
        e("v_cndmask_b32 v%d, 0, v%d, s[76:77]" % (ET + 2, d2))
        for sw in ("v_permlane16_swap_b32", "v_permlane32_swap_b32"):
            e("v_mov_b32 v%d, v%d" % (ET + 3, ET + 2)); e("s_nop 1")
            e("%s v%d, v%d" % (sw, ET + 2, ET + 3))
            e("v_add_f32 v%d, v%d, v%d" % (ET + 2, ET + 2, ET + 3))
        e("v_mul_f32 v%d, 0x3acccccd, v%d" % (ET, d1))
        e("v_mul_f32 v%d, 0x3acccccd, v%d" % (ET + 2, ET + 2))
        e("v_fma_f32 v%d, -v%d, v%d, v%d" % (ET + 2, ET, ET, ET + 2))
        e("v_max_f32 v%d, 0, v%d" % (ET + 2, ET + 2)); e("v_add_f32 v%d, 0x3727c5ac, v%d" % (ET + 2, ET + 2))
        e("v_rsq_f32 v%d, v%d" % (ET + 2, ET + 2)); e("s_nop 0")
        e("v_mul_f32 v%d, v%d, v%d" % (ET, ET, ET + 2))
        for i in range(80):
            r = XA(tt, 0) + i; a = ET + 4 + 2 * (i & 3)
            e("v_lshlrev_b32 v%d, 16, v%d" % (a, r)); e("v_and_b32 v%d, 0xffff0000, v%d" % (a + 1, r))
            e("v_fma_f32 v%d, v%d, v%d, -v%d" % (a, a, ET + 2, ET)); e("v_fma_f32 v%d, v%d, v%d, -v%d" % (a + 1, a + 1, ET + 2, ET))
            e("v_cvt_pk_bf16_f32 v%d, v%d, v%d" % (r, a, a + 1))
    e("s_lshl_b32 s48, s47, 14")
    e("s_mul_i32 s49, s47, %d" % (2 * 56 * 1024)); e("s_add_u32 s49, s49, 0x%x" % H_OFF)
    e("s_mov_b32 s50, 0xbfb8aa3b")
    tick(A, 62, 14, 26)
    e("s_waitcnt vmcnt(0)")
    e("s_barrier")
    PD = 6
    def rd(f):
        f %= 80
        ks5, ks, T = f >> 4, (f >> 2) & 3, f & 3
        off = ks5 * 16384 + (T >> 1) * 8192 + ks * 2048
        base = 6 + (T & 1)
        if off >= 65536: off -= 65536; base += 2
        b = BB + 4 * (f & 7)
        for a in range(2): e("ds_read_b64_tr_b16 v[%d:%d], v%d offset:%d" % (b + 2 * a, b + 2 * a + 1, base, off + 256 * a))
    tick(A, 63, 14, 26)
    for f in range(PD): rd(f)
    A.label("L_g1_loop")
    e("s_lshr_b32 s33, s29, 6"); e("s_cmp_eq_u32 s33, 1"); e("s_cbranch_scc1 L_g1_bodyV")
    for kind in ("N", "V"):
        A.label("L_g1_body" + kind)
        for f in range(80):
            ks5, ks, T = f >> 4, (f >> 2) & 3, f & 3
            if f & 15 == 0:
                e("s_waitcnt vmcnt(8)"); e("s_barrier")
                if ks5 == 1:
                    e("s_add_u32 s30, s30, %d" % NPART); setup_dma()
                dma((ks5 + 4) % 5)
                if mega and ks5 == 2:
                    l = A.newlabel("Lg1f")
                    e("s_cmp_eq_u32 s51, 1"); e("s_mov_b32 s51, 0"); e("s_cbranch_scc1 %s" % l)
                    e("s_sub_u32 s37, s29, %d" % NPART); signal(37)
                    A.label(l)
            rd(f + PD)
            e("s_waitcnt lgkmcnt(%d)" % (2 * PD))
            b = vr(BB + 4 * (f & 7), 4)
            for tt in range(2):
                x = vr(XA(tt, 4 * ks5 + ks), 4); d = vr(acc(T, tt), 4)
                c = "0" if (ks5 == 0 and ks == 0) else d
                if kind == "N": e("%s %s, %s, %s, %s" % (MF32, d, b, x, c))
                else: e("%s %s, %s, %s, %s" % (MF32, d, x, b, c))
        e("s_and_b32 s34, s29, 63")
        e("s_lshr_b32 s35, s34, 1"); e("s_lshl_b32 s35, s35, 20"); e("s_add_u32 s35, s35, s48")
        e("s_and_b32 s36, s34, 1")
        if kind == "V":
            e("s_lshl_b32 s36, s36, 12"); e("s_add_u32 s35, s35, s36"); e("s_add_u32 s35, s35, 0x%x" % (KV_OFF + 8192))
            e("s_nop 1")
            for T in range(4):
                o = ET + 4 * T
                for tt in range(2):
                    a = acc(T, tt)
                    e("v_cvt_pk_bf16_f32 v%d, v%d, v%d" % (o + 2 * tt, a, a + 1)); e("v_cvt_pk_bf16_f32 v%d, v%d, v%d" % (o + 2 * tt + 1, a + 2, a + 3))
                e("buffer_store_dwordx4 v[%d:%d], v1, s[4:7], s35 offen offset:%d%s" % (o, o + 3, 1024 * T, sc))
        else:
            e("s_lshr_b32 s33, s29, 6"); e("s_cmp_eq_u32 s33, 3"); e("s_cbranch_scc1 L_g1_epiF")
            e("s_lshr_b32 s37, s35, 1"); e("s_add_u32 s37, s37, 0x%x" % QF_OFF); e("s_add_u32 s35, s35, 0x%x" % KV_OFF)
            e("s_cmp_eq_u32 s33, 0"); e("s_cselect_b32 s35, s35, s37")
            e("s_lshl_b32 s36, s36, 11"); e("s_add_u32 s35, s35, s36"); e("s_add_u32 s36, s35, 4096")
            for u in range(2):
                for tt in range(2):
                    o = ET + 4 * (2 * u + tt)
                    for i in range(2):
                        a = acc(2 * u + i, tt)
                        e("v_cvt_pk_bf16_f32 v%d, v%d, v%d" % (o + 2 * i, a, a + 1)); e("v_cvt_pk_bf16_f32 v%d, v%d, v%d" % (o + 2 * i + 1, a + 2, a + 3))
                    e("buffer_store_dwordx4 v[%d:%d], v1, s[4:7], s%d offen offset:%d%s" % (o, o + 3, 35 + tt, 1024 * u, sc))
            e("s_branch L_g1_next")
            A.label("L_g1_epiF")
            e("s_lshl_b32 s35, s34, 10"); e("s_add_u32 s35, s35, s49"); e("s_add_u32 s36, s35, %d" % (56 * 1024))
            for tt in range(2):
                gs = [acc(T, tt) + r for T in range(2) for r in range(4)]
                us = [acc(T + 2, tt) + r for T in range(2) for r in range(4)]
                for i in range(8): e("v_mul_f32 v%d, s50, v%d" % (ET + i, gs[i]))
                for i in range(8): e("v_exp_f32 v%d, v%d" % (ET + i, ET + i))
                for i in range(8): e("v_add_f32 v%d, 1.0, v%d" % (ET + i, ET + i))
                for i in range(8): e("v_rcp_f32 v%d, v%d" % (ET + i, ET + i))
                for i in range(8): e("v_mul_f32 v%d, v%d, v%d" % (gs[i], gs[i], us[i]))
                for i in range(8): e("v_mul_f32 v%d, v%d, v%d" % (gs[i], gs[i], ET + i))
                o = ET + 8 + 4 * tt
                for i in range(4): e("v_cvt_pk_bf16_f32 v%d, v%d, v%d" % (o + i, gs[2 * i], gs[2 * i + 1]))
                e("buffer_store_dwordx4 v[%d:%d], v1, s[4:7], s%d offen%s" % (o, o + 3, 35 + tt, sc))
            e("s_branch L_g1_next")
    A.label("L_g1_next")
    if TICK["on"]:
        e("s_add_u32 s99, s99, 1"); tick(A, 2, 12, 26, 99)
    if mega:
        e("s_cmp_ge_u32 s29, 128"); e("s_cbranch_scc1 L_g1_np")
        e("s_cmp_lt_u32 s29, %d" % (128 - NPART)); e("s_cbranch_scc1 L_g1_np")
        e("s_cmp_ge_u32 s27, %d" % NT); e("s_cbranch_scc1 L_g1_np")
        e("s_waitcnt vmcnt(0)"); e("s_barrier")
        signal(29); e("s_mov_b32 s51, 1")
        A.label("L_g1_np")
    e("s_add_u32 s29, s29, %d" % NPART); e("s_cmp_lt_u32 s29, %d" % NCG); e("s_cbranch_scc1 L_g1_loop")
    e("s_waitcnt vmcnt(0) lgkmcnt(0)")
    if mega:
        e("s_barrier")
        e("s_sub_u32 s37, s29, %d" % NPART); signal(37)
        e("s_add_u32 s28, s28, 8"); e("s_cmp_ge_u32 s28, %d" % NPART); e("s_cselect_b32 s33, %d, 0" % NPART); e("s_sub_u32 s28, s28, s33")
        e("s_add_u32 s27, s27, %d" % NT); e("s_cmp_lt_u32 s27, 16"); e("s_cbranch_scc1 L_g1_pass")

def emit_g1_kernel(A):
    e = A.e
    kernel_header(A, "g1_kernel")
    e("s_cmp_ge_u32 s2, 256"); e("s_cbranch_scc1 L_g1_end")
    e("s_load_dwordx4 s[52:55], s[0:1], 0")
    e("s_load_dwordx4 s[16:19], s[0:1], 16")
    e("s_load_dwordx2 s[20:21], s[0:1], 32")
    e("s_load_dwordx4 s[56:59], s[0:1], 64")
    e("s_load_dwordx2 s[60:61], s[0:1], 104")
    e("v_lshrrev_b32 v1, 6, v0"); e("s_nop 0"); e("v_readfirstlane_b32 s26, v1")
    e("s_waitcnt lgkmcnt(0)")
    e("s_mov_b64 s[22:23], s[56:57]"); e("s_mov_b64 s[24:25], s[58:59]")
    srd(e, 4, 60, WS_BYTES); srd(e, 8, 52, 2621440); srd(e, 40, 54, 10240)
    emit_init(A)
    e("v_and_b32 v0, 63, v0")
    e("s_and_b32 s28, s2, 7"); e("s_lshr_b32 s33, s2, 7"); e("s_lshl_b32 s33, s33, 3"); e("s_add_u32 s28, s28, s33")
    e("s_bfe_u32 s27, s2, 0x40003")
    emit_g1(A)
    A.label("L_g1_end")
    e("s_endpgm")

if __name__ == "__main__":
    A = Asm()
    A.raw("; @launch kernel=g1_kernel grid=(256,1,1) block=(256,1,1) lds=81920")
    A.raw('.amdgcn_target "amdgcn-amd-amdhsa--gfx950"')
    A.raw(".text")
    emit_g1_kernel(A)
    A.raw('.section .rodata,"a"'); A.raw(".p2align 6")
    A.raw(kernel_desc("g1_kernel", 256, 80, 256))
    open("g1_test.s", "w").write(A.text())
```

```python
from asmlib import *
from layout import *

SMF = "v_smfmac_f32_16x16x64_bf16"
MF32 = "v_mfma_f32_16x16x32_bf16"
MF16 = "v_mfma_f32_16x16x16_bf16"

SPIN_LIMIT = 60000
R_AT = 0
KX_L, AC_L, QKX_L, SEL_L, MISC_L, WV_L = 0, 16384, 26624, 30720, 31744, 32768
OX_L = AC_L + 5120
VX_L = 8192
NSLOT = 8
WB = 80
def FR(f): return R(WB + 8 * f, 8)
LSLOT = {("K", 0): 0, ("K", 2): 1, ("K", 4): 2, ("V", 1): 3, ("V", 3): 4, ("Q", 5): 5, ("O", 3): 6, ("O", 4): 7}
_res = [(m, j) for m in "QKV" for j in range(10) if (m, j) not in LSLOT] + [("O", t) for t in range(3)]
RIDX = {k: i for i, k in enumerate(_res)}
assert len(_res) == 27
def FX(m, j, T): return 2 * RIDX[(m, j)] + T
def AA(j): return 12 + 4 * j
GG, ACQ, ACK, ACV, TMP = 32, 40, 48, 56, 64
D_GAP = 2
DIS = 0
PUBSC = ""
KVSC = ""
TRACE_STEP = 40
MEGA = False
NEARSEL = None
FAKEXCC = 0
HX = 0
ALIGN = 0
WORD = "QKVO"
KVPOS = 5
GREARLY = 0
WARM = 0
TW = 0
PFD = 0
DEPTH = 8

def emit_rec(A, instr=False, d_first=4, d_red=4, steps=64, exit_label="L_end", worker_label=None):
    e = A.e
    e("s_load_dwordx4 s[52:55], s[0:1], 16")
    e("s_load_dwordx4 s[56:59], s[0:1], 32")
    e("s_load_dwordx4 s[60:63], s[0:1], 96")
    e("v_lshrrev_b32 v11, 6, v0"); e("v_and_b32 v0, 63, v0"); e("v_readfirstlane_b32 s28, v11")
    e("s_waitcnt lgkmcnt(0)")
    for (d, s, n) in ((4, 62, WS_BYTES), (8, 52, 5242880), (12, 54, 5242880), (16, 56, 5242880), (20, 58, 5242880), (24, 60, 256)):
        e("s_mov_b32 s%d, s%d" % (d, s)); e("s_mov_b32 s%d, s%d" % (d + 1, s + 1)); e("s_mov_b32 s%d, 0x%x" % (d + 2, n)); e("s_mov_b32 s%d, 0x20000" % (d + 3))
    tick(A, 0, 20, 28)
    dtick(A, 8, 20, 's[24:27]')
    e("s_mov_b32 s74, 0")
    e("s_getreg_b32 s52, hwreg(HW_REG_XCC_ID)"); e("s_and_b32 s52, s52, 7")
    if FAKEXCC: e("s_cmp_lt_u32 s2, %d" % FAKEXCC); e("s_cmov_b32 s52, 3")
    e("s_lshl_b32 s53, s52, 4")
    e("v_mov_b32 v1, 1"); e("v_mov_b32 v2, s53"); e("v_mov_b32 v3, %d" % MISC_L); e("v_lshlrev_b32 v5, 4, v0")
    e("s_cmp_lg_u32 s28, 0"); e("s_cbranch_scc1 L_el_done")
    e("s_mov_b64 exec, 1")
    e("buffer_atomic_add v1, v2, s[24:27], 0 offen offset:%d sc0 sc1" % DBG_XC); e("s_waitcnt vmcnt(0)")
    e("v_readfirstlane_b32 s54, v1"); e("s_nop 3")
    e("s_lshl_b32 s55, s52, 5"); e("s_add_u32 s55, s55, s54")
    e("s_cmp_lt_u32 s54, 32"); e("s_cbranch_scc1 L_el_dec")
    e("v_mov_b32 v1, 1"); e("v_mov_b32 v2, 0")
    e("buffer_atomic_add v1, v2, s[24:27], 0 offen offset:%d sc0 sc1" % DBG_OVF); e("s_waitcnt vmcnt(0)")
    e("v_readfirstlane_b32 s54, v1")
    e("s_mov_b64 exec, 0xff")
    A.label("L_el_poll")
    e("buffer_load_dword v4, v5, s[24:27], 0 offen offset:%d sc1" % DBG_XC); e("s_waitcnt vmcnt(0)")
    e("s_mov_b32 s56, 0")
    for i in range(8):
        e("v_readlane_b32 s%d, v4, %d" % (64 + i, i))
    e("s_nop 3")
    for i in range(8): e("s_add_u32 s56, s56, s%d" % (64 + i))
    e("s_cmp_ge_u32 s56, 256"); e("s_cbranch_scc1 L_el_hole")
    e("s_add_u32 s74, s74, 1"); e("s_cmp_gt_u32 s74, %d" % SPIN_LIMIT); e("s_cbranch_scc1 L_abort")
    e("s_sleep 4"); e("s_branch L_el_poll")
    A.label("L_el_hole")
    for i in range(8):
        e("s_min_u32 s56, s%d, 32" % (64 + i)); e("s_sub_u32 s57, 32, s56")
        e("s_add_u32 s55, s56, s54"); e("s_add_u32 s55, s55, %d" % (32 * i))
        e("s_cmp_lt_u32 s54, s57"); e("s_cbranch_scc1 L_el_dec")
        e("s_sub_u32 s54, s54, s57")
    e("s_branch L_abort")
    A.label("L_el_dec")
    e("s_mov_b64 exec, 1")
    e("v_mov_b32 v1, s55")
    e("ds_write_b32 v3, v1"); e("s_waitcnt lgkmcnt(0)")
    e("s_mov_b64 exec, -1")
    A.label("L_el_done")
    e("s_barrier")
    e("ds_read_b32 v4, v3"); e("s_waitcnt lgkmcnt(0)")
    e("v_readfirstlane_b32 s55, v4"); e("s_nop 3")
    e("s_barrier")
    e("s_add_u32 s41, s4, 0x%x" % (MR2_OFF + 0x1fffff)); e("s_and_b32 s41, s41, 0xffe00000"); e("s_sub_u32 s41, s41, s4")
    e("s_cmp_lg_u32 s55, 64"); e("s_cbranch_scc1 L_pr_done")
    e("s_cmp_lg_u32 s28, 0"); e("s_cbranch_scc1 L_pr_bar")
    e("s_mov_b64 exec, 1"); e("v_mov_b32 v12, 0"); e("v_mov_b32 v13, -1")
    e("s_add_u32 s52, s41, 0x%x" % (63 * 16384 + 6144)); e("s_add_u32 s53, s52, 8192")
    e("s_mov_b32 s56, -1"); e("s_mov_b32 s57, -1")
    for rep in range(4):
        for c in range(2):
            e("s_memtime s[64:65]"); e("s_waitcnt lgkmcnt(0)")
            e("buffer_store_dword v13, v12, s[4:7], s%d offen sc1" % (52 + c)); e("s_waitcnt vmcnt(0)")
            e("s_memtime s[66:67]"); e("s_waitcnt lgkmcnt(0)")
            e("s_sub_u32 s68, s66, s64"); e("s_min_u32 s%d, s%d, s68" % (56 + c, 56 + c))
    e("s_cmp_lt_u32 s57, s56"); e("s_cselect_b32 s52, 2, 1")
    e("v_mov_b32 v13, s52")
    e("buffer_store_dword v13, v12, s[24:27], 0 offen offset:%d sc1" % DBG_NEAR)
    e("s_mov_b64 exec, -1")
    A.label("L_pr_bar")
    e("s_barrier")
    A.label("L_pr_done")
    e("s_cmp_ge_u32 s55, 64"); e("s_cbranch_scc1 %s" % (worker_label or exit_label))
    e("s_lshr_b32 s29, s55, 5"); e("s_and_b32 s30, s55, 31")
    if HX: e("s_xor_b32 s30, s30, %d" % HX)
    tick(A, 1, 20, 28)
    if MEGA: team_init(A)
    tick(A, 2, 20, 28)
    e("v_lshlrev_b32 v1, 4, v0")
    e("v_and_b32 v11, 1, v0"); e("v_cmp_eq_u32 vcc, 1, v11"); e("v_mov_b32 v2, 0x4444"); e("v_mov_b32 v11, 0xeeee"); e("v_cndmask_b32 v2, v2, v11, vcc")
    C, G, RR, CP, T0, T1 = 64, 65, 66, 67, 68, 69
    e("v_and_b32 v%d, 15, v0" % C); e("v_lshrrev_b32 v%d, 4, v0" % G)
    e("v_bfe_u32 v%d, v0, 2, 2" % RR); e("v_and_b32 v%d, 3, v0" % CP)
    e("v_and_b32 v%d, 1, v%d" % (T0, RR)); e("v_lshlrev_b32 v3, 4, v%d" % T0)
    e("v_lshrrev_b32 v%d, 1, v%d" % (T1, G)); e("v_lshl_add_u32 v3, v%d, 2, v3" % T1)
    e("v_lshrrev_b32 v%d, 1, v%d" % (T1, RR)); e("v_lshl_add_u32 v3, v%d, 1, v3" % T1)
    e("v_and_b32 v%d, 1, v%d" % (T1, G)); e("v_add_u32 v3, v3, v%d" % T1)
    e("v_lshlrev_b32 v3, 6, v3"); e("v_lshl_add_u32 v3, v%d, 3, v3" % CP); e("v_lshl_add_u32 v3, v%d, 5, v3" % T0)
    e("s_mul_i32 s52, s28, %d" % (NSLOT * 4096)); e("s_add_u32 s52, s52, %d" % WV_L)
    e("v_add_u32 v3, s52, v3"); e("v_xor_b32 v4, 32, v3")
    e("s_lshl_b32 s53, s28, 10"); e("s_add_u32 s53, s53, %d" % QKX_L)
    e("v_lshlrev_b32 v5, 5, v%d" % C); e("v_lshl_add_u32 v5, v%d, 3, v5" % G); e("v_add_u32 v5, s53, v5")
    e("v_lshlrev_b32 v6, 3, v0")
    e("v_lshrrev_b32 v%d, 2, v%d" % (T0, C)); e("v_and_b32 v%d, 1, v%d" % (T1, C)); e("v_lshl_add_u32 v%d, v%d, 1, v%d" % (T0, T0, T1))
    e("v_mul_u32_u24 v7, 320, v%d" % T0); e("v_lshl_add_u32 v7, v%d, 3, v7" % G)
    e("s_lshl_b32 s53, s28, 6"); e("s_add_u32 s53, s53, %d" % OX_L); e("v_add_u32 v7, s53, v7")
    e("v_lshrrev_b32 v%d, 1, v%d" % (T0, C)); e("v_mul_u32_u24 v8, 320, v%d" % T0); e("v_lshl_add_u32 v8, v%d, 5, v8" % G)
    e("v_lshl_add_u32 v8, v%d, 4, v8" % T1); e("v_add_u32 v8, %d, v8" % OX_L)
    e("v_lshlrev_b32 v9, 13, v%d" % G); e("v_lshrrev_b32 v%d, 3, v%d" % (T0, C)); e("v_lshl_add_u32 v9, v%d, 12, v9" % T0)
    e("v_and_b32 v%d, 7, v%d" % (T0, C)); e("v_lshl_add_u32 v9, v%d, 4, v9" % T0)
    e("s_lshl_b32 s42, s28, 5"); e("s_add_u32 s42, s42, s30")
    e("s_and_b32 s53, s42, 1"); e("s_lshl_b32 s53, s53, 3")
    e("v_add_u32 v%d, s53, v%d" % (T0, T0))
    e("v_lshrrev_b32 v10, 2, v%d" % T0); e("v_lshlrev_b32 v10, 8, v10")
    e("v_bfe_u32 v%d, v%d, 1, 1" % (T1, T0)); e("v_lshl_add_u32 v10, v%d, 4, v10" % T1)
    e("v_and_b32 v%d, 1, v%d" % (T1, T0)); e("v_lshl_add_u32 v10, v%d, 3, v10" % T1)
    e("v_and_b32 v%d, 1, v%d" % (T1, G)); e("v_lshl_add_u32 v10, v%d, 5, v10" % T1)
    e("s_bfe_u32 s53, s42, 0x20001"); e("s_lshl_b32 s53, s53, 6")
    e("s_lshr_b32 s54, s42, 3"); e("s_lshl_b32 s54, s54, 10"); e("s_add_u32 s53, s53, s54")
    e("v_add_u32 v10, s53, v10")
    e("s_lshl_b32 s53, s29, 18"); e("s_add_u32 s53, s53, 0x%x" % PB_OFF)
    e("s_lshl_b32 s54, s30, 7"); e("s_add_u32 s54, s54, s53")
    e("s_lshl_b32 s43, s28, 15"); e("s_add_u32 s43, s43, s54")
    e("s_lshl_b32 s44, s28, 2"); e("s_add_u32 s44, s44, s54"); e("s_add_u32 s44, s44, 0x20000")
    e("s_lshl_b32 s45, s42, 12"); e("s_add_u32 s45, s45, s53")
    e("s_lshl_b32 s53, s29, 19")
    e("s_add_u32 s38, s53, 0x%x" % ML_OFF)
    e("s_lshl_b32 s53, s29, 20")
    e("s_add_u32 s40, s53, s41")
    e("s_xor_b32 s53, s53, 0x100000"); e("s_add_u32 s39, s53, s41")
    e("s_lshl_b32 s53, s30, 20"); e("s_lshl_b32 s54, s28, 11"); e("s_add_u32 s53, s53, s54")
    e("s_add_u32 s46, s53, 0x%x" % KV_OFF); e("s_add_u32 s47, s46, 8192")
    e("s_lshr_b32 s54, s53, 1"); e("s_add_u32 s48, s54, 0x%x" % XV_OFF)
    e("s_lshl_b32 s53, s30, 19"); e("s_lshl_b32 s54, s28, 9"); e("s_add_u32 s49, s53, s54"); e("s_add_u32 s49, s49, 0x%x" % (XV_OFF + 4096))
    e("s_lshl_b32 s50, s28, 11")
    GE, GO, GW4, GW1 = 70, 71, 72, 73
    e("v_lshrrev_b32 v%d, 2, v0" % T0); e("v_lshlrev_b32 v%d, 13, v%d" % (GE, T0)); e("v_lshl_add_u32 v%d, v%d, 4, v%d" % (GE, CP, GE))
    e("s_lshl_b32 s53, s30, 8"); e("s_lshl_b32 s54, s28, 6"); e("s_add_u32 s53, s53, s54")
    e("v_add_u32 v%d, s53, v%d" % (GE, GE)); e("v_xor_b32 v%d, 32, v%d" % (GO, GE))
    e("v_lshrrev_b32 v%d, 1, v0" % T0); e("v_mul_u32_u24 v%d, 1280, v%d" % (GW1, T0)); e("v_and_b32 v%d, 1, v0" % T0); e("v_lshl_add_u32 v%d, v%d, 4, v%d" % (GW1, T0, GW1))
    e("s_mul_i32 s53, s30, 163840"); e("s_mul_i32 s54, s29, 640"); e("s_add_u32 s53, s53, s54")
    e("s_lshl_b32 s54, s28, 7"); e("s_add_u32 s54, s54, s53"); e("v_add_u32 v%d, s54, v%d" % (GW4, GW1))
    e("s_lshl_b32 s54, s28, 5"); e("s_add_u32 s54, s54, s53"); e("s_add_u32 s54, s54, 512"); e("v_add_u32 v%d, s54, v%d" % (GW1, GW1))
    e("v_lshrrev_b32 v%d, 1, v%d" % (T0, G)); e("v_lshlrev_b32 v%d, 4, v%d" % (T0, T0))
    e("v_lshrrev_b32 v%d, 1, v%d" % (T1, RR)); e("v_lshl_add_u32 v%d, v%d, 3, v%d" % (T0, T1, T0))
    e("v_and_b32 v%d, 1, v%d" % (T1, G)); e("v_lshl_add_u32 v%d, v%d, 2, v%d" % (T0, T1, T0))
    e("v_and_b32 v%d, 1, v%d" % (T1, RR)); e("v_add_u32 v%d, v%d, v%d" % (T0, T0, T1))
    e("v_lshlrev_b32 v0, 5, v%d" % T0); e("v_lshl_add_u32 v0, v%d, 3, v0" % CP); e("v_add_u32 v0, s52, v0")
    e("s_mul_i32 s53, s29, 5"); e("s_sub_u32 s54, 5, s53")
    for j in range(10):
        e("s_add_u32 s%d, s%d, %d" % (64 + j, 53 if j < 5 else 54, j % 5)); e("s_lshl_b32 s%d, s%d, 19" % (64 + j, 64 + j))
    e("v_mov_b32 v21, 0x3f80"); e("v_mov_b32 v22, 0x3f800000")
    e("v_cmp_gt_u32 vcc, 4, v%d" % C); e("s_nop 1"); e("v_cndmask_b32 v21, v22, v21, vcc")
    e("v_cmp_gt_u32 vcc, 8, v%d" % C); e("s_nop 1"); e("v_cndmask_b32 v21, 0, v21, vcc")
    for d in range(4):
        e("v_cmp_eq_u32 vcc, %d, v%d" % (d, CP)); e("s_nop 1"); e("v_cndmask_b32 v%d, 0, v21, vcc" % (16 + d))
    e("ds_write_b128 v1, v[16:19] offset:%d" % SEL_L)
    e("s_lshl_b32 s33, s28, 10"); e("s_lshl_b32 s34, s28, 8"); e("s_add_u32 s34, s34, 4096")
    items = sorted(_res, key=lambda k: WORD.index(k[0]))
    final = sorted(LSLOT, key=lambda k: LSLOT[k])
    def issue(it, slot):
        k, j = it
        for i in range(4):
            e("s_add_u32 m0, s52, %d" % (slot * 4096 + i * 1024))
            if k == "O":
                e("s_mov_b32 s53, %d" % (i * 32 * 1280 + (32 * j if j < 4 else 0)))
                e("buffer_load_dwordx4 v%d, s[20:23], s53 offen lds" % (GW4 if j < 4 else GW1))
            else:
                e("s_add_u32 s53, s%d, %d" % (64 + j, i * 16 * 8192))
                e("buffer_load_dwordx4 v%d, %s, s53 offen lds" % (GO if i & 1 else GE, {"Q": "s[8:11]", "K": "s[12:15]", "V": "s[16:19]"}[k]))
    def consume(it, slot):
        k, j = it
        for T in range(2):
            f = FX(k, j, T)
            for a in range(4):
                if k == "O": e("ds_read_b64_tr_b16 %s, v0 offset:%d" % (R(WB + 8 * f + 2 * a, 2), slot * 4096 + (64 * T + 32 * (a >> 1) + 2 * (a & 1)) * 32))
                else: e("ds_read_b64_tr_b16 %s, v%d offset:%d" % (R(WB + 8 * f + 2 * a, 2), 3 + T, slot * 4096 + 2048 * (a & 1) + 512 * (a >> 1)))
    order = [(it, n % NSLOT) for n, it in enumerate(items)]
    nreg = len(order)
    order += [(final[(nreg + i) % NSLOT], (nreg + i) % NSLOT) for i in range(NSLOT)]
    e("v_lshlrev_b32 v74, 2, v1")
    e("s_lshl_b32 s54, s30, 14"); e("s_lshl_b32 s55, s28, 12"); e("s_add_u32 s55, s55, s54")
    e("s_lshl_b32 s54, s28, 8"); e("s_add_u32 s54, s54, %d" % MISC_L)
    q = []
    def pf(n):
        if not PFD or n >= len(order) or order[n][0][0] == "O": return
        k, j = order[n][0]
        e("s_mov_b32 m0, s54"); e("s_add_u32 s53, s%d, s55" % (64 + j))
        e("buffer_load_dword v74, %s, s53 offen lds" % {"Q": "s[8:11]", "K": "s[12:15]", "V": "s[16:19]"}[k]); q.append(None)
    def iss(n):
        pf(n + PFD)
        issue(*order[n]); q.extend([n] * 4)
    if PFD:
        for n in range(PFD): pf(n)
    for n in range(DEPTH): iss(n)
    if MEGA: team_init_finish(A, len(q))
    for n in range(len(order)):
        if n < nreg:
            last = len(q) - 1 - q[::-1].index(n)
            e("s_waitcnt vmcnt(%d)" % (len(q) - 1 - last)); del q[:last + 1]
            consume(*order[n])
            e("s_waitcnt lgkmcnt(0)")
            if n in (8, 15, 23, 26): tick(A, 44 + (8, 15, 23, 26).index(n), 20, 28)
        if n + DEPTH < len(order): iss(n + DEPTH)
    e("s_waitcnt vmcnt(0)")
    e("v_add_u32 v11, s52, v1")
    for sl in range(NSLOT):
        k, j = final[sl]
        for T in range(2):
            for a in range(4):
                d = 16 + 8 * T + 2 * a
                if k == "O": e("ds_read_b64_tr_b16 v[%d:%d], v0 offset:%d" % (d, d + 1, sl * 4096 + (64 * T + 32 * (a >> 1) + 2 * (a & 1)) * 32))
                else: e("ds_read_b64_tr_b16 v[%d:%d], v%d offset:%d" % (d, d + 1, 3 + T, sl * 4096 + 2048 * (a & 1) + 512 * (a >> 1)))
        e("s_waitcnt lgkmcnt(0)")
        for q in range(4): e("ds_write_b128 v11, v[%d:%d] offset:%d" % (16 + 4 * q, 19 + 4 * q, sl * 4096 + 1024 * q))
    e("v_mov_b32 v3, v11")
    e("v_lshrrev_b32 v0, 2, v1")
    e("v_lshlrev_b32 v4, 2, v1")
    e("s_mov_b32 s35, %d" % MISC_L)
    e("s_lshl_b32 s37, s28, 7"); e("s_add_u32 s37, s37, %d" % (MISC_L + 256))
    e("v_add_u32 v11, s37, v0"); e("v_mov_b32 v12, 0"); e("s_mov_b32 exec_hi, 0"); e("ds_write_b32 v11, v12"); e("s_mov_b32 exec_hi, -1")
    e("s_and_b32 s36, s42, 63"); e("s_lshl_b32 s36, s36, 7"); e("s_add_u32 s36, s36, 10240")
    e("s_lshl_b32 s50, s28, 12"); e("s_lshl_b32 s46, s30, 20"); e("s_add_u32 s46, s46, s50"); e("s_add_u32 s46, s46, 0x%x" % KV_OFF)
    e("s_lshl_b32 s56, s28, 10"); e("s_lshl_b32 s57, s28, 9")
    e("s_add_u32 s54, s57, 4096"); e("s_cmp_eq_u32 s29, 0"); e("s_cselect_b32 s54, s56, s54")
    e("s_lshl_b32 s48, s30, 19"); e("s_add_u32 s48, s48, s54"); e("s_add_u32 s48, s48, 0x%x" % XV_OFF); e("s_mov_b32 s62, 0")
    e("s_lshl_b32 s47, s28, 11"); e("s_add_u32 s47, s47, %d" % VX_L)
    e("s_and_b32 s60, s28, 1"); e("s_lshl_b32 s60, s60, 13"); e("s_sub_u32 s61, s60, s50")
    e("s_cmp_eq_u32 s30, 20"); e("s_cselect_b32 s59, 0, 61")
    e("s_lshl_b32 s63, s29, 7"); e("s_add_u32 s63, s63, s42"); e("s_xor_b32 s63, s63, %d" % (96 + 20))
    for r in range(ACQ, ACQ + 24): e("v_mov_b32 v%d, 0" % r)
    e("s_mov_b32 s32, 0")
    e("s_mov_b32 s51, 0x3e0293ee")
    tick(A, 3, 20, 28)
    if TICK["on"]:
        e("s_lshl_b32 s96, s29, 5"); e("s_add_u32 s96, s96, s30"); e("v_mov_b32 v20, s96"); e("s_add_u32 s98, s98, %d" % (4 * 40)); e("buffer_store_dword v20, v21, s[4:7], s98 offen")
    dtick(A, 9, 20, 's[24:27]')
    A.label("L_md_poll")
    e("buffer_load_dword v11, v0, s[24:27], 0 offen sc1"); e("s_waitcnt vmcnt(0)")
    for i in range(8): e("v_readlane_b32 s%d, v11, %d" % (64 + i, DBG_XC // 4 + 4 * i))
    e("v_readlane_b32 s72, v11, %d" % (DBG_INIT // 4)); e("v_readlane_b32 s73, v11, %d" % (DBG_NEAR // 4))
    e("v_and_b32 v11, 0x3ff, v11"); e("v_cmp_le_u32 vcc, 128, v11"); e("s_nop 3")
    e("s_lshr_b32 s49, vcc_lo, %d" % (DBG_G1 // 4)); e("s_ff0_i32_b32 s49, s49")
    e("s_cmp_eq_u32 s49, 16"); e("s_cmov_b32 s49, 18")
    e("s_cmp_eq_u32 s73, 0"); e("s_cbranch_scc1 L_md_no")
    if MEGA:
        e("s_cmp_lt_u32 s72, 64"); e("s_cbranch_scc1 L_md_no")
        e("s_cmp_eq_u32 s49, 0"); e("s_cbranch_scc1 L_md_no")
    e("s_mov_b32 s31, 0")
    e("s_min_u32 s53, s64, s65"); e("s_cmp_ge_u32 s53, 32"); e("s_cbranch_scc1 L_md_ok")
    e("s_mov_b32 s31, 1"); e("s_mov_b32 s53, 0")
    for i in range(8): e("s_add_u32 s53, s53, s%d" % (64 + i))
    e("s_cmp_ge_u32 s53, 256"); e("s_cbranch_scc1 L_md_ok")
    A.label("L_md_no")
    e("s_add_u32 s74, s74, 1"); e("s_cmp_gt_u32 s74, %d" % SPIN_LIMIT); e("s_cbranch_scc1 L_abort")
    e("s_sleep 4"); e("s_branch L_md_poll")
    A.label("L_md_ok")
    e("s_lshl_b32 s58, s49, 2"); e("s_sub_u32 s58, s58, 5")
    if NEARSEL is None:
        e("s_sub_u32 s73, s73, 1"); e("s_lshl_b32 s73, s73, 13")
    else:
        e("s_sub_u32 s73, s73, 1"); e("s_xor_b32 s73, s73, 1"); e("s_lshl_b32 s73, s73, 13")
    e("s_add_u32 s39, s39, s73"); e("s_add_u32 s40, s40, s73")
    e("s_waitcnt vmcnt(0)")
    e("s_barrier")
    if instr in (1, 2):
        for r in range(80, 96): e("s_mov_b32 s%d, 0" % r)
        e("s_memtime s[76:77]"); e("s_waitcnt lgkmcnt(0)"); e("s_mov_b32 s78, s76"); e("s_mov_b32 s95, s76")
    TP = [64, 66, 68, 70, 72] + list(range(76, 102, 2))
    tstate = {"n": 0}
    def stamp(i, fine=False):
        if not instr: return
        if instr == 5:
            if i == 6:
                l = A.newlabel("Lst")
                e("s_cmp_lg_u32 s28, 3"); e("s_cbranch_scc1 %s" % l)
                e("s_memtime s[76:77]"); e("s_waitcnt lgkmcnt(0)")
                e("s_lshl_b32 s53, s29, 5"); e("s_add_u32 s53, s53, s30"); e("s_lshl_b32 s53, s53, 6"); e("s_add_u32 s53, s53, s32"); e("s_lshl_b32 s53, s53, 3"); e("s_add_u32 s53, s53, 0x%x" % ST_OFF)
                e("s_mov_b64 exec, 1"); e("v_mov_b32 v12, s76"); e("v_mov_b32 v13, s74"); e("buffer_store_dwordx2 v[12:13], v0, s[4:7], s53 offen"); e("s_mov_b64 exec, -1")
                A.label(l)
            return
        if instr == 4:
            if i == 8:
                l = A.newlabel("Lst")
                e("s_cmp_lg_u32 s32, 2"); e("s_cbranch_scc1 %s" % l)
                e("s_memtime s[76:77]"); e("s_memrealtime s[78:79]")
                A.label(l)
                l = A.newlabel("Lst")
                e("s_cmp_lg_u32 s32, 62"); e("s_cbranch_scc1 %s" % l)
                e("s_memtime s[80:81]"); e("s_memrealtime s[82:83]"); e("s_waitcnt lgkmcnt(0)")
                e("s_sub_u32 s80, s80, s76"); e("s_sub_u32 s82, s82, s78")
                e("s_lshl_b32 s53, s29, 5"); e("s_add_u32 s53, s53, s30"); e("s_lshl_b32 s53, s53, 2"); e("s_add_u32 s53, s53, s28"); e("s_lshl_b32 s53, s53, 7"); e("s_add_u32 s53, s53, 0x%x" % ST_OFF)
                e("v_mov_b32 v37, 0"); e("v_mov_b32 v11, s80"); e("buffer_store_dword v11, v37, s[4:7], s53 offen")
                e("v_mov_b32 v11, s82"); e("buffer_store_dword v11, v37, s[4:7], s53 offen offset:4")
                A.label(l)
            return
        if instr == 3:
            n = tstate["n"]
            e("s_memtime s[%d:%d]" % (TP[n], TP[n] + 1)); A.c("stamp %d (%s)" % (n, i))
            tstate["n"] = n + 1
            if i == 8:
                l = A.newlabel("Lst")
                e("s_cmp_lg_u32 s32, %d" % TRACE_STEP); e("s_cbranch_scc1 %s" % l)
                e("s_waitcnt lgkmcnt(0)")
                e("s_lshl_b32 s53, s29, 5"); e("s_add_u32 s53, s53, s30"); e("s_lshl_b32 s53, s53, 2"); e("s_add_u32 s53, s53, s28"); e("s_lshl_b32 s53, s53, 7"); e("s_add_u32 s53, s53, 0x%x" % ST_OFF)
                e("v_mov_b32 v37, 0")
                for k in range(tstate["n"]):
                    e("v_mov_b32 v11, s%d" % TP[k]); e("buffer_store_dword v11, v37, s[4:7], s53 offen offset:%d" % (4 * k))
                A.label(l)
                tstate["n"] = 0
            return
        if fine: return
        if instr == 2:
            l = A.newlabel("Lst")
            e("s_cmp_lg_u32 s32, %d" % TRACE_STEP); e("s_cbranch_scc1 %s" % l)
            e("s_memrealtime s[76:77]"); e("s_waitcnt lgkmcnt(0)"); e("s_mov_b32 s%d, s76" % (80 + i))
            A.label(l)
            return
        e("s_memtime s[76:77]"); e("s_waitcnt lgkmcnt(0)")
        e("s_sub_u32 s79, s76, s78"); e("s_add_u32 s%d, s%d, s79" % (80 + i, 80 + i)); e("s_mov_b32 s78, s76")
        if i == 8:
            l = A.newlabel("Lst")
            e("s_cmp_lg_u32 s32, 3"); e("s_cbranch_scc1 %s" % l)
            for r in range(80, 95): e("s_mov_b32 s%d, 0" % r)
            e("s_mov_b32 s95, s76")
            A.label(l)
    if KVPOS in (1, 2, 4, 5):
        e("s_mov_b32 m0, s50"); e("s_nop 0")
        for i in range(4): e("buffer_load_dwordx4 v1, s[4:7], s46 offen offset:%d%s lds" % (1024 * i, KVSC))
    tick(A, 4, 20, 28)
    dtick(A, 10, 20, 's[24:27]')
    e("s_lshl_b32 s53, s31, 1"); e("s_add_u32 s53, s53, s29")
    for i, nm in enumerate(("fast1", "slow0", "slow1")):
        e("s_cmp_eq_u32 s53, %d" % (i + 1)); e("s_cbranch_scc1 L_loop_" + nm)
    for mode in ("fast0", "fast1", "slow0", "slow1"):
        sc = "" if mode.startswith("fast") else " sc1"
        if ALIGN:
            A.raw(".p2align 6")
            for _ in range(ALIGN - 1): e("s_nop 0")
        A.label("L_loop_" + mode)
        ools = [emit_step(A, par, sc, stamp, d_first, d_red, instr in (1, 2), int(mode[-1])) for par in (1, 0)]
        if TICK["on"]:
            e("s_lshr_b32 s99, s32, 1"); tick(A, 5, 12, 28, 99)
        e("s_branch L_loop_" + mode)
        A.label("L_ool_" + mode)
        for f in ools: f()
    A.label("L_rec_last")
    tick(A, 39, 20, 28)
    e("s_barrier")
    e("s_cmp_eq_u32 s29, 0"); e("s_cbranch_scc1 L_rec_l2")
    e("v_add_u32 v11, s56, v0")
    e("ds_write_b32 v11, v76 offset:%d" % QKX_L); e("ds_write_b32 v11, v78 offset:%d" % (QKX_L + 256))
    A.label("L_rec_l2")
    e("s_mov_b32 s32, 64")
    A.label("L_rec_done")
    publish(A)
    if MEGA:
        e("s_waitcnt vmcnt(0)"); e("s_barrier")
        signal_fin(A)
        tick(A, 38, 20, 28)
        dtick(A, 11, 20, 's[24:27]')
    if instr in (1, 2):
        e("s_memtime s[76:77]"); e("s_waitcnt lgkmcnt(0)"); e("s_sub_u32 s95, s76, s95")
        e("s_lshl_b32 s53, s29, 5"); e("s_add_u32 s53, s53, s30"); e("s_lshl_b32 s53, s53, 2"); e("s_add_u32 s53, s53, s28"); e("s_lshl_b32 s53, s53, 6"); e("s_add_u32 s53, s53, 0x%x" % ST_OFF)
        e("v_mov_b32 v0, 0")
        for i in range(16):
            e("v_mov_b32 v11, s%d" % (80 + i)); e("buffer_store_dword v11, v0, s[4:7], s53 offen offset:%d" % (4 * i))

    e("s_branch %s" % exit_label)
    A.label("L_abort")
    e("s_mov_b64 exec, 1")
    e("v_mov_b32 v0, %d" % DBG_ABORT); e("v_mov_b32 v11, 1")
    e("buffer_store_dword v11, v0, s[24:27], 0 offen")

def fload(A, dst, slot, T):
    for q in range(2):
        A.e("ds_read_b128 v[%d:%d], v3 offset:%d" % (dst + 4 * q, dst + 4 * q + 3, slot * 4096 + 2048 * T + 1024 * q))

def team_init(A):
    e = A.e
    e("s_load_dwordx2 s[52:53], s[0:1], 8")
    e("s_lshl_b32 s54, s28, 6"); e("v_add_u32 v12, s54, v0")
    e("v_lshlrev_b32 v13, 4, v12")
    for i in range(12): e("v_mov_b32 v%d, -1" % (16 + i))
    e("s_waitcnt lgkmcnt(0)")
    e("s_mov_b32 s56, s52"); e("s_mov_b32 s57, s53"); e("s_mov_b32 s58, 10240"); e("s_mov_b32 s59, 0x20000")
    e("s_cmp_lg_u32 s30, 0"); e("s_cbranch_scc1 L_ti_st")
    e("s_mul_i32 s54, s29, 640")
    e("v_bfe_u32 v14, v12, 1, 3"); e("v_mul_u32_u24 v14, 1280, v14")
    e("v_bfe_u32 v15, v12, 4, 2"); e("v_lshl_add_u32 v14, v15, 3, v14")
    e("v_and_b32 v15, 1, v12"); e("v_lshl_add_u32 v14, v15, 2, v14")
    e("v_lshrrev_b32 v15, 6, v12"); e("v_lshl_add_u32 v15, v15, 7, v14")
    for t in range(4): e("buffer_load_dword v%d, v15, s[56:59], s54 offen offset:%d" % (28 + t, 32 * t))
    for t in range(4): e("buffer_load_dword v%d, v14, s[56:59], s54 offen offset:%d" % (36 + t, 512 + 32 * t))
    e("s_mov_b32 s52, 0x05040100"); e("s_mov_b32 s53, 0x07060302")
    e("s_waitcnt vmcnt(0)")
    for half in range(2):
        d = 16 + 4 * half; q = 28 + 8 * half
        if half == 1: e("s_cmp_lg_u32 s28, 0"); e("s_cbranch_scc1 L_ti_st")
        e("v_perm_b32 v%d, v%d, v%d, s52" % (d, q + 1, q)); e("v_perm_b32 v%d, v%d, v%d, s52" % (d + 1, q + 3, q + 2))
        e("v_perm_b32 v%d, v%d, v%d, s53" % (d + 2, q + 1, q)); e("v_perm_b32 v%d, v%d, v%d, s53" % (d + 3, q + 3, q + 2))
        for i in range(4): e("v_min_u32 v%d, -2, v%d" % (d + i, d + i))
    A.label("L_ti_st")
    e("s_lshl_b32 s52, s29, 19"); e("s_mul_i32 s53, s30, 12288"); e("s_add_u32 s52, s52, s53")
    for i in range(3):
        e("s_add_u32 s53, s52, 0x%x" % (ML_OFF + 4096 * i))
        e("buffer_store_dwordx4 v[%d:%d], v13, s[4:7], s53 offen sc1" % (16 + 4 * i, 19 + 4 * i))
    e("s_lshl_b32 s52, s29, 20"); e("s_lshl_b32 s53, s30, 15"); e("s_add_u32 s52, s52, s53"); e("s_add_u32 s52, s52, s41")
    for i in range(8):
        d = 16 + 4 * (i & 1) if i < 4 else 24
        e("s_add_u32 s53, s52, %d" % (4096 * i))
        e("buffer_store_dwordx4 v[%d:%d], v13, s[4:7], s53 offen sc1" % (d, d + 3))
    for i in range(4): e("v_mov_b32 v%d, 0" % (32 + i))
    e("s_lshl_b32 s52, s29, 18"); e("s_lshl_b32 s53, s30, 13"); e("s_add_u32 s52, s52, s53")
    for i in range(2):
        e("s_add_u32 s53, s52, 0x%x" % (PB_OFF + 4096 * i))
        e("buffer_store_dwordx4 v[32:35], v13, s[4:7], s53 offen sc1")
    e("s_lshl_b32 s52, s29, 5"); e("s_add_u32 s52, s52, s30"); e("s_lshl_b32 s52, s52, 8"); e("s_add_u32 s52, s52, 0x%x" % CT_OFF)
    e("v_lshlrev_b32 v14, 2, v0")
    e("buffer_store_dword v32, v14, s[4:7], s52 offen sc1")

def team_init_finish(A, younger):
    e = A.e
    e("s_waitcnt vmcnt(%d)" % younger); e("s_barrier")
    e("s_cmp_lg_u32 s28, 0"); e("s_cbranch_scc1 L_ti_done")
    e("s_mov_b64 exec, 1"); e("v_mov_b32 v14, %d" % DBG_INIT); e("v_mov_b32 v15, 1")
    e("buffer_atomic_add v15, v14, s[24:27], 0 offen sc1")
    e("s_mov_b64 exec, -1")
    A.label("L_ti_done")

def kv_poll(A):
    e = A.e
    lp = A.newlabel("Lkv"); ok = A.newlabel("Lkvok"); upd = A.newlabel("Lkvu"); need = A.newlabel("Lkvn"); ool = A.newlabel("Lkvo")
    e("s_cmp_ge_i32 s32, s58"); e("s_cbranch_scc1 %s" % ool)
    A.label(ok)
    def f():
        A.label(ool)
        e("s_add_u32 s54, s32, 3"); e("s_lshr_b32 s54, s54, 2")
        e("s_cmp_ge_u32 s54, s49"); e("s_cbranch_scc1 %s" % need)
        e("s_mov_b32 m0, s37"); e("s_mov_b32 exec_hi, 0")
        e("buffer_load_dword v0, s[24:27], 0 offen sc1 lds")
        e("s_mov_b32 exec_hi, -1")
        e("s_branch %s" % ok)
        A.label(need)
        e("v_add_u32 v11, s37, v0"); e("ds_read_b32 v11, v11"); e("s_waitcnt lgkmcnt(0)")
        e("s_branch %s" % upd)
        A.label(lp)
        e("buffer_load_dword v11, v0, s[24:27], 0 offen sc1"); e("s_waitcnt vmcnt(0)")
        A.label(upd)
        e("v_and_b32 v11, 0x3ff, v11"); e("v_cmp_le_u32 vcc, 128, v11"); e("s_nop 3")
        e("s_lshr_b32 s49, vcc_lo, %d" % (DBG_G1 // 4)); e("s_ff0_i32_b32 s49, s49")
        e("s_cmp_eq_u32 s49, 16"); e("s_cmov_b32 s49, 18")
        e("s_lshl_b32 s58, s49, 2"); e("s_sub_u32 s58, s58, 5")
        e("s_cmp_lt_u32 s54, s49"); e("s_cbranch_scc1 %s" % ok)
        e("s_add_u32 s74, s74, 1"); e("s_cmp_gt_u32 s74, %d" % SPIN_LIMIT); e("s_cbranch_scc1 L_abort")
        e("s_sleep 2"); e("s_branch %s" % lp)
    return f

def signal_prog(A):
    e = A.e
    l = A.newlabel("Lsg")
    e("s_cmp_lg_u32 s63, 0"); e("s_cbranch_scc1 %s" % l)
    e("s_max_u32 s53, s32, 2"); e("s_sub_u32 s53, s53, 2")
    e("s_mov_b64 exec, 1"); e("v_mov_b32 v11, s53"); e("s_mov_b32 s53, 0x%x" % CT_OFF)
    e("buffer_store_dword v11, v0, s[4:7], s53 offen sc1")
    e("s_mov_b64 exec, -1")
    A.label(l)

def signal_fin(A, back=0):
    e = A.e
    l = A.newlabel("Lsg")
    e("s_cmp_lg_u32 s28, 2"); e("s_cbranch_scc1 %s" % l)
    e("s_lshl_b32 s53, s30, 7"); e("s_lshl_b32 s54, s29, 2"); e("s_add_u32 s53, s53, s54"); e("s_add_u32 s53, s53, 0x%x" % (CT_OFF + 128))
    e("s_sub_u32 s54, s32, %d" % back)
    e("s_mov_b64 exec, 1"); e("v_mov_b32 v11, s54")
    e("buffer_store_dword v11, v0, s[4:7], s53 offen sc1")
    e("s_mov_b64 exec, -1")
    A.label(l)

def publish(A, lds=None, wait_for=None, mm=None, team=None):
    e = A.e
    e("v_add_u32 v36, s56, v6")
    if team != 1:
        e("ds_read_b64_tr_b16 v[32:33], v36 offset:%d" % QKX_L); e("ds_read_b64_tr_b16 v[34:35], v36 offset:%d" % (QKX_L + 512))
        if lds: lds("PB", 2)
    if team != 0:
        e("ds_read_b64 v[38:39], v36 offset:%d" % QKX_L)
        if lds: lds("PB", 1)
    seq = (6, 7, 9, 5, 8) if mm else (9,)
    for j in seq:
        if mm:
            wait_for(("A", j))
            for T in range(2): mm("Q", j, T)
        if j == 9:
            if mm: wait_for("PB")
            else: e("s_waitcnt lgkmcnt(0)")
            t1 = A.newlabel("Lt1"); tj = A.newlabel("Ltj")
            if team is None: e("s_cmp_lg_u32 s29, 0"); e("s_cbranch_scc1 %s" % t1)
            if team != 1: e("buffer_store_dwordx4 v[32:35], v1, s[4:7], s48 offen%s" % PUBSC)
            if team is None:
                e("s_branch %s" % tj)
                A.label(t1)
            if team != 0: e("buffer_store_dwordx2 v[38:39], v6, s[4:7], s48 offen%s" % PUBSC)
            if team is None: A.label(tj)
            e("s_add_u32 s48, s48, s62"); e("s_mov_b32 s62, 0x2000")

def emit_step(A, par, sc, stamp, d_first, d_red, instr, team):
    e = A.e
    extra = []
    KXC = KX_L
    ACC = {"Q": ACQ, "K": ACK, "V": ACV}
    def smf(acc, a, b): e("%s v[%d:%d], %s, %s, v2" % (SMF, acc, acc + 3, vr(a, 4), b))
    def spin():
        e("s_add_u32 s74, s74, 1"); e("s_cmp_gt_u32 s74, %d" % SPIN_LIMIT); e("s_cbranch_scc1 L_abort")
    def gl_load(reg, s):
        e("buffer_load_dwordx4 v[%d:%d], v37, s[4:7], s%d offen sc1" % (reg, reg + 3, s))
        e("buffer_load_dword v%d, v38, s[4:7], s%d offen sc1" % (reg + 4, s))
    def gl_check(reg):
        e("v_max3_u32 v11, v%d, v%d, v%d" % (reg, reg + 1, reg + 2)); e("v_max3_u32 v11, v11, v%d, v%d" % (reg + 3, reg + 4))
        e("v_cmp_eq_u32 vcc, -1, v11")
    def gl_write(reg, half):
        e("ds_write_b128 v37, v[%d:%d] offset:%d" % (reg, reg + 3, AC_L + 5120 * half))
        e("ds_write_b32 v38, v%d offset:%d" % (reg + 4, AC_L + 5120 * half))
    Lseq = [(m, j, T) for (m, j) in [("K", 0), ("K", 2), ("K", 4), ("V", 1), ("V", 3), ("Q", 5)] for T in range(2)]
    lstate = {"issued": 0, "other": 0}
    pend = []
    def lds(tag, n=1):
        pend.extend([tag] * n)
    def wait_for(tag):
        if tag not in pend: return
        last = len(pend) - 1 - pend[::-1].index(tag)
        n = len(pend) - 1 - last
        e("s_waitcnt lgkmcnt(%d)" % n)
        del pend[:last + 1]
    def wait_all():
        e("s_waitcnt lgkmcnt(0)"); del pend[:]
    def Lissue():
        i = lstate["issued"]
        if i >= len(Lseq): return
        m, j, T = Lseq[i]
        fload(A, TMP + 8 * (i % 2), LSLOT[(m, j)], T); lds(("L", i), 2)
        lstate["issued"] = i + 1
    def mm(m, j, T):
        a = AA(j % 5)
        if DIS & 64 and j >= 5 and (m, j) not in LSLOT:
            e("s_nop 3"); return
        if DIS & 128 and (m, j) not in LSLOT:
            e("s_nop 3"); return
        if (m, j) in LSLOT:
            i = Lseq.index((m, j, T))
            wait_for(("L", i))
            smf(ACC[m] + 4 * T, a, vr(TMP + 8 * (i % 2), 8))
            Lissue()
        else:
            smf(ACC[m] + 4 * T, a, FR(FX(m, j, T)))
    def rdA(j):
        e("ds_read_b128 v[%d:%d], v1 offset:%d" % (AA(j % 5), AA(j % 5) + 3, AC_L + 1024 * j)); lds(("A", j))
    def zero(lo, hi):
        for r in range(lo, hi, 2): e("v_mov_b64 v[%d:%d], 0" % (r, r + 1))
    e("v_add_u32 v37, s33, v1"); e("v_add_u32 v38, s34, v0")
    if d_first: e("s_sleep %d" % d_first)
    GA, GB = 12, 20
    gl_load(GA, 38)
    stamp("issueA", True)
    if D_GAP: e("s_sleep %d" % D_GAP)
    e("s_mov_b32 m0, s50")
    gl_load(GB, 38)
    for i in range(4):
        if KVPOS == 0: e("buffer_load_dwordx4 v1, s[4:7], s46 offen offset:%d%s lds" % (1024 * i, KVSC))
    lp = A.newlabel("Lgl"); okA = A.newlabel("LglA"); okB = A.newlabel("LglB"); ok = A.newlabel("Lglok"); re = A.newlabel("Lglre")
    e("s_waitcnt vmcnt(%d)" % (2 if KVPOS else 6))
    A.label(lp)
    gl_check(GA); e("s_cbranch_vccnz %s" % re)
    gl_write(GA, 0)
    A.label(ok)
    lds("W", 2)
    stamp("gotL", True)
    if GREARLY: gl_load(GG, 39)
    Lissue(); Lissue()
    wait_for("W")
    stamp(0)
    e("s_barrier")
    e("s_waitcnt vmcnt(%d)" % (2 if GREARLY else 0))
    stamp("B4", True)
    for j in range(5): rdA(j)
    if not GREARLY: gl_load(GG, 39)
    if KVPOS == 3:
        for i in range(4): e("buffer_load_dwordx4 v1, s[4:7], s46 offen offset:%d%s lds" % (1024 * i, KVSC))
    for j in range(5):
        wait_for(("A", j))
        if j % 2 == 0: order = [("K", 0), ("Q", 0), ("Q", 1), ("K", 1)]
        else: order = [("Q", 0), ("K", 0), ("Q", 1), ("K", 1)]
        for m, T in order: mm(m, j, T)

    stamp(1)
    lpr = A.newlabel("Lgr"); rer = A.newlabel("Lgrre")
    e("s_waitcnt vmcnt(%d)" % (4 if KVPOS == 3 else 0))
    A.label(lpr)
    gl_check(GG); e("s_cbranch_vccnz %s" % rer)
    gl_write(GG, 1); lds("W", 2)
    stamp(9)
    mm("V", 0, 0)
    if MEGA and not par: extra.append(kv_poll(A))
    if KVPOS == 3:
        mm("V", 0, 1); e("s_waitcnt vmcnt(0)")
    e("s_mov_b32 m0, s35"); e("s_add_u32 s46, s46, 0x4000")
    if KVPOS in (1, 2, 4, 5):
        e("s_add_u32 s53, s46, 0x4000"); e("buffer_load_dword v4, s[4:7], s53 offen%s lds" % KVSC)
    else: e("buffer_load_dword v4, s[4:7], s46 offen%s lds" % KVSC)
    mm("V", 1, 0)
    if KVPOS != 3: mm("V", 0, 1)
    mm("V", 1, 1)
    wait_for("W")
    e("s_barrier")
    stamp("B5", True)
    rdA(5); rdA(6)
    xt = A.newlabel("Lxt"); xr = A.newlabel("Lxr")
    e("s_cmp_ge_u32 s32, s59"); e("s_cbranch_scc1 %s" % xt)
    A.label(xr)
    def xtra():
        A.label(xt)
        nml = A.newlabel("Lnml")
        e("s_cmp_lg_u32 s30, 20"); e("s_cbranch_scc1 %s" % nml)
        e("s_add_u32 s54, s38, s50"); e("s_add_u32 s54, s54, 10240")
        e("buffer_load_dword v4, s[4:7], s54 offen lds")
        if MEGA: signal_prog(A)
        A.label(nml)
        if MEGA:
            e("s_cmp_lt_u32 s32, 61"); e("s_cbranch_scc1 %s" % xr)
            signal_fin(A, 1)
        e("s_branch %s" % xr)
    extra.append(xtra)
    VXR = GG
    mm("V", 2, 0); mm("V", 2, 1); rdA(7)
    mm("V", 4, 0); mm("V", 4, 1); rdA(9)
    mm("V", 3, 0); mm("V", 3, 1); rdA(8)
    publish(A, lds, wait_for, mm, team)
    for j in range(5, 10):
        for T in range(2):
            mm("K", j, T)
            if j < 7:
                ks = 2 * (j - 5) + T
                e("ds_read_b128 v[%d:%d], v1 offset:%d" % (TMP + 4 * ks, TMP + 3 + 4 * ks, KXC + 4096 + 1024 * ks)); lds("K1")
            if j == 8:
                q = ACQ + 4 * T
                e("v_add_f32 v%d, v%d, v%d" % (q, q, q + 1)); e("v_add_f32 v%d, v%d, v%d" % (q + 2, q + 2, q + 3))
            if j == 9:
                q = ACQ + 4 * T
                e("v_cvt_pk_bf16_f32 v%d, v%d, v%d" % (q + 1, q, q + 2))
    stamp(2)
    if TW & 1:
        for T in range(2): mm("V", 5, T)
        e("s_nop 3")
        for T in range(2):
            q, k = ACQ + 4 * T, ACK + 4 * T
            e("v_add_f32 v%d, v%d, v%d" % (k, k, k + 1)); e("v_add_f32 v%d, v%d, v%d" % (k + 2, k + 2, k + 3))
            if T == 0: mm("V", 6, 0)
            e("v_cvt_pk_bf16_f32 v%d, v%d, v%d" % (q, k, k + 2))
            e("ds_write_b64 v5, v[%d:%d] offset:%d" % (q, q + 1, 512 * T)); lds("W")
        mm("V", 6, 1)
    else:
        for j in (5, 6):
            for T in range(2): mm("V", j, T)
        e("s_nop 1")
        for T in range(2):
            q, k = ACQ + 4 * T, ACK + 4 * T
            e("v_add_f32 v%d, v%d, v%d" % (k, k, k + 1)); e("v_add_f32 v%d, v%d, v%d" % (k + 2, k + 2, k + 3))
            e("v_cvt_pk_bf16_f32 v%d, v%d, v%d" % (q, k, k + 2))
            e("ds_write_b64 v5, v[%d:%d] offset:%d" % (q, q + 1, 512 * T)); lds("W")
    for j in (7, 8):
        for T in range(2): mm("V", j, T)
    wait_all()
    e("s_barrier")
    stamp("B1", True)
    X, KT0 = 12, 40
    for ks in range(4):
        for a in range(2): e("ds_read_b64_tr_b16 v[%d:%d], v6 offset:%d" % (X + 4 * ks + 2 * a, X + 4 * ks + 2 * a + 1, QKX_L + 1024 * ks + 512 * a))
        lds(("X", ks), 2)
        if ks == 1: mm("V", 9, 0)
        if ks == 3: mm("V", 9, 1)
    if not TW & 2:
        for ks in range(4): e("ds_read_b128 v[%d:%d], v1 offset:%d" % (KT0 + 4 * ks, KT0 + 3 + 4 * ks, KXC + 1024 * ks)); lds("K0")
        e("v_add_u32 v11, s47, v1")
        e("ds_read_b128 v[32:35], v11"); e("ds_read_b128 v[36:39], v11 offset:1024"); lds("VX", 2)
    else: e("v_add_u32 v11, s47, v1")
    stamp(3)
    S2, S0, S1 = 28, 64, 68
    for ks in range(4):
        wait_for(("X", ks))
        e("%s v[%d:%d], %s, %s, %s" % (MF32, S2, S2 + 3, vr(TMP + 4 * ks, 4), vr(X + 4 * ks, 4), "0" if ks == 0 else vr(S2, 4)))
        if TW & 2:
            e("ds_read_b128 v[%d:%d], v1 offset:%d" % (KT0 + 4 * ks, KT0 + 3 + 4 * ks, KXC + 1024 * ks)); lds("K0")
    if TW & 2:
        e("ds_read_b128 v[32:35], v11"); e("ds_read_b128 v[36:39], v11 offset:1024"); lds("VX", 2)
    for ks in range(4):
        e("%s v[%d:%d], %s, %s, %s" % (MF32, S0, S0 + 3, vr(X + 4 * ks, 4), vr(X + 4 * ks, 4), "0" if ks == 0 else vr(S0, 4)))
    wait_all()
    if KVPOS in (4, 5): e("s_mov_b32 m0, s50"); e("s_barrier")
    VM = 76
    for ks in range(4):
        e("%s v[%d:%d], %s, %s, %s" % (MF32, S1, S1 + 3, vr(KT0 + 4 * ks, 4), vr(X + 4 * ks, 4), "0" if ks == 0 else vr(S1, 4)))
        if KVPOS == 4 or (KVPOS == 5 and ks >= 2): e("buffer_load_dwordx4 v1, s[4:7], s46 offen offset:%d%s lds" % (1024 * ks, KVSC))
        if ks < 2:
            v = ACV + 4 * ks
            e("v_add_f32 v%d, v%d, v%d" % (v, v, v + 1)); e("v_add_f32 v%d, v%d, v%d" % (v + 2, v + 2, v + 3))
        else:
            v = ACV + 4 * (ks - 2)
            e("v_cvt_pk_bf16_f32 v%d, v%d, v%d" % (VM + 2 * (ks - 2), v, v + 2)); e("v_mov_b32 v%d, 0" % (VM + 1 + 2 * (ks - 2)))
    if not par:
        e("s_cmp_eq_u32 s32, 63"); e("s_cbranch_scc1 L_rec_last")
    fload(A, 40, 7, 0); fload(A, 48, 7, 1); lds("O4", 4)
    e("v_max3_f32 v11, v%d, v%d, v%d" % (S2, S2 + 1, S2 + 2)); e("v_max3_f32 v11, v11, v%d, v%d" % (S2 + 3, S0))
    P1, P0, ONES, OA, LS = 12, 16, 20, 56, 24
    e("v_max3_f32 v11, v11, v%d, v%d" % (S0 + 1, S1)); e("v_max3_f32 v11, v11, v%d, v%d" % (S1 + 1, S1 + 2))
    e("v_max_f32 v11, v11, v%d" % (S1 + 3)); e("v_mov_b32 v66, v11")
    e("v_mov_b32 v%d, 0x3f803f80" % ONES); e("v_mov_b32 v%d, 0x3f803f80" % (ONES + 1))
    e("v_permlane16_swap_b32 v11, v66"); e("v_max_f32 v11, v11, v66"); e("v_mov_b32 v66, v11")
    e("v_mov_b64 v[%d:%d], v[%d:%d]" % (ONES + 2, ONES + 3, ONES, ONES + 1)); e("v_mov_b32 v%d, 0" % (P0 + 1))
    e("v_permlane32_swap_b32 v11, v66"); e("v_max_f32 v11, v11, v66")
    e("v_mul_f32 v11, s51, v11")
    vals = [S0, S0 + 1] + [S1 + i for i in range(4)] + [S2 + i for i in range(4)]
    for i, v in enumerate(vals):
        e("v_fma_f32 v%d, v%d, s51, -v11" % (v, v))
        if i >= 1: e("v_exp_f32 v%d, v%d" % (vals[i - 1], vals[i - 1]))
        if i == 3: e("v_cvt_pk_bf16_f32 v%d, v%d, v%d" % (P0, S0, S0 + 1))
        if i == 5:
            e("v_cvt_pk_bf16_f32 v%d, v%d, v%d" % (P1, S1, S1 + 1))
            e("%s v[%d:%d], %s, %s, 0" % (MF16, LS, LS + 3, vr(ONES, 2), vr(P0, 2)))
        if i == 6: e("%s v[%d:%d], %s, %s, 0" % (MF16, OA, OA + 3, vr(VM, 2), vr(P0, 2)))
        if i == 7:
            e("v_cvt_pk_bf16_f32 v%d, v%d, v%d" % (P1 + 1, S1 + 2, S1 + 3))
            e("%s v[%d:%d], %s, %s, 0" % (MF16, OA + 4, OA + 7, vr(VM + 2, 2), vr(P0, 2)))
    e("v_exp_f32 v%d, v%d" % (vals[9], vals[9]))
    e("v_cvt_pk_bf16_f32 v%d, v%d, v%d" % (P1 + 2, S2, S2 + 1)); e("v_cvt_pk_bf16_f32 v%d, v%d, v%d" % (P1 + 3, S2 + 2, S2 + 3))
    stamp(4)
    e("s_nop 1")
    stamp("vx", True)
    e("%s v[%d:%d], %s, %s, %s" % (MF32, LS, LS + 3, vr(ONES, 4), vr(P1, 4), vr(LS, 4)))
    for T in range(2): e("%s v[%d:%d], %s, %s, %s" % (MF32, OA + 4 * T, OA + 4 * T + 3, vr(VXR + 4 * T, 4), vr(P1, 4), vr(OA + 4 * T, 4)))
    WA = 12
    zero(12, 24)
    e("v_rcp_f32 v11, v%d" % LS)

    e("s_mov_b32 exec_lo, 0xcccccccc"); e("s_mov_b32 exec_hi, 0xcccccccc")
    for T in range(2):
        o = OA + 4 * T
        for i in range(4): e("v_mul_f32 v%d, v%d, v11" % (o + i, o + i))
        e("v_cvt_pk_bf16_f32 v%d, v%d, v%d" % (o, o, o + 1)); e("v_cvt_pk_bf16_f32 v%d, v%d, v%d" % (o + 1, o + 2, o + 3))
        e("ds_write_b64 v7, v[%d:%d] offset:%d" % (o, o + 1, 32 * T)); lds("W")
    e("s_mov_b64 exec, -1")
    fload(A, 32, 6, 0); fload(A, 64, 6, 1); lds("O3", 4)
    zero(24, 32)
    if KVPOS == 5:
        for i in range(2): e("buffer_load_dwordx4 v1, s[4:7], s46 offen offset:%d%s lds" % (1024 * i, KVSC))
    wait_for("W")
    stamp("preB2", True)
    e("s_barrier")
    stamp("B2", True)
    OF = 56
    for ks in range(2): e("ds_read_b128 v[%d:%d], v8 offset:%d" % (OF + 4 * ks, OF + 3 + 4 * ks, 128 * ks)); lds(("OF", ks))
    if KVPOS == 1:
        e("s_mov_b32 m0, s50"); e("s_nop 0")
        for i in range(4): e("buffer_load_dwordx4 v1, s[4:7], s46 offen offset:%d%s lds" % (1024 * i, KVSC))
    stamp(5)
    WF = {(4, 0): vr(40, 8), (4, 1): vr(48, 8), (3, 0): vr(32, 8), (3, 1): vr(64, 8)}
    for t in range(3):
        for ks in range(2): WF[(t, ks)] = FR(FX("O", t, ks))
    wait_for(("OF", 0))
    smf(WA + 16, OF, WF[(4, 0)])
    wait_for(("OF", 1))
    smf(WA + 16, OF + 4, WF[(4, 1)])
    tagop = (lambda d: "v_or_b32 v%d, 1, v%d" % (d, d)) if par else (lambda d: "v_and_b32 v%d, -2, v%d" % (d, d))
    def packl(t, dst):
        d = WA + 4 * t
        return ["v_add_f32 v%d, v%d, v%d" % (d, d, d + 1), "v_add_f32 v%d, v%d, v%d" % (d + 2, d + 2, d + 3),
                "v_cvt_pk_bf16_f32 v%d, v%d, v%d" % (dst, d, d + 2), tagop(dst)]
    for t in (0, 1, 2):
        for ks in range(2): smf(WA + 4 * t, OF + 4 * ks, WF[(t, ks)])
    e("s_nop 1")
    p4 = packl(4, 44)
    e(p4[0]); e(p4[1]); smf(WA + 12, OF, WF[(3, 0)]); e(p4[2]); e(p4[3]); smf(WA + 12, OF + 4, WF[(3, 1)])
    e("buffer_store_dword v44, v9, s[4:7], s44 offen%s" % sc)
    for t in range(4):
        for x in packl(t, 40 + t): e(x)
    e("buffer_store_dwordx4 v[40:43], v9, s[4:7], s43 offen%s" % sc)
    stamp(6)
    if team == 1:
        e("v_add_u32 v11, s56, v0")
        e("ds_write_b32 v11, v%d offset:%d" % (VM, QKX_L)); e("ds_write_b32 v11, v%d offset:%d" % (VM + 2, QKX_L + 256))
    e("s_add_u32 s38, s38, 5120"); e("s_add_u32 s39, s39, 16384"); e("s_add_u32 s40, s40, 16384")
    e("ds_read_b128 v[28:31], v1 offset:%d" % SEL_L)
    if not WARM: zero(ACQ, ACQ + 24)
    nored = A.newlabel("Lnored"); join = A.newlabel("Ljoin")
    e("s_cmp_ge_u32 s42, 40"); e("s_cbranch_scc1 %s" % nored)
    if d_red: e("s_sleep %d" % d_red)
    op = "v_bitop3_b32 v11, v11, v%d, v%d bitop3:0x80" if par else "v_or3_b32 v11, v11, v%d, v%d"
    RA, RB = 64, 12
    def rload(b):
        for j in range(4): e("buffer_load_dwordx4 v[%d:%d], v1, s[4:7], s45 offen offset:%d sc1" % (b + 4 * j, b + 3 + 4 * j, 1024 * j))
        if instr: e("s_add_u32 s91, s91, 1")
    def rcheck(b):
        e("v_mov_b32 v11, %d" % par)
        for j in range(4):
            e("s_waitcnt vmcnt(%d)" % (7 - j))
            e("%s v[32:35], v[28:31], %s, %s" % (MF32, vr(b + 4 * j, 4), "0" if j == 0 else "v[32:35]"))
            e(op % (b + 4 * j, b + 4 * j + 1)); e(op % (b + 4 * j + 2, b + 4 * j + 3))
        e("v_and_b32 v11, 1, v11")
        e("v_cmp_ne_u32 vcc, %d, v11" % par)
    rload(RA)
    if WARM:
        e("s_waitcnt lgkmcnt(0)")
        for r in range(ACQ, ACQ + 10): e("v_mov_b32 v%d, 0" % r)
        for j in range(4):
            e("buffer_load_dwordx4 v[%d:%d], v1, s[4:7], s45 offen offset:%d sc1" % (RB + 4 * j, RB + 3 + 4 * j, 1024 * j))
            e("v_mov_b32 v%d, 0" % (ACQ + 10 + j))
        for r in range(ACQ + 14, ACQ + 24):
            e("v_mov_b32 v%d, 0" % r)
            if WARM > 1: e("s_nop %d" % (WARM - 2))
    else:
        if D_GAP: e("s_sleep %d" % D_GAP)
        rload(RB)
        e("s_waitcnt lgkmcnt(0)")
    lpd = A.newlabel("Lrd"); okd = A.newlabel("Lrdok"); red2 = A.newlabel("Lrd2")
    A.label(lpd)
    rcheck(RA); e("s_cbranch_vccnz %s" % red2)
    A.label(okd)
    e("s_nop 2")
    for i in range(4): e("v_add_f32_dpp v%d, v%d, v%d row_ror:8 row_mask:0xf bank_mask:0xf" % (36 + i, 32 + i, 32 + i))
    e("s_mov_b32 exec_lo, 0x00ff00ff"); e("s_mov_b32 exec_hi, 0")
    e("v_cvt_pk_bf16_f32 v32, v36, v37"); e("v_cvt_pk_bf16_f32 v33, v38, v39")
    e("v_min_u32 v32, -2, v32"); e("v_min_u32 v33, -2, v33")
    e("buffer_store_dwordx2 v[32:33], v10, s[4:7], s38 offen%s" % sc)
    e("buffer_store_dwordx2 v[32:33], v10, s[4:7], s40 offen sc1")
    e("s_mov_b64 exec, -1")
    A.label(join)
    stamp(7)
    e("s_barrier")
    stamp(8)
    e("s_add_u32 s32, s32, 1")
    def ool():
        A.label(red2)
        rload(RA)
        rcheck(RB); e("s_cbranch_vccz %s" % okd); rload(RB)
        spin()
        e("s_branch %s" % lpd)
        A.label(re)
        gl_load(GA, 38)
        if instr: e("s_add_u32 s90, s90, 1")
        e("s_waitcnt vmcnt(2)"); gl_check(GB); e("s_cbranch_vccz %s" % okB)
        gl_load(GB, 38)
        if instr: e("s_add_u32 s90, s90, 1")
        spin()
        e("s_waitcnt vmcnt(2)")
        e("s_branch %s" % lp)
        A.label(okB); gl_write(GB, 0); e("s_branch %s" % ok)
        A.label(rer)
        gl_load(GG, 39)
        if instr: e("s_add_u32 s92, s92, 1")
        spin()
        e("s_waitcnt vmcnt(0)")
        e("s_branch %s" % lpr)
        A.label(nored)
        e("s_waitcnt lgkmcnt(0)")
        e("s_branch %s" % join)
        for f in extra: f()
    return ool

def gen(**kw):
    A = Asm()
    A.raw("; @launch kernel=rec_kernel grid=(256,1,1) block=(256,1,1) lds=163840")
    A.raw('.amdgcn_target "amdgcn-amd-amdhsa--gfx950"')
    A.raw(".text")
    kernel_header(A, "rec_kernel")
    A.e("s_cmp_ge_u32 s2, 256"); A.e("s_cbranch_scc1 L_end")
    emit_rec(A, **kw)
    A.label("L_end")
    A.e("s_endpgm")
    A.raw('.section .rodata,"a"'); A.raw(".p2align 6")
    A.raw(kernel_desc("rec_kernel", 512, 102, 256))
    return A.text()

if __name__ == "__main__":
    import sys
    for spec in sys.argv[1:]:
        d1, dr, ra, ins = map(int, spec.split(","))
        DIS = d1 >> 4; d1 &= 15
        NEARSEL = 1 if DIS & 32 else None
        KVSC = " sc1" if DIS & 8 else ""
        PUBSC = " sc1" if DIS & 16 else ""
        D_GAP = ra % 10; KVPOS = (ra // 10) % 10; ALIGN = ra // 100
        mr = ALIGN; ALIGN = 0
        txt = gen(instr=ins, d_first=d1, d_red=dr)
        if mr == 9:
            ALIGN = 2; txt = gen(instr=ins, d_first=d1, d_red=dr)
        elif mr:
            import aligner
            txt, st = aligner.align(txt, [("L_loop_fast0", "L_ool_fast0"), ("L_loop_fast1", "L_ool_fast1")], minrun=mr); print(st)
        open("rec_%d_%d_%d_%d.s" % (d1 + 16 * DIS, dr, ra, ins), "w").write(txt)
```

```python
import sys
from asmlib import *
from layout import *
import gen_g1, gen_rec, gen_att, gen_g2s
from gen_g1 import srd
NAME = "recurrent_scan__memory_aug_recurrent_mem_tr__glu_gated_swiglu__prompt"
HEAD = open("cdna_kernels/%s.s.ref" % NAME).read().split("; Override launch")[0]
LIM = 60000

SL1 = 40
def poll(A, srdname, soff, voff_imm, shift, target, vtmp, sleep=8, tail=None):
    e = A.e
    lp = A.newlabel("Lp"); ok = A.newlabel("Lpok")
    A.label(lp)
    e("v_mov_b32 v%d, 0" % vtmp)
    e("buffer_load_dword v%d, v%d, %s, %s offen offset:%d sc1" % (vtmp, vtmp, srdname, soff, voff_imm)); e("s_waitcnt vmcnt(0)")
    e("v_readfirstlane_b32 s68, v%d" % vtmp); e("s_nop 3")
    for (sh, tg) in zip(shift, target):
        e("s_bfe_u32 s69, s68, 0x%x" % ((10 << 16) | sh)); e("s_cmp_lt_u32 s69, %d" % tg); e("s_cbranch_scc1 %s_n" % lp)
    e("s_branch %s" % ok)
    A.label(lp + "_n")
    e("s_add_u32 s74, s74, 1"); e("s_cmp_gt_u32 s74, %d" % LIM); e("s_cbranch_scc1 L_wabort")
    e("s_sleep %d" % sleep)
    if tail:
        e("s_cmp_ge_u32 s47, %d" % tail); e("s_cbranch_scc1 %s" % lp); e("s_sleep 64")
    e("s_branch %s" % lp)
    A.label(ok)

def poll_prog(A, segreg, vtmp, head=None):
    e = A.e
    lp = A.newlabel("Lpp"); ok = A.newlabel("Lppok"); done = A.newlabel("Lppd")
    e("s_min_u32 s75, s%d, %d" % (segreg, 60 if head is None else 57))
    A.label(lp)
    e("v_mov_b32 v%d, 0" % vtmp); e("s_mov_b32 s69, 0x%x" % CT_OFF)
    e("buffer_load_dword v%d, v%d, s[4:7], s69 offen sc1" % (vtmp, vtmp)); e("s_waitcnt vmcnt(0)")
    e("v_readfirstlane_b32 s68, v%d" % vtmp); e("s_nop 3")
    e("s_cmp_gt_u32 s68, s75"); e("s_cbranch_scc1 %s" % ok)
    e("s_add_u32 s74, s74, 1"); e("s_cmp_gt_u32 s74, %d" % LIM); e("s_cbranch_scc1 L_wabort")
    e("s_sleep 8")
    e("s_cmp_ge_u32 s68, s75"); e("s_cbranch_scc1 %s" % lp)
    e("s_sleep %d" % SL1); e("s_branch %s" % lp)
    A.label(ok)
    if head is not None:
        e("s_cmp_gt_u32 s68, s%d" % segreg); e("s_cbranch_scc1 %s" % done)
        lf = A.newlabel("Lpf")
        A.label(lf)
        e("v_mov_b32 v%d, 0" % vtmp); e("s_lshl_b32 s69, s%d, 7" % head); e("s_add_u32 s69, s69, 0x%x" % (CT_OFF + 128))
        e("buffer_load_dwordx2 v[%d:%d], v%d, s[4:7], s69 offen sc1" % (vtmp, vtmp + 1, vtmp)); e("s_waitcnt vmcnt(0)")
        e("v_min_u32 v%d, v%d, v%d" % (vtmp, vtmp, vtmp + 1)); e("s_nop 0"); e("v_readfirstlane_b32 s68, v%d" % vtmp); e("s_nop 3")
        e("s_cmp_gt_u32 s68, s%d" % segreg); e("s_cbranch_scc1 %s" % done)
        e("s_add_u32 s74, s74, 1"); e("s_cmp_gt_u32 s74, %d" % LIM); e("s_cbranch_scc1 L_wabort")
        e("s_sleep 4"); e("s_branch %s" % lf)
        A.label(done)

def build(instr=0, d_first=2, d_red=3, listform=False):
    A = Asm(); e = A.e
    A.raw(HEAD.rstrip())
    if listform: A.raw("; @launch kernel=%s_kernel grid=(256,1,1) block=(256,1,1) lds=163840" % NAME)
    else: A.raw("; @launch grid=(256,1,1) block=(256,1,1) lds=163840")
    A.raw('.amdgcn_target "amdgcn-amd-amdhsa--gfx950"')
    A.raw(".text")
    kernel_header(A, NAME + "_kernel")
    e("s_cmp_ge_u32 s2, 256"); e("s_cbranch_scc1 L_end")
    gen_rec.MEGA = True; gen_rec.PUBSC = " sc1"; gen_rec.KVSC = " sc1"
    gen_rec.emit_rec(A, instr=instr, d_first=d_first, d_red=d_red, worker_label="L_worker")
    e("s_branch L_end")
    A.label("L_worker")
    e("s_mov_b32 s26, s28")
    e("s_sub_u32 s70, s55, 64")
    e("s_mov_b32 s64, s24"); e("s_mov_b32 s65, s25"); e("s_mov_b32 s66, 256"); e("s_mov_b32 s67, 0x20000")
    e("s_load_dwordx2 s[54:55], s[0:1], 0")
    e("s_load_dwordx4 s[16:19], s[0:1], 16")
    e("s_load_dwordx2 s[20:21], s[0:1], 32")
    e("s_load_dwordx4 s[56:59], s[0:1], 64")
    e("s_load_dwordx2 s[62:63], s[0:1], 40")
    e("s_waitcnt lgkmcnt(0)")
    e("s_mov_b64 s[22:23], s[56:57]"); e("s_mov_b64 s[24:25], s[58:59]")
    srd(e, 8, 54, 2621440)
    e("s_and_b32 s27, s70, 3"); e("s_lshr_b32 s28, s70, 2"); e("s_sub_u32 s28, 47, s28")
    tick(A, 1, 12, 26); e("s_mov_b32 s99, 0")
    gen_g1.emit_g1(A, NPART=48, mega=True, NT=4)
    tick(A, 30, 12, 26)
    dtick(A, 12, 12, 's[64:67]')
    poll(A, "s[64:67]", "0", DBG_INIT, [0], [64], 11)
    e("s_mul_i32 s33, s70, 171"); e("s_lshr_b32 s71, s33, 10")
    e("s_mul_i32 s33, s71, 6"); e("s_sub_u32 s72, s70, s33")
    e("s_cmp_eq_u32 s72, 5"); e("s_cbranch_scc1 L_att_role")
    e("s_load_dwordx2 s[54:55], s[0:1], 40")
    e("s_load_dwordx4 s[56:59], s[0:1], 80")
    e("s_mul_i32 s33, s71, 5"); e("s_add_u32 s33, s33, s72")
    e("s_mul_i32 s47, s33, 205"); e("s_lshr_b32 s47, s47, 12")
    e("s_mul_i32 s34, s47, 20"); e("s_sub_u32 s28, s33, s34")
    e("s_waitcnt lgkmcnt(0)")
    srd(e, 16, 58, 2621440); srd(e, 12, 56, 1728 * 1280); srd(e, 20, 54, 5242880)
    e("s_barrier")
    gen_g2s.emit_g2s_prologue(A)
    tick(A, 31, 12, 26)
    A.label("L_g2_loop")
    def waitH():
        e("s_lshr_b32 s41, s47, 3"); e("s_lshl_b32 s41, s41, 2")
        poll(A, "s[64:67]", "s41", DBG_G1, [20], [56], 11, sleep=32)
    def waitO():
        e("s_lshr_b32 s41, s47, 1")
        e("s_cmp_lg_u32 s26, 0"); e("s_cbranch_scc1 L_g2_nopoll")
        poll_prog(A, 41, 10)
        e("s_lshl_b32 s41, s41, 7"); e("s_add_u32 s41, s41, 0x%x" % (CT_OFF + 0x2000))
        poll(A, "s[4:7]", "s41", 0, [0], [32], 11, sleep=4)
        A.label("L_g2_nopoll")
        e("s_barrier")
    gen_g2s.emit_g2s_task(A, waitH, waitO, " sc1")
    if TICK["on"]:
        e("s_lshr_b32 s99, s47, 4"); tick(A, 32, 14, 26, 99)
    e("s_add_u32 s47, s47, 8"); e("s_cmp_lt_u32 s47, 128"); e("s_cbranch_scc1 L_g2_loop")
    dtick(A, 14, 14, 's[64:67]')
    e("s_branch L_end")
    A.label("L_att_role")
    gen_att.emit_att_setup(A)
    e("v_lshrrev_b32 v0, 6, v0")
    e("s_mov_b32 s47, s73")
    A.label("L_att_loop")
    e("s_lshl_b32 s30, s71, 6"); e("s_add_u32 s30, s30, s47")
    def waitQ():
        e("s_lshr_b32 s44, s47, 2"); e("s_lshl_b32 s44, s44, 2")
        poll(A, "s[64:67]", "s44", DBG_G1, [0, 10], [128, 64], 15, sleep=32)
    def waitM():
        poll_prog(A, 47, 14, head=71)
    gen_att.emit_att(A, " sc1", waitQ, waitM)
    tick(A, 42, 8, 73)
    e("s_waitcnt vmcnt(0)")
    e("s_lshl_b32 s44, s47, 7"); e("s_add_u32 s44, s44, 0x%x" % (CT_OFF + 0x2000))
    e("s_mov_b64 exec, 1"); e("v_mov_b32 v15, 1")
    e("buffer_atomic_add v15, v0, s[4:7], s44 offen sc1")
    e("s_mov_b64 exec, -1")
    if TICK["on"]:
        e("s_lshr_b32 s99, s47, 2"); tick(A, 44, 8, 73, 99)
    e("s_add_u32 s47, s47, 4"); e("s_cmp_lt_u32 s47, 64"); e("s_cbranch_scc1 L_att_loop")
    dtick(A, 13, 8, 's[64:67]')
    e("s_branch L_end")
    A.label("L_wabort")
    e("s_mov_b64 exec, 1"); e("v_mov_b32 v0, %d" % (DBG_ABORT + 4)); e("v_mov_b32 v11, 1")
    e("buffer_store_dword v11, v0, s[64:67], 0 offen")
    A.label("L_end"); e("s_endpgm")
    A.raw('.section .rodata,"a"'); A.raw(".p2align 6")
    A.raw(kernel_desc(NAME + "_kernel", 512, 102, 256))
    txt = A.text()
    return txt.replace("    s_mov_b32 s26, s28\n", "    s_mov_b32 s26, s28\n    s_mov_b32 s73, s28\n", 1)
if __name__ == "__main__":
    open("cdna_kernels/%s.s" % NAME, "w").write(build())
    open("mega_list.s", "w").write(build(listform=True))
    open("mega_3.s", "w").write(build(listform=True, instr=3))
    import aligner
    for al in (0, 1, 2):
        gen_rec.ALIGN = al
        open("mega_al%d_4.s" % al, "w").write(build(listform=True, instr=4))
    gen_rec.ALIGN = 0
    for mr in (5, 8):
        txt, st = aligner.align(build(listform=True, instr=4), [("L_loop_fast0", "L_ool_fast0"), ("L_loop_fast1", "L_ool_fast1")], minrun=mr)
        open("mega_mr%d_4.s" % mr, "w").write(txt)
    gen_rec.FAKEXCC = 40
    open("mega_fake.s", "w").write(build(listform=True))
    gen_rec.FAKEXCC = 0
    DTICK["on"] = True
    open("dtick.s", "w").write(build())
    DTICK["on"] = False
    TICK["on"] = True
    open("mega_tick.s", "w").write(build(listform=True))
```

```python
from asmlib import *
from layout import *

SMF = "v_smfmac_f32_16x16x64_bf16"
MF32 = "v_mfma_f32_16x16x32_bf16"
MF16 = "v_mfma_f32_16x16x16_bf16"

SPIN_LIMIT = 60000
R_AT = 0
KX_L, AC_L, QKX_L, SEL_L, MISC_L, WV_L = 0, 16384, 26624, 30720, 31744, 32768
OX_L = AC_L + 5120
VX_L = 8192
NSLOT = 8
WB = 80
def FR(f): return R(WB + 8 * f, 8)
LSLOT = {("K", 0): 0, ("K", 2): 1, ("K", 4): 2, ("V", 1): 3, ("V", 3): 4, ("Q", 5): 5, ("O", 3): 6, ("O", 4): 7}
_res = [(m, j) for m in "QKV" for j in range(10) if (m, j) not in LSLOT] + [("O", t) for t in range(3)]
RIDX = {k: i for i, k in enumerate(_res)}
assert len(_res) == 27
def FX(m, j, T): return 2 * RIDX[(m, j)] + T
def AA(j): return 12 + 4 * j
GG, ACQ, ACK, ACV, TMP = 32, 40, 48, 56, 64
D_GAP = 2
DIS = 0
PUBSC = ""
KVSC = ""
TRACE_STEP = 40
MEGA = False
NEARSEL = None
FAKEXCC = 0
HX = 0
DG = 0
GRAT = 0
ALIGN = 0
WORD = "QKVO"
KVPOS = 5
GREARLY = 0
WARM = 0
TW = 0
PFD = 0
DEPTH = 8

def emit_rec(A, instr=False, d_first=4, d_red=4, steps=64, exit_label="L_end", worker_label=None):
    e = A.e
    e("s_load_dwordx4 s[52:55], s[0:1], 16")
    e("s_load_dwordx4 s[56:59], s[0:1], 32")
    e("s_load_dwordx4 s[60:63], s[0:1], 96")
    e("v_lshrrev_b32 v11, 6, v0"); e("v_and_b32 v0, 63, v0"); e("v_readfirstlane_b32 s28, v11")
    e("s_waitcnt lgkmcnt(0)")
    for (d, s, n) in ((4, 62, WS_BYTES), (8, 52, 5242880), (12, 54, 5242880), (16, 56, 5242880), (20, 58, 5242880), (24, 60, 256)):
        e("s_mov_b32 s%d, s%d" % (d, s)); e("s_mov_b32 s%d, s%d" % (d + 1, s + 1)); e("s_mov_b32 s%d, 0x%x" % (d + 2, n)); e("s_mov_b32 s%d, 0x20000" % (d + 3))
    tick(A, 0, 20, 28)
    dtick(A, 8, 20, 's[24:27]')
    e("s_mov_b32 s74, 0")
    e("s_getreg_b32 s52, hwreg(HW_REG_XCC_ID)"); e("s_and_b32 s52, s52, 7")
    if FAKEXCC: e("s_cmp_lt_u32 s2, %d" % FAKEXCC); e("s_cmov_b32 s52, 3")
    e("s_lshl_b32 s53, s52, 4")
    e("v_mov_b32 v1, 1"); e("v_mov_b32 v2, s53"); e("v_mov_b32 v3, %d" % MISC_L); e("v_lshlrev_b32 v5, 4, v0")
    e("s_cmp_lg_u32 s28, 0"); e("s_cbranch_scc1 L_el_done")
    e("s_mov_b64 exec, 1")
    e("buffer_atomic_add v1, v2, s[24:27], 0 offen offset:%d sc0 sc1" % DBG_XC); e("s_waitcnt vmcnt(0)")
    e("v_readfirstlane_b32 s54, v1"); e("s_nop 3")
    e("s_lshl_b32 s55, s52, 5"); e("s_add_u32 s55, s55, s54")
    e("s_cmp_lt_u32 s54, 32"); e("s_cbranch_scc1 L_el_dec")
    e("v_mov_b32 v1, 1"); e("v_mov_b32 v2, 0")
    e("buffer_atomic_add v1, v2, s[24:27], 0 offen offset:%d sc0 sc1" % DBG_OVF); e("s_waitcnt vmcnt(0)")
    e("v_readfirstlane_b32 s54, v1")
    e("s_mov_b64 exec, 0xff")
    A.label("L_el_poll")
    e("buffer_load_dword v4, v5, s[24:27], 0 offen offset:%d sc1" % DBG_XC); e("s_waitcnt vmcnt(0)")
    e("s_mov_b32 s56, 0")
    for i in range(8):
        e("v_readlane_b32 s%d, v4, %d" % (64 + i, i))
    e("s_nop 3")
    for i in range(8): e("s_add_u32 s56, s56, s%d" % (64 + i))
    e("s_cmp_ge_u32 s56, 256"); e("s_cbranch_scc1 L_el_hole")
    e("s_add_u32 s74, s74, 1"); e("s_cmp_gt_u32 s74, %d" % SPIN_LIMIT); e("s_cbranch_scc1 L_abort")
    e("s_sleep 4"); e("s_branch L_el_poll")
    A.label("L_el_hole")
    for i in range(8):
        e("s_min_u32 s56, s%d, 32" % (64 + i)); e("s_sub_u32 s57, 32, s56")
        e("s_add_u32 s55, s56, s54"); e("s_add_u32 s55, s55, %d" % (32 * i))
        e("s_cmp_lt_u32 s54, s57"); e("s_cbranch_scc1 L_el_dec")
        e("s_sub_u32 s54, s54, s57")
    e("s_branch L_abort")
    A.label("L_el_dec")
    e("s_mov_b64 exec, 1")
    e("v_mov_b32 v1, s55")
    e("ds_write_b32 v3, v1"); e("s_waitcnt lgkmcnt(0)")
    e("s_mov_b64 exec, -1")
    A.label("L_el_done")
    e("s_barrier")
    e("ds_read_b32 v4, v3"); e("s_waitcnt lgkmcnt(0)")
    e("v_readfirstlane_b32 s55, v4"); e("s_nop 3")
    e("s_barrier")
    e("s_add_u32 s41, s4, 0x%x" % (MR2_OFF + 0x1fffff)); e("s_and_b32 s41, s41, 0xffe00000"); e("s_sub_u32 s41, s41, s4")
    e("s_cmp_lg_u32 s55, 64"); e("s_cbranch_scc1 L_pr_done")
    e("s_cmp_lg_u32 s28, 0"); e("s_cbranch_scc1 L_pr_bar")
    e("s_mov_b64 exec, 1"); e("v_mov_b32 v12, 0"); e("v_mov_b32 v13, -1")
    e("s_add_u32 s52, s41, 0x%x" % (63 * 16384 + 6144)); e("s_add_u32 s53, s52, 8192")
    e("s_mov_b32 s56, -1"); e("s_mov_b32 s57, -1")
    for rep in range(4):
        for c in range(2):
            e("s_memtime s[64:65]"); e("s_waitcnt lgkmcnt(0)")
            e("buffer_store_dword v13, v12, s[4:7], s%d offen sc1" % (52 + c)); e("s_waitcnt vmcnt(0)")
            e("s_memtime s[66:67]"); e("s_waitcnt lgkmcnt(0)")
            e("s_sub_u32 s68, s66, s64"); e("s_min_u32 s%d, s%d, s68" % (56 + c, 56 + c))
    e("s_cmp_lt_u32 s57, s56"); e("s_cselect_b32 s52, 2, 1")
    e("v_mov_b32 v13, s52")
    e("buffer_store_dword v13, v12, s[24:27], 0 offen offset:%d sc1" % DBG_NEAR)
    e("s_mov_b64 exec, -1")
    A.label("L_pr_bar")
    e("s_barrier")
    A.label("L_pr_done")
    e("s_cmp_ge_u32 s55, 64"); e("s_cbranch_scc1 %s" % (worker_label or exit_label))
    e("s_lshr_b32 s29, s55, 5"); e("s_and_b32 s30, s55, 31")
    if HX: e("s_xor_b32 s30, s30, %d" % HX)
    tick(A, 1, 20, 28)
    if MEGA: team_init(A)
    tick(A, 2, 20, 28)
    e("v_lshlrev_b32 v1, 4, v0")
    e("v_and_b32 v11, 1, v0"); e("v_cmp_eq_u32 vcc, 1, v11"); e("v_mov_b32 v2, 0x4444"); e("v_mov_b32 v11, 0xeeee"); e("v_cndmask_b32 v2, v2, v11, vcc")
    C, G, RR, CP, T0, T1 = 64, 65, 66, 67, 68, 69
    e("v_and_b32 v%d, 15, v0" % C); e("v_lshrrev_b32 v%d, 4, v0" % G)
    e("v_bfe_u32 v%d, v0, 2, 2" % RR); e("v_and_b32 v%d, 3, v0" % CP)
    e("v_and_b32 v%d, 1, v%d" % (T0, RR)); e("v_lshlrev_b32 v3, 4, v%d" % T0)
    e("v_lshrrev_b32 v%d, 1, v%d" % (T1, G)); e("v_lshl_add_u32 v3, v%d, 2, v3" % T1)
    e("v_lshrrev_b32 v%d, 1, v%d" % (T1, RR)); e("v_lshl_add_u32 v3, v%d, 1, v3" % T1)
    e("v_and_b32 v%d, 1, v%d" % (T1, G)); e("v_add_u32 v3, v3, v%d" % T1)
    e("v_lshlrev_b32 v3, 6, v3"); e("v_lshl_add_u32 v3, v%d, 3, v3" % CP); e("v_lshl_add_u32 v3, v%d, 5, v3" % T0)
    e("s_mul_i32 s52, s28, %d" % (NSLOT * 4096)); e("s_add_u32 s52, s52, %d" % WV_L)
    e("v_add_u32 v3, s52, v3"); e("v_xor_b32 v4, 32, v3")
    e("s_lshl_b32 s53, s28, 10"); e("s_add_u32 s53, s53, %d" % QKX_L)
    e("v_lshlrev_b32 v5, 5, v%d" % C); e("v_lshl_add_u32 v5, v%d, 3, v5" % G); e("v_add_u32 v5, s53, v5")
    e("v_lshlrev_b32 v6, 3, v0")
    e("v_lshrrev_b32 v%d, 2, v%d" % (T0, C)); e("v_and_b32 v%d, 1, v%d" % (T1, C)); e("v_lshl_add_u32 v%d, v%d, 1, v%d" % (T0, T0, T1))
    e("v_mul_u32_u24 v7, 320, v%d" % T0); e("v_lshl_add_u32 v7, v%d, 3, v7" % G)
    e("s_lshl_b32 s53, s28, 6"); e("s_add_u32 s53, s53, %d" % OX_L); e("v_add_u32 v7, s53, v7")
    e("v_lshrrev_b32 v%d, 1, v%d" % (T0, C)); e("v_mul_u32_u24 v8, 320, v%d" % T0); e("v_lshl_add_u32 v8, v%d, 5, v8" % G)
    e("v_lshl_add_u32 v8, v%d, 4, v8" % T1); e("v_add_u32 v8, %d, v8" % OX_L)
    e("v_lshlrev_b32 v9, 13, v%d" % G); e("v_lshrrev_b32 v%d, 3, v%d" % (T0, C)); e("v_lshl_add_u32 v9, v%d, 12, v9" % T0)
    e("v_and_b32 v%d, 7, v%d" % (T0, C)); e("v_lshl_add_u32 v9, v%d, 4, v9" % T0)
    e("s_lshl_b32 s42, s28, 5"); e("s_add_u32 s42, s42, s30")
    e("s_and_b32 s53, s42, 1"); e("s_lshl_b32 s53, s53, 3")
    e("v_add_u32 v%d, s53, v%d" % (T0, T0))
    e("v_lshrrev_b32 v10, 2, v%d" % T0); e("v_lshlrev_b32 v10, 8, v10")
    e("v_bfe_u32 v%d, v%d, 1, 1" % (T1, T0)); e("v_lshl_add_u32 v10, v%d, 4, v10" % T1)
    e("v_and_b32 v%d, 1, v%d" % (T1, T0)); e("v_lshl_add_u32 v10, v%d, 3, v10" % T1)
    e("v_and_b32 v%d, 1, v%d" % (T1, G)); e("v_lshl_add_u32 v10, v%d, 5, v10" % T1)
    e("s_bfe_u32 s53, s42, 0x20001"); e("s_lshl_b32 s53, s53, 6")
    e("s_lshr_b32 s54, s42, 3"); e("s_lshl_b32 s54, s54, 10"); e("s_add_u32 s53, s53, s54")
    e("v_add_u32 v10, s53, v10")
    e("s_lshl_b32 s53, s29, 18"); e("s_add_u32 s53, s53, 0x%x" % PB_OFF)
    e("s_lshl_b32 s54, s30, 7"); e("s_add_u32 s54, s54, s53")
    e("s_lshl_b32 s43, s28, 15"); e("s_add_u32 s43, s43, s54")
    e("s_lshl_b32 s44, s28, 2"); e("s_add_u32 s44, s44, s54"); e("s_add_u32 s44, s44, 0x20000")
    e("s_lshl_b32 s45, s42, 12"); e("s_add_u32 s45, s45, s53")
    e("s_lshl_b32 s53, s29, 19")
    e("s_add_u32 s38, s53, 0x%x" % ML_OFF)
    e("s_lshl_b32 s53, s29, 20")
    e("s_add_u32 s40, s53, s41")
    e("s_xor_b32 s53, s53, 0x100000"); e("s_add_u32 s39, s53, s41")
    e("s_lshl_b32 s53, s30, 20"); e("s_lshl_b32 s54, s28, 11"); e("s_add_u32 s53, s53, s54")
    e("s_add_u32 s46, s53, 0x%x" % KV_OFF); e("s_add_u32 s47, s46, 8192")
    e("s_lshr_b32 s54, s53, 1"); e("s_add_u32 s48, s54, 0x%x" % XV_OFF)
    e("s_lshl_b32 s53, s30, 19"); e("s_lshl_b32 s54, s28, 9"); e("s_add_u32 s49, s53, s54"); e("s_add_u32 s49, s49, 0x%x" % (XV_OFF + 4096))
    e("s_lshl_b32 s50, s28, 11")
    GE, GO, GW4, GW1 = 70, 71, 72, 73
    e("v_lshrrev_b32 v%d, 2, v0" % T0); e("v_lshlrev_b32 v%d, 13, v%d" % (GE, T0)); e("v_lshl_add_u32 v%d, v%d, 4, v%d" % (GE, CP, GE))
    e("s_lshl_b32 s53, s30, 8"); e("s_lshl_b32 s54, s28, 6"); e("s_add_u32 s53, s53, s54")
    e("v_add_u32 v%d, s53, v%d" % (GE, GE)); e("v_xor_b32 v%d, 32, v%d" % (GO, GE))
    e("v_lshrrev_b32 v%d, 1, v0" % T0); e("v_mul_u32_u24 v%d, 1280, v%d" % (GW1, T0)); e("v_and_b32 v%d, 1, v0" % T0); e("v_lshl_add_u32 v%d, v%d, 4, v%d" % (GW1, T0, GW1))
    e("s_mul_i32 s53, s30, 163840"); e("s_mul_i32 s54, s29, 640"); e("s_add_u32 s53, s53, s54")
    e("s_lshl_b32 s54, s28, 7"); e("s_add_u32 s54, s54, s53"); e("v_add_u32 v%d, s54, v%d" % (GW4, GW1))
    e("s_lshl_b32 s54, s28, 5"); e("s_add_u32 s54, s54, s53"); e("s_add_u32 s54, s54, 512"); e("v_add_u32 v%d, s54, v%d" % (GW1, GW1))
    e("v_lshrrev_b32 v%d, 1, v%d" % (T0, G)); e("v_lshlrev_b32 v%d, 4, v%d" % (T0, T0))
    e("v_lshrrev_b32 v%d, 1, v%d" % (T1, RR)); e("v_lshl_add_u32 v%d, v%d, 3, v%d" % (T0, T1, T0))
    e("v_and_b32 v%d, 1, v%d" % (T1, G)); e("v_lshl_add_u32 v%d, v%d, 2, v%d" % (T0, T1, T0))
    e("v_and_b32 v%d, 1, v%d" % (T1, RR)); e("v_add_u32 v%d, v%d, v%d" % (T0, T0, T1))
    e("v_lshlrev_b32 v0, 5, v%d" % T0); e("v_lshl_add_u32 v0, v%d, 3, v0" % CP); e("v_add_u32 v0, s52, v0")
    e("s_mul_i32 s53, s29, 5"); e("s_sub_u32 s54, 5, s53")
    for j in range(10):
        e("s_add_u32 s%d, s%d, %d" % (64 + j, 53 if j < 5 else 54, j % 5)); e("s_lshl_b32 s%d, s%d, 19" % (64 + j, 64 + j))
    e("v_mov_b32 v21, 0x3f80"); e("v_mov_b32 v22, 0x3f800000")
    e("v_cmp_gt_u32 vcc, 4, v%d" % C); e("s_nop 1"); e("v_cndmask_b32 v21, v22, v21, vcc")
    e("v_cmp_gt_u32 vcc, 8, v%d" % C); e("s_nop 1"); e("v_cndmask_b32 v21, 0, v21, vcc")
    for d in range(4):
        e("v_cmp_eq_u32 vcc, %d, v%d" % (d, CP)); e("s_nop 1"); e("v_cndmask_b32 v%d, 0, v21, vcc" % (16 + d))
    e("ds_write_b128 v1, v[16:19] offset:%d" % SEL_L)
    e("s_lshl_b32 s33, s28, 10"); e("s_lshl_b32 s34, s28, 8"); e("s_add_u32 s34, s34, 4096")
    items = sorted(_res, key=lambda k: WORD.index(k[0]))
    final = sorted(LSLOT, key=lambda k: LSLOT[k])
    def issue(it, slot):
        k, j = it
        for i in range(4):
            e("s_add_u32 m0, s52, %d" % (slot * 4096 + i * 1024))
            if k == "O":
                e("s_mov_b32 s53, %d" % (i * 32 * 1280 + (32 * j if j < 4 else 0)))
                e("buffer_load_dwordx4 v%d, s[20:23], s53 offen lds" % (GW4 if j < 4 else GW1))
            else:
                e("s_add_u32 s53, s%d, %d" % (64 + j, i * 16 * 8192))
                e("buffer_load_dwordx4 v%d, %s, s53 offen lds" % (GO if i & 1 else GE, {"Q": "s[8:11]", "K": "s[12:15]", "V": "s[16:19]"}[k]))
    def consume(it, slot):
        k, j = it
        for T in range(2):
            f = FX(k, j, T)
            for a in range(4):
                if k == "O": e("ds_read_b64_tr_b16 %s, v0 offset:%d" % (R(WB + 8 * f + 2 * a, 2), slot * 4096 + (64 * T + 32 * (a >> 1) + 2 * (a & 1)) * 32))
                else: e("ds_read_b64_tr_b16 %s, v%d offset:%d" % (R(WB + 8 * f + 2 * a, 2), 3 + T, slot * 4096 + 2048 * (a & 1) + 512 * (a >> 1)))
    order = [(it, n % NSLOT) for n, it in enumerate(items)]
    nreg = len(order)
    order += [(final[(nreg + i) % NSLOT], (nreg + i) % NSLOT) for i in range(NSLOT)]
    e("v_lshlrev_b32 v74, 2, v1")
    e("s_lshl_b32 s54, s30, 14"); e("s_lshl_b32 s55, s28, 12"); e("s_add_u32 s55, s55, s54")
    e("s_lshl_b32 s54, s28, 8"); e("s_add_u32 s54, s54, %d" % MISC_L)
    q = []
    def pf(n):
        if not PFD or n >= len(order) or order[n][0][0] == "O": return
        k, j = order[n][0]
        e("s_mov_b32 m0, s54"); e("s_add_u32 s53, s%d, s55" % (64 + j))
        e("buffer_load_dword v74, %s, s53 offen lds" % {"Q": "s[8:11]", "K": "s[12:15]", "V": "s[16:19]"}[k]); q.append(None)
    def iss(n):
        pf(n + PFD)
        issue(*order[n]); q.extend([n] * 4)
    if PFD:
        for n in range(PFD): pf(n)
    for n in range(DEPTH): iss(n)
    if MEGA: team_init_finish(A, len(q))
    for n in range(len(order)):
        if n < nreg:
            last = len(q) - 1 - q[::-1].index(n)
            e("s_waitcnt vmcnt(%d)" % (len(q) - 1 - last)); del q[:last + 1]
            consume(*order[n])
            e("s_waitcnt lgkmcnt(0)")
            if n in (8, 15, 23, 26): tick(A, 44 + (8, 15, 23, 26).index(n), 20, 28)
        if n + DEPTH < len(order): iss(n + DEPTH)
    e("s_waitcnt vmcnt(0)")
    e("v_add_u32 v11, s52, v1")
    for sl in range(NSLOT):
        k, j = final[sl]
        for T in range(2):
            for a in range(4):
                d = 16 + 8 * T + 2 * a
                if k == "O": e("ds_read_b64_tr_b16 v[%d:%d], v0 offset:%d" % (d, d + 1, sl * 4096 + (64 * T + 32 * (a >> 1) + 2 * (a & 1)) * 32))
                else: e("ds_read_b64_tr_b16 v[%d:%d], v%d offset:%d" % (d, d + 1, 3 + T, sl * 4096 + 2048 * (a & 1) + 512 * (a >> 1)))
        e("s_waitcnt lgkmcnt(0)")
        for q in range(4): e("ds_write_b128 v11, v[%d:%d] offset:%d" % (16 + 4 * q, 19 + 4 * q, sl * 4096 + 1024 * q))
    e("v_mov_b32 v3, v11")
    e("v_lshrrev_b32 v0, 2, v1")
    e("v_lshlrev_b32 v4, 2, v1")
    e("s_mov_b32 s35, %d" % MISC_L)
    e("s_lshl_b32 s37, s28, 7"); e("s_add_u32 s37, s37, %d" % (MISC_L + 256))
    e("v_add_u32 v11, s37, v0"); e("v_mov_b32 v12, 0"); e("s_mov_b32 exec_hi, 0"); e("ds_write_b32 v11, v12"); e("s_mov_b32 exec_hi, -1")
    e("s_and_b32 s36, s42, 63"); e("s_lshl_b32 s36, s36, 7"); e("s_add_u32 s36, s36, 10240")
    e("s_lshl_b32 s50, s28, 12"); e("s_lshl_b32 s46, s30, 20"); e("s_add_u32 s46, s46, s50"); e("s_add_u32 s46, s46, 0x%x" % KV_OFF)
    e("s_lshl_b32 s56, s28, 10"); e("s_lshl_b32 s57, s28, 9")
    e("s_add_u32 s54, s57, 4096"); e("s_cmp_eq_u32 s29, 0"); e("s_cselect_b32 s54, s56, s54")
    e("s_lshl_b32 s48, s30, 19"); e("s_add_u32 s48, s48, s54"); e("s_add_u32 s48, s48, 0x%x" % XV_OFF); e("s_mov_b32 s62, 0")
    e("s_lshl_b32 s47, s28, 11"); e("s_add_u32 s47, s47, %d" % VX_L)
    e("s_and_b32 s60, s28, 1"); e("s_lshl_b32 s60, s60, 13"); e("s_sub_u32 s61, s60, s50")
    e("s_cmp_eq_u32 s30, 20"); e("s_cselect_b32 s59, 0, 61")
    e("s_lshl_b32 s63, s29, 7"); e("s_add_u32 s63, s63, s42"); e("s_xor_b32 s63, s63, %d" % (96 + 20))
    for r in range(ACQ, ACQ + 24): e("v_mov_b32 v%d, 0" % r)
    e("s_mov_b32 s32, 0")
    e("s_mov_b32 s51, 0x3e0293ee")
    tick(A, 3, 20, 28)
    if TICK["on"]:
        e("s_lshl_b32 s96, s29, 5"); e("s_add_u32 s96, s96, s30"); e("v_mov_b32 v20, s96"); e("s_add_u32 s98, s98, %d" % (4 * 40)); e("buffer_store_dword v20, v21, s[4:7], s98 offen")
    dtick(A, 9, 20, 's[24:27]')
    A.label("L_md_poll")
    e("buffer_load_dword v11, v0, s[24:27], 0 offen sc1"); e("s_waitcnt vmcnt(0)")
    for i in range(8): e("v_readlane_b32 s%d, v11, %d" % (64 + i, DBG_XC // 4 + 4 * i))
    e("v_readlane_b32 s72, v11, %d" % (DBG_INIT // 4)); e("v_readlane_b32 s73, v11, %d" % (DBG_NEAR // 4))
    e("v_and_b32 v11, 0x3ff, v11"); e("v_cmp_le_u32 vcc, 128, v11"); e("s_nop 3")
    e("s_lshr_b32 s49, vcc_lo, %d" % (DBG_G1 // 4)); e("s_ff0_i32_b32 s49, s49")
    e("s_cmp_eq_u32 s49, 16"); e("s_cmov_b32 s49, 18")
    e("s_cmp_eq_u32 s73, 0"); e("s_cbranch_scc1 L_md_no")
    if MEGA:
        e("s_cmp_lt_u32 s72, 64"); e("s_cbranch_scc1 L_md_no")
        e("s_cmp_eq_u32 s49, 0"); e("s_cbranch_scc1 L_md_no")
    e("s_mov_b32 s31, 0")
    e("s_min_u32 s53, s64, s65"); e("s_cmp_ge_u32 s53, 32"); e("s_cbranch_scc1 L_md_ok")
    e("s_mov_b32 s31, 1"); e("s_mov_b32 s53, 0")
    for i in range(8): e("s_add_u32 s53, s53, s%d" % (64 + i))
    e("s_cmp_ge_u32 s53, 256"); e("s_cbranch_scc1 L_md_ok")
    A.label("L_md_no")
    e("s_add_u32 s74, s74, 1"); e("s_cmp_gt_u32 s74, %d" % SPIN_LIMIT); e("s_cbranch_scc1 L_abort")
    e("s_sleep 4"); e("s_branch L_md_poll")
    A.label("L_md_ok")
    e("s_lshl_b32 s58, s49, 2"); e("s_sub_u32 s58, s58, 5")
    if NEARSEL is None:
        e("s_sub_u32 s73, s73, 1"); e("s_lshl_b32 s73, s73, 13")
    else:
        e("s_sub_u32 s73, s73, 1"); e("s_xor_b32 s73, s73, 1"); e("s_lshl_b32 s73, s73, 13")
    e("s_add_u32 s39, s39, s73"); e("s_add_u32 s40, s40, s73")
    e("s_waitcnt vmcnt(0)")
    e("s_barrier")
    if instr in (1, 2):
        for r in range(80, 96): e("s_mov_b32 s%d, 0" % r)
        e("s_memtime s[76:77]"); e("s_waitcnt lgkmcnt(0)"); e("s_mov_b32 s78, s76"); e("s_mov_b32 s95, s76")
    TP = [64, 66, 68, 70, 72] + list(range(76, 102, 2))
    tstate = {"n": 0}
    def stamp(i, fine=False):
        if not instr: return
        if instr == 5:
            if i == 6:
                l = A.newlabel("Lst")
                e("s_cmp_lg_u32 s28, 3"); e("s_cbranch_scc1 %s" % l)
                e("s_memtime s[76:77]"); e("s_waitcnt lgkmcnt(0)")
                e("s_lshl_b32 s53, s29, 5"); e("s_add_u32 s53, s53, s30"); e("s_lshl_b32 s53, s53, 6"); e("s_add_u32 s53, s53, s32"); e("s_lshl_b32 s53, s53, 3"); e("s_add_u32 s53, s53, 0x%x" % ST_OFF)
                e("s_mov_b64 exec, 1"); e("v_mov_b32 v12, s76"); e("v_mov_b32 v13, s74"); e("buffer_store_dwordx2 v[12:13], v0, s[4:7], s53 offen"); e("s_mov_b64 exec, -1")
                A.label(l)
            return
        if instr == 4:
            if i == 8:
                l = A.newlabel("Lst")
                e("s_cmp_lg_u32 s32, 2"); e("s_cbranch_scc1 %s" % l)
                e("s_memtime s[76:77]"); e("s_memrealtime s[78:79]")
                A.label(l)
                l = A.newlabel("Lst")
                e("s_cmp_lg_u32 s32, 62"); e("s_cbranch_scc1 %s" % l)
                e("s_memtime s[80:81]"); e("s_memrealtime s[82:83]"); e("s_waitcnt lgkmcnt(0)")
                e("s_sub_u32 s80, s80, s76"); e("s_sub_u32 s82, s82, s78")
                e("s_lshl_b32 s53, s29, 5"); e("s_add_u32 s53, s53, s30"); e("s_lshl_b32 s53, s53, 2"); e("s_add_u32 s53, s53, s28"); e("s_lshl_b32 s53, s53, 7"); e("s_add_u32 s53, s53, 0x%x" % ST_OFF)
                e("v_mov_b32 v37, 0"); e("v_mov_b32 v11, s80"); e("buffer_store_dword v11, v37, s[4:7], s53 offen")
                e("v_mov_b32 v11, s82"); e("buffer_store_dword v11, v37, s[4:7], s53 offen offset:4")
                A.label(l)
            return
        if instr == 3:
            n = tstate["n"]
            e("s_memtime s[%d:%d]" % (TP[n], TP[n] + 1)); A.c("stamp %d (%s)" % (n, i))
            tstate["n"] = n + 1
            if i == 8:
                l = A.newlabel("Lst")
                e("s_cmp_lg_u32 s32, %d" % TRACE_STEP); e("s_cbranch_scc1 %s" % l)
                e("s_waitcnt lgkmcnt(0)")
                e("s_lshl_b32 s53, s29, 5"); e("s_add_u32 s53, s53, s30"); e("s_lshl_b32 s53, s53, 2"); e("s_add_u32 s53, s53, s28"); e("s_lshl_b32 s53, s53, 7"); e("s_add_u32 s53, s53, 0x%x" % ST_OFF)
                e("v_mov_b32 v37, 0")
                for k in range(tstate["n"]):
                    e("v_mov_b32 v11, s%d" % TP[k]); e("buffer_store_dword v11, v37, s[4:7], s53 offen offset:%d" % (4 * k))
                A.label(l)
                tstate["n"] = 0
            return
        if fine: return
        if instr == 2:
            l = A.newlabel("Lst")
            e("s_cmp_lg_u32 s32, %d" % TRACE_STEP); e("s_cbranch_scc1 %s" % l)
            e("s_memrealtime s[76:77]"); e("s_waitcnt lgkmcnt(0)"); e("s_mov_b32 s%d, s76" % (80 + i))
            A.label(l)
            return
        e("s_memtime s[76:77]"); e("s_waitcnt lgkmcnt(0)")
        e("s_sub_u32 s79, s76, s78"); e("s_add_u32 s%d, s%d, s79" % (80 + i, 80 + i)); e("s_mov_b32 s78, s76")
        if i == 8:
            l = A.newlabel("Lst")
            e("s_cmp_lg_u32 s32, 3"); e("s_cbranch_scc1 %s" % l)
            for r in range(80, 95): e("s_mov_b32 s%d, 0" % r)
            e("s_mov_b32 s95, s76")
            A.label(l)
    if KVPOS in (1, 2, 4, 5):
        e("s_mov_b32 m0, s50"); e("s_nop 0")
        for i in range(4): e("buffer_load_dwordx4 v1, s[4:7], s46 offen offset:%d%s lds" % (1024 * i, KVSC))
    tick(A, 4, 20, 28)
    dtick(A, 10, 20, 's[24:27]')
    e("s_lshl_b32 s53, s31, 1"); e("s_add_u32 s53, s53, s29")
    for i, nm in enumerate(("fast1", "slow0", "slow1")):
        e("s_cmp_eq_u32 s53, %d" % (i + 1)); e("s_cbranch_scc1 L_loop_" + nm)
    for mode in ("fast0", "fast1", "slow0", "slow1"):
        sc = "" if mode.startswith("fast") else " sc1"
        if ALIGN:
            A.raw(".p2align 6")
            for _ in range(ALIGN - 1): e("s_nop 0")
        A.label("L_loop_" + mode)
        ools = [emit_step(A, par, sc, stamp, d_first, d_red, instr in (1, 2), int(mode[-1])) for par in (1, 0)]
        if TICK["on"]:
            e("s_lshr_b32 s99, s32, 1"); tick(A, 5, 12, 28, 99)
        e("s_branch L_loop_" + mode)
        A.label("L_ool_" + mode)
        for f in ools: f()
    A.label("L_rec_last")
    tick(A, 39, 20, 28)
    e("s_barrier")
    e("s_cmp_eq_u32 s29, 0"); e("s_cbranch_scc1 L_rec_l2")
    e("v_add_u32 v11, s56, v0")
    e("ds_write_b32 v11, v76 offset:%d" % QKX_L); e("ds_write_b32 v11, v78 offset:%d" % (QKX_L + 256))
    A.label("L_rec_l2")
    e("s_mov_b32 s32, 64")
    A.label("L_rec_done")
    publish(A)
    if MEGA:
        e("s_waitcnt vmcnt(0)"); e("s_barrier")
        signal_fin(A)
        tick(A, 38, 20, 28)
        dtick(A, 11, 20, 's[24:27]')
    if instr in (1, 2):
        e("s_memtime s[76:77]"); e("s_waitcnt lgkmcnt(0)"); e("s_sub_u32 s95, s76, s95")
        e("s_lshl_b32 s53, s29, 5"); e("s_add_u32 s53, s53, s30"); e("s_lshl_b32 s53, s53, 2"); e("s_add_u32 s53, s53, s28"); e("s_lshl_b32 s53, s53, 6"); e("s_add_u32 s53, s53, 0x%x" % ST_OFF)
        e("v_mov_b32 v0, 0")
        for i in range(16):
            e("v_mov_b32 v11, s%d" % (80 + i)); e("buffer_store_dword v11, v0, s[4:7], s53 offen offset:%d" % (4 * i))

    e("s_branch %s" % exit_label)
    A.label("L_abort")
    e("s_mov_b64 exec, 1")
    e("v_mov_b32 v0, %d" % DBG_ABORT); e("v_mov_b32 v11, 1")
    e("buffer_store_dword v11, v0, s[24:27], 0 offen")

def fload(A, dst, slot, T):
    for q in range(2):
        A.e("ds_read_b128 v[%d:%d], v3 offset:%d" % (dst + 4 * q, dst + 4 * q + 3, slot * 4096 + 2048 * T + 1024 * q))

def team_init(A):
    e = A.e
    e("s_load_dwordx2 s[52:53], s[0:1], 8")
    e("s_lshl_b32 s54, s28, 6"); e("v_add_u32 v12, s54, v0")
    e("v_lshlrev_b32 v13, 4, v12")
    for i in range(12): e("v_mov_b32 v%d, -1" % (16 + i))
    e("s_waitcnt lgkmcnt(0)")
    e("s_mov_b32 s56, s52"); e("s_mov_b32 s57, s53"); e("s_mov_b32 s58, 10240"); e("s_mov_b32 s59, 0x20000")
    e("s_cmp_lg_u32 s30, 0"); e("s_cbranch_scc1 L_ti_st")
    e("s_mul_i32 s54, s29, 640")
    e("v_bfe_u32 v14, v12, 1, 3"); e("v_mul_u32_u24 v14, 1280, v14")
    e("v_bfe_u32 v15, v12, 4, 2"); e("v_lshl_add_u32 v14, v15, 3, v14")
    e("v_and_b32 v15, 1, v12"); e("v_lshl_add_u32 v14, v15, 2, v14")
    e("v_lshrrev_b32 v15, 6, v12"); e("v_lshl_add_u32 v15, v15, 7, v14")
    for t in range(4): e("buffer_load_dword v%d, v15, s[56:59], s54 offen offset:%d" % (28 + t, 32 * t))
    for t in range(4): e("buffer_load_dword v%d, v14, s[56:59], s54 offen offset:%d" % (36 + t, 512 + 32 * t))
    e("s_mov_b32 s52, 0x05040100"); e("s_mov_b32 s53, 0x07060302")
    e("s_waitcnt vmcnt(0)")
    for half in range(2):
        d = 16 + 4 * half; q = 28 + 8 * half
        if half == 1: e("s_cmp_lg_u32 s28, 0"); e("s_cbranch_scc1 L_ti_st")
        e("v_perm_b32 v%d, v%d, v%d, s52" % (d, q + 1, q)); e("v_perm_b32 v%d, v%d, v%d, s52" % (d + 1, q + 3, q + 2))
        e("v_perm_b32 v%d, v%d, v%d, s53" % (d + 2, q + 1, q)); e("v_perm_b32 v%d, v%d, v%d, s53" % (d + 3, q + 3, q + 2))
        for i in range(4): e("v_min_u32 v%d, -2, v%d" % (d + i, d + i))
    A.label("L_ti_st")
    e("s_lshl_b32 s52, s29, 19"); e("s_mul_i32 s53, s30, 12288"); e("s_add_u32 s52, s52, s53")
    for i in range(3):
        e("s_add_u32 s53, s52, 0x%x" % (ML_OFF + 4096 * i))
        e("buffer_store_dwordx4 v[%d:%d], v13, s[4:7], s53 offen sc1" % (16 + 4 * i, 19 + 4 * i))
    e("s_lshl_b32 s52, s29, 20"); e("s_lshl_b32 s53, s30, 15"); e("s_add_u32 s52, s52, s53"); e("s_add_u32 s52, s52, s41")
    for i in range(8):
        d = 16 + 4 * (i & 1) if i < 4 else 24
        e("s_add_u32 s53, s52, %d" % (4096 * i))
        e("buffer_store_dwordx4 v[%d:%d], v13, s[4:7], s53 offen sc1" % (d, d + 3))
    for i in range(4): e("v_mov_b32 v%d, 0" % (32 + i))
    e("s_lshl_b32 s52, s29, 18"); e("s_lshl_b32 s53, s30, 13"); e("s_add_u32 s52, s52, s53")
    for i in range(2):
        e("s_add_u32 s53, s52, 0x%x" % (PB_OFF + 4096 * i))
        e("buffer_store_dwordx4 v[32:35], v13, s[4:7], s53 offen sc1")
    e("s_lshl_b32 s52, s29, 5"); e("s_add_u32 s52, s52, s30"); e("s_lshl_b32 s52, s52, 8"); e("s_add_u32 s52, s52, 0x%x" % CT_OFF)
    e("v_lshlrev_b32 v14, 2, v0")
    e("buffer_store_dword v32, v14, s[4:7], s52 offen sc1")

def team_init_finish(A, younger):
    e = A.e
    e("s_waitcnt vmcnt(%d)" % younger); e("s_barrier")
    e("s_cmp_lg_u32 s28, 0"); e("s_cbranch_scc1 L_ti_done")
    e("s_mov_b64 exec, 1"); e("v_mov_b32 v14, %d" % DBG_INIT); e("v_mov_b32 v15, 1")
    e("buffer_atomic_add v15, v14, s[24:27], 0 offen sc1")
    e("s_mov_b64 exec, -1")
    A.label("L_ti_done")

def kv_poll(A):
    e = A.e
    lp = A.newlabel("Lkv"); ok = A.newlabel("Lkvok"); upd = A.newlabel("Lkvu"); need = A.newlabel("Lkvn"); ool = A.newlabel("Lkvo")
    e("s_cmp_ge_i32 s32, s58"); e("s_cbranch_scc1 %s" % ool)
    A.label(ok)
    def f():
        A.label(ool)
        e("s_add_u32 s54, s32, 3"); e("s_lshr_b32 s54, s54, 2")
        e("s_cmp_ge_u32 s54, s49"); e("s_cbranch_scc1 %s" % need)
        e("s_mov_b32 m0, s37"); e("s_mov_b32 exec_hi, 0")
        e("buffer_load_dword v0, s[24:27], 0 offen sc1 lds")
        e("s_mov_b32 exec_hi, -1")
        e("s_branch %s" % ok)
        A.label(need)
        e("v_add_u32 v11, s37, v0"); e("ds_read_b32 v11, v11"); e("s_waitcnt lgkmcnt(0)")
        e("s_branch %s" % upd)
        A.label(lp)
        e("buffer_load_dword v11, v0, s[24:27], 0 offen sc1"); e("s_waitcnt vmcnt(0)")
        A.label(upd)
        e("v_and_b32 v11, 0x3ff, v11"); e("v_cmp_le_u32 vcc, 128, v11"); e("s_nop 3")
        e("s_lshr_b32 s49, vcc_lo, %d" % (DBG_G1 // 4)); e("s_ff0_i32_b32 s49, s49")
        e("s_cmp_eq_u32 s49, 16"); e("s_cmov_b32 s49, 18")
        e("s_lshl_b32 s58, s49, 2"); e("s_sub_u32 s58, s58, 5")
        e("s_cmp_lt_u32 s54, s49"); e("s_cbranch_scc1 %s" % ok)
        e("s_add_u32 s74, s74, 1"); e("s_cmp_gt_u32 s74, %d" % SPIN_LIMIT); e("s_cbranch_scc1 L_abort")
        e("s_sleep 2"); e("s_branch %s" % lp)
    return f

def signal_prog(A):
    e = A.e
    l = A.newlabel("Lsg")
    e("s_cmp_lg_u32 s63, 0"); e("s_cbranch_scc1 %s" % l)
    e("s_max_u32 s53, s32, 2"); e("s_sub_u32 s53, s53, 2")
    e("s_mov_b64 exec, 1"); e("v_mov_b32 v11, s53"); e("s_mov_b32 s53, 0x%x" % CT_OFF)
    e("buffer_store_dword v11, v0, s[4:7], s53 offen sc1")
    e("s_mov_b64 exec, -1")
    A.label(l)

def signal_fin(A, back=0):
    e = A.e
    l = A.newlabel("Lsg")
    e("s_cmp_lg_u32 s28, 2"); e("s_cbranch_scc1 %s" % l)
    e("s_lshl_b32 s53, s30, 7"); e("s_lshl_b32 s54, s29, 2"); e("s_add_u32 s53, s53, s54"); e("s_add_u32 s53, s53, 0x%x" % (CT_OFF + 128))
    e("s_sub_u32 s54, s32, %d" % back)
    e("s_mov_b64 exec, 1"); e("v_mov_b32 v11, s54")
    e("buffer_store_dword v11, v0, s[4:7], s53 offen sc1")
    e("s_mov_b64 exec, -1")
    A.label(l)

def publish(A, lds=None, wait_for=None, mm=None, team=None):
    e = A.e
    e("v_add_u32 v36, s56, v6")
    if team != 1:
        e("ds_read_b64_tr_b16 v[32:33], v36 offset:%d" % QKX_L); e("ds_read_b64_tr_b16 v[34:35], v36 offset:%d" % (QKX_L + 512))
        if lds: lds("PB", 2)
    if team != 0:
        e("ds_read_b64 v[38:39], v36 offset:%d" % QKX_L)
        if lds: lds("PB", 1)
    seq = (6, 7, 9, 5, 8) if mm else (9,)
    for j in seq:
        if mm:
            wait_for(("A", j))
            for T in range(2): mm("Q", j, T)
        if j == 9:
            if mm: wait_for("PB")
            else: e("s_waitcnt lgkmcnt(0)")
            t1 = A.newlabel("Lt1"); tj = A.newlabel("Ltj")
            if team is None: e("s_cmp_lg_u32 s29, 0"); e("s_cbranch_scc1 %s" % t1)
            if team != 1: e("buffer_store_dwordx4 v[32:35], v1, s[4:7], s48 offen%s" % PUBSC)
            if team is None:
                e("s_branch %s" % tj)
                A.label(t1)
            if team != 0: e("buffer_store_dwordx2 v[38:39], v6, s[4:7], s48 offen%s" % PUBSC)
            if team is None: A.label(tj)
            e("s_add_u32 s48, s48, s62"); e("s_mov_b32 s62, 0x2000")

def emit_step(A, par, sc, stamp, d_first, d_red, instr, team):
    e = A.e
    extra = []
    KXC = KX_L
    ACC = {"Q": ACQ, "K": ACK, "V": ACV}
    def smf(acc, a, b): e("%s v[%d:%d], %s, %s, v2" % (SMF, acc, acc + 3, vr(a, 4), b))
    def spin():
        e("s_add_u32 s74, s74, 1"); e("s_cmp_gt_u32 s74, %d" % SPIN_LIMIT); e("s_cbranch_scc1 L_abort")
    def gl_load(reg, s):
        e("buffer_load_dwordx4 v[%d:%d], v37, s[4:7], s%d offen sc1" % (reg, reg + 3, s))
        e("buffer_load_dword v%d, v38, s[4:7], s%d offen sc1" % (reg + 4, s))
    def gl_check(reg):
        e("v_max3_u32 v11, v%d, v%d, v%d" % (reg, reg + 1, reg + 2)); e("v_max3_u32 v11, v11, v%d, v%d" % (reg + 3, reg + 4))
        e("v_cmp_eq_u32 vcc, -1, v11")
    def gl_write(reg, half):
        e("ds_write_b128 v37, v[%d:%d] offset:%d" % (reg, reg + 3, AC_L + 5120 * half))
        e("ds_write_b32 v38, v%d offset:%d" % (reg + 4, AC_L + 5120 * half))
    Lseq = [(m, j, T) for (m, j) in [("K", 0), ("K", 2), ("K", 4), ("V", 1), ("V", 3), ("Q", 5)] for T in range(2)]
    lstate = {"issued": 0, "other": 0}
    pend = []
    def lds(tag, n=1):
        pend.extend([tag] * n)
    def wait_for(tag):
        if tag not in pend: return
        last = len(pend) - 1 - pend[::-1].index(tag)
        n = len(pend) - 1 - last
        e("s_waitcnt lgkmcnt(%d)" % n)
        del pend[:last + 1]
    def wait_all():
        e("s_waitcnt lgkmcnt(0)"); del pend[:]
    def Lissue():
        i = lstate["issued"]
        if i >= len(Lseq): return
        m, j, T = Lseq[i]
        fload(A, TMP + 8 * (i % 2), LSLOT[(m, j)], T); lds(("L", i), 2)
        lstate["issued"] = i + 1
    def mm(m, j, T):
        a = AA(j % 5)
        if DIS & 64 and j >= 5 and (m, j) not in LSLOT:
            e("s_nop 3"); return
        if DIS & 128 and (m, j) not in LSLOT:
            e("s_nop 3"); return
        if (m, j) in LSLOT:
            i = Lseq.index((m, j, T))
            wait_for(("L", i))
            smf(ACC[m] + 4 * T, a, vr(TMP + 8 * (i % 2), 8))
            Lissue()
        else:
            smf(ACC[m] + 4 * T, a, FR(FX(m, j, T)))
    def rdA(j):
        e("ds_read_b128 v[%d:%d], v1 offset:%d" % (AA(j % 5), AA(j % 5) + 3, AC_L + 1024 * j)); lds(("A", j))
    def zero(lo, hi):
        for r in range(lo, hi, 2): e("v_mov_b64 v[%d:%d], 0" % (r, r + 1))
    if DG:
        def gl5():
            for j in range(5): e("buffer_load_dwordx4 v[%d:%d], v1, s[4:7], s%d offen offset:%d sc1" % (AA(j), AA(j) + 3, 38 if j < 4 else 55, 1024 * (j & 3)))
        e("v_add_u32 v37, s33, v1"); e("v_add_u32 v38, s34, v0"); e("s_add_u32 s55, s38, 4096")
        if d_first: e("s_sleep %d" % d_first)
        gl5()
        stamp("issueA", True)
        lp = A.newlabel("Lgl"); re = A.newlabel("Lglre")
        e("s_waitcnt vmcnt(5)")
        A.label(lp)
        Lissue(); Lissue()
        for j in range(5):
            e("s_waitcnt vmcnt(%d)" % (4 - j + (2 if j > GRAT else 0)))
            if j == 0:
                stamp("gotL", True); stamp(0); stamp("B4", True)
            a = AA(j)
            if j % 2 == 0: order = [("K", 0), ("Q", 0), ("Q", 1), ("K", 1)]
            else: order = [("Q", 0), ("K", 0), ("Q", 1), ("K", 1)]
            for n, (m, T) in enumerate(order):
                mm(m, j, T)
                if n == 1:
                    if j == 0: e("v_max3_u32 v11, v%d, v%d, v%d" % (a, a + 1, a + 2))
                    else: e("v_max3_u32 v11, v11, v%d, v%d" % (a, a + 1))
                if n == 2:
                    if j == 0: e("v_max_u32 v11, v11, v%d" % (a + 3))
                    else: e("v_max3_u32 v11, v11, v%d, v%d" % (a + 2, a + 3))
            if j == GRAT: gl_load(GG, 39)
        e("v_cmp_eq_u32 vcc, -1, v11")
        e("s_cbranch_vccnz %s" % re)
    else:
        e("v_add_u32 v37, s33, v1"); e("v_add_u32 v38, s34, v0")
        if d_first: e("s_sleep %d" % d_first)
        GA, GB = 12, 20
        gl_load(GA, 38)
        stamp("issueA", True)
        if D_GAP: e("s_sleep %d" % D_GAP)
        e("s_mov_b32 m0, s50")
        gl_load(GB, 38)
        for i in range(4):
            if KVPOS == 0: e("buffer_load_dwordx4 v1, s[4:7], s46 offen offset:%d%s lds" % (1024 * i, KVSC))
        lp = A.newlabel("Lgl"); okA = A.newlabel("LglA"); okB = A.newlabel("LglB"); ok = A.newlabel("Lglok"); re = A.newlabel("Lglre")
        e("s_waitcnt vmcnt(%d)" % (2 if KVPOS else 6))
        A.label(lp)
        gl_check(GA); e("s_cbranch_vccnz %s" % re)
        gl_write(GA, 0)
        A.label(ok)
        lds("W", 2)
        stamp("gotL", True)
        if GREARLY: gl_load(GG, 39)
        Lissue(); Lissue()
        wait_for("W")
        stamp(0)
        e("s_barrier")
        e("s_waitcnt vmcnt(%d)" % (2 if GREARLY else 0))
        stamp("B4", True)
        for j in range(5): rdA(j)
        if not GREARLY: gl_load(GG, 39)
        if KVPOS == 3:
            for i in range(4): e("buffer_load_dwordx4 v1, s[4:7], s46 offen offset:%d%s lds" % (1024 * i, KVSC))
        for j in range(5):
            wait_for(("A", j))
            if j % 2 == 0: order = [("K", 0), ("Q", 0), ("Q", 1), ("K", 1)]
            else: order = [("Q", 0), ("K", 0), ("Q", 1), ("K", 1)]
            for m, T in order: mm(m, j, T)

    stamp(1)
    lpr = A.newlabel("Lgr"); rer = A.newlabel("Lgrre")
    e("s_waitcnt vmcnt(%d)" % (4 if KVPOS == 3 else 0))
    A.label(lpr)
    gl_check(GG); e("s_cbranch_vccnz %s" % rer)
    gl_write(GG, 1); lds("W", 2)
    stamp(9)
    mm("V", 0, 0)
    if MEGA and not par: extra.append(kv_poll(A))
    if KVPOS == 3:
        mm("V", 0, 1); e("s_waitcnt vmcnt(0)")
    e("s_mov_b32 m0, s35"); e("s_add_u32 s46, s46, 0x4000")
    if KVPOS in (1, 2, 4, 5):
        e("s_add_u32 s53, s46, 0x4000"); e("buffer_load_dword v4, s[4:7], s53 offen%s lds" % KVSC)
    else: e("buffer_load_dword v4, s[4:7], s46 offen%s lds" % KVSC)
    mm("V", 1, 0)
    if KVPOS != 3: mm("V", 0, 1)
    mm("V", 1, 1)
    wait_for("W")
    e("s_barrier")
    stamp("B5", True)
    rdA(5); rdA(6)
    xt = A.newlabel("Lxt"); xr = A.newlabel("Lxr")
    e("s_cmp_ge_u32 s32, s59"); e("s_cbranch_scc1 %s" % xt)
    A.label(xr)
    def xtra():
        A.label(xt)
        nml = A.newlabel("Lnml")
        e("s_cmp_lg_u32 s30, 20"); e("s_cbranch_scc1 %s" % nml)
        e("s_add_u32 s54, s38, s50"); e("s_add_u32 s54, s54, 10240")
        e("buffer_load_dword v4, s[4:7], s54 offen lds")
        if MEGA: signal_prog(A)
        A.label(nml)
        if MEGA:
            e("s_cmp_lt_u32 s32, 61"); e("s_cbranch_scc1 %s" % xr)
            signal_fin(A, 1)
        e("s_branch %s" % xr)
    extra.append(xtra)
    VXR = GG
    mm("V", 2, 0); mm("V", 2, 1); rdA(7)
    mm("V", 4, 0); mm("V", 4, 1); rdA(9)
    mm("V", 3, 0); mm("V", 3, 1); rdA(8)
    publish(A, lds, wait_for, mm, team)
    for j in range(5, 10):
        for T in range(2):
            mm("K", j, T)
            if j < 7:
                ks = 2 * (j - 5) + T
                e("ds_read_b128 v[%d:%d], v1 offset:%d" % (TMP + 4 * ks, TMP + 3 + 4 * ks, KXC + 4096 + 1024 * ks)); lds("K1")
            if j == 8:
                q = ACQ + 4 * T
                e("v_add_f32 v%d, v%d, v%d" % (q, q, q + 1)); e("v_add_f32 v%d, v%d, v%d" % (q + 2, q + 2, q + 3))
            if j == 9:
                q = ACQ + 4 * T
                e("v_cvt_pk_bf16_f32 v%d, v%d, v%d" % (q + 1, q, q + 2))
    stamp(2)
    if TW & 1:
        for T in range(2): mm("V", 5, T)
        e("s_nop 3")
        for T in range(2):
            q, k = ACQ + 4 * T, ACK + 4 * T
            e("v_add_f32 v%d, v%d, v%d" % (k, k, k + 1)); e("v_add_f32 v%d, v%d, v%d" % (k + 2, k + 2, k + 3))
            if T == 0: mm("V", 6, 0)
            e("v_cvt_pk_bf16_f32 v%d, v%d, v%d" % (q, k, k + 2))
            e("ds_write_b64 v5, v[%d:%d] offset:%d" % (q, q + 1, 512 * T)); lds("W")
        mm("V", 6, 1)
    else:
        for j in (5, 6):
            for T in range(2): mm("V", j, T)
        e("s_nop 1")
        for T in range(2):
            q, k = ACQ + 4 * T, ACK + 4 * T
            e("v_add_f32 v%d, v%d, v%d" % (k, k, k + 1)); e("v_add_f32 v%d, v%d, v%d" % (k + 2, k + 2, k + 3))
            e("v_cvt_pk_bf16_f32 v%d, v%d, v%d" % (q, k, k + 2))
            e("ds_write_b64 v5, v[%d:%d] offset:%d" % (q, q + 1, 512 * T)); lds("W")
    for j in (7, 8):
        for T in range(2): mm("V", j, T)
    wait_all()
    e("s_barrier")
    stamp("B1", True)
    X, KT0 = 12, 40
    for ks in range(4):
        for a in range(2): e("ds_read_b64_tr_b16 v[%d:%d], v6 offset:%d" % (X + 4 * ks + 2 * a, X + 4 * ks + 2 * a + 1, QKX_L + 1024 * ks + 512 * a))
        lds(("X", ks), 2)
        if ks == 1: mm("V", 9, 0)
        if ks == 3: mm("V", 9, 1)
    if not TW & 2:
        for ks in range(4): e("ds_read_b128 v[%d:%d], v1 offset:%d" % (KT0 + 4 * ks, KT0 + 3 + 4 * ks, KXC + 1024 * ks)); lds("K0")
        e("v_add_u32 v11, s47, v1")
        e("ds_read_b128 v[32:35], v11"); e("ds_read_b128 v[36:39], v11 offset:1024"); lds("VX", 2)
    else: e("v_add_u32 v11, s47, v1")
    stamp(3)
    S2, S0, S1 = 28, 64, 68
    for ks in range(4):
        wait_for(("X", ks))
        e("%s v[%d:%d], %s, %s, %s" % (MF32, S2, S2 + 3, vr(TMP + 4 * ks, 4), vr(X + 4 * ks, 4), "0" if ks == 0 else vr(S2, 4)))
        if TW & 2:
            e("ds_read_b128 v[%d:%d], v1 offset:%d" % (KT0 + 4 * ks, KT0 + 3 + 4 * ks, KXC + 1024 * ks)); lds("K0")
    if TW & 2:
        e("ds_read_b128 v[32:35], v11"); e("ds_read_b128 v[36:39], v11 offset:1024"); lds("VX", 2)
    for ks in range(4):
        e("%s v[%d:%d], %s, %s, %s" % (MF32, S0, S0 + 3, vr(X + 4 * ks, 4), vr(X + 4 * ks, 4), "0" if ks == 0 else vr(S0, 4)))
    wait_all()
    if KVPOS in (4, 5): e("s_mov_b32 m0, s50"); e("s_barrier")
    VM = 76
    for ks in range(4):
        e("%s v[%d:%d], %s, %s, %s" % (MF32, S1, S1 + 3, vr(KT0 + 4 * ks, 4), vr(X + 4 * ks, 4), "0" if ks == 0 else vr(S1, 4)))
        if KVPOS == 4 or (KVPOS == 5 and ks >= 2): e("buffer_load_dwordx4 v1, s[4:7], s46 offen offset:%d%s lds" % (1024 * ks, KVSC))
        if ks < 2:
            v = ACV + 4 * ks
            e("v_add_f32 v%d, v%d, v%d" % (v, v, v + 1)); e("v_add_f32 v%d, v%d, v%d" % (v + 2, v + 2, v + 3))
        else:
            v = ACV + 4 * (ks - 2)
            e("v_cvt_pk_bf16_f32 v%d, v%d, v%d" % (VM + 2 * (ks - 2), v, v + 2)); e("v_mov_b32 v%d, 0" % (VM + 1 + 2 * (ks - 2)))
    if not par:
        e("s_cmp_eq_u32 s32, 63"); e("s_cbranch_scc1 L_rec_last")
    fload(A, 40, 7, 0); fload(A, 48, 7, 1); lds("O4", 4)
    e("v_max3_f32 v11, v%d, v%d, v%d" % (S2, S2 + 1, S2 + 2)); e("v_max3_f32 v11, v11, v%d, v%d" % (S2 + 3, S0))
    P1, P0, ONES, OA, LS = 12, 16, 20, 56, 24
    e("v_max3_f32 v11, v11, v%d, v%d" % (S0 + 1, S1)); e("v_max3_f32 v11, v11, v%d, v%d" % (S1 + 1, S1 + 2))
    e("v_max_f32 v11, v11, v%d" % (S1 + 3)); e("v_mov_b32 v66, v11")
    e("v_mov_b32 v%d, 0x3f803f80" % ONES); e("v_mov_b32 v%d, 0x3f803f80" % (ONES + 1))
    e("v_permlane16_swap_b32 v11, v66"); e("v_max_f32 v11, v11, v66"); e("v_mov_b32 v66, v11")
    e("v_mov_b64 v[%d:%d], v[%d:%d]" % (ONES + 2, ONES + 3, ONES, ONES + 1)); e("v_mov_b32 v%d, 0" % (P0 + 1))
    e("v_permlane32_swap_b32 v11, v66"); e("v_max_f32 v11, v11, v66")
    e("v_mul_f32 v11, s51, v11")
    vals = [S0, S0 + 1] + [S1 + i for i in range(4)] + [S2 + i for i in range(4)]
    for i, v in enumerate(vals):
        e("v_fma_f32 v%d, v%d, s51, -v11" % (v, v))
        if i >= 1: e("v_exp_f32 v%d, v%d" % (vals[i - 1], vals[i - 1]))
        if i == 3: e("v_cvt_pk_bf16_f32 v%d, v%d, v%d" % (P0, S0, S0 + 1))
        if i == 5:
            e("v_cvt_pk_bf16_f32 v%d, v%d, v%d" % (P1, S1, S1 + 1))
            e("%s v[%d:%d], %s, %s, 0" % (MF16, LS, LS + 3, vr(ONES, 2), vr(P0, 2)))
        if i == 6: e("%s v[%d:%d], %s, %s, 0" % (MF16, OA, OA + 3, vr(VM, 2), vr(P0, 2)))
        if i == 7:
            e("v_cvt_pk_bf16_f32 v%d, v%d, v%d" % (P1 + 1, S1 + 2, S1 + 3))
            e("%s v[%d:%d], %s, %s, 0" % (MF16, OA + 4, OA + 7, vr(VM + 2, 2), vr(P0, 2)))
    e("v_exp_f32 v%d, v%d" % (vals[9], vals[9]))
    e("v_cvt_pk_bf16_f32 v%d, v%d, v%d" % (P1 + 2, S2, S2 + 1)); e("v_cvt_pk_bf16_f32 v%d, v%d, v%d" % (P1 + 3, S2 + 2, S2 + 3))
    stamp(4)
    e("s_nop 1")
    stamp("vx", True)
    e("%s v[%d:%d], %s, %s, %s" % (MF32, LS, LS + 3, vr(ONES, 4), vr(P1, 4), vr(LS, 4)))
    for T in range(2): e("%s v[%d:%d], %s, %s, %s" % (MF32, OA + 4 * T, OA + 4 * T + 3, vr(VXR + 4 * T, 4), vr(P1, 4), vr(OA + 4 * T, 4)))
    WA = 12
    zero(12, 24)
    e("v_rcp_f32 v11, v%d" % LS)

    e("s_mov_b32 exec_lo, 0xcccccccc"); e("s_mov_b32 exec_hi, 0xcccccccc")
    for T in range(2):
        o = OA + 4 * T
        for i in range(4): e("v_mul_f32 v%d, v%d, v11" % (o + i, o + i))
        e("v_cvt_pk_bf16_f32 v%d, v%d, v%d" % (o, o, o + 1)); e("v_cvt_pk_bf16_f32 v%d, v%d, v%d" % (o + 1, o + 2, o + 3))
        e("ds_write_b64 v7, v[%d:%d] offset:%d" % (o, o + 1, 32 * T)); lds("W")
    e("s_mov_b64 exec, -1")
    fload(A, 32, 6, 0); fload(A, 64, 6, 1); lds("O3", 4)
    zero(24, 32)
    if KVPOS == 5:
        for i in range(2): e("buffer_load_dwordx4 v1, s[4:7], s46 offen offset:%d%s lds" % (1024 * i, KVSC))
    wait_for("W")
    stamp("preB2", True)
    e("s_barrier")
    stamp("B2", True)
    OF = 56
    for ks in range(2): e("ds_read_b128 v[%d:%d], v8 offset:%d" % (OF + 4 * ks, OF + 3 + 4 * ks, 128 * ks)); lds(("OF", ks))
    if KVPOS == 1:
        e("s_mov_b32 m0, s50"); e("s_nop 0")
        for i in range(4): e("buffer_load_dwordx4 v1, s[4:7], s46 offen offset:%d%s lds" % (1024 * i, KVSC))
    stamp(5)
    WF = {(4, 0): vr(40, 8), (4, 1): vr(48, 8), (3, 0): vr(32, 8), (3, 1): vr(64, 8)}
    for t in range(3):
        for ks in range(2): WF[(t, ks)] = FR(FX("O", t, ks))
    wait_for(("OF", 0))
    smf(WA + 16, OF, WF[(4, 0)])
    wait_for(("OF", 1))
    smf(WA + 16, OF + 4, WF[(4, 1)])
    tagop = (lambda d: "v_or_b32 v%d, 1, v%d" % (d, d)) if par else (lambda d: "v_and_b32 v%d, -2, v%d" % (d, d))
    def packl(t, dst):
        d = WA + 4 * t
        return ["v_add_f32 v%d, v%d, v%d" % (d, d, d + 1), "v_add_f32 v%d, v%d, v%d" % (d + 2, d + 2, d + 3),
                "v_cvt_pk_bf16_f32 v%d, v%d, v%d" % (dst, d, d + 2), tagop(dst)]
    for t in (0, 1, 2):
        for ks in range(2): smf(WA + 4 * t, OF + 4 * ks, WF[(t, ks)])
    e("s_nop 1")
    p4 = packl(4, 44)
    e(p4[0]); e(p4[1]); smf(WA + 12, OF, WF[(3, 0)]); e(p4[2]); e(p4[3]); smf(WA + 12, OF + 4, WF[(3, 1)])
    e("buffer_store_dword v44, v9, s[4:7], s44 offen%s" % sc)
    for t in range(4):
        for x in packl(t, 40 + t): e(x)
    e("buffer_store_dwordx4 v[40:43], v9, s[4:7], s43 offen%s" % sc)
    stamp(6)
    if team == 1:
        e("v_add_u32 v11, s56, v0")
        e("ds_write_b32 v11, v%d offset:%d" % (VM, QKX_L)); e("ds_write_b32 v11, v%d offset:%d" % (VM + 2, QKX_L + 256))
    e("s_add_u32 s38, s38, 5120"); e("s_add_u32 s39, s39, 16384"); e("s_add_u32 s40, s40, 16384")
    e("ds_read_b128 v[28:31], v1 offset:%d" % SEL_L)
    if not WARM: zero(ACQ, ACQ + 24)
    nored = A.newlabel("Lnored"); join = A.newlabel("Ljoin")
    e("s_cmp_ge_u32 s42, 40"); e("s_cbranch_scc1 %s" % nored)
    if d_red: e("s_sleep %d" % d_red)
    op = "v_bitop3_b32 v11, v11, v%d, v%d bitop3:0x80" if par else "v_or3_b32 v11, v11, v%d, v%d"
    RA, RB = 64, 12
    def rload(b):
        for j in range(4): e("buffer_load_dwordx4 v[%d:%d], v1, s[4:7], s45 offen offset:%d sc1" % (b + 4 * j, b + 3 + 4 * j, 1024 * j))
        if instr: e("s_add_u32 s91, s91, 1")
    def rcheck(b):
        e("v_mov_b32 v11, %d" % par)
        for j in range(4):
            e("s_waitcnt vmcnt(%d)" % (7 - j))
            e("%s v[32:35], v[28:31], %s, %s" % (MF32, vr(b + 4 * j, 4), "0" if j == 0 else "v[32:35]"))
            e(op % (b + 4 * j, b + 4 * j + 1)); e(op % (b + 4 * j + 2, b + 4 * j + 3))
        e("v_and_b32 v11, 1, v11")
        e("v_cmp_ne_u32 vcc, %d, v11" % par)
    rload(RA)
    if WARM:
        e("s_waitcnt lgkmcnt(0)")
        for r in range(ACQ, ACQ + 10): e("v_mov_b32 v%d, 0" % r)
        for j in range(4):
            e("buffer_load_dwordx4 v[%d:%d], v1, s[4:7], s45 offen offset:%d sc1" % (RB + 4 * j, RB + 3 + 4 * j, 1024 * j))
            e("v_mov_b32 v%d, 0" % (ACQ + 10 + j))
        for r in range(ACQ + 14, ACQ + 24):
            e("v_mov_b32 v%d, 0" % r)
            if WARM > 1: e("s_nop %d" % (WARM - 2))
    else:
        if D_GAP: e("s_sleep %d" % D_GAP)
        rload(RB)
        e("s_waitcnt lgkmcnt(0)")
    lpd = A.newlabel("Lrd"); okd = A.newlabel("Lrdok"); red2 = A.newlabel("Lrd2")
    A.label(lpd)
    rcheck(RA); e("s_cbranch_vccnz %s" % red2)
    A.label(okd)
    e("s_nop 2")
    for i in range(4): e("v_add_f32_dpp v%d, v%d, v%d row_ror:8 row_mask:0xf bank_mask:0xf" % (36 + i, 32 + i, 32 + i))
    e("s_mov_b32 exec_lo, 0x00ff00ff"); e("s_mov_b32 exec_hi, 0")
    e("v_cvt_pk_bf16_f32 v32, v36, v37"); e("v_cvt_pk_bf16_f32 v33, v38, v39")
    e("v_min_u32 v32, -2, v32"); e("v_min_u32 v33, -2, v33")
    e("buffer_store_dwordx2 v[32:33], v10, s[4:7], s38 offen%s" % sc)
    e("buffer_store_dwordx2 v[32:33], v10, s[4:7], s40 offen sc1")
    e("s_mov_b64 exec, -1")
    A.label(join)
    stamp(7)
    e("s_barrier")
    stamp(8)
    e("s_add_u32 s32, s32, 1")
    def ool():
        A.label(red2)
        rload(RA)
        rcheck(RB); e("s_cbranch_vccz %s" % okd); rload(RB)
        spin()
        e("s_branch %s" % lpd)
        A.label(re)
        if DG:
            gl5()
            spin()
            e("s_nop 7")
            zero(ACQ, ACQ + 16)
            e("s_waitcnt vmcnt(0) lgkmcnt(0)")
            e("s_branch %s" % lp)
        else:
            gl_load(GA, 38)
            if instr: e("s_add_u32 s90, s90, 1")
            e("s_waitcnt vmcnt(2)"); gl_check(GB); e("s_cbranch_vccz %s" % okB)
            gl_load(GB, 38)
            if instr: e("s_add_u32 s90, s90, 1")
            spin()
            e("s_waitcnt vmcnt(2)")
            e("s_branch %s" % lp)
            A.label(okB); gl_write(GB, 0); e("s_branch %s" % ok)
        A.label(rer)
        gl_load(GG, 39)
        if instr: e("s_add_u32 s92, s92, 1")
        spin()
        e("s_waitcnt vmcnt(0)")
        e("s_branch %s" % lpr)
        A.label(nored)
        e("s_waitcnt lgkmcnt(0)")
        e("s_branch %s" % join)
        for f in extra: f()
    return ool

def gen(**kw):
    A = Asm()
    A.raw("; @launch kernel=rec_kernel grid=(256,1,1) block=(256,1,1) lds=163840")
    A.raw('.amdgcn_target "amdgcn-amd-amdhsa--gfx950"')
    A.raw(".text")
    kernel_header(A, "rec_kernel")
    A.e("s_cmp_ge_u32 s2, 256"); A.e("s_cbranch_scc1 L_end")
    emit_rec(A, **kw)
    A.label("L_end")
    A.e("s_endpgm")
    A.raw('.section .rodata,"a"'); A.raw(".p2align 6")
    A.raw(kernel_desc("rec_kernel", 512, 102, 256))
    return A.text()

if __name__ == "__main__":
    import sys
    for spec in sys.argv[1:]:
        d1, dr, ra, ins = map(int, spec.split(","))
        DIS = d1 >> 4; d1 &= 15
        NEARSEL = 1 if DIS & 32 else None
        KVSC = " sc1" if DIS & 8 else ""
        PUBSC = " sc1" if DIS & 16 else ""
        D_GAP = ra % 10; KVPOS = (ra // 10) % 10; DG = (ra // 100) % 10; GRAT = ra // 1000
        mr = ALIGN; ALIGN = 0
        txt = gen(instr=ins, d_first=d1, d_red=dr)
        if mr == 9:
            ALIGN = 2; txt = gen(instr=ins, d_first=d1, d_red=dr)
        elif mr:
            import aligner
            txt, st = aligner.align(txt, [("L_loop_fast0", "L_ool_fast0"), ("L_loop_fast1", "L_ool_fast1")], minrun=mr); print(st)
        open("rec_%d_%d_%d_%d.s" % (d1 + 16 * DIS, dr, ra, ins), "w").write(txt)
```

```python
import sys
from asmlib import *
from layout import *
import gen_g1, gen_rec, gen_att, gen_g2s
from gen_g1 import srd
NAME = "recurrent_scan__memory_aug_recurrent_mem_tr__glu_gated_swiglu__prompt"
HEAD = open("cdna_kernels/%s.s.ref" % NAME).read().split("; Override launch")[0]
LIM = 60000
DOC = """
One persistent launch, 256 workgroups (one per CU), roles chosen at run time from the die id each workgroup reads:
  * 2 x 32 'team' workgroups run the 64-step memory recurrence, one head per CU, weights resident in registers / LDS
    (2:4-sparse MFMA packs the 8 memory tokens into 16 rows).  Both teams compute q/k/v + attention of the memory tokens;
    team x owns output columns 320x..320x+319 of Wo.  Hand-offs are validated per dword (tag bit / sentinel).  Inside a team they
    use plain stores only when the hardware die ids show that the whole team sits on one die; otherwise (any other placement)
    the 'slow' loops use write-through stores, so the result never depends on placement.
  * 192 workers: LayerNorm + Q/K/V/FFN-up GEMM, then 32 of them do the attention of the sequence tokens and 160 the
    Wo / w2 GEMMs + gating epilogue, each segment as soon as the recurrence has produced its memory keys / values.
Every s_sleep below is the back-off of a bounded polling loop (or the wait before its first poll).
"""

SL1 = 40
def poll(A, srdname, soff, voff_imm, shift, target, vtmp, sleep=8, tail=None):
    e = A.e
    lp = A.newlabel("Lp"); ok = A.newlabel("Lpok")
    A.label(lp)
    e("v_mov_b32 v%d, 0" % vtmp)
    e("buffer_load_dword v%d, v%d, %s, %s offen offset:%d sc1" % (vtmp, vtmp, srdname, soff, voff_imm)); e("s_waitcnt vmcnt(0)")
    e("v_readfirstlane_b32 s68, v%d" % vtmp); e("s_nop 3")
    for (sh, tg) in zip(shift, target):
        e("s_bfe_u32 s69, s68, 0x%x" % ((10 << 16) | sh)); e("s_cmp_lt_u32 s69, %d" % tg); e("s_cbranch_scc1 %s_n" % lp)
    e("s_branch %s" % ok)
    A.label(lp + "_n")
    e("s_add_u32 s74, s74, 1"); e("s_cmp_gt_u32 s74, %d" % LIM); e("s_cbranch_scc1 L_wabort")
    e("s_sleep %d" % sleep)
    if tail:
        e("s_cmp_ge_u32 s47, %d" % tail); e("s_cbranch_scc1 %s" % lp); e("s_sleep 64")
    e("s_branch %s" % lp)
    A.label(ok)

def poll_prog(A, segreg, vtmp, head=None):
    e = A.e
    lp = A.newlabel("Lpp"); ok = A.newlabel("Lppok"); done = A.newlabel("Lppd")
    e("s_min_u32 s75, s%d, %d" % (segreg, 60 if head is None else 57))
    A.label(lp)
    e("v_mov_b32 v%d, 0" % vtmp); e("s_mov_b32 s69, 0x%x" % CT_OFF)
    e("buffer_load_dword v%d, v%d, s[4:7], s69 offen sc1" % (vtmp, vtmp)); e("s_waitcnt vmcnt(0)")
    e("v_readfirstlane_b32 s68, v%d" % vtmp); e("s_nop 3")
    e("s_cmp_gt_u32 s68, s75"); e("s_cbranch_scc1 %s" % ok)
    e("s_add_u32 s74, s74, 1"); e("s_cmp_gt_u32 s74, %d" % LIM); e("s_cbranch_scc1 L_wabort")
    e("s_sleep 8")
    e("s_cmp_ge_u32 s68, s75"); e("s_cbranch_scc1 %s" % lp)
    e("s_sleep %d" % SL1); e("s_branch %s" % lp)
    A.label(ok)
    if head is not None:
        e("s_cmp_gt_u32 s68, s%d" % segreg); e("s_cbranch_scc1 %s" % done)
        lf = A.newlabel("Lpf")
        A.label(lf)
        e("v_mov_b32 v%d, 0" % vtmp); e("s_lshl_b32 s69, s%d, 7" % head); e("s_add_u32 s69, s69, 0x%x" % (CT_OFF + 128))
        e("buffer_load_dwordx2 v[%d:%d], v%d, s[4:7], s69 offen sc1" % (vtmp, vtmp + 1, vtmp)); e("s_waitcnt vmcnt(0)")
        e("v_min_u32 v%d, v%d, v%d" % (vtmp, vtmp, vtmp + 1)); e("s_nop 0"); e("v_readfirstlane_b32 s68, v%d" % vtmp); e("s_nop 3")
        e("s_cmp_gt_u32 s68, s%d" % segreg); e("s_cbranch_scc1 %s" % done)
        e("s_add_u32 s74, s74, 1"); e("s_cmp_gt_u32 s74, %d" % LIM); e("s_cbranch_scc1 L_wabort")
        e("s_sleep 4"); e("s_branch %s" % lf)
        A.label(done)

def build(instr=0, d_first=2, d_red=3, listform=False):
    A = Asm(); e = A.e
    A.raw(HEAD.rstrip())
    if listform: A.raw("; @launch kernel=%s_kernel grid=(256,1,1) block=(256,1,1) lds=163840" % NAME)
    else: A.raw("; @launch grid=(256,1,1) block=(256,1,1) lds=163840")
    for l in DOC.strip("\n").split("\n"): A.raw("; " + l)
    A.raw('.amdgcn_target "amdgcn-amd-amdhsa--gfx950"')
    A.raw(".text")
    kernel_header(A, NAME + "_kernel")
    e("s_cmp_ge_u32 s2, 256"); e("s_cbranch_scc1 L_end")
    gen_rec.MEGA = True; gen_rec.PUBSC = " sc1"; gen_rec.KVSC = " sc1"
    gen_rec.emit_rec(A, instr=instr, d_first=d_first, d_red=d_red, worker_label="L_worker")
    e("s_branch L_end")
    A.label("L_worker")
    e("s_mov_b32 s26, s28")
    e("s_sub_u32 s70, s55, 64")
    e("s_mov_b32 s64, s24"); e("s_mov_b32 s65, s25"); e("s_mov_b32 s66, 256"); e("s_mov_b32 s67, 0x20000")
    e("s_load_dwordx2 s[54:55], s[0:1], 0")
    e("s_load_dwordx4 s[16:19], s[0:1], 16")
    e("s_load_dwordx2 s[20:21], s[0:1], 32")
    e("s_load_dwordx4 s[56:59], s[0:1], 64")
    e("s_load_dwordx2 s[62:63], s[0:1], 40")
    e("s_waitcnt lgkmcnt(0)")
    e("s_mov_b64 s[22:23], s[56:57]"); e("s_mov_b64 s[24:25], s[58:59]")
    srd(e, 8, 54, 2621440)
    e("s_and_b32 s27, s70, 3"); e("s_lshr_b32 s28, s70, 2"); e("s_sub_u32 s28, 47, s28")
    tick(A, 1, 12, 26); e("s_mov_b32 s99, 0")
    gen_g1.emit_g1(A, NPART=48, mega=True, NT=4)
    tick(A, 30, 12, 26)
    dtick(A, 12, 12, 's[64:67]')
    poll(A, "s[64:67]", "0", DBG_INIT, [0], [64], 11)
    e("s_mul_i32 s33, s70, 171"); e("s_lshr_b32 s71, s33, 10")
    e("s_mul_i32 s33, s71, 6"); e("s_sub_u32 s72, s70, s33")
    e("s_cmp_eq_u32 s72, 5"); e("s_cbranch_scc1 L_att_role")
    e("s_load_dwordx2 s[54:55], s[0:1], 40")
    e("s_load_dwordx4 s[56:59], s[0:1], 80")
    e("s_mul_i32 s33, s71, 5"); e("s_add_u32 s33, s33, s72")
    e("s_mul_i32 s47, s33, 205"); e("s_lshr_b32 s47, s47, 12")
    e("s_mul_i32 s34, s47, 20"); e("s_sub_u32 s28, s33, s34")
    e("s_waitcnt lgkmcnt(0)")
    srd(e, 16, 58, 2621440); srd(e, 12, 56, 1728 * 1280); srd(e, 20, 54, 5242880)
    e("s_barrier")
    gen_g2s.emit_g2s_prologue(A)
    tick(A, 31, 12, 26)
    A.label("L_g2_loop")
    def waitH():
        e("s_lshr_b32 s41, s47, 3"); e("s_lshl_b32 s41, s41, 2")
        poll(A, "s[64:67]", "s41", DBG_G1, [20], [56], 11, sleep=32)
    def waitO():
        e("s_lshr_b32 s41, s47, 1")
        e("s_cmp_lg_u32 s26, 0"); e("s_cbranch_scc1 L_g2_nopoll")
        poll_prog(A, 41, 10)
        e("s_lshl_b32 s41, s41, 7"); e("s_add_u32 s41, s41, 0x%x" % (CT_OFF + 0x2000))
        poll(A, "s[4:7]", "s41", 0, [0], [32], 11, sleep=4)
        A.label("L_g2_nopoll")
        e("s_barrier")
    gen_g2s.emit_g2s_task(A, waitH, waitO, " sc1")
    if TICK["on"]:
        e("s_lshr_b32 s99, s47, 4"); tick(A, 32, 14, 26, 99)
    e("s_add_u32 s47, s47, 8"); e("s_cmp_lt_u32 s47, 128"); e("s_cbranch_scc1 L_g2_loop")
    dtick(A, 14, 14, 's[64:67]')
    e("s_branch L_end")
    A.label("L_att_role")
    gen_att.emit_att_setup(A)
    e("v_lshrrev_b32 v0, 6, v0")
    e("s_mov_b32 s47, s73")
    A.label("L_att_loop")
    e("s_lshl_b32 s30, s71, 6"); e("s_add_u32 s30, s30, s47")
    def waitQ():
        e("s_lshr_b32 s44, s47, 2"); e("s_lshl_b32 s44, s44, 2")
        poll(A, "s[64:67]", "s44", DBG_G1, [0, 10], [128, 64], 15, sleep=32)
    def waitM():
        poll_prog(A, 47, 14, head=71)
    gen_att.emit_att(A, " sc1", waitQ, waitM)
    tick(A, 42, 8, 73)
    e("s_waitcnt vmcnt(0)")
    e("s_lshl_b32 s44, s47, 7"); e("s_add_u32 s44, s44, 0x%x" % (CT_OFF + 0x2000))
    e("s_mov_b64 exec, 1"); e("v_mov_b32 v15, 1")
    e("buffer_atomic_add v15, v0, s[4:7], s44 offen sc1")
    e("s_mov_b64 exec, -1")
    if TICK["on"]:
        e("s_lshr_b32 s99, s47, 2"); tick(A, 44, 8, 73, 99)
    e("s_add_u32 s47, s47, 4"); e("s_cmp_lt_u32 s47, 64"); e("s_cbranch_scc1 L_att_loop")
    dtick(A, 13, 8, 's[64:67]')
    e("s_branch L_end")
    A.label("L_wabort")
    e("s_mov_b64 exec, 1"); e("v_mov_b32 v0, %d" % (DBG_ABORT + 4)); e("v_mov_b32 v11, 1")
    e("buffer_store_dword v11, v0, s[64:67], 0 offen")
    A.label("L_end"); e("s_endpgm")
    A.raw('.section .rodata,"a"'); A.raw(".p2align 6")
    A.raw(kernel_desc(NAME + "_kernel", 512, 102, 256))
    txt = A.text()
    import re
    txt = re.sub(r"(\n    s_sleep \d+)\n", r"\1                      ; poll back-off\n", txt)
    return txt.replace("    s_mov_b32 s26, s28\n", "    s_mov_b32 s26, s28\n    s_mov_b32 s73, s28\n", 1)
if __name__ == "__main__":
    open("cdna_kernels/%s.s" % NAME, "w").write(build())
    open("mega_list.s", "w").write(build(listform=True))
    open("mega_3.s", "w").write(build(listform=True, instr=3))
    import aligner
    for al in (0, 1, 2):
        gen_rec.ALIGN = al
        open("mega_al%d_4.s" % al, "w").write(build(listform=True, instr=4))
    gen_rec.ALIGN = 0
    for mr in (5, 8):
        txt, st = aligner.align(build(listform=True, instr=4), [("L_loop_fast0", "L_ool_fast0"), ("L_loop_fast1", "L_ool_fast1")], minrun=mr)
        open("mega_mr%d_4.s" % mr, "w").write(txt)
    gen_rec.FAKEXCC = 40
    open("mega_fake.s", "w").write(build(listform=True))
    gen_rec.FAKEXCC = 0
    DTICK["on"] = True
    open("dtick.s", "w").write(build())
    DTICK["on"] = False
    TICK["on"] = True
    open("mega_tick.s", "w").write(build(listform=True))
```
